```python
import torch

def _softmax(x, axis=-1):
    return torch.softmax(x, dim=axis)
def _gelu(x):
    return torch.nn.functional.gelu(x, approximate="tanh")
def _silu(x):
    return torch.nn.functional.silu(x)
def _sigmoid(x):
    return torch.sigmoid(x)
def _layernorm(x, axis=-1, eps=1e-5):
    m = x.mean(dim=axis, keepdim=True)
    v = x.var(dim=axis, keepdim=True, unbiased=False)
    return (x - m) / torch.sqrt(v + eps)
def _scatter_add(tgt, idx, src, axis=0):
    return tgt.clone().index_add_(axis, idx, src)
def _segment_sum(src, seg, n):
    out = torch.zeros((n,) + src.shape[1:], dtype=src.dtype)
    return out.index_add_(0, seg, src)
def _pad(x, pw):
    flat = tuple(v for pair in reversed(pw) for v in pair)
    return torch.nn.functional.pad(x, flat)

kernel_name = 'sequential_preLN__sliding_local_dilated__glu_gated_reglu__prompt'

def setup_inputs():

    _w = (lambda a: (lambda t: t.to(torch.bfloat16) if t.is_floating_point() else t)(torch.as_tensor(a)))
    def _A_setup():
        B, S, D = 1, 2048, 512
        return {
            "x": _w((lambda *s: torch.randn(*s, dtype=torch.bfloat16) * 0.05)(B, S, D)),
            "wqkv": _w((lambda *s: torch.randn(*s, dtype=torch.bfloat16) * 0.05)(D, 3 * D)),
            "wo": _w((lambda *s: torch.randn(*s, dtype=torch.bfloat16) * 0.05)(D, D)),
        }
    _A_in = _A_setup()

    def _B_setup():
        B, S, D, F = 1, 2048, 512, 1376
        return {
            "x": _w((lambda *s: torch.randn(*s, dtype=torch.bfloat16) * 0.05)(B, S, D)),
            "W_gate": _w((lambda *s: torch.randn(*s, dtype=torch.bfloat16) * 0.8)(D, F) * (2.0 / D) ** 0.5),
            "W_up": _w((lambda *s: torch.randn(*s, dtype=torch.bfloat16) * 0.8)(D, F) * (2.0 / D) ** 0.5),
            "W_down": _w((lambda *s: torch.randn(*s, dtype=torch.bfloat16) * 0.8)(F, D) * (1.0 / F) ** 0.5),
        }
    _B_in = _B_setup()

    return {
        "A_x": _A_in["x"],
        "A_wqkv": _A_in["wqkv"],
        "A_wo": _A_in["wo"],
        "B_x": _B_in["x"],
        "B_W_gate": _B_in["W_gate"],
        "B_W_up": _B_in["W_up"],
        "B_W_down": _B_in["W_down"],
    }

def reference(A_x, A_wqkv, A_wo, B_x, B_W_gate, B_W_up, B_W_down):
    def _A_ref(x, wqkv, wo):
        B, S, D = x.shape
        H = 32; Dh = D // H
        W, dil = 8, 2
        qkv = (lambda x, *d: x.permute(*d))((x @ wqkv).reshape(B, S, 3, H, Dh), 2, 0, 3, 1, 4)
        q, k, v = qkv[0], qkv[1], qkv[2]
        scale = Dh ** -0.5
        pos = torch.arange(S)
        off = torch.arange(W) * dil
        idx = pos[:, None] - off[None, :]
        mask = idx >= 0
        idx_c = torch.where(mask, idx, 0).reshape(-1)
        kg = k[:, :, idx_c, :].reshape(B, H, S, W, Dh)
        vg = v[:, :, idx_c, :].reshape(B, H, S, W, Dh)
        logits = torch.einsum("bhsd,bhswd->bhsw", q, kg) * scale
        logits = torch.where(mask[None, None, :, :], logits, -1e9)
        attn = _softmax(logits, axis=-1)
        o = torch.einsum("bhsw,bhswd->bhsd", attn, vg)
        return (lambda x, *d: x.permute(*d))(o, 0, 2, 1, 3).reshape(B, S, D) @ wo

    def _B_ref(x, W_gate, W_up, W_down):
        gate = torch.einsum("bsd,df->bsf", x, W_gate)
        up = torch.einsum("bsd,df->bsf", x, W_up)
        gate = gate * (lambda x, dt: x.to(dt))(gate > 0, gate.dtype)
        h = gate * up
        return torch.einsum("bsf,fd->bsd", h, W_down)

    x = A_x
    h = x + _A_ref(_layernorm(x, axis=-1), A_wqkv, A_wo)
    h2 = h + _B_ref(_layernorm(h, axis=-1), B_W_gate, B_W_up, B_W_down)
    return h2
```

```python
import re

def v(i, n=1):
    return f"v{i}" if n == 1 else f"v[{i}:{i+n-1}]"
def a(i, n=1):
    return f"a{i}" if n == 1 else f"a[{i}:{i+n-1}]"
def s(i, n=1):
    return f"s{i}" if n == 1 else f"s[{i}:{i+n-1}]"
def R(i, n=1):
    if i >= 256:
        assert i + n <= 512
        return a(i - 256, n)
    assert i + n <= 256, (i, n)
    return v(i, n)

_REG = re.compile(r'\b([vas])(?:(\d+)\b|\[(\d+):(\d+)\])')

def regs_of(tok):
    out = []
    t = tok.strip()
    if t in ('vcc',):
        return [('c', 0), ('c', 1)]
    if t in ('vcc_lo',): return [('c', 0)]
    if t in ('vcc_hi',): return [('c', 1)]
    if t == 'exec': return [('e', 0), ('e', 1)]
    if t == 'exec_lo': return [('e', 0)]
    if t == 'exec_hi': return [('e', 1)]
    if t == 'm0': return [('m', 0)]
    for m in _REG.finditer(t):
        k = m.group(1)
        if m.group(2) is not None:
            out.append((k, int(m.group(2))))
        else:
            out += [(k, i) for i in range(int(m.group(3)), int(m.group(4)) + 1)]
    return out

TRANS = ('v_exp_f32', 'v_log_f32', 'v_rcp_f32', 'v_rsq_f32', 'v_sqrt_f32', 'v_sin_f32', 'v_cos_f32')

class Ins:
    __slots__ = ('text', 'op', 'wr', 'rd', 'cls', 'passes', 'srcC', 'srcAB', 'dpp', 'states', 'wide_store', 'sdata')
    def __init__(self, text):
        self.text = text
        body = text.split(';')[0].strip()
        parts = body.split(None, 1)
        op = parts[0]
        self.op = op
        opstr = parts[1] if len(parts) > 1 else ''
        ops = []
        depth = 0; cur = ''
        for ch in opstr:
            if ch in '[(': depth += 1
            if ch in '])': depth -= 1
            if ch == ',' and depth == 0:
                ops.append(cur); cur = ''
            else:
                cur += ch
        if cur.strip(): ops.append(cur)
        def first_tok(x):
            x = x.strip()
            return x.split(' ')[0] if not x.startswith('hwreg') else ''
        toks = [first_tok(o) for o in ops]
        self.wr = []; self.rd = []; self.passes = 0; self.srcC = []; self.srcAB = []
        self.dpp = ('row_' in body or 'quad_perm' in body or '_dpp' in op)
        self.states = 1; self.wide_store = False; self.sdata = []
        if op == 's_nop':
            self.cls = 'nop'; self.states = int(toks[0], 0) + 1; return
        if op.startswith('v_mfma'):
            self.cls = 'mfma'
            self.passes = 8 if '32x32' in op else 4
            self.wr = regs_of(toks[0]); self.srcAB = regs_of(toks[1]) + regs_of(toks[2]); self.srcC = regs_of(toks[3])
            self.rd = self.srcAB + self.srcC
            return
        if op.startswith('v_'):
            self.cls = 'valu'
            if op.startswith('v_cmp'):
                self.wr = regs_of(toks[0]); self.rd = sum((regs_of(t) for t in toks[1:]), [])
                if op.startswith('v_cmpx'): self.wr += [('e', 0), ('e', 1)]
            elif op.startswith('v_permlane') and 'swap' in op:
                self.wr = regs_of(toks[0]) + regs_of(toks[1]); self.rd = list(self.wr)
            elif op.startswith(('v_add_co', 'v_sub_co', 'v_subrev_co', 'v_addc_co', 'v_subb_co')):
                self.wr = regs_of(toks[0]) + regs_of(toks[1]); self.rd = sum((regs_of(t) for t in toks[2:]), [])
            else:
                self.wr = regs_of(toks[0]); self.rd = sum((regs_of(t) for t in toks[1:]), [])
                if op.startswith(('v_fmac', 'v_dot2c', 'v_pk_fmac')) or self.dpp:
                    self.rd += regs_of(toks[0])
            return
        if op.startswith('ds_'):
            self.cls = 'lds'
            if op.startswith(('ds_read', 'ds_bpermute', 'ds_permute', 'ds_swizzle')):
                self.wr = regs_of(toks[0]); self.rd = sum((regs_of(t) for t in toks[1:]), [])
            else:
                self.rd = sum((regs_of(t) for t in toks), [])
            return
        if op.startswith(('buffer_', 'global_', 'flat_')):
            self.cls = 'vmem'
            is_lds = bool(re.search(r'\blds\b', body)) or '_lds_' in op
            if 'load' in op and not is_lds:
                self.wr = regs_of(toks[0]); self.rd = sum((regs_of(t) for t in toks[1:]), [])
            else:
                self.rd = sum((regs_of(t) for t in toks), [])
                if is_lds: self.rd.append(('m', 0))
                if 'store' in op and ('x4' in op or 'x3' in op):
                    self.wide_store = True
                    self.sdata = regs_of(toks[0]) if op.startswith('buffer_') else regs_of(toks[1])
                if 'atomic' in op and 'sc0' in body:
                    self.wr = regs_of(toks[0])
            return
        if op.startswith('s_'):
            self.cls = 'salu'
            if op.startswith(('s_cmp', 's_bitcmp', 's_cbranch', 's_branch', 's_waitcnt', 's_barrier', 's_endpgm', 's_sleep', 's_setprio', 's_setreg')):
                self.rd = sum((regs_of(t) for t in toks), [])
            else:
                self.wr = regs_of(toks[0]) if toks else []
                self.rd = sum((regs_of(t) for t in toks[1:]), [])
                if 'saveexec' in op: self.wr += [('e', 0), ('e', 1)]
            return
        raise ValueError('unknown instruction class: ' + text)

def need_states(p, c):
    n = 0
    pw = set(p.wr)
    isv = lambda r: r[0] in 'va'
    if p.cls == 'valu':
        vw = {r for r in pw if isv(r)}
        sw = {r for r in pw if r[0] in 'sc'}
        ew = {r for r in pw if r[0] == 'e'}
        if c.cls == 'mfma' and vw & set(c.rd): n = max(n, 2)
        if c.cls == 'mfma' and ew: n = max(n, 4)
        if c.cls == 'valu':
            if c.dpp and vw & set(c.rd): n = max(n, 2)
            if c.dpp and ew: n = max(n, 5)
            if c.op.startswith('v_permlane') and vw & set(c.rd): n = max(n, 2)
            if c.op.startswith('v_permlane') and ew: n = max(n, 4)
            if c.op.startswith(('v_readlane', 'v_readfirstlane')) and vw & set(c.rd): n = max(n, 1)
            if c.op.startswith(('v_readlane', 'v_readfirstlane', 'v_writelane')) and ew: n = max(n, 4)
            if sw & set(c.rd): n = max(n, 4 if c.op.startswith(('v_readlane', 'v_writelane', 'v_div_fmas')) else 2)
            if p.op in TRANS and c.op not in TRANS and vw & set(c.rd): n = max(n, 1)
            if ('op_sel' in p.text and not p.op.startswith('v_pk')) and vw & (set(c.rd) | set(c.wr)): n = max(n, 1)
            if p.op.startswith('v_dot'):
                if vw & (set(c.rd) | set(c.wr)):
                    same_acc = (c.op == p.op) and not (vw & set(c.rd[:2] if False else []))
                    if c.op == p.op:
                        ab = set(c.rd) - set(c.wr)
                        if vw & ab: n = max(n, 3)
                    else:
                        n = max(n, 3)
        if p.op.startswith('v_dot') and c.cls in ('mfma', 'lds', 'vmem') and vw & set(c.rd): n = max(n, 3)
        if c.cls == 'vmem' and sw & set(c.rd): n = max(n, 5)
        if c.cls == 'salu' and sw & set(c.rd): n = max(n, 1)
    if p.cls == 'salu':
        if ('m', 0) in pw and c.cls == 'vmem' and ('m', 0) in c.rd: n = max(n, 1)
    if p.cls == 'mfma':
        big = {4: 8, 8: 12}[p.passes]
        if c.cls == 'mfma':
            if pw & set(c.srcAB): n = max(n, big)
            if pw & set(c.srcC):
                if not (list(p.wr) == list(c.srcC) and p.passes == c.passes):
                    n = max(n, {4: 6, 8: 10}[p.passes])
        elif c.cls in ('valu', 'lds', 'vmem'):
            if pw & (set(c.rd) | set(c.wr)): n = max(n, big)
        if c.cls == 'valu' and set(p.srcC) & set(c.wr): n = max(n, {4: 3, 8: 7}[p.passes])
    if p.cls == 'vmem' and p.wide_store:
        if set(p.sdata) & set(c.wr): n = max(n, 2)
    return n

class Asm:
    def __init__(self):
        self.items = []
    def raw(self, t): self.items.append(('raw', t))
    def label(self, n): self.items.append(('label', n))
    def c(self, t): self.items.append(('raw', '    ; ' + t))
    def __call__(self, text):
        for ln in text.strip().split('\n'):
            ln = ln.strip()
            if ln: self.items.append(('ins', Ins(ln)))
    def finalize(self):
        out = []
        hist = []
        def pad_needed(hist, ins):
            need = 0; dist = 0
            for p in reversed(hist):
                n = need_states(p, ins)
                if n > dist: need = max(need, n - dist)
                dist += p.states
                if dist >= 20: break
            return need
        labels = {}
        for it in self.items:
            if it[0] == 'ins':
                ins = it[1]
                k = pad_needed(hist, ins)
                while k > 0:
                    q = min(k, 16)
                    nop = Ins(f's_nop {q-1}')
                    out.append(('ins', nop)); hist.append(nop); k -= q
                out.append(it); hist.append(ins)
                if len(hist) > 64: hist = hist[-40:]
            else:
                if it[0] == 'label': labels[it[1]] = len(out)
                out.append(it)
        res = []
        for idx, it in enumerate(out):
            if it[0] == 'ins' and it[1].op.startswith(('s_cbranch', 's_branch')):
                tgt = it[1].text.split()[1]
                if tgt in labels:
                    pre = [x[1] for x in out[max(0, idx - 40):idx + 1] if x[0] == 'ins']
                    post = [x[1] for x in out[labels[tgt]:labels[tgt] + 60] if x[0] == 'ins'][:24]
                    h = list(pre); need = 0; extra = 0
                    for ins in post:
                        dist = extra
                        for p in reversed(pre):
                            n = need_states(p, ins)
                            if n > dist: need = max(need, n - dist)
                            dist += p.states
                            if dist >= 20: break
                        extra += ins.states
                        if extra >= 20: break
                    while need > 0:
                        q = min(need, 16)
                        res.append(('ins', Ins(f's_nop {q-1}'))); need -= q
            res.append(it)
        lines = []
        for it in res:
            if it[0] == 'ins': lines.append('    ' + it[1].text)
            elif it[0] == 'label': lines.append(it[1] + ':')
            else: lines.append(it[1])
        return '\n'.join(lines) + '\n'
```

```python
import numpy as np
GSTRIDE = 640 * 1024
O_OFF = 0
H_OFF = 128 * 1024
HH_OFF = 256 * 1024
ST_OFF = 600 * 1024
FL_OFF = 608 * 1024
STAMP_OFF = 16 * GSTRIDE
WS_USED = STAMP_OFF + 256 * 4 * 256

def bf2f(a16): return (a16.astype(np.uint32) << 16).view(np.float32)
def rows_of(G, t8):
    i = np.arange(16)
    return 128 * G + 64 * (t8 >> 2) + 32 * ((t8 >> 1) & 1) + 2 * i + (t8 & 1)
def std_cols(ks):
    g = np.arange(4)[:, None]; e = np.arange(8)[None, :]
    return 32 * ks + 16 * (e >> 2) + 4 * g + (e & 3)
def h_cols(ks):
    g = np.arange(4)[:, None]; e = np.arange(8)[None, :]
    return 64 * (ks >> 1) + 16 * g + 8 * (ks & 1) + e
def unpack(ws, off, nks, colf, ncol):
    out = np.full((2048, ncol), np.nan, np.float32)
    for G in range(16):
        blk = ws[G * GSTRIDE + off: G * GSTRIDE + off + 8 * nks * 1024].view(np.uint16).reshape(8, nks, 4, 16, 8)
        f = bf2f(blk)
        for t8 in range(8):
            r = rows_of(G, t8)
            for ks in range(nks):
                c = colf(ks)
                out[r[None, :, None], c[:, None, :]] = f[t8, ks]
    return out
def unpack_o(ws): return unpack(ws, O_OFF, 16, std_cols, 512)
def unpack_h(ws): return unpack(ws, H_OFF, 16, h_cols, 512)
def unpack_hh(ws): return unpack(ws, HH_OFF, 43, std_cols, 1376)
def unpack_st(ws):
    s = np.zeros(2048, np.float32); q = np.zeros(2048, np.float32)
    for G in range(16):
        blk = ws[G * GSTRIDE + ST_OFF: G * GSTRIDE + ST_OFF + 8192].view(np.float32).reshape(8, 16, 8, 2)
        for t8 in range(8):
            r = rows_of(G, t8)
            s[r] = blk[t8, :, :, 0].sum(1); q[r] = blk[t8, :, :, 1].sum(1)
    return s, q
def print_stamps(ws, n):
    st = ws[STAMP_OFF: STAMP_OFF + 256 * 4 * 256].view(np.uint64).reshape(256, 4, 32)[:, :, :n].astype(np.int64)
    t0 = st[:, :, 0].min()
    rel = (st - t0) * 0.01
    for w in range(4):
        print("wave", w, "mean:", " ".join("%.2f" % x for x in rel[:, w].mean(0)))
    print("all max :", " ".join("%.2f" % x for x in rel.reshape(-1, n).max(0)))
    print("all min :", " ".join("%.2f" % x for x in rel.reshape(-1, n).min(0)))
```

```python
import sys
from asmlib import *
import layout as L

NAME = "sequential_preLN__sliding_local_dilated__glu_gated_reglu__prompt"
HDR = open('cdna_kernels/' + NAME + '.s.ref').read().split('; Override launch')[0]

SX, SW1, SWO, SWG, SWU, SWD, SOUT, SWS = 8, 12, 16, 20, 24, 28, 32, 36
sXCD, sIDX, sRBL, sCB, sW, sG, sRB, sM = 40, 41, 42, 43, 44, 45, 46, 47
sONE = 48
sT0, sT1, sT2, sT3, sT4, sT5 = 50, 51, 52, 53, 54, 55
sI = 56
sPLO, sPHI = 57, 58

def prologue(A, endlabel):
    A(f"""
    s_cmp_ge_u32 s2, 256
    s_cbranch_scc1 {endlabel}
    s_load_dwordx16 s[64:79], s[0:1], 0
    s_load_dwordx4 s[80:83], s[0:1], 64
    s_and_b32 {s(sXCD)}, s2, 7
    s_lshr_b32 {s(sIDX)}, s2, 3
    s_lshr_b32 {s(sRBL)}, {s(sIDX)}, 3
    s_and_b32 {s(sCB)}, {s(sIDX)}, 7
    s_and_b32 {s(sM)}, {s(sIDX)}, 15
    s_lshl_b32 {s(sRB)}, {s(sXCD)}, 2
    s_add_u32 {s(sRB)}, {s(sRB)}, {s(sRBL)}
    s_lshr_b32 {s(sG)}, {s(sRB)}, 1
    v_lshrrev_b32 v1, 6, v0
    v_and_b32 v0, 63, v0
    v_readfirstlane_b32 {s(sW)}, v1
    s_mov_b32 {s(sONE)}, 0x3f803f80
    s_mov_b32 {s(sPLO)}, 0x05040100
    s_mov_b32 {s(sPHI)}, 0x07060302
    s_waitcnt lgkmcnt(0)
    """)
    for srd, src, size in ((SX, 64, 2048*1024), (SW1, 66, 512*3072), (SWO, 68, 512*1024), (SWG, 72, 512*2752),
                           (SWU, 74, 512*2752), (SWD, 76, 1376*1024), (SOUT, 78, 2048*1024)):
        A(f"""
        s_mov_b32 {s(srd)}, {s(src)}
        s_and_b32 {s(srd+1)}, {s(src+1)}, 0xffff
        s_mov_b32 {s(srd+2)}, {size}
        s_mov_b32 {s(srd+3)}, 0x20000
        """)
    A(f"""
    s_mul_i32 {s(sT0)}, {s(sG)}, {L.GSTRIDE}
    s_add_u32 {s(SWS)}, s82, {s(sT0)}
    s_addc_u32 {s(SWS+1)}, s83, 0
    s_and_b32 {s(SWS+1)}, {s(SWS+1)}, 0xffff
    s_mov_b32 {s(SWS+2)}, {L.GSTRIDE}
    s_mov_b32 {s(SWS+3)}, 0x20000
    """)

def kernel_header(A, name):
    A.raw(f".globl {name}\n.p2align 8\n.type {name},@function\n{name}:")

def kernel_desc(name, nv, acc):
    return f""".amdhsa_kernel {name}
  .amdhsa_next_free_vgpr {nv}
  .amdhsa_next_free_sgpr 102
  .amdhsa_accum_offset {acc}
  .amdhsa_group_segment_fixed_size 0
  .amdhsa_kernarg_size 80
  .amdhsa_user_sgpr_count 2
  .amdhsa_user_sgpr_kernarg_segment_ptr 1
  .amdhsa_system_sgpr_workgroup_id_x 1
.end_amdhsa_kernel
"""

XCH = 10240
WRING = 8 * XCH
WSLOT = 24576
STATS1 = WRING + 3 * WSLOT
P1_LDS = STATS1 + 1024

def gen_p1(A):
    vL = 0
    vXo0, vXo1, vXh, vWo = 2, 3, 4, 5
    vXa0, vXa1, vWa, vSa, vSh = 6, 7, 8, 9, 10
    vT = [11, 12, 13, 14, 15]
    FA, FB = 16, 48
    SF = 80
    ACC = 92
    SACC = 152
    BIAS = 160
    Qa = lambda T: ACC + 4 * T
    Ka = lambda T: ACC + 20 + 4 * T
    Va = lambda T: ACC + 40 + 4 * T
    t0, t1, t2, t3, t4 = vT
    sEXH = 60
    sXOFF, sWOFF, sSLOTW, sSLOTR, sXL = 62, 63, 84, 85, 86
    A.c("---- P1 address setup")
    A(f"""
    s_lshl_b32 {s(sT0)}, {s(sRB)}, 6
    s_lshr_b32 {s(sT1)}, {s(sW)}, 1
    s_lshl_b32 {s(sT1)}, {s(sT1)}, 5
    s_add_u32 {s(sT1)}, {s(sT1)}, {s(sT0)}
    s_and_b32 {s(sT2)}, {s(sW)}, 1
    s_add_u32 {s(sT1)}, {s(sT1)}, {s(sT2)}
    v_lshrrev_b32 {v(t0)}, 3, {v(vL)}
    v_and_b32 {v(t1)}, 7, {v(vL)}
    v_lshrrev_b32 {v(t2)}, 4, {v(vL)}
    v_xor_b32 {v(t3)}, {v(t1)}, {v(t2)}
    v_lshlrev_b32 {v(t4)}, 1, {v(t0)}
    v_add_u32 {v(t4)}, {s(sT1)}, {v(t4)}
    v_lshlrev_b32 {v(t4)}, 10, {v(t4)}
    v_lshl_add_u32 {v(vXo0)}, {v(t3)}, 4, {v(t4)}
    v_xor_b32 {v(t3)}, 4, {v(t3)}
    v_lshl_add_u32 {v(vXo1)}, {v(t3)}, 4, {v(t4)}
    v_add_u32 {v(vXo1)}, 0x4000, {v(vXo1)}
    """)
    A(f"""
    s_lshl_b32 {s(sT2)}, {s(sW)}, 2
    v_add_u32 {v(t3)}, {s(sT2)}, {v(t0)}
    v_lshrrev_b32 {v(t4)}, 1, {v(t3)}
    v_and_b32 {v(t4)}, 7, {v(t4)}
    v_xor_b32 {v(t4)}, {v(t4)}, {v(t1)}
    s_sub_u32 {s(sT3)}, {s(sT0)}, 16
    v_add_u32 {v(t3)}, {s(sT3)}, {v(t3)}
    v_max_i32 {v(t3)}, 0, {v(t3)}
    v_lshlrev_b32 {v(t3)}, 10, {v(t3)}
    v_lshl_add_u32 {v(vXh)}, {v(t4)}, 4, {v(t3)}
    s_mov_b32 {s(sEXH)}, -1
    s_cmp_eq_u32 {s(sW)}, 0
    s_cselect_b32 {s(sEXH)}, 0xffffff00, {s(sEXH)}
    s_mov_b32 {s(sEXH+1)}, 0
    """)
    A(f"""
    s_lshl_b32 {s(sT2)}, {s(sW)}, 3
    v_add_u32 {v(t3)}, {s(sT2)}, {v(t0)}
    v_mul_u32_u24 {v(t3)}, 3072, {v(t3)}
    v_and_b32 {v(t4)}, 1, {v(t2)}
    v_lshlrev_b32 {v(t4)}, 1, {v(t4)}
    s_and_b32 {s(sT2)}, {s(sW)}, 1
    s_lshl_b32 {s(sT2)}, {s(sT2)}, 2
    v_or_b32 {v(t4)}, {s(sT2)}, {v(t4)}
    v_xor_b32 {v(t4)}, {v(t4)}, {v(t1)}
    v_lshl_add_u32 {v(vWo)}, {v(t4)}, 4, {v(t3)}
    s_lshl_b32 {s(sT2)}, {s(sCB)}, 7
    v_add_u32 {v(vWo)}, {s(sT2)}, {v(vWo)}
    """)
    A(f"""
    s_lshl_b32 {s(sT2)}, {s(sRBL)}, 1
    s_add_u32 {s(sT2)}, {s(sT2)}, {s(sCB)}
    s_and_b32 {s(sXOFF)}, {s(sT2)}, 7
    s_mov_b32 {s(sSLOTW)}, {WRING}
    s_mov_b32 {s(sXL)}, 0
    """)
    def dma_chunk():
        g = []
        g.append(f"""
        s_lshl_b32 {s(sT0)}, {s(sXOFF)}, 7
        s_lshl_b32 {s(sT1)}, {s(sW)}, 11
        s_add_u32 {s(sT1)}, {s(sT1)}, {s(sXL)}
        s_mov_b32 m0, {s(sT1)}
        buffer_load_dwordx4 {v(vXo0)}, {s(SX,4)}, {s(sT0)} offen lds
        """)
        g.append(f"""
        s_add_u32 m0, {s(sT1)}, 1024
        s_mul_i32 {s(sT2)}, {s(sXOFF)}, 196608
        buffer_load_dwordx4 {v(vXo1)}, {s(SX,4)}, {s(sT0)} offen lds
        """)
        g.append(f"""
        s_lshl_b32 {s(sT1)}, {s(sW)}, 9
        s_add_u32 {s(sT1)}, {s(sT1)}, {s(sXL)}
        s_add_u32 m0, {s(sT1)}, 8192
        s_mov_b64 exec, {s(sEXH,2)}
        buffer_load_dwordx4 {v(vXh)}, {s(SX,4)}, {s(sT0)} offen lds
        s_mov_b64 exec, -1
        """)
        g.append(f"""
        s_mul_i32 {s(sT1)}, {s(sW)}, 3072
        s_add_u32 {s(sT1)}, {s(sT1)}, {s(sSLOTW)}
        s_mov_b32 m0, {s(sT1)}
        s_add_u32 {s(sT3)}, {s(sT2)}, {32*3072}
        buffer_load_dwordx4 {v(vWo)}, {s(SW1,4)}, {s(sT2)} offen lds
        """)
        g.append(f"buffer_load_dwordx4 {v(vWo)}, {s(SW1,4)}, {s(sT2)} offen offset:1024 lds")
        g.append(f"buffer_load_dwordx4 {v(vWo)}, {s(SW1,4)}, {s(sT2)} offen offset:2048 lds")
        g.append(f"""
        s_add_u32 m0, {s(sT1)}, {4*3072}
        s_nop 0
        buffer_load_dwordx4 {v(vWo)}, {s(SW1,4)}, {s(sT3)} offen lds
        """)
        g.append(f"buffer_load_dwordx4 {v(vWo)}, {s(SW1,4)}, {s(sT3)} offen offset:1024 lds")
        g.append(f"""
        buffer_load_dwordx4 {v(vWo)}, {s(SW1,4)}, {s(sT3)} offen offset:2048 lds
        s_add_u32 {s(sXOFF)}, {s(sXOFF)}, 1
        s_and_b32 {s(sXOFF)}, {s(sXOFF)}, 7
        s_add_u32 {s(sXL)}, {s(sXL)}, {XCH}
        s_add_u32 {s(sSLOTW)}, {s(sSLOTW)}, {WSLOT}
        s_cmp_eq_u32 {s(sSLOTW)}, {WRING + 3*WSLOT}
        s_cselect_b32 {s(sSLOTW)}, {WRING}, {s(sSLOTW)}
        """)
        return g
    for _ in range(3):
        for x in dma_chunk(): A(x)
    A.c("---- LDS read addresses")
    A(f"""
    v_and_b32 {v(t0)}, 15, {v(vL)}
    v_lshrrev_b32 {v(t1)}, 1, {v(t0)}
    v_xor_b32 {v(t1)}, {v(t1)}, {v(t2)}
    v_lshlrev_b32 {v(t1)}, 4, {v(t1)}
    v_lshl_add_u32 {v(vXa0)}, {v(t0)}, 7, {v(t1)}
    v_xor_b32 {v(vXa1)}, 64, {v(vXa0)}
    """)
    A(f"""
    v_mul_u32_u24 {v(vWa)}, 3072, {v(t2)}
    v_bfe_u32 {v(t1)}, {v(vL)}, 2, 2
    v_lshl_add_u32 {v(vWa)}, {v(t1)}, 7, {v(vWa)}
    v_lshrrev_b32 {v(t1)}, 1, {v(t1)}
    v_and_b32 {v(t3)}, 1, {v(t2)}
    v_lshl_or_b32 {v(t1)}, {v(t3)}, 1, {v(t1)}
    v_xor_b32 {v(t1)}, {s(sW)}, {v(t1)}
    v_lshl_add_u32 {v(vWa)}, {v(t1)}, 5, {v(vWa)}
    v_and_b32 {v(t1)}, 3, {v(vL)}
    v_lshl_add_u32 {v(vWa)}, {v(t1)}, 3, {v(vWa)}
    v_add_u32 {v(vWa)}, {WRING}, {v(vWa)}
    s_lshl_b32 {s(sT0)}, {s(sW)}, 11
    v_lshlrev_b32 {v(vSa)}, 4, {v(vL)}
    s_lshl_b32 {s(sT1)}, {s(sW)}, 9
    s_add_u32 {s(sT1)}, {s(sT1)}, 8192
    v_add_u32 {v(vSh)}, {s(sT1)}, {v(vSa)}
    v_add_u32 {v(vSa)}, {s(sT0)}, {v(vSa)}
    """)
    A.c("---- ones row (halo tile row 0 of every chunk): every wave writes it (same data)")
    A(f"""
    v_lshrrev_b32 {v(t1)}, 3, {v(vL)}
    v_mul_u32_u24 {v(t1)}, {XCH}, {v(t1)}
    v_and_b32 {v(t3)}, 7, {v(vL)}
    v_lshl_add_u32 {v(t1)}, {v(t3)}, 4, {v(t1)}
    v_mov_b32 {v(FA)}, {s(sONE)}
    v_mov_b32 {v(FA+1)}, {s(sONE)}
    v_mov_b32 {v(FA+2)}, {s(sONE)}
    v_mov_b32 {v(FA+3)}, {s(sONE)}
    ds_write_b128 {v(t1)}, {v(FA,4)} offset:8192
    """)
    A.c("---- zero acc, bias masks")
    for i in range(60): A(f"v_mov_b32 {v(ACC+i)}, 0")
    for i in range(6): A(f"v_mov_b32 {v(SACC+i)}, 0")
    NEG = "0xf149f2ca"
    A(f"""
    v_mov_b32 {v(t4)}, {NEG}
    v_lshlrev_b32 {v(t1)}, 2, {v(t2)}
    v_sub_u32 {v(t3)}, {v(t0)}, {v(t1)}
    s_cmp_eq_u32 {s(sRB)}, 0
    s_cselect_b32 {s(sT0)}, 64, 2
    """)
    for r in range(4):
        A(f"""
        v_subrev_u32 {v(t1)}, {r}, {v(t3)}
        v_cmp_ge_u32 vcc, 7, {v(t1)}
        v_cndmask_b32 {v(BIAS+r)}, {v(t4)}, 0, vcc
        v_cmp_ge_i32 vcc, -9, {v(t1)}
        v_cndmask_b32 {v(BIAS+4+r)}, {v(t4)}, 0, vcc
        """)
    A(f"""
    v_lshlrev_b32 {v(t1)}, 2, {v(t2)}
    v_lshlrev_b32 {v(t3)}, 1, {v(t0)}
    v_sub_u32 {v(t3)}, {v(t1)}, {v(t3)}
    v_subrev_u32 {v(t3)}, {s(sT0)}, {v(t3)}
    """)
    for p in range(2):
        for r in range(4):
            if (r - p) & 1:
                A(f"v_mov_b32 {v(BIAS+8+4*p+r)}, {v(t4)}")
            else:
                A(f"""
                v_cmp_le_i32 vcc, {-(r-p)}, {v(t3)}
                v_cndmask_b32 {v(BIAS+8+4*p+r)}, {v(t4)}, 0, vcc
                """)
    def reads(F, kh):
        xs = [f"ds_read_b128 {v(F+4*T,4)}, {v(vXa1 if kh else vXa0)} offset:{T*2048}" for T in range(5)]
        ws = []
        for sct in range(3):
            for half in range(2):
                ws.append(f"ds_read_b64_tr_b16 {v(F+20+4*sct+2*half,2)}, {v(vWa)} offset:{kh*12288+sct*1024+half*512}")
        return ws[:2] + xs[:1] + ws[2:4] + xs[1:2] + ws[4:] + xs[2:]
    def mfmas(F):
        out = []
        for T in range(5):
            x = v(F+4*T, 4)
            out.append(f"v_mfma_f32_16x16x32_bf16 {v(Qa(T),4)}, {v(F+20,4)}, {x}, {v(Qa(T),4)}")
            out.append(f"v_mfma_f32_16x16x32_bf16 {v(Ka(T),4)}, {v(F+24,4)}, {x}, {v(Ka(T),4)}")
            out.append(f"v_mfma_f32_16x16x32_bf16 {v(Va(T),4)}, {x}, {v(F+28,4)}, {v(Va(T),4)}")
        return out
    def dots():
        out = []
        for j in range(4):
            for b in range(3):
                out.append(f"v_dot2c_f32_bf16 {v(SACC+2*b)}, {s(sONE)}, {v(SF+4*b+j)}")
                out.append(f"v_dot2c_f32_bf16 {v(SACC+2*b+1)}, {v(SF+4*b+j)}, {v(SF+4*b+j)}")
        return out
    A(f"""
    s_mov_b32 {s(sI)}, 0
    s_mov_b32 {s(sSLOTR)}, {WRING}
    s_waitcnt vmcnt(18) lgkmcnt(0)
    s_barrier
    """)
    for x in reads(FA, 0): A(x)
    A.label("P1_LOOP")
    for x in reads(FB, 1): A(x)
    A(f"""
    ds_read_b128 {v(SF,4)}, {v(vSa)}
    ds_read_b128 {v(SF+4,4)}, {v(vSa)} offset:1024
    ds_read_b128 {v(SF+8,4)}, {v(vSh)}
    s_waitcnt lgkmcnt(14)
    """)
    for x in mfmas(FA): A(x)
    A(f"""
    s_add_u32 {s(sT4)}, {s(sSLOTR)}, {WSLOT}
    s_cmp_eq_u32 {s(sT4)}, {WRING + 3*WSLOT}
    s_cselect_b32 {s(sT4)}, {WRING}, {s(sT4)}
    s_sub_u32 {s(sT5)}, {s(sT4)}, {s(sSLOTR)}
    s_mov_b32 {s(sSLOTR)}, {s(sT4)}
    s_waitcnt lgkmcnt(0)
    v_add_u32 {v(vWa)}, {s(sT5)}, {v(vWa)}
    v_add_u32 {v(vXa0)}, {XCH}, {v(vXa0)}
    v_add_u32 {v(vXa1)}, {XCH}, {v(vXa1)}
    v_add_u32 {v(vSa)}, {XCH}, {v(vSa)}
    v_add_u32 {v(vSh)}, {XCH}, {v(vSh)}
    s_cmp_eq_u32 {s(sI)}, 7
    s_cbranch_scc1 P1_LAST
    s_cmp_eq_u32 {s(sI)}, 6
    s_cbranch_scc1 P1_W0
    s_waitcnt vmcnt(9)
    s_branch P1_W1
    """)
    A.label("P1_W0")
    A("s_waitcnt vmcnt(0)")
    A.label("P1_W1")
    A("s_barrier")
    for x in reads(FA, 0): A(x)
    A(f"""
    s_cmp_ge_u32 {s(sI)}, 5
    s_cbranch_scc1 P1_NODMA
    """)
    for x in dma_chunk(): A(x)
    A.label("P1_NODMA")
    mf = mfmas(FB); dd = dots()
    for i, x in enumerate(mf):
        A(x)
        for y in dd[2*i:2*i+2]: A(y)
    A(f"""
    s_add_u32 {s(sI)}, {s(sI)}, 1
    s_branch P1_LOOP
    """)
    A.label("P1_LAST")
    for i, x in enumerate(mf):
        A(x)
        for y in dd[2*i:2*i+2]: A(y)
    A.c("---- P1 epilogue: row stats")
    for dpp in ("quad_perm:[1,0,3,2]", "quad_perm:[2,3,0,1]", "row_half_mirror"):
        for i in range(6):
            A(f"v_add_f32_dpp {v(SACC+i)}, {v(SACC+i)}, {v(SACC+i)} {dpp} row_mask:0xf bank_mask:0xf")
    A(f"""
    s_mov_b32 {s(sT0)}, 0x3b000000
    s_mov_b32 {s(sT1)}, 0x3727c5ac
    """)
    for b in range(3):
        sm, sq = SACC+2*b, SACC+2*b+1
        A(f"""
        v_mul_f32 {v(sm)}, {s(sT0)}, {v(sm)}
        v_mul_f32 {v(sq)}, {s(sT0)}, {v(sq)}
        v_fma_f32 {v(sq)}, -{v(sm)}, {v(sm)}, {v(sq)}
        v_max_f32 {v(sq)}, 0, {v(sq)}
        v_add_f32 {v(sq)}, {s(sT1)}, {v(sq)}
        v_rsq_f32 {v(sq)}, {v(sq)}
        v_mul_f32 {v(sm)}, -{v(sm)}, {v(sq)}
        """)
    A(f"""
    v_lshrrev_b32 {v(t0)}, 3, {v(vL)}
    v_lshlrev_b32 {v(t0)}, 2, {v(t0)}
    s_lshl_b32 {s(sT0)}, {s(sW)}, 6
    s_add_u32 {s(sT0)}, {s(sT0)}, {STATS1}
    v_add_u32 {v(t1)}, {s(sT0)}, {v(t0)}
    s_lshl_b32 {s(sT0)}, {s(sW)}, 4
    s_add_u32 {s(sT0)}, {s(sT0)}, {STATS1 + 256}
    v_add_u32 {v(t3)}, {s(sT0)}, {v(t0)}
    ds_write_b32 {v(t1)}, {v(SACC+1)}
    ds_write_b32 {v(t1)}, {v(SACC)} offset:512
    ds_write_b32 {v(t1)}, {v(SACC+3)} offset:32
    ds_write_b32 {v(t1)}, {v(SACC+2)} offset:544
    s_mov_b32 exec_hi, 0
    ds_write_b32 {v(t3)}, {v(SACC+5)}
    ds_write_b32 {v(t3)}, {v(SACC+4)} offset:512
    s_mov_b64 exec, -1
    v_and_b32 {v(t0)}, 15, {v(vL)}
    v_lshlrev_b32 {v(t0)}, 2, {v(t0)}
    v_add_u32 {v(t0)}, {STATS1}, {v(t0)}
    v_lshrrev_b32 {v(t1)}, 4, {v(vL)}
    v_lshlrev_b32 {v(t1)}, 4, {v(t1)}
    v_add_u32 {v(t1)}, {STATS1}, {v(t1)}
    s_waitcnt lgkmcnt(0)
    s_barrier
    """)
    LA = 16
    LBa = 28
    LBb = 48
    CSQ, CSK, CSV = 68, 72, 76
    TMP = 80
    for T in range(5):
        A(f"ds_read2_b32 {v(LA+2*T,2)}, {v(t0)} offset0:{T*16} offset1:{T*16+128}")
    for T in range(5):
        A(f"ds_read_b128 {v(LBa+4*T,4)}, {v(t1)} offset:{T*64}")
        A(f"ds_read_b128 {v(LBb+4*T,4)}, {v(t1)} offset:{T*64+512}")
    for r in range(4):
        A(f"v_mov_b32_dpp {v(CSQ+r)}, {v(Qa(4)+r)} row_newbcast:0 row_mask:0xf bank_mask:0xf")
        A(f"v_mov_b32_dpp {v(CSK+r)}, {v(Ka(4)+r)} row_newbcast:0 row_mask:0xf bank_mask:0xf")
    A(f"""
    v_mov_b32 {v(CSV)}, {v(Va(4))}
    v_mov_b32 {v(CSV+1)}, {v(Va(4))}
    v_permlane16_swap_b32 {v(CSV)}, {v(CSV+1)}
    v_mov_b32 {v(CSV+1)}, {v(CSV)}
    v_permlane32_swap_b32 {v(CSV)}, {v(CSV+1)}
    v_mov_b32 {v(CSV+1)}, {v(CSV)}
    s_waitcnt lgkmcnt(0)
    """)
    QP = 176; KP = 184; VP = 196
    vpos = {2: 0, 0: 2, 4: 4, 1: 6, 3: 8}
    def norm_qk(acc, cs, T, dst):
        ab = v(LA+2*T, 2)
        for hlf in range(2):
            A(f"v_pk_mul_f32 {v(TMP+2*hlf,2)}, {v(cs+2*hlf,2)}, {ab} op_sel:[0,1] op_sel_hi:[1,1]")
        for hlf in range(2):
            A(f"v_pk_fma_f32 {v(acc+2*hlf,2)}, {v(acc+2*hlf,2)}, {ab}, {v(TMP+2*hlf,2)} op_sel:[0,0,0] op_sel_hi:[1,0,1]")
        for hlf in range(2):
            A(f"v_cvt_pk_bf16_f32 {v(dst+hlf)}, {v(acc+2*hlf)}, {v(acc+2*hlf+1)}")
    for T in range(5):
        norm_qk(Ka(T), CSK, T, KP+2*T)
        if T < 4: norm_qk(Qa(T), CSQ, T, QP+2*T)
    SC = lambda T: ACC + 8*T
    for T in range(4):
        prev = T - 2 if T >= 2 else 4
        bprev = BIAS + 4 if T >= 2 else BIAS + 8 + 4*T
        A(f"v_mfma_f32_16x16x16_bf16 {v(SC(T),4)}, {v(KP+2*T,2)}, {v(QP+2*T,2)}, {v(BIAS,4)}")
        A(f"v_mfma_f32_16x16x16_bf16 {v(SC(T)+4,4)}, {v(KP+2*prev,2)}, {v(QP+2*T,2)}, {v(bprev,4)}")
    for T in range(5):
        acc = Va(T)
        for hlf in range(2):
            A(f"v_pk_mul_f32 {v(TMP+2*hlf,2)}, {v(LBb+4*T+2*hlf,2)}, {v(CSV,2)}")
        for hlf in range(2):
            A(f"v_pk_fma_f32 {v(acc+2*hlf,2)}, {v(acc+2*hlf,2)}, {v(LBa+4*T+2*hlf,2)}, {v(TMP+2*hlf,2)}")
        for hlf in range(2):
            A(f"v_cvt_pk_bf16_f32 {v(VP+vpos[T]+hlf)}, {v(acc+2*hlf)}, {v(acc+2*hlf+1)}")
    MX = 16; M2 = 20; SM = 24; S2 = 28
    PP = 32
    A(f"s_mov_b32 {s(sT0)}, 0x3eb8aa3b")
    for T in range(4):
        b = SC(T)
        A(f"""
        v_max3_f32 {v(MX+T)}, {v(b)}, {v(b+1)}, {v(b+2)}
        v_max3_f32 {v(M2+T)}, {v(b+3)}, {v(b+4)}, {v(b+5)}
        """)
    for T in range(4):
        b = SC(T)
        A(f"v_max3_f32 {v(MX+T)}, {v(MX+T)}, {v(b+6)}, {v(b+7)}")
    for T in range(4): A(f"v_max_f32 {v(MX+T)}, {v(MX+T)}, {v(M2+T)}")
    def allreduce(X, Y, op):
        for T in range(4): A(f"v_mov_b32 {v(Y+T)}, {v(X+T)}")
        for T in range(4): A(f"v_permlane16_swap_b32 {v(X+T)}, {v(Y+T)}")
        for T in range(4): A(f"{op} {v(X+T)}, {v(X+T)}, {v(Y+T)}")
        for T in range(4): A(f"v_mov_b32 {v(Y+T)}, {v(X+T)}")
        for T in range(4): A(f"v_permlane32_swap_b32 {v(X+T)}, {v(Y+T)}")
        for T in range(4): A(f"{op} {v(X+T)}, {v(X+T)}, {v(Y+T)}")
    allreduce(MX, M2, "v_max_f32")
    for T in range(4): A(f"v_mul_f32 {v(MX+T)}, {s(sT0)}, {v(MX+T)}")
    for T in range(4):
        for i in range(8):
            A(f"v_fma_f32 {v(SC(T)+i)}, {v(SC(T)+i)}, {s(sT0)}, -{v(MX+T)}")
    for T in range(4):
        for i in range(8):
            A(f"v_exp_f32 {v(SC(T)+i)}, {v(SC(T)+i)}")
    OA = 48
    win = {2: 0, 0: 2, 1: 4, 3: 6}
    for T in range(4):
        b = SC(T)
        first, second = (b, b+4) if T in (0, 2) else (b+4, b)
        A(f"""
        v_cvt_pk_bf16_f32 {v(PP+4*T)}, {v(first)}, {v(first+1)}
        v_cvt_pk_bf16_f32 {v(PP+4*T+1)}, {v(first+2)}, {v(first+3)}
        v_cvt_pk_bf16_f32 {v(PP+4*T+2)}, {v(second)}, {v(second+1)}
        v_cvt_pk_bf16_f32 {v(PP+4*T+3)}, {v(second+2)}, {v(second+3)}
        """)
    for T in range(4):
        A(f"v_mfma_f32_16x16x32_bf16 {v(OA+4*T,4)}, {v(VP+win[T],4)}, {v(PP+4*T,4)}, 0")
    for T in range(4):
        b = SC(T)
        A(f"""
        v_pk_add_f32 {v(b,2)}, {v(b,2)}, {v(b+2,2)}
        v_pk_add_f32 {v(b+4,2)}, {v(b+4,2)}, {v(b+6,2)}
        """)
    for T in range(4):
        b = SC(T)
        A(f"v_pk_add_f32 {v(b,2)}, {v(b,2)}, {v(b+4,2)}")
    for T in range(4):
        b = SC(T)
        A(f"v_add_f32 {v(SM+T)}, {v(b)}, {v(b+1)}")
    allreduce(SM, S2, "v_add_f32")
    for T in range(4): A(f"v_rcp_f32 {v(SM+T)}, {v(SM+T)}")
    A(f"""
    s_and_b32 {s(sT0)}, {s(sRB)}, 1
    s_lshl_b32 {s(sT0)}, {s(sT0)}, 16
    s_lshl_b32 {s(sT1)}, {s(sCB)}, 11
    s_add_u32 {s(sT0)}, {s(sT0)}, {s(sT1)}
    s_lshr_b32 {s(sT1)}, {s(sW)}, 1
    s_lshl_b32 {s(sT1)}, {s(sT1)}, 10
    s_add_u32 {s(sT0)}, {s(sT0)}, {s(sT1)}
    s_and_b32 {s(sT1)}, {s(sW)}, 1
    s_lshl_b32 {s(sT1)}, {s(sT1)}, 3
    s_add_u32 {s(sT0)}, {s(sT0)}, {s(sT1)}
    s_add_u32 {s(sT0)}, {s(sT0)}, {L.O_OFF}
    v_lshlrev_b32 {v(t0)}, 4, {v(vL)}
    """)
    for T in range(4):
        for i in range(4):
            A(f"v_mul_f32 {v(OA+4*T+i)}, {v(OA+4*T+i)}, {v(SM+T)}")
        A(f"""
        v_cvt_pk_bf16_f32 {v(OA+4*T)}, {v(OA+4*T)}, {v(OA+4*T+1)}
        v_cvt_pk_bf16_f32 {v(OA+4*T+1)}, {v(OA+4*T+2)}, {v(OA+4*T+3)}
        buffer_store_dwordx2 {v(OA+4*T,2)}, {v(t0)}, {s(SWS,4)}, {s(sT0)} offen
        s_add_u32 {s(sT0)}, {s(sT0)}, 16384
        """)

def gen_ksplit(A, tag, nks, SWT, a_off, a_tile_stride, final):
    vL = 0
    t0, t1, t2 = 2, 3, 4
    vWo, vAo, vRed = 5, 6, 7
    RAW = 8
    ACC = 24
    XH = 88
    RED = 96
    WF = 144 if nks <= 4 else None
    if nks <= 4:
        WFr = lambda j: 144 + 16*j
        AFr = lambda u, j: 256 + 4*(u*nks + j)
    else:
        WFr = lambda j: (144 + 16*j) if j < 7 else (256 + 176 + 16*(j-7))
        AFr = lambda u, j: 256 + 4*(u*nks + j)
    sKS0 = 60
    sSO = 61
    A.c(f"---- {tag} setup")
    A(f"""
    s_mul_i32 {s(sKS0)}, {s(sW)}, {nks}
    v_lshrrev_b32 {v(t0)}, 4, {v(vL)}
    v_and_b32 {v(t1)}, 15, {v(vL)}
    v_lshlrev_b32 {v(vWo)}, 12, {v(t0)}
    v_lshl_add_u32 {v(vWo)}, {v(t1)}, 3, {v(vWo)}
    s_lshl_b32 {s(sT0)}, {s(sCB)}, 7
    v_add_u32 {v(vWo)}, {s(sT0)}, {v(vWo)}
    v_lshlrev_b32 {v(vAo)}, 4, {v(vL)}
    """)
    A(f"""
    s_and_b32 {s(sT1)}, {s(sRB)}, 1
    s_lshl_b32 {s(sT1)}, {s(sT1)}, 2
    """)
    def a_loads(u):
        A(f"""
        s_add_u32 {s(sT0)}, {s(sW)}, {1+u}
        s_and_b32 {s(sT0)}, {s(sT0)}, 3
        s_add_u32 {s(sT0)}, {s(sT0)}, {s(sT1)}
        s_mul_i32 {s(sT0)}, {s(sT0)}, {a_tile_stride}
        s_lshl_b32 {s(sT2)}, {s(sKS0)}, 10
        s_add_u32 {s(sSO)}, {s(sT0)}, {s(sT2)}
        s_add_u32 {s(sSO)}, {s(sSO)}, {a_off}
        """)
        for j in range(nks):
            if j and j % 4 == 0: A(f"s_add_u32 {s(sSO)}, {s(sSO)}, 4096")
            A(f"buffer_load_dwordx4 {R(AFr(u,j),4)}, {v(vAo)}, {s(SWS,4)}, {s(sSO)} offen offset:{(j%4)*1024} sc1")
    for j in range(nks):
        A(f"""
        s_add_u32 {s(sT0)}, {s(sKS0)}, {j}
        s_lshl_b32 {s(sT0)}, {s(sT0)}, 15
        s_add_u32 {s(sT2)}, {s(sT0)}, 16384
        """)
        for e in range(8):
            A(f"buffer_load_dwordx2 {v(RAW+2*e,2)}, {v(vWo)}, {s(SWT,4)}, {s(sT0 if e < 4 else sT2)} offen offset:{(e&3)*1024}")
        A("s_waitcnt vmcnt(0)")
        for jt in range(4):
            for d in range(4):
                dst = WFr(j) + 4*jt + d
                sel = sPHI if jt & 1 else sPLO
                if dst < 256:
                    A(f"v_perm_b32 {v(dst)}, {v(RAW+2*(2*d+1)+(jt>>1))}, {v(RAW+2*(2*d)+(jt>>1))}, {s(sel)}")
                else:
                    A(f"v_perm_b32 {v(t2)}, {v(RAW+2*(2*d+1)+(jt>>1))}, {v(RAW+2*(2*d)+(jt>>1))}, {s(sel)}")
                    A(f"v_accvgpr_write_b32 {R(dst)}, {v(t2)}")
    if tag == 'P4':
        pass
    for u in range(4): a_loads(u)
    final(pre=True, XH=XH, t0=t0, t1=t1)
    A("s_waitcnt vmcnt(0)")
    if tag == 'P4':
        A(f"""
        s_cmp_lg_u32 {s(sW)}, 3
        s_cbranch_scc1 P4_NOZ
        """)
        for u in range(4):
            for i in range(4): A(f"v_accvgpr_write_b32 {R(AFr(u,nks-1)+i)}, 0")
        A.label("P4_NOZ")
    A(f"v_lshlrev_b32 {v(vRed)}, 4, {v(vL)}")
    for u in range(4):
        for j in range(nks):
            for jt in range(4):
                c = "0" if j == 0 else v(ACC+16*u+4*jt, 4)
                A(f"v_mfma_f32_16x16x32_bf16 {v(ACC+16*u+4*jt,4)}, {R(WFr(j)+4*jt,4)}, {R(AFr(u,j),4)}, {c}")
        if u < 3:
            A(f"""
            s_add_u32 {s(sT0)}, {s(sW)}, {1+u}
            s_and_b32 {s(sT0)}, {s(sT0)}, 3
            s_mul_i32 {s(sT0)}, {s(sT0)}, 12288
            v_add_u32 {v(t2)}, {s(sT0)}, {v(vRed)}
            """)
            for jt in range(4):
                A(f"ds_write_b128 {v(t2)}, {v(ACC+16*u+4*jt,4)} offset:{u*4096+jt*1024}")
    A(f"""
    s_mul_i32 {s(sT0)}, {s(sW)}, 12288
    v_add_u32 {v(t2)}, {s(sT0)}, {v(vRed)}
    s_waitcnt lgkmcnt(0)
    s_barrier
    """)
    for i in range(12):
        A(f"ds_read_b128 {v(RED+4*i,4)}, {v(t2)} offset:{i*1024}")
    A("s_waitcnt lgkmcnt(0)")
    F = ACC + 48
    for u in range(3):
        for i in range(8):
            A(f"v_pk_add_f32 {v(F+2*i,2)}, {v(F+2*i,2)}, {v(RED+16*u+2*i,2)}")
    final(pre=False, XH=XH, t0=t0, t1=t1, F=F, RAW=RAW)

def add_residual_pack(A, XH, F, OUTR, tmp):
    for r in range(4):
        for hf in range(2):
            x = XH + 2*r + hf
            lo, hi = F + 4*(2*hf) + r, F + 4*(2*hf+1) + r
            A(f"""
            v_lshlrev_b32 {v(tmp)}, 16, {v(x)}
            v_and_b32 {v(tmp+1)}, 0xffff0000, {v(x)}
            v_add_f32 {v(lo)}, {v(lo)}, {v(tmp)}
            v_add_f32 {v(hi)}, {v(hi)}, {v(tmp+1)}
            v_cvt_pk_bf16_f32 {v(OUTR+2*r+hf)}, {v(lo)}, {v(hi)}
            """)

def row_col_offset(A, dst, t0, t1):
    A(f"""
    s_lshl_b32 {s(sT0)}, {s(sRB)}, 6
    s_lshr_b32 {s(sT2)}, {s(sW)}, 1
    s_lshl_b32 {s(sT2)}, {s(sT2)}, 5
    s_add_u32 {s(sT0)}, {s(sT0)}, {s(sT2)}
    s_and_b32 {s(sT2)}, {s(sW)}, 1
    s_add_u32 {s(sT0)}, {s(sT0)}, {s(sT2)}
    s_lshl_b32 {s(sT0)}, {s(sT0)}, 10
    s_lshl_b32 {s(sT2)}, {s(sCB)}, 7
    s_add_u32 {s(sT0)}, {s(sT0)}, {s(sT2)}
    v_and_b32 {v(t1)}, 15, v0
    v_lshlrev_b32 {v(t1)}, 11, {v(t1)}
    v_lshrrev_b32 {v(t0)}, 4, v0
    v_lshl_add_u32 {v(dst)}, {v(t0)}, 5, {v(t1)}
    v_add_u32 {v(dst)}, {s(sT0)}, {v(dst)}
    """)

def h_frag_soff(A, dst):
    A(f"""
    s_and_b32 {s(dst)}, {s(sRB)}, 1
    s_lshl_b32 {s(dst)}, {s(dst)}, 2
    s_add_u32 {s(dst)}, {s(dst)}, {s(sW)}
    s_lshl_b32 {s(dst)}, {s(dst)}, 14
    s_lshl_b32 {s(sT2)}, {s(sCB)}, 11
    s_add_u32 {s(dst)}, {s(dst)}, {s(sT2)}
    s_add_u32 {s(dst)}, {s(dst)}, {L.H_OFF}
    """)

def gen_p2(A):
    def final(pre, XH, t0, t1, F=None, RAW=None):
        if pre:
            row_col_offset(A, 1, t0, t1)
            A(f"""
            buffer_load_dwordx4 {v(XH,4)}, v1, {s(SX,4)}, 0 offen
            buffer_load_dwordx4 {v(XH+4,4)}, v1, {s(SX,4)}, 0 offen offset:16
            """)
            return
        add_residual_pack(A, XH, F, RAW, RAW+8)
        h_frag_soff(A, sT0)
        sm, sq = RAW+10, RAW+11
        A(f"""
        v_lshlrev_b32 {v(t0)}, 4, v0
        buffer_store_dwordx4 {v(RAW,4)}, {v(t0)}, {s(SWS,4)}, {s(sT0)} offen
        buffer_store_dwordx4 {v(RAW+4,4)}, {v(t0)}, {s(SWS,4)}, {s(sT0)} offen offset:1024
        v_mov_b32 {v(sm)}, 0
        v_mov_b32 {v(sq)}, 0
        """)
        for i in range(8):
            A(f"v_dot2c_f32_bf16 {v(sm)}, {s(sONE)}, {v(RAW+i)}")
            A(f"v_dot2c_f32_bf16 {v(sq)}, {v(RAW+i)}, {v(RAW+i)}")
        A(f"""
        v_permlane32_swap_b32 {v(sm)}, {v(sq)}
        v_add_f32 {v(sm)}, {v(sm)}, {v(sq)}
        v_mov_b32 {v(sq)}, {v(sm)}
        v_permlane16_swap_b32 {v(sm)}, {v(sq)}
        v_add_f32 {v(sm)}, {v(sm)}, {v(sq)}
        s_and_b32 {s(sT0)}, {s(sRB)}, 1
        s_lshl_b32 {s(sT0)}, {s(sT0)}, 2
        s_add_u32 {s(sT0)}, {s(sT0)}, {s(sW)}
        s_lshl_b32 {s(sT0)}, {s(sT0)}, 10
        s_lshl_b32 {s(sT2)}, {s(sCB)}, 3
        s_add_u32 {s(sT0)}, {s(sT0)}, {s(sT2)}
        s_add_u32 {s(sT0)}, {s(sT0)}, {L.ST_OFF}
        v_and_b32 {v(t0)}, 15, v0
        v_lshlrev_b32 {v(t0)}, 6, {v(t0)}
        v_lshrrev_b32 {v(t1)}, 5, v0
        v_lshl_add_u32 {v(t0)}, {v(t1)}, 2, {v(t0)}
        buffer_store_dword {v(sm)}, {v(t0)}, {s(SWS,4)}, {s(sT0)} offen
        """)
    gen_ksplit(A, 'P2', 4, SWO, L.O_OFF, 16384, final)

def gen_p4(A):
    def final(pre, XH, t0, t1, F=None, RAW=None):
        if pre:
            h_frag_soff(A, sT0)
            A(f"""
            v_lshlrev_b32 {v(t0)}, 4, v0
            buffer_load_dwordx4 {v(XH,4)}, {v(t0)}, {s(SWS,4)}, {s(sT0)} offen sc1
            buffer_load_dwordx4 {v(XH+4,4)}, {v(t0)}, {s(SWS,4)}, {s(sT0)} offen offset:1024 sc1
            """)
            return
        add_residual_pack(A, XH, F, RAW, RAW+8)
        row_col_offset(A, 1, t0, t1)
        A(f"""
        buffer_store_dwordx4 {v(RAW,4)}, v1, {s(SOUT,4)}, 0 offen
        buffer_store_dwordx4 {v(RAW+4,4)}, v1, {s(SOUT,4)}, 0 offen offset:16
        """)
    gen_ksplit(A, 'P4', 11, SWD, L.HH_OFF, 43*1024, final)

W3G = 3104
W3U = 12560
W3CH = 2 * W3U
A3CH = 16384
SLOT3 = W3CH + A3CH
STATS3 = 3 * SLOT3
P3_LDS = STATS3 + 1024

def gen_p3(A):
    vL = 0
    t0, t1, t2, t3 = 2, 3, 4, 5
    vP = [6, 7, 8]
    vAo = 9
    vXY, vZ, vAr = 10, 11, 12
    ONES = 16
    ST = 20
    SL = 36
    CS = 44
    ACC = 56
    FA, FB = 152, 196
    TMP = 240
    sSLOTW, sSLOTR, sCH = 60, 61, 62
    sMU = 84
    A.c("---- P3 setup")
    A(f"""
    s_cmp_eq_u32 {s(sM)}, 15
    s_cbranch_scc1 K3_END
    s_bitcmp1_b32 {s(sW)}, 0
    s_cselect_b32 {s(sMU)}, {s(SWU)}, {s(SWG)}
    s_cselect_b32 {s(sMU+1)}, {s(SWU+1)}, {s(SWG+1)}
    s_mov_b32 {s(sMU+2)}, {512*2752}
    s_mov_b32 {s(sMU+3)}, 0x20000
    s_mul_i32 {s(sT0)}, {s(sM)}, 192
    s_mov_b32 {s(sT1)}, 0x15555556
    """)
    for i in range(3):
        A(f"""
        v_add_u32 {v(t0)}, {64*i}, {v(vL)}
        v_mul_hi_u32 {v(t1)}, {v(t0)}, {s(sT1)}
        v_mul_u32_u24 {v(t2)}, 12, {v(t1)}
        v_sub_u32 {v(t2)}, {v(t0)}, {v(t2)}
        v_mul_u32_u24 {v(t1)}, 2752, {v(t1)}
        v_lshl_add_u32 {v(vP[i])}, {v(t2)}, 4, {v(t1)}
        v_add_u32 {v(vP[i])}, {s(sT0)}, {v(vP[i])}
        v_subrev_u32 {v(vP[i])}, {1024*i}, {v(vP[i])}
        """)
    A(f"""
    v_lshlrev_b32 {v(vAo)}, 4, {v(vL)}
    s_mov_b32 {s(sSLOTW)}, 0
    s_mov_b32 {s(sSLOTR)}, 0
    s_mov_b32 {s(sCH)}, 0
    """)
    def dma_chunk():
        g = []
        g.append(f"""
        s_lshr_b32 {s(sT0)}, {s(sW)}, 1
        s_lshl_b32 {s(sT1)}, {s(sCH)}, 1
        s_add_u32 {s(sT1)}, {s(sT1)}, {s(sT0)}
        s_mul_i32 {s(sT1)}, {s(sT1)}, {32*2752}
        s_mul_i32 {s(sT0)}, {s(sT0)}, {2*W3G}
        s_and_b32 {s(sT2)}, {s(sW)}, 1
        s_mul_i32 {s(sT2)}, {s(sT2)}, {W3U}
        s_add_u32 {s(sT0)}, {s(sT0)}, {s(sT2)}
        s_add_u32 {s(sT0)}, {s(sT0)}, {s(sSLOTW)}
        s_mov_b32 m0, {s(sT0)}
        s_add_u32 {s(sT2)}, {s(sT1)}, {16*2752}
        buffer_load_dwordx4 {v(vP[0])}, {s(sMU,4)}, {s(sT1)} offen lds
        """)
        g.append(f"buffer_load_dwordx4 {v(vP[1])}, {s(sMU,4)}, {s(sT1)} offen offset:1024 lds")
        g.append(f"buffer_load_dwordx4 {v(vP[2])}, {s(sMU,4)}, {s(sT1)} offen offset:2048 lds")
        g.append(f"""
        s_add_u32 m0, {s(sT0)}, {W3G}
        s_nop 0
        buffer_load_dwordx4 {v(vP[0])}, {s(sMU,4)}, {s(sT2)} offen lds
        """)
        g.append(f"buffer_load_dwordx4 {v(vP[1])}, {s(sMU,4)}, {s(sT2)} offen offset:1024 lds")
        g.append(f"buffer_load_dwordx4 {v(vP[2])}, {s(sMU,4)}, {s(sT2)} offen offset:2048 lds")
        g.append(f"""
        s_lshl_b32 {s(sT0)}, {s(sW)}, 12
        s_add_u32 {s(sT0)}, {s(sT0)}, {s(sSLOTW)}
        s_add_u32 {s(sT0)}, {s(sT0)}, {W3CH}
        s_mov_b32 m0, {s(sT0)}
        s_lshl_b32 {s(sT1)}, {s(sW)}, 15
        s_lshl_b32 {s(sT2)}, {s(sCH)}, 11
        s_add_u32 {s(sT1)}, {s(sT1)}, {s(sT2)}
        s_add_u32 {s(sT1)}, {s(sT1)}, {L.H_OFF}
        s_add_u32 {s(sT2)}, {s(sT1)}, 16384
        buffer_load_dwordx4 {v(vAo)}, {s(SWS,4)}, {s(sT1)} offen sc1 lds
        """)
        g.append(f"buffer_load_dwordx4 {v(vAo)}, {s(SWS,4)}, {s(sT1)} offen offset:1024 sc1 lds")
        g.append(f"""
        s_add_u32 m0, {s(sT0)}, 2048
        s_nop 0
        buffer_load_dwordx4 {v(vAo)}, {s(SWS,4)}, {s(sT2)} offen sc1 lds
        """)
        g.append(f"""
        buffer_load_dwordx4 {v(vAo)}, {s(SWS,4)}, {s(sT2)} offen offset:1024 sc1 lds
        s_add_u32 {s(sCH)}, {s(sCH)}, 1
        s_add_u32 {s(sSLOTW)}, {s(sSLOTW)}, {SLOT3}
        s_cmp_eq_u32 {s(sSLOTW)}, {3*SLOT3}
        s_cselect_b32 {s(sSLOTW)}, 0, {s(sSLOTW)}
        """)
        return g
    A(f"""
    v_and_b32 {v(t0)}, 15, {v(vL)}
    v_lshrrev_b32 {v(t1)}, 4, {v(vL)}
    v_lshlrev_b32 {v(t2)}, 6, {v(t0)}
    v_lshl_add_u32 {v(t2)}, {v(t1)}, 4, {v(t2)}
    s_lshl_b32 {s(sT0)}, {s(sW)}, 11
    s_add_u32 {s(sT0)}, {s(sT0)}, {L.ST_OFF}
    buffer_load_dwordx4 {v(SL,4)}, {v(t2)}, {s(SWS,4)}, {s(sT0)} offen sc1
    buffer_load_dwordx4 {v(SL+4,4)}, {v(t2)}, {s(SWS,4)}, {s(sT0)} offen offset:1024 sc1
    """)
    for _ in range(3):
        for x in dma_chunk(): A(x)
    A(f"""
    v_mul_u32_u24 {v(vXY)}, {W3G}, {v(t1)}
    v_bfe_u32 {v(t2)}, {v(vL)}, 2, 2
    v_mul_u32_u24 {v(t2)}, 192, {v(t2)}
    v_add_u32 {v(vXY)}, {v(vXY)}, {v(t2)}
    v_and_b32 {v(t2)}, 1, {v(vL)}
    v_lshl_add_u32 {v(vZ)}, {v(t2)}, 3, {v(vXY)}
    v_bfe_u32 {v(t2)}, {v(vL)}, 1, 1
    v_mul_u32_u24 {v(t2)}, {W3U}, {v(t2)}
    v_add_u32 {v(vZ)}, {v(vZ)}, {v(t2)}
    s_lshl_b32 {s(sT0)}, {s(sW)}, 4
    s_add_u32 {s(sT0)}, {s(sT0)}, 128
    v_add_u32 {v(vZ)}, {s(sT0)}, {v(vZ)}
    v_and_b32 {v(t2)}, 3, {v(vL)}
    v_lshl_add_u32 {v(vXY)}, {v(t2)}, 3, {v(vXY)}
    s_lshl_b32 {s(sT0)}, {s(sW)}, 5
    v_add_u32 {v(vXY)}, {s(sT0)}, {v(vXY)}
    v_add_u32 {v(vAr)}, {W3CH}, {v(vAo)}
    """)
    for i in range(4): A(f"v_mov_b32 {v(ONES+i)}, {s(sONE)}")
    for i in range(108): A(f"v_mov_b32 {v(CS+i)}, 0")
    A(f"""
    s_waitcnt vmcnt(30)
    v_add_f32 {v(SL)}, {v(SL)}, {v(SL+2)}
    v_add_f32 {v(SL+1)}, {v(SL+1)}, {v(SL+3)}
    v_add_f32 {v(SL+4)}, {v(SL+4)}, {v(SL+6)}
    v_add_f32 {v(SL+5)}, {v(SL+5)}, {v(SL+7)}
    v_permlane32_swap_b32 {v(SL)}, {v(SL+4)}
    v_permlane32_swap_b32 {v(SL+1)}, {v(SL+5)}
    v_add_f32 {v(SL)}, {v(SL)}, {v(SL+4)}
    v_add_f32 {v(SL+1)}, {v(SL+1)}, {v(SL+5)}
    v_mov_b32 {v(SL+2)}, {v(SL)}
    v_mov_b32 {v(SL+3)}, {v(SL+1)}
    v_permlane16_swap_b32 {v(SL)}, {v(SL+2)}
    v_permlane16_swap_b32 {v(SL+1)}, {v(SL+3)}
    v_add_f32 {v(SL)}, {v(SL)}, {v(SL+2)}
    v_add_f32 {v(SL+1)}, {v(SL+1)}, {v(SL+3)}
    s_mov_b32 {s(sT0)}, 0x3b000000
    s_mov_b32 {s(sT1)}, 0x3727c5ac
    v_mul_f32 {v(SL)}, {s(sT0)}, {v(SL)}
    v_mul_f32 {v(SL+1)}, {s(sT0)}, {v(SL+1)}
    v_fma_f32 {v(SL+1)}, -{v(SL)}, {v(SL)}, {v(SL+1)}
    v_max_f32 {v(SL+1)}, 0, {v(SL+1)}
    v_add_f32 {v(SL+1)}, {s(sT1)}, {v(SL+1)}
    v_rcp_f32 {v(SL+1)}, {v(SL+1)}
    v_sub_f32 {v(SL)}, 0, {v(SL)}
    v_lshrrev_b32 {v(t2)}, 5, {v(vL)}
    v_lshlrev_b32 {v(t2)}, 7, {v(t2)}
    v_lshl_add_u32 {v(t2)}, {v(t0)}, 3, {v(t2)}
    s_lshl_b32 {s(sT0)}, {s(sW)}, 8
    s_add_u32 {s(sT0)}, {s(sT0)}, {STATS3}
    v_add_u32 {v(t2)}, {s(sT0)}, {v(t2)}
    ds_write_b64 {v(t2)}, {v(SL,2)}
    v_lshlrev_b32 {v(t3)}, 3, {v(t0)}
    v_add_u32 {v(t3)}, {STATS3}, {v(t3)}
    """)
    def reads(F, u):
        w = []
        for half in range(2):
            o = (8*u + 4*half) * 192
            w.append(f"ds_read_b64_tr_b16 {v(F+32+2*half,2)}, {v(vXY)} offset:{o}")
            w.append(f"ds_read_b64_tr_b16 {v(F+36+2*half,2)}, {v(vXY)} offset:{o+W3U}")
            w.append(f"ds_read_b64_tr_b16 {v(F+40+2*half,2)}, {v(vZ)} offset:{o}")
        x = [f"ds_read_b128 {v(F+4*t,4)}, {v(vAr)} offset:{(t*2+u)*1024}" for t in range(8)]
        return w + x
    def mfmas(F):
        out = []
        for t in range(8):
            for k in range(3):
                out.append(f"v_mfma_f32_16x16x32_bf16 {v(ACC+12*t+4*k,4)}, {v(F+32+4*k,4)}, {v(F+4*t,4)}, {v(ACC+12*t+4*k,4)}")
        for k in range(3):
            out.append(f"v_mfma_f32_16x16x32_bf16 {v(CS+4*k,4)}, {v(F+32+4*k,4)}, {v(ONES,4)}, {v(CS+4*k,4)}")
        return out
    A(f"""
    s_mov_b32 {s(sI)}, 0
    s_waitcnt vmcnt(20) lgkmcnt(0)
    s_barrier
    """)
    for t in range(8): A(f"ds_read_b64 {v(ST+2*t,2)}, {v(t3)} offset:{t*128}")
    A("s_waitcnt lgkmcnt(0)")
    for x in reads(FA, 0): A(x)
    A.label("P3_LOOP")
    for x in reads(FB, 1): A(x)
    A("s_waitcnt lgkmcnt(14)")
    for x in mfmas(FA): A(x)
    A(f"""
    s_add_u32 {s(sT4)}, {s(sSLOTR)}, {SLOT3}
    s_cmp_eq_u32 {s(sT4)}, {3*SLOT3}
    s_cselect_b32 {s(sT4)}, 0, {s(sT4)}
    s_sub_u32 {s(sT5)}, {s(sT4)}, {s(sSLOTR)}
    s_mov_b32 {s(sSLOTR)}, {s(sT4)}
    s_waitcnt lgkmcnt(0)
    v_add_u32 {v(vXY)}, {s(sT5)}, {v(vXY)}
    v_add_u32 {v(vZ)}, {s(sT5)}, {v(vZ)}
    v_add_u32 {v(vAr)}, {s(sT5)}, {v(vAr)}
    s_cmp_eq_u32 {s(sI)}, 7
    s_cbranch_scc1 P3_LAST
    s_cmp_eq_u32 {s(sI)}, 6
    s_cbranch_scc1 P3_W0
    s_waitcnt vmcnt(10)
    s_branch P3_W1
    """)
    A.label("P3_W0")
    A("s_waitcnt vmcnt(0)")
    A.label("P3_W1")
    A("s_barrier")
    for x in reads(FA, 0): A(x)
    A(f"""
    s_cmp_ge_u32 {s(sI)}, 5
    s_cbranch_scc1 P3_NODMA
    """)
    for x in dma_chunk(): A(x)
    A.label("P3_NODMA")
    for x in mfmas(FB): A(x)
    A(f"""
    s_add_u32 {s(sI)}, {s(sI)}, 1
    s_branch P3_LOOP
    """)
    A.label("P3_LAST")
    for x in mfmas(FB): A(x)
    A.c("---- P3 epilogue")
    A(f"""
    s_mul_i32 {s(sT0)}, {s(sM)}, 3072
    s_add_u32 {s(sT0)}, {s(sT0)}, {L.HH_OFF}
    s_lshr_b32 {s(sT1)}, {s(sW)}, 1
    s_lshl_b32 {s(sT2)}, {s(sT1)}, 10
    s_add_u32 {s(sT2)}, {s(sT2)}, {s(sT0)}
    s_and_b32 {s(sT3)}, {s(sW)}, 1
    s_lshl_b32 {s(sT4)}, {s(sT3)}, 3
    s_add_u32 {s(sT2)}, {s(sT2)}, {s(sT4)}
    s_lshl_b32 {s(sT1)}, {s(sT1)}, 3
    s_add_u32 {s(sT0)}, {s(sT0)}, {s(sT1)}
    s_lshl_b32 {s(sT3)}, {s(sT3)}, 9
    s_add_u32 {s(sT0)}, {s(sT0)}, {s(sT3)}
    s_add_u32 {s(sT0)}, {s(sT0)}, 2048
    v_and_b32 {v(t0)}, 31, {v(vL)}
    v_lshlrev_b32 {v(t0)}, 4, {v(t0)}
    v_lshrrev_b32 {v(t1)}, 5, {v(vL)}
    v_mul_u32_u24 {v(t1)}, {43*1024}, {v(t1)}
    v_add_u32 {v(t0)}, {v(t0)}, {v(t1)}
    s_cmp_eq_u32 {s(sM)}, 14
    s_cselect_b32 {s(sT4)}, 2, 4
    s_cmp_ge_u32 {s(sW)}, {s(sT4)}
    s_cbranch_scc1 K3_END
    """)
    for t in range(8):
        X, Y = ACC+12*t, ACC+12*t+4
        st = v(ST+2*t, 2)
        for h in range(2):
            A(f"v_pk_fma_f32 {v(X+2*h,2)}, {v(CS+2*h,2)}, {st}, {v(X+2*h,2)} op_sel:[0,0,0] op_sel_hi:[1,0,1]")
            A(f"v_pk_fma_f32 {v(Y+2*h,2)}, {v(CS+4+2*h,2)}, {st}, {v(Y+2*h,2)} op_sel:[0,0,0] op_sel_hi:[1,0,1]")
        for i in range(4): A(f"v_max_f32 {v(X+i)}, 0, {v(X+i)}")
        for h in range(2): A(f"v_pk_mul_f32 {v(Y+2*h,2)}, {v(Y+2*h,2)}, {st} op_sel:[0,1] op_sel_hi:[1,1]")
        for h in range(2): A(f"v_pk_mul_f32 {v(X+2*h,2)}, {v(X+2*h,2)}, {v(Y+2*h,2)}")
        A(f"""
        v_cvt_pk_bf16_f32 {v(X)}, {v(X)}, {v(X+1)}
        v_cvt_pk_bf16_f32 {v(X+1)}, {v(X+2)}, {v(X+3)}
        buffer_store_dwordx2 {v(X,2)}, {v(vAo)}, {s(SWS,4)}, {s(sT2)} offen
        s_add_u32 {s(sT2)}, {s(sT2)}, {43*1024}
        """)
    A(f"""
    s_cmp_eq_u32 {s(sM)}, 14
    s_cbranch_scc1 K3_END
    s_mov_b32 vcc_lo, -1
    s_mov_b32 vcc_hi, 0
    """)
    for p in range(4):
        ZA, ZB = ACC+12*(2*p)+8, ACC+12*(2*p+1)+8
        for Z, t in ((ZA, 2*p), (ZB, 2*p+1)):
            st = v(ST+2*t, 2)
            for h in range(2):
                A(f"v_pk_fma_f32 {v(Z+2*h,2)}, {v(CS+8+2*h,2)}, {st}, {v(Z+2*h,2)} op_sel:[0,0,0] op_sel_hi:[1,0,1]")
        A(f"v_cndmask_b32 {v(TMP)}, {v(ST+2*(2*p+1)+1)}, {v(ST+2*(2*p)+1)}, vcc")
        for i in range(4): A(f"v_permlane32_swap_b32 {v(ZA+i)}, {v(ZB+i)}")
        for i in range(4): A(f"v_max_f32 {v(ZA+i)}, 0, {v(ZA+i)}")
        for i in range(4): A(f"v_mul_f32 {v(ZB+i)}, {v(ZB+i)}, {v(TMP)}")
        for h in range(2): A(f"v_pk_mul_f32 {v(ZA+2*h,2)}, {v(ZA+2*h,2)}, {v(ZB+2*h,2)}")
        A(f"""
        v_cvt_pk_bf16_f32 {v(ZA)}, {v(ZA)}, {v(ZA+1)}
        v_cvt_pk_bf16_f32 {v(ZA+1)}, {v(ZA+2)}, {v(ZA+3)}
        buffer_store_dwordx2 {v(ZA,2)}, {v(t0)}, {s(SWS,4)}, {s(sT0)} offen
        s_add_u32 {s(sT0)}, {s(sT0)}, {2*43*1024}
        """)

def main(path):
    A = Asm()
    A.raw(HDR.rstrip('\n'))
    ks = [("k1_kernel", gen_p1, P1_LDS), ("k2_kernel", gen_p2, 49152), ("k3_kernel", gen_p3, P3_LDS), ("k4_kernel", gen_p4, 49152)]
    for n, _, lds in ks:
        A.raw(f"; @launch kernel={n} grid=(256,1,1) block=(256,1,1) lds={lds}")
    A.raw('.amdgcn_target "amdgcn-amd-amdhsa--gfx950"\n.text')
    for i, (n, fn, lds) in enumerate(ks):
        kernel_header(A, n)
        prologue(A, f"K{i+1}_END")
        fn(A)
        A.label(f"K{i+1}_END")
        A("s_endpgm")
    A.raw('.section .rodata,"a"')
    for n, _, _ in ks:
        A.raw('.p2align 6')
        A.raw(kernel_desc(n, 512, 256))
    open(path, 'w').write(A.finalize())

if __name__ == '__main__':
    main(sys.argv[1] if len(sys.argv) > 1 else 'v1.s')
```

```python
import sys
from asmlib import *
import layout as L

NAME = "sequential_preLN__sliding_local_dilated__glu_gated_reglu__prompt"
HDR = open('cdna_kernels/' + NAME + '.s.ref').read().split('; Override launch')[0]

class Cfg:
    stamps = False
    nb2 = 2
    force_slow = False
    code_prefetch = True

SX, SW1, SWO, SWG, SWU, SWD, SOUT, SWS, SDBG, SMU = 8, 12, 16, 20, 24, 28, 32, 36, 84, 88
sXCD, sIDX, sRBL, sCB, sW, sG, sRB, sM = 40, 41, 42, 43, 44, 45, 46, 47
sONE = 48
sMODE = 49
sT0, sT1, sT2, sT3, sT4, sT5 = 50, 51, 52, 53, 54, 55
sI = 56
sPLO, sPHI = 57, 58
sEXH = 60
sXOFF, sSLOTW, sSLOTR, sXL = 62, 63, 64, 65
sKO = 66
sCNT = 77
sROT3 = 78
sW3S = 79
sW3G = 80
sST = 92
sTS = 96

AG = 256

class Gen:
    def __init__(self, cfg):
        self.A = Asm(); self.cfg = cfg
        self.vm = 0
        self.tags = {}
        self.nstamp = 0
    def __call__(self, t):
        for ln in t.strip().split('\n'):
            ln = ln.strip()
            if not ln: continue
            self.A(ln)
            if ln.startswith(('buffer_', 'global_')): self.vm += 1
    def tag(self, name): self.tags[name] = self.vm
    def wait_tag(self, name, extra=''):
        n = self.vm - self.tags[name]
        assert n >= 0
        self.A(f"s_waitcnt vmcnt({min(n,63)}) {extra}".strip())
    def stamp(self):
        if not self.cfg.stamps: return
        i = self.nstamp; self.nstamp += 1
        self(f"""
        s_memrealtime {s(sTS,2)}
        s_waitcnt lgkmcnt(0)
        v_mov_b32 v254, {s(sTS)}
        v_mov_b32 v255, {s(sTS+1)}
        buffer_store_dwordx2 v[254:255], v253, {s(sST,4)}, 0 offen offset:{i*8}
        """)

XCH = 10240
WRING = 8 * XCH
WSLOT = 24576
STATS1 = WRING + 3 * WSLOT
W3SL = 24576
RING = 98304
STATS3 = 156672
LDS_TOTAL = 163840

vL = 0
vP3 = 240
vFE = 246
vL16 = 248
vWoff = 249
vFA = 250
RAW = 208
CS = 144
ONES = 156
aWO = AG + 0
aW3 = AG + 64
aA2 = AG + 160
aXR = AG + 224
aH = AG + 232
aJIT = AG + 160
WD_SLOT = [160, 176, 192, AG+184, AG+200, AG+240, AG+64, AG+80, AG+96, AG+112, AG+128]
A4_FR = [AG + 4*i for i in range(16)] + [AG + 144 + 4*i for i in range(6)]

def prologue(G):
    A = G
    A(f"""
    s_cmp_ge_u32 s2, 256
    s_cbranch_scc1 K_END
    s_load_dwordx16 s[64:79], s[0:1], 0
    s_load_dwordx4 s[80:83], s[0:1], 64
    s_memrealtime {s(sTS,2)}
    s_getreg_b32 {s(sT5)}, hwreg(HW_REG_XCC_ID, 0, 4)
    s_and_b32 {s(sXCD)}, s2, 7
    s_lshr_b32 {s(sIDX)}, s2, 3
    s_lshr_b32 {s(sRBL)}, {s(sIDX)}, 3
    s_and_b32 {s(sCB)}, {s(sIDX)}, 7
    s_and_b32 {s(sM)}, {s(sIDX)}, 15
    s_lshl_b32 {s(sRB)}, {s(sXCD)}, 2
    s_add_u32 {s(sRB)}, {s(sRB)}, {s(sRBL)}
    s_lshr_b32 {s(sG)}, {s(sRB)}, 1
    v_lshrrev_b32 v1, 6, v0
    v_and_b32 v0, 63, v0
    v_readfirstlane_b32 {s(sW)}, v1
    s_mov_b32 {s(sONE)}, 0x3f803f80
    s_mov_b32 {s(sPLO)}, 0x05040100
    s_mov_b32 {s(sPHI)}, 0x07060302
    v_lshlrev_b32 {v(vL16)}, 4, v0
    s_waitcnt lgkmcnt(0)
    """)
    for srd, src, size in ((SX, 64, 2048*1024), (SW1, 66, 512*3072), (SWO, 68, 512*1024), (SWG, 72, 512*2752),
                           (SWU, 74, 512*2752), (SWD, 76, 1376*1024), (SOUT, 78, 2048*1024), (SDBG, 80, 256)):
        A(f"""
        s_mov_b32 {s(srd)}, {s(src)}
        s_and_b32 {s(srd+1)}, {s(src+1)}, 0xffff
        s_mov_b32 {s(srd+2)}, {size}
        s_mov_b32 {s(srd+3)}, 0x20000
        """)
    A(f"""
    s_mul_i32 {s(sT0)}, {s(sG)}, {L.GSTRIDE}
    s_add_u32 {s(SWS)}, s82, {s(sT0)}
    s_addc_u32 {s(SWS+1)}, s83, 0
    s_and_b32 {s(SWS+1)}, {s(SWS+1)}, 0xffff
    s_mov_b32 {s(SWS+2)}, {L.GSTRIDE}
    s_mov_b32 {s(SWS+3)}, 0x20000
    s_bitcmp1_b32 {s(sW)}, 0
    s_cselect_b32 {s(SMU)}, {s(SWU)}, {s(SWG)}
    s_cselect_b32 {s(SMU+1)}, {s(SWU+1)}, {s(SWG+1)}
    s_mov_b32 {s(SMU+2)}, {512*2752}
    s_mov_b32 {s(SMU+3)}, 0x20000
    """)
    if G.cfg.stamps:
        A(f"""
        s_lshl_b32 {s(sT0)}, s2, 10
        s_lshl_b32 {s(sT1)}, {s(sW)}, 8
        s_add_u32 {s(sT0)}, {s(sT0)}, {s(sT1)}
        s_add_u32 {s(sT0)}, {s(sT0)}, {L.STAMP_OFF}
        s_add_u32 {s(sST)}, s82, {s(sT0)}
        s_addc_u32 {s(sST+1)}, s83, 0
        s_and_b32 {s(sST+1)}, {s(sST+1)}, 0xffff
        s_mov_b32 {s(sST+2)}, 256
        s_mov_b32 {s(sST+3)}, 0x20000
        v_mov_b32 v253, 0
        v_mov_b32 v254, {s(sTS)}
        v_mov_b32 v255, {s(sTS+1)}
        buffer_store_dwordx2 v[254:255], v253, {s(sST,4)}, 0 offen
        """)
        G.nstamp = 1

def registration(G):
    A = G.A
    A(f"""
    s_cmp_lg_u32 {s(sW)}, 0
    s_cbranch_scc1 REG_DONE
    s_and_b32 {s(sT5)}, {s(sT5)}, 7
    s_mul_i32 {s(sT0)}, {s(sT5)}, {s(sT5)}
    s_lshl_b32 {s(sT0)}, {s(sT0)}, 12
    s_lshl_b32 {s(sT1)}, {s(sT5)}, 5
    s_or_b32 {s(sT0)}, {s(sT0)}, {s(sT1)}
    s_or_b32 {s(sT0)}, {s(sT0)}, 1
    s_lshl_b64 {s(sT2,2)}, {s(sTS,2)}, 22
    s_or_b32 {s(sT0)}, {s(sT0)}, {s(sT2)}
    v_mov_b32 v2, {s(sT0)}
    v_mov_b32 v3, {s(sT3)}
    s_lshl_b32 {s(sT1)}, {s(sG)}, 3
    v_mov_b32 v4, {s(sT1)}
    s_mov_b64 exec, 1
    buffer_atomic_add_x2 v[2:3], v4, {s(SDBG,4)}, 0 offen sc1
    s_mov_b64 exec, -1
    """)
    A.label("REG_DONE")

def stores(G, lst, label):
    A = G.A
    A(f"""
    s_cmp_lg_u32 {s(sMODE)}, 0
    s_cbranch_scc1 {label}_SLOW
    """)
    for x in lst: A(x)
    A(f"s_branch {label}_DONE")
    A.label(f"{label}_SLOW")
    for x in lst: A((x + " sc1") if x.startswith('buffer_store') else x)
    A.label(f"{label}_DONE")
    G.vm += sum(1 for x in lst if x.startswith('buffer_'))

def signal(G, phase):
    G(f"""
    v_add_u32 v2, {phase}, {v(vFE)}
    v_mov_b32 v3, {v(vFE+1)}
    s_lshl_b32 {s(sT0)}, {s(sM)}, 2
    s_add_u32 {s(sT0)}, {s(sT0)}, {s(sW)}
    s_lshl_b32 {s(sT0)}, {s(sT0)}, 3
    s_add_u32 {s(sT0)}, {s(sT0)}, {L.FL_OFF + phase*512}
    v_mov_b32 v4, {s(sT0)}
    s_waitcnt vmcnt(0)
    s_mov_b64 exec, 1
    """)
    stores(G, [f"buffer_store_dwordx2 v[2:3], v4, {s(SWS,4)}, 0 offen"], f"SIG{phase}")
    G("s_mov_b64 exec, -1")

def poll(G, phase):
    A = G.A
    if phase == 0:
        A(f"""
        v_and_b32 v4, 31, v0
        s_and_b32 {s(sT0)}, {s(sM)}, 8
        s_lshl_b32 {s(sT0)}, {s(sT0)}, 2
        v_add_u32 v4, {s(sT0)}, v4
        v_lshlrev_b32 v4, 3, v4
        """)
    else:
        A("v_lshlrev_b32 v4, 3, v0")
    A(f"""
    v_add_u32 v2, {phase}, {v(vFE)}
    v_mov_b32 v3, {v(vFE+1)}
    s_mov_b32 {s(sCNT)}, 0
    s_mov_b32 {s(sT0)}, {L.FL_OFF + phase*512}
    """)
    A.label(f"POLL{phase}")
    A(f"""
    buffer_load_dwordx2 v[6:7], v4, {s(SWS,4)}, {s(sT0)} offen sc1
    s_add_u32 {s(sCNT)}, {s(sCNT)}, 1
    s_waitcnt vmcnt(0)
    v_cmp_ne_u64 vcc, v[6:7], v[2:3]
    s_cmp_ge_u32 {s(sCNT)}, 20000
    s_cbranch_scc1 POLL{phase}_DONE
    s_cbranch_vccnz POLL{phase}
    """)
    A.label(f"POLL{phase}_DONE")

def w3_setup(G):
    t0, t1, t2, t3 = 2, 3, 4, 5
    G(f"""
    s_mul_i32 {s(sT0)}, {s(sM)}, 192
    s_mov_b32 {s(sT1)}, 0x15555556
    s_and_b32 {s(sT2)}, {s(sW)}, 1
    s_lshr_b32 {s(sT3)}, {s(sW)}, 1
    s_mul_i32 {s(sW3S)}, {s(sT2)}, 12288
    s_mul_i32 {s(sT4)}, {s(sT3)}, 6144
    s_add_u32 {s(sW3S)}, {s(sW3S)}, {s(sT4)}
    s_mul_i32 {s(sW3G)}, {s(sT3)}, {32*2752}
    s_and_b32 {s(sROT3)}, {s(sG)}, 1
    s_lshl_b32 {s(sROT3)}, {s(sROT3)}, 2
    """)
    for i in range(3):
        G(f"""
        v_add_u32 {v(t0)}, {64*i}, {v(vL)}
        v_mul_hi_u32 {v(t1)}, {v(t0)}, {s(sT1)}
        v_mul_u32_u24 {v(t2)}, 12, {v(t1)}
        v_sub_u32 {v(t2)}, {v(t0)}, {v(t2)}
        v_mul_u32_u24 {v(t1)}, 2752, {v(t1)}
        v_add_u32 {v(t1)}, {s(sT0)}, {v(t1)}
        v_subrev_u32 {v(t1)}, {1024*i}, {v(t1)}
        v_subrev_u32 {v(t2)}, {s(sT2)}, {v(t2)}
        """)
        for par in range(2):
            G(f"""
            v_subrev_u32 {v(t3)}, {2*par}, {v(t2)}
            v_add_u32 {v(t0)}, 12, {v(t3)}
            v_cmp_gt_i32 vcc, 0, {v(t3)}
            v_cndmask_b32 {v(t3)}, {v(t3)}, {v(t0)}, vcc
            v_lshl_add_u32 {v(vP3+3*par+i)}, {v(t3)}, 4, {v(t1)}
            """)

def w3_dma(c, slot):
    g = []
    g.append(f"""
    s_add_u32 {s(sT0)}, {s(sROT3)}, {c}
    s_and_b32 {s(sT0)}, {s(sT0)}, 7
    s_mul_i32 {s(sT0)}, {s(sT0)}, {64*2752}
    s_add_u32 {s(sT0)}, {s(sT0)}, {s(sW3G)}
    s_add_u32 m0, {s(sW3S)}, {slot*W3SL}
    s_add_u32 {s(sT1)}, {s(sT0)}, {16*2752}
    buffer_load_dwordx4 {v(vP3+0)}, {s(SMU,4)}, {s(sT0)} offen lds
    """)
    g.append(f"buffer_load_dwordx4 {v(vP3+1)}, {s(SMU,4)}, {s(sT0)} offen offset:1024 lds")
    g.append(f"buffer_load_dwordx4 {v(vP3+2)}, {s(SMU,4)}, {s(sT0)} offen offset:2048 lds")
    g.append(f"""
    s_add_u32 m0, {s(sW3S)}, {slot*W3SL + 3072}
    s_nop 0
    buffer_load_dwordx4 {v(vP3+3)}, {s(SMU,4)}, {s(sT1)} offen lds
    """)
    g.append(f"buffer_load_dwordx4 {v(vP3+4)}, {s(SMU,4)}, {s(sT1)} offen offset:1024 lds")
    g.append(f"buffer_load_dwordx4 {v(vP3+5)}, {s(SMU,4)}, {s(sT1)} offen offset:2048 lds")
    return g

vX3, vY3, vZ3 = 251, 252, 15
def w3_read_setup(G):
    t0, t1, t2, t3 = 2, 3, 4, 5
    G(f"""
    v_lshrrev_b32 {v(t0)}, 4, {v(vL)}
    v_mul_u32_u24 {v(t1)}, 3072, {v(t0)}
    v_bfe_u32 {v(t2)}, {v(vL)}, 2, 2
    v_mul_u32_u24 {v(t2)}, 192, {v(t2)}
    v_add_u32 {v(t1)}, {v(t1)}, {v(t2)}
    v_and_b32 {v(t0)}, 1, {v(t0)}
    v_lshlrev_b32 {v(t0)}, 5, {v(t0)}
    v_and_b32 {v(t2)}, 3, {v(vL)}
    v_lshl_add_u32 {v(t2)}, {v(t2)}, 3, {v(t0)}
    s_lshl_b32 {s(sT0)}, {s(sW)}, 5
    v_add3_u32 {v(vX3)}, {v(t1)}, {v(t2)}, {s(sT0)}
    v_add_u32 {v(vY3)}, {12288+16}, {v(vX3)}
    s_lshl_b32 {s(sT0)}, {s(sW)}, 4
    s_add_u32 {s(sT0)}, {s(sT0)}, 128
    v_add_u32 {v(t2)}, {s(sT0)}, {v(t2)}
    v_subrev_u32 {v(t3)}, 192, {v(t2)}
    v_cmp_le_u32 vcc, 192, {v(t2)}
    v_cndmask_b32 {v(t2)}, {v(t2)}, {v(t3)}, vcc
    v_bfe_u32 {v(t3)}, {v(vL)}, 1, 1
    v_mul_u32_u24 {v(t3)}, 12288, {v(t3)}
    v_add3_u32 {v(vZ3)}, {v(t1)}, {v(t2)}, {v(t3)}
    """)

def w3_reads(dst, slot, u):
    out = []
    for k, va in enumerate((vX3, vY3, vZ3)):
        for half in range(2):
            o = slot*W3SL + (8*u + 4*half) * 192
            out.append((va, o, dst + 4*k + 2*half))
    return out

def emit_w3_reads(G, dst, slot, u):
    for va, o, d in w3_reads(dst, slot, u):
        assert o < 65536, o
        G(f"ds_read_b64_tr_b16 {R(d,2)}, {v(va)} offset:{o}")

def wraw_loads(SWT, sko, raw):
    g = [f"""
    s_lshl_b32 {s(sT2)}, {s(sko)}, 5
    s_add_u32 {s(sT3)}, {s(sT2)}, 16384
    buffer_load_dwordx2 {v(raw,2)}, {v(vWoff)}, {s(SWT,4)}, {s(sT2)} offen
    """]
    for e in range(1, 8):
        g.append(f"buffer_load_dwordx2 {v(raw+2*e,2)}, {v(vWoff)}, {s(SWT,4)}, {s(sT2 if e < 4 else sT3)} offen offset:{(e&3)*1024}")
    return g
def wraw_perms(raw, dst, tmp):
    out = []
    for jt in range(4):
        for d in range(4):
            sel = sPHI if jt & 1 else sPLO
            r = dst + 4*jt + d
            src = f"{v(raw+2*(2*d+1)+(jt>>1))}, {v(raw+2*(2*d)+(jt>>1))}, {s(sel)}"
            if r < 256: out.append(f"v_perm_b32 {v(r)}, {src}")
            else:
                t = tmp + (len(out) // 2) % 2
                out.append(f"v_perm_b32 {v(t)}, {src}\nv_accvgpr_write_b32 {R(r)}, {v(t)}")
    return out

def interleave(G, main, fill, every=1, start=0):
    fi = 0
    for i, x in enumerate(main):
        G(x)
        if i >= start:
            for _ in range(every):
                if fi < len(fill): G(fill[fi]); fi += 1
    while fi < len(fill): G(fill[fi]); fi += 1

def spread(G, main, fill):
    n, m = len(main), len(fill)
    fi = 0
    for i, x in enumerate(main):
        G(x)
        while fi < m and (fi + 1) * n <= (i + 1) * m + (n - 1):
            G(fill[fi]); fi += 1
            if (fi) * n > (i + 1) * m: break
    while fi < m: G(fill[fi]); fi += 1

def gen_p1(G):
    A = G.A
    vXo0, vXo1, vXh, vWo = 2+4, 3+4, 4+4, 5+4
    vXa0, vXa1, vWa, vSa, vSh = 10, 11, 12, 13, 14
    t0, t1, t2, t3, t4 = 1, 2, 3, 4, 5
    FA, FB = 16, 48
    SF = 80
    ACC = 84 + 8
    SACC = 152 + 6
    SACC = 152
    BIAS = 160
    Qa = lambda T: ACC + 4 * T
    Ka = lambda T: ACC + 20 + 4 * T
    Va = lambda T: ACC + 40 + 4 * T
    A.c("---- P1 address setup")
    G(f"""
    s_lshl_b32 {s(sT0)}, {s(sRB)}, 6
    s_lshr_b32 {s(sT1)}, {s(sW)}, 1
    s_lshl_b32 {s(sT1)}, {s(sT1)}, 5
    s_add_u32 {s(sT1)}, {s(sT1)}, {s(sT0)}
    s_and_b32 {s(sT2)}, {s(sW)}, 1
    s_add_u32 {s(sT1)}, {s(sT1)}, {s(sT2)}
    v_lshrrev_b32 {v(t0)}, 3, {v(vL)}
    v_and_b32 {v(t1)}, 7, {v(vL)}
    v_lshrrev_b32 {v(t2)}, 4, {v(vL)}
    v_xor_b32 {v(t3)}, {v(t1)}, {v(t2)}
    v_lshlrev_b32 {v(t4)}, 1, {v(t0)}
    v_add_u32 {v(t4)}, {s(sT1)}, {v(t4)}
    v_lshlrev_b32 {v(t4)}, 10, {v(t4)}
    v_lshl_add_u32 {v(vXo0)}, {v(t3)}, 4, {v(t4)}
    v_xor_b32 {v(t3)}, 4, {v(t3)}
    v_lshl_add_u32 {v(vXo1)}, {v(t3)}, 4, {v(t4)}
    v_add_u32 {v(vXo1)}, 0x4000, {v(vXo1)}
    s_lshl_b32 {s(sT2)}, {s(sW)}, 2
    v_add_u32 {v(t3)}, {s(sT2)}, {v(t0)}
    v_lshrrev_b32 {v(t4)}, 1, {v(t3)}
    v_and_b32 {v(t4)}, 7, {v(t4)}
    v_xor_b32 {v(t4)}, {v(t4)}, {v(t1)}
    s_sub_u32 {s(sT3)}, {s(sT0)}, 16
    v_add_u32 {v(t3)}, {s(sT3)}, {v(t3)}
    v_max_i32 {v(t3)}, 0, {v(t3)}
    v_lshlrev_b32 {v(t3)}, 10, {v(t3)}
    v_lshl_add_u32 {v(vXh)}, {v(t4)}, 4, {v(t3)}
    s_mov_b32 {s(sEXH)}, -1
    s_cmp_eq_u32 {s(sW)}, 0
    s_cselect_b32 {s(sEXH)}, 0xffffff00, {s(sEXH)}
    s_mov_b32 {s(sEXH+1)}, 0
    s_lshl_b32 {s(sT2)}, {s(sW)}, 3
    v_add_u32 {v(t3)}, {s(sT2)}, {v(t0)}
    v_mul_u32_u24 {v(t3)}, 3072, {v(t3)}
    v_and_b32 {v(t4)}, 1, {v(t2)}
    v_lshlrev_b32 {v(t4)}, 1, {v(t4)}
    s_and_b32 {s(sT2)}, {s(sW)}, 1
    s_lshl_b32 {s(sT2)}, {s(sT2)}, 2
    v_or_b32 {v(t4)}, {s(sT2)}, {v(t4)}
    v_xor_b32 {v(t4)}, {v(t4)}, {v(t1)}
    v_lshl_add_u32 {v(vWo)}, {v(t4)}, 4, {v(t3)}
    s_lshl_b32 {s(sT2)}, {s(sCB)}, 7
    v_add_u32 {v(vWo)}, {s(sT2)}, {v(vWo)}
    s_lshl_b32 {s(sT2)}, {s(sRBL)}, 1
    s_add_u32 {s(sT2)}, {s(sT2)}, {s(sCB)}
    s_and_b32 {s(sXOFF)}, {s(sT2)}, 7
    s_mov_b32 {s(sSLOTW)}, {WRING}
    s_mov_b32 {s(sXL)}, 0
    """)
    def dma_chunk():
        g = []
        g.append(f"""
        s_lshl_b32 {s(sT0)}, {s(sXOFF)}, 7
        s_lshl_b32 {s(sT1)}, {s(sW)}, 11
        s_add_u32 {s(sT1)}, {s(sT1)}, {s(sXL)}
        s_mov_b32 m0, {s(sT1)}
        s_mul_i32 {s(sT2)}, {s(sXOFF)}, 196608
        buffer_load_dwordx4 {v(vXo0)}, {s(SX,4)}, {s(sT0)} offen lds
        """)
        g.append(f"""
        s_add_u32 m0, {s(sT1)}, 1024
        s_lshl_b32 {s(sT1)}, {s(sW)}, 9
        buffer_load_dwordx4 {v(vXo1)}, {s(SX,4)}, {s(sT0)} offen lds
        """)
        g.append(f"""
        s_add_u32 {s(sT1)}, {s(sT1)}, {s(sXL)}
        s_add_u32 m0, {s(sT1)}, 8192
        s_mov_b64 exec, {s(sEXH,2)}
        buffer_load_dwordx4 {v(vXh)}, {s(SX,4)}, {s(sT0)} offen lds
        s_mov_b64 exec, -1
        """)
        g.append(f"""
        s_mul_i32 {s(sT1)}, {s(sW)}, 3072
        s_add_u32 {s(sT1)}, {s(sT1)}, {s(sSLOTW)}
        s_mov_b32 m0, {s(sT1)}
        s_add_u32 {s(sT3)}, {s(sT2)}, {32*3072}
        buffer_load_dwordx4 {v(vWo)}, {s(SW1,4)}, {s(sT2)} offen lds
        """)
        g.append(f"buffer_load_dwordx4 {v(vWo)}, {s(SW1,4)}, {s(sT2)} offen offset:1024 lds")
        g.append(f"buffer_load_dwordx4 {v(vWo)}, {s(SW1,4)}, {s(sT2)} offen offset:2048 lds")
        g.append(f"""
        s_add_u32 m0, {s(sT1)}, {4*3072}
        s_nop 0
        buffer_load_dwordx4 {v(vWo)}, {s(SW1,4)}, {s(sT3)} offen lds
        """)
        g.append(f"buffer_load_dwordx4 {v(vWo)}, {s(SW1,4)}, {s(sT3)} offen offset:1024 lds")
        g.append(f"""
        buffer_load_dwordx4 {v(vWo)}, {s(SW1,4)}, {s(sT3)} offen offset:2048 lds
        s_add_u32 {s(sXOFF)}, {s(sXOFF)}, 1
        s_and_b32 {s(sXOFF)}, {s(sXOFF)}, 7
        s_add_u32 {s(sXL)}, {s(sXL)}, {XCH}
        s_add_u32 {s(sSLOTW)}, {s(sSLOTW)}, {WSLOT}
        s_cmp_eq_u32 {s(sSLOTW)}, {WRING + 3*WSLOT}
        s_cselect_b32 {s(sSLOTW)}, {WRING}, {s(sSLOTW)}
        """)
        return g
    for x in dma_chunk(): G(x)
    for x in dma_chunk(): G(x)
    registration(G)
    for x in dma_chunk(): G(x)
    A.c("---- LDS read addresses")
    G(f"""
    v_lshrrev_b32 {v(t2)}, 4, {v(vL)}
    v_and_b32 {v(t0)}, 15, {v(vL)}
    v_lshrrev_b32 {v(t1)}, 1, {v(t0)}
    v_xor_b32 {v(t1)}, {v(t1)}, {v(t2)}
    v_lshlrev_b32 {v(t1)}, 4, {v(t1)}
    v_lshl_add_u32 {v(vXa0)}, {v(t0)}, 7, {v(t1)}
    v_xor_b32 {v(vXa1)}, 64, {v(vXa0)}
    v_mul_u32_u24 {v(vWa)}, 3072, {v(t2)}
    v_bfe_u32 {v(t1)}, {v(vL)}, 2, 2
    v_lshl_add_u32 {v(vWa)}, {v(t1)}, 7, {v(vWa)}
    v_lshrrev_b32 {v(t1)}, 1, {v(t1)}
    v_and_b32 {v(t3)}, 1, {v(t2)}
    v_lshl_or_b32 {v(t1)}, {v(t3)}, 1, {v(t1)}
    v_xor_b32 {v(t1)}, {s(sW)}, {v(t1)}
    v_lshl_add_u32 {v(vWa)}, {v(t1)}, 5, {v(vWa)}
    v_and_b32 {v(t1)}, 3, {v(vL)}
    v_lshl_add_u32 {v(vWa)}, {v(t1)}, 3, {v(vWa)}
    v_add_u32 {v(vWa)}, {WRING}, {v(vWa)}
    s_lshl_b32 {s(sT0)}, {s(sW)}, 11
    s_lshl_b32 {s(sT1)}, {s(sW)}, 9
    s_add_u32 {s(sT1)}, {s(sT1)}, 8192
    v_add_u32 {v(vSh)}, {s(sT1)}, {v(vL16)}
    v_add_u32 {v(vSa)}, {s(sT0)}, {v(vL16)}
    v_lshrrev_b32 {v(t1)}, 3, {v(vL)}
    v_mul_u32_u24 {v(t1)}, {XCH}, {v(t1)}
    v_and_b32 {v(t3)}, 7, {v(vL)}
    v_lshl_add_u32 {v(t1)}, {v(t3)}, 4, {v(t1)}
    v_mov_b32 {v(FA)}, {s(sONE)}
    v_mov_b32 {v(FA+1)}, {s(sONE)}
    v_mov_b32 {v(FA+2)}, {s(sONE)}
    v_mov_b32 {v(FA+3)}, {s(sONE)}
    ds_write_b128 {v(t1)}, {v(FA,4)} offset:8192
    """)
    for i in range(60): G(f"v_mov_b32 {v(ACC+i)}, 0")
    for i in range(6): G(f"v_mov_b32 {v(SACC+i)}, 0")
    NEG = "0xf149f2ca"
    G(f"""
    v_mov_b32 {v(t4)}, {NEG}
    v_lshlrev_b32 {v(t1)}, 2, {v(t2)}
    v_sub_u32 {v(t3)}, {v(t0)}, {v(t1)}
    s_cmp_eq_u32 {s(sRB)}, 0
    s_cselect_b32 {s(sT0)}, 64, 2
    """)
    for r in range(4):
        G(f"""
        v_subrev_u32 {v(t1)}, {r}, {v(t3)}
        v_cmp_ge_u32 vcc, 7, {v(t1)}
        v_cndmask_b32 {v(BIAS+r)}, {v(t4)}, 0, vcc
        v_cmp_ge_i32 vcc, -9, {v(t1)}
        v_cndmask_b32 {v(BIAS+4+r)}, {v(t4)}, 0, vcc
        """)
    G(f"""
    v_lshlrev_b32 {v(t1)}, 2, {v(t2)}
    v_lshlrev_b32 {v(t3)}, 1, {v(t0)}
    v_sub_u32 {v(t3)}, {v(t1)}, {v(t3)}
    v_subrev_u32 {v(t3)}, {s(sT0)}, {v(t3)}
    """)
    for p in range(2):
        for r in range(4):
            if (r - p) & 1: G(f"v_mov_b32 {v(BIAS+8+4*p+r)}, {v(t4)}")
            else:
                G(f"""
                v_cmp_le_i32 vcc, {-(r-p)}, {v(t3)}
                v_cndmask_b32 {v(BIAS+8+4*p+r)}, {v(t4)}, 0, vcc
                """)
    w3_setup(G)
    G(f"""
    v_lshrrev_b32 {v(t0)}, 4, {v(vL)}
    v_and_b32 {v(t1)}, 15, {v(vL)}
    v_lshlrev_b32 {v(vWoff)}, 12, {v(t0)}
    v_lshl_add_u32 {v(vWoff)}, {v(t1)}, 3, {v(vWoff)}
    s_lshl_b32 {s(sT0)}, {s(sCB)}, 7
    v_add_u32 {v(vWoff)}, {s(sT0)}, {v(vWoff)}
    s_lshl_b32 {s(sT1)}, {s(sW)}, 2
    """)
    for j in range(4):
        G(f"""
        s_add_u32 {s(sT0)}, {s(sRBL)}, {j}
        s_and_b32 {s(sT0)}, {s(sT0)}, 3
        s_add_u32 {s(sT0)}, {s(sT0)}, {s(sT1)}
        s_lshl_b32 {s(sKO+j)}, {s(sT0)}, 10
        """)
    def reads(F, kh):
        xs = [f"ds_read_b128 {v(F+4*T,4)}, {v(vXa1 if kh else vXa0)} offset:{T*2048}" for T in range(5)]
        ws = []
        for sct in range(3):
            for half in range(2):
                ws.append(f"ds_read_b64_tr_b16 {v(F+20+4*sct+2*half,2)}, {v(vWa)} offset:{kh*12288+sct*1024+half*512}")
        return ws[:2] + xs[:1] + ws[2:4] + xs[1:2] + ws[4:] + xs[2:]
    def mfmas(F):
        out = []
        for T in range(5):
            x = v(F+4*T, 4)
            out.append(f"v_mfma_f32_16x16x32_bf16 {v(Qa(T),4)}, {v(F+20,4)}, {x}, {v(Qa(T),4)}")
            out.append(f"v_mfma_f32_16x16x32_bf16 {v(Ka(T),4)}, {v(F+24,4)}, {x}, {v(Ka(T),4)}")
            out.append(f"v_mfma_f32_16x16x32_bf16 {v(Va(T),4)}, {x}, {v(F+28,4)}, {v(Va(T),4)}")
        return out
    def dots():
        out = []
        for j in range(4):
            for b in range(3):
                out.append(f"v_dot2c_f32_bf16 {v(SACC+2*b)}, {s(sONE)}, {v(SF+4*b+j)}\nv_dot2c_f32_bf16 {v(SACC+2*b+1)}, {v(SF+4*b+j)}, {v(SF+4*b+j)}")
        return out
    def advance():
        G(f"""
        s_add_u32 {s(sT4)}, {s(sSLOTR)}, {WSLOT}
        s_cmp_eq_u32 {s(sT4)}, {WRING + 3*WSLOT}
        s_cselect_b32 {s(sT4)}, {WRING}, {s(sT4)}
        s_sub_u32 {s(sT5)}, {s(sT4)}, {s(sSLOTR)}
        s_mov_b32 {s(sSLOTR)}, {s(sT4)}
        s_waitcnt lgkmcnt(0)
        v_add_u32 {v(vWa)}, {s(sT5)}, {v(vWa)}
        v_add_u32 {v(vXa0)}, {XCH}, {v(vXa0)}
        v_add_u32 {v(vXa1)}, {XCH}, {v(vXa1)}
        v_add_u32 {v(vSa)}, {XCH}, {v(vSa)}
        v_add_u32 {v(vSh)}, {XCH}, {v(vSh)}
        """)
    def first_half(fill=()):
        for x in reads(FB, 1): G(x)
        G(f"""
        ds_read_b128 {v(SF,4)}, {v(vSa)}
        ds_read_b128 {v(SF+4,4)}, {v(vSa)} offset:1024
        ds_read_b128 {v(SF+8,4)}, {v(vSh)}
        s_waitcnt lgkmcnt(14)
        """)
        spread(G, mfmas(FA), list(fill))
        advance()
    G(f"""
    s_mov_b32 {s(sI)}, 0
    s_mov_b32 {s(sSLOTR)}, {WRING}
    s_waitcnt vmcnt(18) lgkmcnt(0)
    s_barrier
    """)
    G.stamp()
    for x in reads(FA, 0): G(x)
    A.label("P1_LOOP")
    first_half()
    G("""
    s_waitcnt vmcnt(9)
    s_barrier
    """)
    for x in reads(FA, 0): G(x)
    mf = mfmas(FB); dd = dots()
    dm = dma_chunk()
    fill = []
    for i in range(12):
        fill.append(dd[i])
        if i < 9: fill.append(dm[i])
    spread(G, mf, fill)
    G(f"""
    s_add_u32 {s(sI)}, {s(sI)}, 1
    s_cmp_lt_u32 {s(sI)}, 5
    s_cbranch_scc1 P1_LOOP
    """)
    G.vm = 18; G.tags['c6'] = 9; G.tags['c7'] = 18
    t5 = 5
    G(f"""
    s_lshl_b32 {s(sT0)}, {s(sRB)}, 6
    s_lshr_b32 {s(sT2)}, {s(sW)}, 1
    s_lshl_b32 {s(sT2)}, {s(sT2)}, 5
    s_add_u32 {s(sT0)}, {s(sT0)}, {s(sT2)}
    s_and_b32 {s(sT2)}, {s(sW)}, 1
    s_add_u32 {s(sT0)}, {s(sT0)}, {s(sT2)}
    s_lshl_b32 {s(sT0)}, {s(sT0)}, 10
    s_lshl_b32 {s(sT2)}, {s(sCB)}, 7
    s_add_u32 {s(sT0)}, {s(sT0)}, {s(sT2)}
    v_and_b32 v2, 15, v0
    v_lshlrev_b32 v2, 11, v2
    v_lshrrev_b32 v3, 4, v0
    v_lshl_add_u32 v1, v3, 5, v2
    v_add_u32 v1, {s(sT0)}, v1
    """)
    first_half(wraw_loads(SWO, sKO+0, RAW)); G.tag('wo0')
    G.wait_tag('c6'); G("s_barrier")
    for x in reads(FA, 0): G(x)
    spread(G, mf, dd + wraw_loads(SWO, sKO+1, RAW+16)); G.tag('wo1')
    first_half(w3_dma(0, 0))
    G.wait_tag('wo0')
    G("s_barrier")
    for x in reads(FA, 0): G(x)
    spread(G, mf, dd + wraw_perms(RAW, aWO, 2) + wraw_loads(SWO, sKO+2, RAW)); G.tag('wo2')
    for x in reads(FB, 1): G(x)
    G(f"""
    ds_read_b128 {v(SF,4)}, {v(vSa)}
    ds_read_b128 {v(SF+4,4)}, {v(vSa)} offset:1024
    ds_read_b128 {v(SF+8,4)}, {v(vSh)}
    """)
    G.wait_tag('wo1', 'lgkmcnt(14)')
    spread(G, mfmas(FA), wraw_perms(RAW+16, aWO+16, 2) + wraw_loads(SWO, sKO+3, RAW+16)); G.tag('wo3')
    G("s_waitcnt lgkmcnt(0)")
    xl = [f"buffer_load_dwordx4 {R(aXR,4)}, v1, {s(SX,4)}, 0 offen", f"buffer_load_dwordx4 {R(aXR+4,4)}, v1, {s(SX,4)}, 0 offen offset:16",
          f"s_lshl_b32 {s(sT0)}, {s(sG)}, 3\nv_mov_b32 v5, {s(sT0)}\nbuffer_load_dwordx2 {v(vFE,2)}, v5, {s(SDBG,4)}, 0 offen sc1"]
    spread(G, mf, dd + xl); G.tag('reg')
    for x in w3_dma(1, 1): G(x)
    G.stamp()
    A.c("---- P1 epilogue: row stats")
    for dpp in ("quad_perm:[1,0,3,2]", "quad_perm:[2,3,0,1]", "row_half_mirror"):
        for i in range(6):
            G(f"v_add_f32_dpp {v(SACC+i)}, {v(SACC+i)}, {v(SACC+i)} {dpp} row_mask:0xf bank_mask:0xf")
    G(f"""
    s_mov_b32 {s(sT0)}, 0x3b000000
    s_mov_b32 {s(sT1)}, 0x3727c5ac
    """)
    B3 = range(3)
    for b in B3: G(f"v_pk_mul_f32 {v(SACC+2*b,2)}, {v(SACC+2*b,2)}, {s(sT0,2)} op_sel:[0,0] op_sel_hi:[1,0]")
    for b in B3: G(f"v_fma_f32 {v(SACC+2*b+1)}, -{v(SACC+2*b)}, {v(SACC+2*b)}, {v(SACC+2*b+1)}")
    for b in B3: G(f"v_max_f32 {v(SACC+2*b+1)}, 0, {v(SACC+2*b+1)}")
    for b in B3: G(f"v_add_f32 {v(SACC+2*b+1)}, {s(sT1)}, {v(SACC+2*b+1)}")
    for b in B3: G(f"v_rsq_f32 {v(SACC+2*b+1)}, {v(SACC+2*b+1)}")
    G(f"""
    v_lshrrev_b32 {v(t1)}, 3, {v(vL)}
    v_lshlrev_b32 {v(t1)}, 2, {v(t1)}
    s_lshl_b32 {s(sT0)}, {s(sW)}, 6
    s_add_u32 {s(sT0)}, {s(sT0)}, {STATS1}
    v_add_u32 {v(t2)}, {s(sT0)}, {v(t1)}
    s_lshl_b32 {s(sT0)}, {s(sW)}, 4
    s_add_u32 {s(sT0)}, {s(sT0)}, {STATS1 + 256}
    v_add_u32 {v(t3)}, {s(sT0)}, {v(t1)}
    """)
    for b in B3: G(f"v_mul_f32 {v(SACC+2*b)}, -{v(SACC+2*b)}, {v(SACC+2*b+1)}")
    G(f"""
    ds_write_b32 {v(t2)}, {v(SACC+1)}
    ds_write_b32 {v(t2)}, {v(SACC)} offset:512
    ds_write_b32 {v(t2)}, {v(SACC+3)} offset:32
    ds_write_b32 {v(t2)}, {v(SACC+2)} offset:544
    s_mov_b32 exec_hi, 0
    ds_write_b32 {v(t3)}, {v(SACC+5)}
    ds_write_b32 {v(t3)}, {v(SACC+4)} offset:512
    s_mov_b64 exec, -1
    v_and_b32 {v(t1)}, 15, {v(vL)}
    v_lshlrev_b32 {v(t1)}, 2, {v(t1)}
    v_add_u32 {v(t1)}, {STATS1}, {v(t1)}
    v_lshrrev_b32 {v(t2)}, 4, {v(vL)}
    v_lshlrev_b32 {v(t2)}, 4, {v(t2)}
    v_add_u32 {v(t2)}, {STATS1}, {v(t2)}
    """)
    LA = 16; LBa = 28; LBb = 48
    CSQ, CSK, CSV = 68, 72, 76
    TMP = 80
    for r in range(4):
        G(f"v_mov_b32_dpp {v(CSQ+r)}, {v(Qa(4)+r)} row_newbcast:0 row_mask:0xf bank_mask:0xf")
        G(f"v_mov_b32_dpp {v(CSK+r)}, {v(Ka(4)+r)} row_newbcast:0 row_mask:0xf bank_mask:0xf")
    G(f"""
    v_mov_b32 {v(CSV)}, {v(Va(4))}
    v_mov_b32 {v(CSV+1)}, {v(Va(4))}
    s_waitcnt lgkmcnt(0)
    s_barrier
    """)
    for T in range(5):
        G(f"ds_read2_b32 {v(LA+2*T,2)}, {v(t1)} offset0:{T*16} offset1:{T*16+128}")
    for T in range(5):
        G(f"ds_read_b128 {v(LBa+4*T,4)}, {v(t2)} offset:{T*64}")
        G(f"ds_read_b128 {v(LBb+4*T,4)}, {v(t2)} offset:{T*64+512}")
    G(f"""
    v_permlane16_swap_b32 {v(CSV)}, {v(CSV+1)}
    v_mov_b32 {v(CSV+1)}, {v(CSV)}
    v_permlane32_swap_b32 {v(CSV)}, {v(CSV+1)}
    v_mov_b32 {v(CSV+1)}, {v(CSV)}
    s_waitcnt lgkmcnt(10)
    """)
    QP = 176; KP = 184; VP = 196
    vpos = {2: 0, 0: 2, 4: 4, 1: 6, 3: 8}
    def norm_qk(acc, cs, T, dst, tmp):
        ab = v(LA+2*T, 2)
        for hlf in range(2):
            G(f"v_pk_mul_f32 {v(tmp+2*hlf,2)}, {v(cs+2*hlf,2)}, {ab} op_sel:[0,1] op_sel_hi:[1,1]")
        for hlf in range(2):
            G(f"v_pk_fma_f32 {v(acc+2*hlf,2)}, {v(acc+2*hlf,2)}, {ab}, {v(tmp+2*hlf,2)} op_sel:[0,0,0] op_sel_hi:[1,0,1]")
        for hlf in range(2):
            G(f"v_cvt_pk_bf16_f32 {v(dst+hlf)}, {v(acc+2*hlf)}, {v(acc+2*hlf+1)}")
    for T in range(5):
        norm_qk(Ka(T), CSK, T, KP+2*T, TMP)
        if T < 4: norm_qk(Qa(T), CSQ, T, QP+2*T, TMP+4)
    SC = lambda T: ACC + 8*T
    for T in range(4):
        prev = T - 2 if T >= 2 else 4
        bprev = BIAS + 4 if T >= 2 else BIAS + 8 + 4*T
        G(f"v_mfma_f32_16x16x16_bf16 {v(SC(T),4)}, {v(KP+2*T,2)}, {v(QP+2*T,2)}, {v(BIAS,4)}")
        G(f"v_mfma_f32_16x16x16_bf16 {v(SC(T)+4,4)}, {v(KP+2*prev,2)}, {v(QP+2*T,2)}, {v(bprev,4)}")
    G("s_waitcnt lgkmcnt(0)")
    for T in range(5):
        acc = Va(T)
        tmp = TMP + 4*(T & 1)
        for hlf in range(2):
            G(f"v_pk_mul_f32 {v(tmp+2*hlf,2)}, {v(LBb+4*T+2*hlf,2)}, {v(CSV,2)}")
        for hlf in range(2):
            G(f"v_pk_fma_f32 {v(acc+2*hlf,2)}, {v(acc+2*hlf,2)}, {v(LBa+4*T+2*hlf,2)}, {v(tmp+2*hlf,2)}")
        for hlf in range(2):
            G(f"v_cvt_pk_bf16_f32 {v(VP+vpos[T]+hlf)}, {v(acc+2*hlf)}, {v(acc+2*hlf+1)}")
    MX = 16; M2 = 20; SM = 24; S2 = 28
    PP = 32
    G(f"s_mov_b32 {s(sT0)}, 0x3eb8aa3b")
    for T in range(4):
        b = SC(T)
        G(f"""
        v_max3_f32 {v(MX+T)}, {v(b)}, {v(b+1)}, {v(b+2)}
        v_max3_f32 {v(M2+T)}, {v(b+3)}, {v(b+4)}, {v(b+5)}
        """)
    for T in range(4):
        b = SC(T)
        G(f"v_max3_f32 {v(MX+T)}, {v(MX+T)}, {v(b+6)}, {v(b+7)}")
    for T in range(4): G(f"v_max_f32 {v(MX+T)}, {v(MX+T)}, {v(M2+T)}")
    def allreduce(X, Y, op):
        for T in range(4): G(f"v_mov_b32 {v(Y+T)}, {v(X+T)}")
        for T in range(4): G(f"v_permlane16_swap_b32 {v(X+T)}, {v(Y+T)}")
        for T in range(4): G(f"{op} {v(X+T)}, {v(X+T)}, {v(Y+T)}")
        for T in range(4): G(f"v_mov_b32 {v(Y+T)}, {v(X+T)}")
        for T in range(4): G(f"v_permlane32_swap_b32 {v(X+T)}, {v(Y+T)}")
        for T in range(4): G(f"{op} {v(X+T)}, {v(X+T)}, {v(Y+T)}")
    allreduce(MX, M2, "v_max_f32")
    for T in range(4): G(f"v_mul_f32 {v(MX+T)}, {s(sT0)}, {v(MX+T)}")
    for T in range(4):
        for i in range(8):
            G(f"v_fma_f32 {v(SC(T)+i)}, {v(SC(T)+i)}, {s(sT0)}, -{v(MX+T)}")
    for T in range(4):
        for i in range(8):
            G(f"v_exp_f32 {v(SC(T)+i)}, {v(SC(T)+i)}")
    OA = 48
    win = {2: 0, 0: 2, 1: 4, 3: 6}
    for T in range(4):
        b = SC(T)
        first, second = (b, b+4) if T in (0, 2) else (b+4, b)
        G(f"""
        v_cvt_pk_bf16_f32 {v(PP+4*T)}, {v(first)}, {v(first+1)}
        v_cvt_pk_bf16_f32 {v(PP+4*T+1)}, {v(first+2)}, {v(first+3)}
        v_cvt_pk_bf16_f32 {v(PP+4*T+2)}, {v(second)}, {v(second+1)}
        v_cvt_pk_bf16_f32 {v(PP+4*T+3)}, {v(second+2)}, {v(second+3)}
        """)
    for T in range(4):
        G(f"v_mfma_f32_16x16x32_bf16 {v(OA+4*T,4)}, {v(VP+win[T],4)}, {v(PP+4*T,4)}, 0")
    for T in range(4):
        b = SC(T)
        G(f"""
        v_pk_add_f32 {v(b,2)}, {v(b,2)}, {v(b+2,2)}
        v_pk_add_f32 {v(b+4,2)}, {v(b+4,2)}, {v(b+6,2)}
        """)
    for T in range(4):
        b = SC(T)
        G(f"v_pk_add_f32 {v(b,2)}, {v(b,2)}, {v(b+4,2)}")
    for T in range(4):
        b = SC(T)
        G(f"v_add_f32 {v(SM+T)}, {v(b)}, {v(b+1)}")
    allreduce(SM, S2, "v_add_f32")
    for T in range(4): G(f"v_rcp_f32 {v(SM+T)}, {v(SM+T)}")
    G.wait_tag('reg')
    G(f"s_mov_b32 {s(sCNT)}, 0")
    A.label("REGPOLL")
    A(f"""
    v_readfirstlane_b32 {s(sT0)}, {v(vFE)}
    v_readfirstlane_b32 {s(sT1)}, {v(vFE+1)}
    s_and_b32 {s(sT2)}, {s(sT0)}, 31
    s_cmp_eq_u32 {s(sT2)}, 16
    s_cbranch_scc1 REGOK
    s_add_u32 {s(sCNT)}, {s(sCNT)}, 1
    s_cmp_ge_u32 {s(sCNT)}, 20000
    s_cbranch_scc1 REGOK
    buffer_load_dwordx2 {v(vFE,2)}, v5, {s(SDBG,4)}, 0 offen sc1
    s_waitcnt vmcnt(0)
    s_branch REGPOLL
    """)
    A.label("REGOK")
    G(f"""
    s_bfe_u32 {s(sT2)}, {s(sT0)}, {5 | (7 << 16)}
    s_bfe_u32 {s(sT3)}, {s(sT0)}, {12 | (10 << 16)}
    s_mul_i32 {s(sT2)}, {s(sT2)}, {s(sT2)}
    s_lshl_b32 {s(sT3)}, {s(sT3)}, 4
    s_cmp_lg_u32 {s(sT2)}, {s(sT3)}
    s_cselect_b32 {s(sMODE)}, 1, {1 if G.cfg.force_slow else 0}
    s_and_b32 {s(sT0)}, {s(sT0)}, 0xffc00000
    s_or_b32 {s(sT0)}, {s(sT0)}, 0x5a5a0
    v_mov_b32 {v(vFE)}, {s(sT0)}
    v_mov_b32 {v(vFE+1)}, {s(sT1)}
    s_and_b32 {s(sT0)}, {s(sRB)}, 1
    s_lshl_b32 {s(sT0)}, {s(sT0)}, 16
    s_lshl_b32 {s(sT1)}, {s(sCB)}, 11
    s_add_u32 {s(sT0)}, {s(sT0)}, {s(sT1)}
    s_lshr_b32 {s(sT1)}, {s(sW)}, 1
    s_lshl_b32 {s(sT1)}, {s(sT1)}, 10
    s_add_u32 {s(sT0)}, {s(sT0)}, {s(sT1)}
    s_and_b32 {s(sT1)}, {s(sW)}, 1
    s_lshl_b32 {s(sT1)}, {s(sT1)}, 3
    s_add_u32 {s(sT0)}, {s(sT0)}, {s(sT1)}
    s_add_u32 {s(sT0)}, {s(sT0)}, {L.O_OFF}
    s_add_u32 {s(sT1)}, {s(sT0)}, 16384
    s_add_u32 {s(sT2)}, {s(sT0)}, 32768
    s_add_u32 {s(sT3)}, {s(sT0)}, 49152
    """)
    for T in range(4):
        for h in range(2):
            G(f"v_pk_mul_f32 {v(OA+4*T+2*h,2)}, {v(OA+4*T+2*h,2)}, {v(SM+T-(T&1),2)} op_sel:[0,{T&1}] op_sel_hi:[1,{T&1}]")
    for T in range(4):
        G(f"""
        v_cvt_pk_bf16_f32 {v(OA+4*T)}, {v(OA+4*T)}, {v(OA+4*T+1)}
        v_cvt_pk_bf16_f32 {v(OA+4*T+1)}, {v(OA+4*T+2)}, {v(OA+4*T+3)}
        """)
    stores(G, [f"buffer_store_dwordx2 {v(OA+4*T,2)}, {v(vL16)}, {s(SWS,4)}, {s(sT0+T)} offen" for T in range(4)], "ST1")
    G.stamp()
    signal(G, 0)
    G.stamp()

def colsum_mfmas(wreg):
    return [f"v_mfma_f32_16x16x32_bf16 {v(CS+4*k,4)}, {R(wreg+4*k,4)}, {v(ONES,4)}, {v(CS+4*k,4)}" for k in range(3)]

def service(G, chunks):
    G("s_barrier")
    for ri, slot in chunks:
        if slot == 3:
            for va in (vX3, vY3, vZ3): G(f"v_add_u32 {v(va)}, {W3SL}, {v(va)}")
        for u in range(2):
            emit_w3_reads(G, aW3 + 24*ri + 12*u, slot if slot < 3 else 2, u)
        if slot == 3:
            G("s_waitcnt lgkmcnt(0)")
            for va in (vX3, vY3, vZ3): G(f"v_subrev_u32 {v(va)}, {W3SL}, {v(va)}")
        G("s_waitcnt lgkmcnt(0)")
    for ri, slot in chunks:
        for u in range(2):
            for x in colsum_mfmas(aW3 + 24*ri + 12*u): G(x)

def ksplit_core(G, nks, wreg, afr, a_base, a_tile_stride, after_issue, ACC=16, RED=80):
    vAo = [6, 7, 8, 9]
    t2 = 10; vRd = 11
    G(f"""
    s_and_b32 {s(sT1)}, {s(sRB)}, 1
    s_lshl_b32 {s(sT1)}, {s(sT1)}, 2
    """)
    for u in range(4):
        G(f"""
        s_add_u32 {s(sT0)}, {s(sW)}, {1+u}
        s_and_b32 {s(sT0)}, {s(sT0)}, 3
        s_add_u32 {s(sT0)}, {s(sT0)}, {s(sT1)}
        s_mul_i32 {s(sT0)}, {s(sT0)}, {a_tile_stride}
        s_add_u32 {s(sT0)}, {s(sT0)}, {a_base}
        v_add_u32 {v(vAo[u])}, {s(sT0)}, {v(vL16)}
        """)
    return vAo

def gen_p2(G):
    A = G.A
    ACC, RED = 16, 80
    A.c("---- service 1 / remaining Wo perms")
    for x in wraw_perms(RAW, aWO+32, 2) + wraw_perms(RAW+16, aWO+48, 2): G(x)
    w3_read_setup(G)
    for i in range(4): G(f"v_mov_b32 {v(ONES+i)}, {s(sONE)}")
    for i in range(12): G(f"v_mov_b32 {v(CS+i)}, 0")
    service(G, [(0, 0), (1, 1)])
    vAo = ksplit_core(G, 4, None, None, L.O_OFF, 16384, None)
    G(f"""
    v_mov_b32 v12, v6
    v_mov_b32 v13, v7
    """)
    vAo = [12, 13, 8, 9]
    G.stamp()
    poll(G, 0)
    G.vm = 0
    G.stamp()
    afr = lambda u, j: aA2 + 4*(u*4 + j)
    for u in range(4):
        for j in range(4):
            G(f"buffer_load_dwordx4 {R(afr(u,j),4)}, {v(vAo[u])}, {s(SWS,4)}, {s(sKO+j)} offen sc1")
            G.tag(f"a2_{u}_{j}")
    pf = w3_dma(2, 2) + w3_dma(3, 3)
    if G.cfg.nb2 > 2:
        G("s_barrier")
        for c in range(4, 2 + G.cfg.nb2): pf += w3_dma(c, c - 4)
    pfi = 0
    per = (len(pf) + 15) // 16
    for u in range(4):
        for j in range(4):
            G.wait_tag(f"a2_{u}_{j}")
            for jt in range(4):
                c = "0" if j == 0 else v(ACC+16*u+4*jt, 4)
                G(f"v_mfma_f32_16x16x32_bf16 {v(ACC+16*u+4*jt,4)}, {R(aWO+16*j+4*jt,4)}, {R(afr(u,j),4)}, {c}")
            for _ in range(per):
                if pfi < len(pf): G(pf[pfi]); pfi += 1
            if j == 0 and u >= 1: red_write(G, u - 1, ACC)
            if u == 3 and j == 2: red_read(G, RED)
    XH = 128
    for i in range(8): G(f"v_accvgpr_read_b32 {v(XH+i)}, {R(aXR+i)}")
    F = ACC + 48
    for u in range(3):
        G(f"s_waitcnt lgkmcnt({8-4*u})")
        for i in range(8):
            G(f"v_pk_add_f32 {v(F+2*i,2)}, {v(F+2*i,2)}, {v(RED+16*u+2*i,2)}")
    OUTR = 136
    add_residual_pack(G, XH, F, OUTR, 16)
    sm, sq = 16, 17
    G(f"""
    s_and_b32 {s(sT0)}, {s(sRB)}, 1
    s_lshl_b32 {s(sT0)}, {s(sT0)}, 2
    s_add_u32 {s(sT0)}, {s(sT0)}, {s(sW)}
    s_lshl_b32 {s(sT1)}, {s(sT0)}, 10
    s_lshl_b32 {s(sT0)}, {s(sT0)}, 14
    s_lshl_b32 {s(sT2)}, {s(sCB)}, 11
    s_add_u32 {s(sT0)}, {s(sT0)}, {s(sT2)}
    s_add_u32 {s(sT0)}, {s(sT0)}, {L.H_OFF}
    s_lshl_b32 {s(sT2)}, {s(sCB)}, 3
    s_add_u32 {s(sT1)}, {s(sT1)}, {s(sT2)}
    s_add_u32 {s(sT1)}, {s(sT1)}, {L.ST_OFF}
    v_mov_b32 {v(sm)}, 0
    v_mov_b32 {v(sq)}, 0
    """)
    stores(G, [f"buffer_store_dwordx4 {v(OUTR,4)}, {v(vL16)}, {s(SWS,4)}, {s(sT0)} offen",
               f"buffer_store_dwordx4 {v(OUTR+4,4)}, {v(vL16)}, {s(SWS,4)}, {s(sT0)} offen offset:1024"], "ST2")
    for i in range(8):
        G(f"v_dot2c_f32_bf16 {v(sm)}, {s(sONE)}, {v(OUTR+i)}")
        G(f"v_dot2c_f32_bf16 {v(sq)}, {v(OUTR+i)}, {v(OUTR+i)}")
    G(f"""
    v_and_b32 v2, 15, v0
    v_lshlrev_b32 v2, 6, v2
    v_lshrrev_b32 v3, 5, v0
    v_lshl_add_u32 v2, v3, 2, v2
    v_permlane32_swap_b32 {v(sm)}, {v(sq)}
    v_add_f32 {v(sm)}, {v(sm)}, {v(sq)}
    v_mov_b32 {v(sq)}, {v(sm)}
    v_permlane16_swap_b32 {v(sm)}, {v(sq)}
    v_add_f32 {v(sm)}, {v(sm)}, {v(sq)}
    """)
    stores(G, [f"buffer_store_dword {v(sm)}, v2, {s(SWS,4)}, {s(sT1)} offen"], "ST2B")
    for i in range(8): G(f"v_accvgpr_write_b32 {R(aH+i)}, {v(OUTR+i)}")
    G.stamp()
    signal(G, 1)
    G.stamp()

def red_write(G, u, ACC):
    G(f"""
    s_add_u32 {s(sT5)}, {s(sW)}, {1+u}
    s_and_b32 {s(sT5)}, {s(sT5)}, 3
    s_mul_i32 {s(sT5)}, {s(sT5)}, 12288
    s_add_u32 {s(sT5)}, {s(sT5)}, {RING}
    v_add_u32 v10, {s(sT5)}, {v(vL16)}
    """)
    for jt in range(4):
        G(f"ds_write_b128 v10, {v(ACC+16*u+4*jt,4)} offset:{u*4096+jt*1024}")

def red_read(G, RED):
    G(f"""
    s_mul_i32 {s(sT5)}, {s(sW)}, 12288
    s_add_u32 {s(sT5)}, {s(sT5)}, {RING}
    v_add_u32 v10, {s(sT5)}, {v(vL16)}
    s_waitcnt lgkmcnt(0)
    s_barrier
    """)
    for i in range(12): G(f"ds_read_b128 {v(RED+4*i,4)}, v10 offset:{i*1024}")

def add_residual_pack(G, XH, F, OUTR, tmp):
    for r in range(4):
        for hf in range(2):
            x = XH + 2*r + hf
            lo, hi = F + 4*(2*hf) + r, F + 4*(2*hf+1) + r
            t = tmp + 2*((2*r+hf) & 1)
            G(f"""
            v_lshlrev_b32 {v(t)}, 16, {v(x)}
            v_and_b32 {v(t+1)}, 0xffff0000, {v(x)}
            v_add_f32 {v(lo)}, {v(lo)}, {v(t)}
            v_add_f32 {v(hi)}, {v(hi)}, {v(t+1)}
            """)
    for r in range(4):
        for hf in range(2):
            lo, hi = F + 4*(2*hf) + r, F + 4*(2*hf+1) + r
            G(f"v_cvt_pk_bf16_f32 {v(OUTR+2*r+hf)}, {v(lo)}, {v(hi)}")

def gen_p3(G):
    A = G.A; cfg = G.cfg
    ACC = 16
    ST = 112
    SL = 128
    TMP = 136
    FA3, FB3 = AG + 0, AG + 32
    vAr = 14
    sA3 = 81
    A.c("---- service 2")
    service(G, [(2, 2), (3, 3)])
    G(f"""
    s_cmp_eq_u32 {s(sW)}, 3
    s_cselect_b32 {s(sT1)}, 10, 11
    s_mul_i32 {s(sT0)}, {s(sRBL)}, 3
    s_mul_i32 {s(sT2)}, {s(sW)}, 11
    """)
    for j in range(11):
        G(f"""
        s_add_u32 {s(sT3)}, {s(sT0)}, {s(sT2)}
        s_lshl_b32 {s(sKO+j)}, {s(sT3)}, 10
        s_add_u32 {s(sT0)}, {s(sT0)}, 1
        s_cmp_eq_u32 {s(sT0)}, {s(sT1)}
        s_cselect_b32 {s(sT0)}, 0, {s(sT0)}
        """)
    sKW10 = 82
    G(f"""
    s_cmp_eq_u32 {s(sW)}, 3
    s_cselect_b32 {s(sKW10)}, {43*1024}, {s(sKO+10)}
    v_add_u32 {v(vAr)}, {RING}, {v(vL16)}
    s_lshl_b32 {s(sA3)}, {s(sW)}, 15
    s_add_u32 {s(sA3)}, {s(sA3)}, {L.H_OFF}
    v_and_b32 v8, 15, v0
    v_lshrrev_b32 v9, 4, v0
    v_lshlrev_b32 v12, 6, v8
    v_lshl_add_u32 v12, v9, 4, v12
    s_barrier
    """)
    for i in range(96): G(f"v_mov_b32 {v(ACC+i)}, 0")
    G.stamp()
    poll(G, 1)
    G.vm = 0
    G.stamp()
    def a_dma(c):
        r = RING + (c % 3) * 16384
        g = []
        g.append(f"""
        s_add_u32 {s(sT0)}, {s(sROT3)}, {c}
        s_and_b32 {s(sT0)}, {s(sT0)}, 7
        s_lshl_b32 {s(sT0)}, {s(sT0)}, 11
        s_add_u32 {s(sT0)}, {s(sT0)}, {s(sA3)}
        s_lshl_b32 {s(sT1)}, {s(sW)}, 12
        s_add_u32 m0, {s(sT1)}, {r}
        s_add_u32 {s(sT4)}, {s(sT0)}, 16384
        buffer_load_dwordx4 {v(vL16)}, {s(SWS,4)}, {s(sT0)} offen sc1 lds
        """)
        g.append(f"buffer_load_dwordx4 {v(vL16)}, {s(SWS,4)}, {s(sT0)} offen offset:1024 sc1 lds")
        g.append(f"""
        s_add_u32 m0, {s(sT1)}, {r + 2048}
        s_nop 0
        buffer_load_dwordx4 {v(vL16)}, {s(SWS,4)}, {s(sT4)} offen sc1 lds
        """)
        g.append(f"buffer_load_dwordx4 {v(vL16)}, {s(SWS,4)}, {s(sT4)} offen offset:1024 sc1 lds")
        return g
    for c in range(3):
        for x in a_dma(c): G(x)
        G.tag(f"a3_{c}")
        if c == 0:
            G(f"""
            s_lshl_b32 {s(sT0)}, {s(sW)}, 11
            s_add_u32 {s(sT0)}, {s(sT0)}, {L.ST_OFF}
            buffer_load_dwordx4 {v(SL,4)}, v12, {s(SWS,4)}, {s(sT0)} offen sc1
            buffer_load_dwordx4 {v(SL+4,4)}, v12, {s(SWS,4)}, {s(sT0)} offen offset:1024 sc1
            """)
            G.tag("st")
    done_w3 = 2 + cfg.nb2
    pf = []
    for c in range(done_w3, 8):
        gs = w3_dma(c, c - 4)
        for i, x in enumerate(gs): pf.append((x, f"w3_{c}" if i == 5 else None))
    for c in range(4, done_w3): G.tags[f"w3_{c}"] = 0
    def areads(F, c, u):
        r = (c % 3) * 16384
        return [f"ds_read_b128 {R(F+4*t,4)}, {v(vAr)} offset:{r + (t*2+u)*1024}" for t in range(8)]
    def wsrc(c, u):
        return (aW3 + 24*c + 12*u) if c < 4 else (aJIT + 12*u)
    def mfmas(F, c, u):
        out = []
        w = wsrc(c, u)
        for t in range(8):
            for k in range(3):
                out.append(f"v_mfma_f32_16x16x32_bf16 {v(ACC+12*t+4*k,4)}, {R(w+4*k,4)}, {R(F+4*t,4)}, {v(ACC+12*t+4*k,4)}")
        if c >= 4: out += colsum_mfmas(w)
        return out
    def all_reads(F, c, u):
        n = 0
        if c >= 4:
            slot = c - 4
            if slot == 3 and u == 0:
                for va in (vX3, vY3, vZ3): G(f"v_add_u32 {v(va)}, {W3SL}, {v(va)}")
            emit_w3_reads(G, aJIT + 12*u, min(slot, 2), u); n += 6
        for x in areads(F, c, u): G(x)
        return n + 8
    wd_load_hs = {0: 3, 1: 4, 2: 5, 3: 6, 4: 7, 5: 8, 6: 9, 7: 10, 8: 11, 9: 12, 10: 13}
    wd_perm_hs = {j: h + 2 for j, h in wd_load_hs.items()}
    pfi = 0
    G.wait_tag("a3_0"); G("s_barrier")
    G.stamp()
    all_reads(FA3, 0, 0)
    for c in range(8):
        for u in range(2):
            hs = 2*c + u
            F, Fn = (FA3, FB3) if u == 0 else (FB3, FA3)
            fill = []
            if u == 0:
                n = all_reads(Fn, c, 1)
                G(f"s_waitcnt lgkmcnt({n})")
            else:
                G("s_waitcnt lgkmcnt(0)")
                if c < 7:
                    need = [f"a3_{c+1}"] + ([f"w3_{c+1}"] if c + 1 >= 4 else [])
                    tg = max(need, key=lambda n_: G.tags[n_])
                    G.wait_tag(tg); G("s_barrier")
                    all_reads(Fn, c+1, 0)
                    if c + 3 < 8:
                        fill += [(x, f"a3_{c+3}" if i == 3 else None) for i, x in enumerate(a_dma(c+3))]
            if hs == 1:
                stats3 = f"""
                v_add_f32 {v(SL)}, {v(SL)}, {v(SL+2)}
                v_add_f32 {v(SL+1)}, {v(SL+1)}, {v(SL+3)}
                v_add_f32 {v(SL+4)}, {v(SL+4)}, {v(SL+6)}
                v_add_f32 {v(SL+5)}, {v(SL+5)}, {v(SL+7)}
                v_permlane32_swap_b32 {v(SL)}, {v(SL+4)}
                v_permlane32_swap_b32 {v(SL+1)}, {v(SL+5)}
                v_add_f32 {v(SL)}, {v(SL)}, {v(SL+4)}
                v_add_f32 {v(SL+1)}, {v(SL+1)}, {v(SL+5)}
                v_mov_b32 {v(SL+2)}, {v(SL)}
                v_mov_b32 {v(SL+3)}, {v(SL+1)}
                v_permlane16_swap_b32 {v(SL)}, {v(SL+2)}
                v_permlane16_swap_b32 {v(SL+1)}, {v(SL+3)}
                v_add_f32 {v(SL)}, {v(SL)}, {v(SL+2)}
                v_add_f32 {v(SL+1)}, {v(SL+1)}, {v(SL+3)}
                v_mul_f32 {v(SL)}, 0x3b000000, {v(SL)}
                v_mul_f32 {v(SL+1)}, 0x3b000000, {v(SL+1)}
                v_fma_f32 {v(SL+1)}, -{v(SL)}, {v(SL)}, {v(SL+1)}
                v_max_f32 {v(SL+1)}, 0, {v(SL+1)}
                v_add_f32 {v(SL+1)}, 0x3727c5ac, {v(SL+1)}
                v_rcp_f32 {v(SL+1)}, {v(SL+1)}
                v_sub_f32 {v(SL)}, 0, {v(SL)}
                v_lshrrev_b32 v2, 5, v0
                v_lshlrev_b32 v2, 7, v2
                v_lshl_add_u32 v2, v8, 3, v2
                s_lshl_b32 {s(sT5)}, {s(sW)}, 8
                s_add_u32 {s(sT5)}, {s(sT5)}, {STATS3}
                v_add_u32 v2, {s(sT5)}, v2
                v_lshlrev_b32 v13, 3, v8
                v_add_u32 v13, {STATS3}, v13
                """
                fill += [(x.strip(), None) for x in stats3.strip().split('\n')]
            if hs == 2:
                fill.append((f"ds_write_b64 v2, {v(SL,2)}", None))
            for _ in range(6):
                if pfi < len(pf): fill.append(pf[pfi]); pfi += 1
            for j, h in wd_perm_hs.items():
                if h == hs:
                    fill.append((('WAIT', f"wd_{j}"), None))
                    fill += [(x, None) for x in wraw_perms(RAW + 16*(j & 1), WD_SLOT[j], TMP)]
            for j, h in wd_load_hs.items():
                if h == hs:
                    gl = wraw_loads(SWD, sKW10 if j == 10 else sKO + j, RAW + 16*(j & 1))
                    fill += [(x, f"wd_{j}" if i == 7 else None) for i, x in enumerate(gl)]
            mf = mfmas(F, c, u)
            n, m = len(mf), len(fill); fi = 0
            for i, x in enumerate(mf):
                G(x)
                while fi < m and fi * n < (i + 1) * m:
                    it, tg = fill[fi]; fi += 1
                    if isinstance(it, tuple): G.wait_tag(it[1])
                    else: G(it)
                    if tg: G.tag(tg)
            assert fi == m
    G.stamp()
    A.c("---- P3 epilogue")
    for t in range(8): G(f"ds_read_b64 {v(ST+2*t,2)}, v13 offset:{t*128}")
    G(f"""
    s_mul_i32 {s(sT0)}, {s(sM)}, 3072
    s_add_u32 {s(sT0)}, {s(sT0)}, {L.HH_OFF}
    s_lshr_b32 {s(sT1)}, {s(sW)}, 1
    s_lshl_b32 {s(sT2)}, {s(sT1)}, 10
    s_add_u32 {s(sT2)}, {s(sT2)}, {s(sT0)}
    s_and_b32 {s(sT3)}, {s(sW)}, 1
    s_lshl_b32 {s(sT4)}, {s(sT3)}, 3
    s_add_u32 {s(sT2)}, {s(sT2)}, {s(sT4)}
    s_lshl_b32 {s(sT1)}, {s(sT1)}, 3
    s_add_u32 {s(sT0)}, {s(sT0)}, {s(sT1)}
    s_lshl_b32 {s(sT3)}, {s(sT3)}, 9
    s_add_u32 {s(sT0)}, {s(sT0)}, {s(sT3)}
    s_add_u32 {s(sT0)}, {s(sT0)}, 2048
    v_and_b32 v2, 31, v0
    v_lshlrev_b32 v2, 4, v2
    v_lshrrev_b32 v3, 5, v0
    v_mul_u32_u24 v3, {43*1024}, v3
    v_add_u32 v2, v2, v3
    s_mov_b32 vcc_lo, -1
    s_mov_b32 vcc_hi, 0
    s_waitcnt lgkmcnt(0)
    """)
    xy_st = []; z_st = []
    for t in range(8):
        X, Y = ACC+12*t, ACC+12*t+4
        st = v(ST+2*t, 2)
        for h in range(2):
            G(f"v_pk_fma_f32 {v(X+2*h,2)}, {v(CS+2*h,2)}, {st}, {v(X+2*h,2)} op_sel:[0,0,0] op_sel_hi:[1,0,1]")
            G(f"v_pk_fma_f32 {v(Y+2*h,2)}, {v(CS+4+2*h,2)}, {st}, {v(Y+2*h,2)} op_sel:[0,0,0] op_sel_hi:[1,0,1]")
        for i in range(4): G(f"v_max_f32 {v(X+i)}, 0, {v(X+i)}")
        for h in range(2): G(f"v_pk_mul_f32 {v(Y+2*h,2)}, {v(Y+2*h,2)}, {st} op_sel:[0,1] op_sel_hi:[1,1]")
        for h in range(2): G(f"v_pk_mul_f32 {v(X+2*h,2)}, {v(X+2*h,2)}, {v(Y+2*h,2)}")
        G(f"""
        v_cvt_pk_bf16_f32 {v(X)}, {v(X)}, {v(X+1)}
        v_cvt_pk_bf16_f32 {v(X+1)}, {v(X+2)}, {v(X+3)}
        """)
        xy_st += [f"buffer_store_dwordx2 {v(X,2)}, {v(vL16)}, {s(SWS,4)}, {s(sT2)} offen", f"s_add_u32 {s(sT2)}, {s(sT2)}, {43*1024}"]
    A(f"""
    s_lshl_b32 {s(sT4)}, {s(sM)}, 2
    s_add_u32 {s(sT4)}, {s(sT4)}, {s(sW)}
    s_cmp_ge_u32 {s(sT4)}, 58
    s_cbranch_scc1 ST3_DONE
    """)
    stores(G, xy_st, "ST3")
    for p in range(4):
        ZA, ZB = ACC+12*(2*p)+8, ACC+12*(2*p+1)+8
        for Z, t in ((ZA, 2*p), (ZB, 2*p+1)):
            st = v(ST+2*t, 2)
            for h in range(2):
                G(f"v_pk_fma_f32 {v(Z+2*h,2)}, {v(CS+8+2*h,2)}, {st}, {v(Z+2*h,2)} op_sel:[0,0,0] op_sel_hi:[1,0,1]")
        G(f"v_cndmask_b32 {v(TMP+2*(p&1))}, {v(ST+2*(2*p+1)+1)}, {v(ST+2*(2*p)+1)}, vcc")
        for i in range(4): G(f"v_permlane32_swap_b32 {v(ZA+i)}, {v(ZB+i)}")
        for i in range(4): G(f"v_max_f32 {v(ZA+i)}, 0, {v(ZA+i)}")
        for h in range(2): G(f"v_pk_mul_f32 {v(ZB+2*h,2)}, {v(ZB+2*h,2)}, {v(TMP+2*(p&1),2)} op_sel:[0,0] op_sel_hi:[1,0]")
        for h in range(2): G(f"v_pk_mul_f32 {v(ZA+2*h,2)}, {v(ZA+2*h,2)}, {v(ZB+2*h,2)}")
        G(f"""
        v_cvt_pk_bf16_f32 {v(ZA)}, {v(ZA)}, {v(ZA+1)}
        v_cvt_pk_bf16_f32 {v(ZA+1)}, {v(ZA+2)}, {v(ZA+3)}
        """)
        z_st += [f"buffer_store_dwordx2 {v(ZA,2)}, v2, {s(SWS,4)}, {s(sT0)} offen", f"s_add_u32 {s(sT0)}, {s(sT0)}, {2*43*1024}"]
    A(f"""
    s_cmp_ge_u32 {s(sM)}, 14
    s_cbranch_scc1 ST3Z_DONE
    """)
    stores(G, z_st, "ST3Z")
    G.stamp()
    signal(G, 2)
    G.stamp()

def gen_p4(G):
    A = G.A
    ACC, RED = 16, 80
    vAo = ksplit_core(G, 11, None, None, L.HH_OFF, 43*1024, None)
    G(f"""
    v_mov_b32 v12, v6
    v_mov_b32 v13, v7
    s_barrier
    """)
    vAo = [12, 13, 8, 9]
    poll(G, 2)
    G.vm = 0
    G.stamp()
    afr = lambda u, j: A4_FR[(u & 1) * 11 + j]
    def aload(u, j):
        G(f"buffer_load_dwordx4 {R(afr(u,j),4)}, {v(vAo[u])}, {s(SWS,4)}, {s(sKO+j)} offen sc1")
        G.tag(f"a4_{u}_{j}")
    for u in range(2):
        for j in range(11): aload(u, j)
    for u in range(4):
        for j in range(11):
            G.wait_tag(f"a4_{u}_{j}")
            for jt in range(4):
                c = "0" if j == 0 else v(ACC+16*u+4*jt, 4)
                G(f"v_mfma_f32_16x16x32_bf16 {v(ACC+16*u+4*jt,4)}, {R(WD_SLOT[j]+4*jt,4)}, {R(afr(u,j),4)}, {c}")
            if u < 2: aload(u + 2, j)
            if j == 2 and u >= 1: red_write(G, u - 1, ACC)
            if u == 3 and j == 6: red_read(G, RED)
    XH = 128
    for i in range(8): G(f"v_accvgpr_read_b32 {v(XH+i)}, {R(aH+i)}")
    F = ACC + 48
    G("s_waitcnt lgkmcnt(0)")
    for i in range(8): G(f"v_pk_add_f32 {v(RED+2*i,2)}, {v(RED+2*i,2)}, {v(RED+16+2*i,2)}")
    for i in range(8): G(f"v_pk_add_f32 {v(RED+2*i,2)}, {v(RED+2*i,2)}, {v(RED+32+2*i,2)}")
    for i in range(8): G(f"v_pk_add_f32 {v(F+2*i,2)}, {v(F+2*i,2)}, {v(RED+2*i,2)}")
    OUTR = 136
    add_residual_pack(G, XH, F, OUTR, 16)
    G(f"""
    buffer_store_dwordx4 {v(OUTR,4)}, v1, {s(SOUT,4)}, 0 offen
    buffer_store_dwordx4 {v(OUTR+4,4)}, v1, {s(SOUT,4)}, 0 offen offset:16
    """)
    G.stamp()

def main(path, cfg):
    G = Gen(cfg); A = G.A
    A.raw(HDR.rstrip('\n'))
    A.raw(f"; @launch grid=(256,1,1) block=(256,1,1) lds={LDS_TOTAL}")
    A.raw('.amdgcn_target "amdgcn-amd-amdhsa--gfx950"\n.text')
    n = NAME + "_kernel"
    A.raw(f".globl {n}\n.p2align 8\n.type {n},@function\n{n}:")
    prologue(G)
    gen_p1(G); gen_p2(G); gen_p3(G); gen_p4(G)
    A.label("K_END")
    A("s_endpgm")
    A.raw('.section .rodata,"a"\n.p2align 6')
    A.raw(f""".amdhsa_kernel {n}
  .amdhsa_next_free_vgpr 512
  .amdhsa_next_free_sgpr 102
  .amdhsa_accum_offset 256
  .amdhsa_group_segment_fixed_size 0
  .amdhsa_kernarg_size 80
  .amdhsa_user_sgpr_count 2
  .amdhsa_user_sgpr_kernarg_segment_ptr 1
  .amdhsa_system_sgpr_workgroup_id_x 1
.end_amdhsa_kernel""")
    open(path, 'w').write(A.finalize())
    print("stamps:", G.nstamp)

if __name__ == '__main__':
    cfg = Cfg()
    for a_ in sys.argv[2:]:
        k, val = a_.split('=')
        setattr(cfg, k, type(getattr(cfg, k))(int(val)))
    main(sys.argv[1], cfg)
```

```python
import numpy as np
GSTRIDE = 640 * 1024
O_OFF = 0
H_OFF = 128 * 1024
HH_OFF = 256 * 1024
ST_OFF = 600 * 1024
FL_OFF = 608 * 1024
STAMP_OFF = 16 * GSTRIDE
WS_USED = STAMP_OFF + 256 * 4 * 256

def bf2f(a16): return (a16.astype(np.uint32) << 16).view(np.float32)
def rows_of(G, t8):
    i = np.arange(16)
    return 128 * G + 64 * (t8 >> 2) + 32 * ((t8 >> 1) & 1) + 2 * i + (t8 & 1)
def std_cols(ks):
    g = np.arange(4)[:, None]; e = np.arange(8)[None, :]
    return 32 * ks + 16 * (e >> 2) + 4 * g + (e & 3)
def h_cols(ks):
    g = np.arange(4)[:, None]; e = np.arange(8)[None, :]
    return 64 * (ks >> 1) + 16 * g + 8 * (ks & 1) + e
def unpack(ws, off, nks, colf, ncol):
    out = np.full((2048, ncol), np.nan, np.float32)
    for G in range(16):
        blk = ws[G * GSTRIDE + off: G * GSTRIDE + off + 8 * nks * 1024].view(np.uint16).reshape(8, nks, 4, 16, 8)
        f = bf2f(blk)
        for t8 in range(8):
            r = rows_of(G, t8)
            for ks in range(nks):
                c = colf(ks)
                out[r[None, :, None], c[:, None, :]] = f[t8, ks]
    return out
def unpack_o(ws): return unpack(ws, O_OFF, 16, std_cols, 512)
def unpack_h(ws): return unpack(ws, H_OFF, 16, h_cols, 512)
def unpack_hh(ws): return unpack(ws, HH_OFF, 43, std_cols, 1376)
def unpack_st(ws):
    s = np.zeros(2048, np.float32); q = np.zeros(2048, np.float32)
    for G in range(16):
        blk = ws[G * GSTRIDE + ST_OFF: G * GSTRIDE + ST_OFF + 8192].view(np.float32).reshape(8, 16, 8, 2)
        for t8 in range(8):
            r = rows_of(G, t8)
            s[r] = blk[t8, :, :, 0].sum(1); q[r] = blk[t8, :, :, 1].sum(1)
    return s, q
def print_stamps(ws, n):
    st = ws[STAMP_OFF: STAMP_OFF + 256 * 4 * 256].view(np.uint64).reshape(256, 4, 32)[:, :, :n].astype(np.int64)
    t0 = st[:, :, 0].min()
    rel = (st - t0) * 0.01
    for w in range(4):
        print("wave", w, "mean:", " ".join("%.2f" % x for x in rel[:, w].mean(0)))
    print("all max :", " ".join("%.2f" % x for x in rel.reshape(-1, n).max(0)))
    print("all min :", " ".join("%.2f" % x for x in rel.reshape(-1, n).min(0)))

def print_cycles(ws, n):
    st = ws[STAMP_OFF: STAMP_OFF + 256 * 4 * 256].view(np.uint64).reshape(256, 4, 32)[:, :, :n].astype(np.int64)
    d = np.diff(st, axis=2)
    print("cycles mean per seg:", " ".join("%d" % x for x in d.reshape(-1, n-1).mean(0)))
    print("cycles min  per seg:", " ".join("%d" % x for x in d.reshape(-1, n-1).min(0)))
    print("cycles max  per seg:", " ".join("%d" % x for x in d.reshape(-1, n-1).max(0)))
    print("total mean", (st[:, :, -1] - st[:, :, 0]).mean())
```

```python
import sys
from asmlib import *
import layout as L

NAME = "sequential_preLN__sliding_local_dilated__glu_gated_reglu__prompt"
HDR = open('cdna_kernels/' + NAME + '.s.ref').read().split('; Override launch')[0]

class Cfg:
    stamps = 0
    nb2 = 2
    force_slow = False
    code_prefetch = True
    diag = 0

SX, SW1, SWO, SWG, SWU, SWD, SOUT, SWS, SDBG, SMU = 8, 12, 16, 20, 24, 28, 32, 36, 84, 88
sXCD, sIDX, sRBL, sCB, sW, sG, sRB, sM = 40, 41, 42, 43, 44, 45, 46, 47
sONE = 48
sMODE = 49
sT0, sT1, sT2, sT3, sT4, sT5 = 50, 51, 52, 53, 54, 55
sI = 56
sPLO, sPHI = 57, 58
sEXH = 60
sXOFF, sSLOTW, sSLOTR, sXL = 62, 63, 64, 65
sKO = 66
sCNT = 77
sROT3 = 78
sW3S = 79
sW3G = 80
sST = 92
sTS = 96

AG = 256

class Gen:
    def __init__(self, cfg):
        self.A = Asm(); self.cfg = cfg
        self.vm = 0
        self.tags = {}
        self.nstamp = 0
    def __call__(self, t):
        for ln in t.strip().split('\n'):
            ln = ln.strip()
            if not ln: continue
            self.A(ln)
            if ln.startswith(('buffer_', 'global_')): self.vm += 1
    def tag(self, name): self.tags[name] = self.vm
    def wait_tag(self, name, extra=''):
        n = self.vm - self.tags[name]
        assert n >= 0
        self.A(f"s_waitcnt vmcnt({min(n,63)}) {extra}".strip())
    def stamp(self):
        if not self.cfg.stamps: return
        i = self.nstamp; self.nstamp += 1
        self(f"""
        {'s_memtime' if self.cfg.stamps == 2 else 's_memrealtime'} {s(sTS,2)}
        s_waitcnt lgkmcnt(0)
        v_mov_b32 v254, {s(sTS)}
        v_mov_b32 v255, {s(sTS+1)}
        buffer_store_dwordx2 v[254:255], v253, {s(sST,4)}, 0 offen offset:{i*8}
        """)

XCH = 10240
WRING = 8 * XCH
WSLOT = 24576
STATS1 = WRING + 3 * WSLOT
W3SL = 24576
RING = 98304
STATS3 = 156672
LDS_TOTAL = 163840

vL = 0
vP3 = 240
vFE = 246
vL16 = 248
vWoff = 249
vFA = 250
RAW = 208
CS = 144
ONES = 156
aWO = AG + 0
aW3 = AG + 64
aA2 = AG + 160
aXR = AG + 224
aH = AG + 232
aJIT = AG + 160
WD_SLOT = [160, 176, 192, AG+184, AG+200, AG+240, AG+64, AG+80, AG+96, AG+112, AG+128]
A4_FR = [AG + 4*i for i in range(16)] + [AG + 144 + 4*i for i in range(6)]

def prologue(G):
    A = G
    A(f"""
    s_cmp_ge_u32 s2, 256
    s_cbranch_scc1 K_END
    s_load_dwordx16 s[64:79], s[0:1], 0
    s_load_dwordx4 s[80:83], s[0:1], 64
    s_memrealtime {s(sTS,2)}
    s_getreg_b32 {s(sT5)}, hwreg(HW_REG_XCC_ID, 0, 4)
    s_and_b32 {s(sXCD)}, s2, 7
    s_lshr_b32 {s(sIDX)}, s2, 3
    s_lshr_b32 {s(sRBL)}, {s(sIDX)}, 3
    s_and_b32 {s(sCB)}, {s(sIDX)}, 7
    s_and_b32 {s(sM)}, {s(sIDX)}, 15
    s_lshl_b32 {s(sRB)}, {s(sXCD)}, 2
    s_add_u32 {s(sRB)}, {s(sRB)}, {s(sRBL)}
    s_lshr_b32 {s(sG)}, {s(sRB)}, 1
    v_lshrrev_b32 v1, 6, v0
    v_and_b32 v0, 63, v0
    v_readfirstlane_b32 {s(sW)}, v1
    s_mov_b32 {s(sONE)}, 0x3f803f80
    s_mov_b32 {s(sPLO)}, 0x05040100
    s_mov_b32 {s(sPHI)}, 0x07060302
    v_lshlrev_b32 {v(vL16)}, 4, v0
    s_waitcnt lgkmcnt(0)
    """)
    for srd, src, size in ((SX, 64, 2048*1024), (SW1, 66, 512*3072), (SWO, 68, 512*1024), (SWG, 72, 512*2752),
                           (SWU, 74, 512*2752), (SWD, 76, 1376*1024), (SOUT, 78, 2048*1024), (SDBG, 80, 256)):
        A(f"""
        s_mov_b32 {s(srd)}, {s(src)}
        s_and_b32 {s(srd+1)}, {s(src+1)}, 0xffff
        s_mov_b32 {s(srd+2)}, {size}
        s_mov_b32 {s(srd+3)}, 0x20000
        """)
    A(f"""
    s_mul_i32 {s(sT0)}, {s(sG)}, {L.GSTRIDE}
    s_add_u32 {s(SWS)}, s82, {s(sT0)}
    s_addc_u32 {s(SWS+1)}, s83, 0
    s_and_b32 {s(SWS+1)}, {s(SWS+1)}, 0xffff
    s_mov_b32 {s(SWS+2)}, {L.GSTRIDE}
    s_mov_b32 {s(SWS+3)}, 0x20000
    s_bitcmp1_b32 {s(sW)}, 0
    s_cselect_b32 {s(SMU)}, {s(SWU)}, {s(SWG)}
    s_cselect_b32 {s(SMU+1)}, {s(SWU+1)}, {s(SWG+1)}
    s_mov_b32 {s(SMU+2)}, {512*2752}
    s_mov_b32 {s(SMU+3)}, 0x20000
    """)
    if G.cfg.stamps:
        A(f"""
        s_lshl_b32 {s(sT0)}, s2, 10
        s_lshl_b32 {s(sT1)}, {s(sW)}, 8
        s_add_u32 {s(sT0)}, {s(sT0)}, {s(sT1)}
        s_add_u32 {s(sT0)}, {s(sT0)}, {L.STAMP_OFF}
        s_add_u32 {s(sST)}, s82, {s(sT0)}
        s_addc_u32 {s(sST+1)}, s83, 0
        s_and_b32 {s(sST+1)}, {s(sST+1)}, 0xffff
        s_mov_b32 {s(sST+2)}, 256
        s_mov_b32 {s(sST+3)}, 0x20000
        v_mov_b32 v253, 0
        s_memtime s[98:99]
        s_waitcnt lgkmcnt(0)
        v_mov_b32 v254, {'s98' if G.cfg.stamps == 2 else s(sTS)}
        v_mov_b32 v255, {'s99' if G.cfg.stamps == 2 else s(sTS+1)}
        buffer_store_dwordx2 v[254:255], v253, {s(sST,4)}, 0 offen
        """)
        G.nstamp = 1

def registration(G):
    A = G.A
    A(f"""
    s_cmp_lg_u32 {s(sW)}, 0
    s_cbranch_scc1 REG_DONE
    s_and_b32 {s(sT5)}, {s(sT5)}, 7
    s_mul_i32 {s(sT0)}, {s(sT5)}, {s(sT5)}
    s_lshl_b32 {s(sT0)}, {s(sT0)}, 12
    s_lshl_b32 {s(sT1)}, {s(sT5)}, 5
    s_or_b32 {s(sT0)}, {s(sT0)}, {s(sT1)}
    s_or_b32 {s(sT0)}, {s(sT0)}, 1
    s_lshl_b64 {s(sT2,2)}, {s(sTS,2)}, 22
    s_or_b32 {s(sT0)}, {s(sT0)}, {s(sT2)}
    v_mov_b32 v2, {s(sT0)}
    v_mov_b32 v3, {s(sT3)}
    s_lshl_b32 {s(sT1)}, {s(sG)}, 3
    v_mov_b32 v4, {s(sT1)}
    s_mov_b64 exec, 1
    buffer_atomic_add_x2 v[2:3], v4, {s(SDBG,4)}, 0 offen offset:128 sc1
    s_mov_b64 exec, -1
    """)
    A.label("REG_DONE")

def stores(G, lst, label):
    A = G.A
    A(f"""
    s_cmp_lg_u32 {s(sMODE)}, 0
    s_cbranch_scc1 {label}_SLOW
    """)
    for x in lst: A(x)
    A(f"s_branch {label}_DONE")
    A.label(f"{label}_SLOW")
    for x in lst: A((x + " sc1") if x.startswith('buffer_store') else x)
    A.label(f"{label}_DONE")
    G.vm += sum(1 for x in lst if x.startswith('buffer_'))

def signal(G, phase):
    G(f"""
    v_add_u32 v2, {phase}, {v(vFE)}
    v_mov_b32 v3, {v(vFE+1)}
    s_lshl_b32 {s(sT0)}, {s(sM)}, 2
    s_add_u32 {s(sT0)}, {s(sT0)}, {s(sW)}
    s_lshl_b32 {s(sT0)}, {s(sT0)}, 3
    s_add_u32 {s(sT0)}, {s(sT0)}, {L.FL_OFF + phase*512}
    v_mov_b32 v4, {s(sT0)}
    s_waitcnt vmcnt(0)
    s_mov_b64 exec, 1
    """)
    stores(G, [f"buffer_store_dwordx2 v[2:3], v4, {s(SWS,4)}, 0 offen"], f"SIG{phase}")
    G("s_mov_b64 exec, -1")

def poll(G, phase):
    A = G.A
    if phase == 0:
        A(f"""
        v_and_b32 v4, 31, v0
        s_and_b32 {s(sT0)}, {s(sM)}, 8
        s_lshl_b32 {s(sT0)}, {s(sT0)}, 2
        v_add_u32 v4, {s(sT0)}, v4
        v_lshlrev_b32 v4, 3, v4
        """)
    else:
        A("v_lshlrev_b32 v4, 3, v0")
    A(f"""
    v_add_u32 v2, {phase}, {v(vFE)}
    v_mov_b32 v3, {v(vFE+1)}
    s_mov_b32 {s(sCNT)}, 0
    s_mov_b32 {s(sT0)}, {L.FL_OFF + phase*512}
    """)
    A.label(f"POLL{phase}")
    A(f"""
    buffer_load_dwordx2 v[6:7], v4, {s(SWS,4)}, {s(sT0)} offen sc1
    s_add_u32 {s(sCNT)}, {s(sCNT)}, 1
    s_waitcnt vmcnt(0)
    v_cmp_ne_u64 vcc, v[6:7], v[2:3]
    s_cmp_ge_u32 {s(sCNT)}, 20000
    s_cbranch_scc1 POLL{phase}_DONE
    s_cbranch_vccnz POLL{phase}
    """)
    A.label(f"POLL{phase}_DONE")

def w3_setup(G):
    t0, t1, t2, t3 = 2, 3, 4, 5
    G(f"""
    s_mul_i32 {s(sT0)}, {s(sM)}, 192
    s_mov_b32 {s(sT1)}, 0x15555556
    s_and_b32 {s(sT2)}, {s(sW)}, 1
    s_lshr_b32 {s(sT3)}, {s(sW)}, 1
    s_mul_i32 {s(sW3S)}, {s(sT2)}, 12288
    s_mul_i32 {s(sT4)}, {s(sT3)}, 6144
    s_add_u32 {s(sW3S)}, {s(sW3S)}, {s(sT4)}
    s_mul_i32 {s(sW3G)}, {s(sT3)}, {32*2752}
    s_and_b32 {s(sROT3)}, {s(sG)}, 1
    s_lshl_b32 {s(sROT3)}, {s(sROT3)}, 2
    """)
    for i in range(3):
        G(f"""
        v_add_u32 {v(t0)}, {64*i}, {v(vL)}
        v_mul_hi_u32 {v(t1)}, {v(t0)}, {s(sT1)}
        v_mul_u32_u24 {v(t2)}, 12, {v(t1)}
        v_sub_u32 {v(t2)}, {v(t0)}, {v(t2)}
        v_mul_u32_u24 {v(t1)}, 2752, {v(t1)}
        v_add_u32 {v(t1)}, {s(sT0)}, {v(t1)}
        v_subrev_u32 {v(t1)}, {1024*i}, {v(t1)}
        v_subrev_u32 {v(t2)}, {s(sT2)}, {v(t2)}
        """)
        for par in range(2):
            G(f"""
            v_subrev_u32 {v(t3)}, {2*par}, {v(t2)}
            v_add_u32 {v(t0)}, 12, {v(t3)}
            v_cmp_gt_i32 vcc, 0, {v(t3)}
            v_cndmask_b32 {v(t3)}, {v(t3)}, {v(t0)}, vcc
            v_lshl_add_u32 {v(vP3+3*par+i)}, {v(t3)}, 4, {v(t1)}
            """)

def w3_dma(c, slot):
    g = []
    g.append(f"""
    s_add_u32 {s(sT0)}, {s(sROT3)}, {c}
    s_and_b32 {s(sT0)}, {s(sT0)}, 7
    s_mul_i32 {s(sT0)}, {s(sT0)}, {64*2752}
    s_add_u32 {s(sT0)}, {s(sT0)}, {s(sW3G)}
    s_add_u32 m0, {s(sW3S)}, {slot*W3SL}
    s_add_u32 {s(sT1)}, {s(sT0)}, {16*2752}
    buffer_load_dwordx4 {v(vP3+0)}, {s(SMU,4)}, {s(sT0)} offen lds
    """)
    g.append(f"buffer_load_dwordx4 {v(vP3+1)}, {s(SMU,4)}, {s(sT0)} offen offset:1024 lds")
    g.append(f"buffer_load_dwordx4 {v(vP3+2)}, {s(SMU,4)}, {s(sT0)} offen offset:2048 lds")
    g.append(f"""
    s_add_u32 m0, {s(sW3S)}, {slot*W3SL + 3072}
    s_nop 0
    buffer_load_dwordx4 {v(vP3+3)}, {s(SMU,4)}, {s(sT1)} offen lds
    """)
    g.append(f"buffer_load_dwordx4 {v(vP3+4)}, {s(SMU,4)}, {s(sT1)} offen offset:1024 lds")
    g.append(f"buffer_load_dwordx4 {v(vP3+5)}, {s(SMU,4)}, {s(sT1)} offen offset:2048 lds")
    return g

vX3, vY3, vZ3 = 251, 252, 15
def w3_read_setup(G):
    t0, t1, t2, t3 = 2, 3, 4, 5
    G(f"""
    v_lshrrev_b32 {v(t0)}, 4, {v(vL)}
    v_mul_u32_u24 {v(t1)}, 3072, {v(t0)}
    v_bfe_u32 {v(t2)}, {v(vL)}, 2, 2
    v_mul_u32_u24 {v(t2)}, 192, {v(t2)}
    v_add_u32 {v(t1)}, {v(t1)}, {v(t2)}
    v_and_b32 {v(t0)}, 1, {v(t0)}
    v_lshlrev_b32 {v(t0)}, 5, {v(t0)}
    v_and_b32 {v(t2)}, 3, {v(vL)}
    v_lshl_add_u32 {v(t2)}, {v(t2)}, 3, {v(t0)}
    s_lshl_b32 {s(sT0)}, {s(sW)}, 5
    v_add3_u32 {v(vX3)}, {v(t1)}, {v(t2)}, {s(sT0)}
    v_add_u32 {v(vY3)}, {12288+16}, {v(vX3)}
    s_lshl_b32 {s(sT0)}, {s(sW)}, 4
    s_add_u32 {s(sT0)}, {s(sT0)}, 128
    v_add_u32 {v(t2)}, {s(sT0)}, {v(t2)}
    v_subrev_u32 {v(t3)}, 192, {v(t2)}
    v_cmp_le_u32 vcc, 192, {v(t2)}
    v_cndmask_b32 {v(t2)}, {v(t2)}, {v(t3)}, vcc
    v_bfe_u32 {v(t3)}, {v(vL)}, 1, 1
    v_mul_u32_u24 {v(t3)}, 12288, {v(t3)}
    v_add3_u32 {v(vZ3)}, {v(t1)}, {v(t2)}, {v(t3)}
    """)

def w3_reads(dst, slot, u):
    out = []
    for k, va in enumerate((vX3, vY3, vZ3)):
        for half in range(2):
            o = slot*W3SL + (8*u + 4*half) * 192
            out.append((va, o, dst + 4*k + 2*half))
    return out

def emit_w3_reads(G, dst, slot, u):
    for va, o, d in w3_reads(dst, slot, u):
        assert o < 65536, o
        G(f"ds_read_b64_tr_b16 {R(d,2)}, {v(va)} offset:{o}")

def wraw_loads(SWT, sko, raw):
    g = [f"""
    s_lshl_b32 {s(sT2)}, {s(sko)}, 5
    s_add_u32 {s(sT3)}, {s(sT2)}, 16384
    buffer_load_dwordx2 {v(raw,2)}, {v(vWoff)}, {s(SWT,4)}, {s(sT2)} offen
    """]
    for e in range(1, 8):
        g.append(f"buffer_load_dwordx2 {v(raw+2*e,2)}, {v(vWoff)}, {s(SWT,4)}, {s(sT2 if e < 4 else sT3)} offen offset:{(e&3)*1024}")
    return g
def wraw_perms(raw, dst, tmp):
    out = []
    for jt in range(4):
        for d in range(4):
            sel = sPHI if jt & 1 else sPLO
            r = dst + 4*jt + d
            src = f"{v(raw+2*(2*d+1)+(jt>>1))}, {v(raw+2*(2*d)+(jt>>1))}, {s(sel)}"
            if r < 256: out.append(f"v_perm_b32 {v(r)}, {src}")
            else:
                t = tmp + (len(out) // 2) % 2
                out.append(f"v_perm_b32 {v(t)}, {src}\nv_accvgpr_write_b32 {R(r)}, {v(t)}")
    return out

def interleave(G, main, fill, every=1, start=0):
    fi = 0
    for i, x in enumerate(main):
        G(x)
        if i >= start:
            for _ in range(every):
                if fi < len(fill): G(fill[fi]); fi += 1
    while fi < len(fill): G(fill[fi]); fi += 1

def spread(G, main, fill):
    n, m = len(main), len(fill)
    fi = 0
    for i, x in enumerate(main):
        G(x)
        while fi < m and (fi + 1) * n <= (i + 1) * m + (n - 1):
            G(fill[fi]); fi += 1
            if (fi) * n > (i + 1) * m: break
    while fi < m: G(fill[fi]); fi += 1

def gen_p1(G):
    A = G.A
    vXo0, vXo1, vXh, vWo = 2+4, 3+4, 4+4, 5+4
    vXa0, vXa1, vWa, vSa, vSh = 10, 11, 12, 13, 14
    t0, t1, t2, t3, t4 = 1, 2, 3, 4, 5
    FA, FB = 16, 48
    SF = 80
    ACC = 84 + 8
    SACC = 152 + 6
    SACC = 152
    BIAS = 160
    Qa = lambda T: ACC + 4 * T
    Ka = lambda T: ACC + 20 + 4 * T
    Va = lambda T: ACC + 40 + 4 * T
    A.c("---- P1 address setup")
    G(f"""
    s_lshl_b32 {s(sT0)}, {s(sRB)}, 6
    s_lshr_b32 {s(sT1)}, {s(sW)}, 1
    s_lshl_b32 {s(sT1)}, {s(sT1)}, 5
    s_add_u32 {s(sT1)}, {s(sT1)}, {s(sT0)}
    s_and_b32 {s(sT2)}, {s(sW)}, 1
    s_add_u32 {s(sT1)}, {s(sT1)}, {s(sT2)}
    v_lshrrev_b32 {v(t0)}, 3, {v(vL)}
    v_and_b32 {v(t1)}, 7, {v(vL)}
    v_lshrrev_b32 {v(t2)}, 4, {v(vL)}
    v_xor_b32 {v(t3)}, {v(t1)}, {v(t2)}
    v_lshlrev_b32 {v(t4)}, 1, {v(t0)}
    v_add_u32 {v(t4)}, {s(sT1)}, {v(t4)}
    v_lshlrev_b32 {v(t4)}, 10, {v(t4)}
    v_lshl_add_u32 {v(vXo0)}, {v(t3)}, 4, {v(t4)}
    v_xor_b32 {v(t3)}, 4, {v(t3)}
    v_lshl_add_u32 {v(vXo1)}, {v(t3)}, 4, {v(t4)}
    v_add_u32 {v(vXo1)}, 0x4000, {v(vXo1)}
    s_lshl_b32 {s(sT2)}, {s(sW)}, 2
    v_add_u32 {v(t3)}, {s(sT2)}, {v(t0)}
    v_lshrrev_b32 {v(t4)}, 1, {v(t3)}
    v_and_b32 {v(t4)}, 7, {v(t4)}
    v_xor_b32 {v(t4)}, {v(t4)}, {v(t1)}
    s_sub_u32 {s(sT3)}, {s(sT0)}, 16
    v_add_u32 {v(t3)}, {s(sT3)}, {v(t3)}
    v_max_i32 {v(t3)}, 0, {v(t3)}
    v_lshlrev_b32 {v(t3)}, 10, {v(t3)}
    v_lshl_add_u32 {v(vXh)}, {v(t4)}, 4, {v(t3)}
    s_mov_b32 {s(sEXH)}, -1
    s_cmp_eq_u32 {s(sW)}, 0
    s_cselect_b32 {s(sEXH)}, 0xffffff00, {s(sEXH)}
    s_mov_b32 {s(sEXH+1)}, 0
    s_lshl_b32 {s(sT2)}, {s(sW)}, 3
    v_add_u32 {v(t3)}, {s(sT2)}, {v(t0)}
    v_mul_u32_u24 {v(t3)}, 3072, {v(t3)}
    v_and_b32 {v(t4)}, 1, {v(t2)}
    v_lshlrev_b32 {v(t4)}, 1, {v(t4)}
    s_and_b32 {s(sT2)}, {s(sW)}, 1
    s_lshl_b32 {s(sT2)}, {s(sT2)}, 2
    v_or_b32 {v(t4)}, {s(sT2)}, {v(t4)}
    v_xor_b32 {v(t4)}, {v(t4)}, {v(t1)}
    v_lshl_add_u32 {v(vWo)}, {v(t4)}, 4, {v(t3)}
    s_lshl_b32 {s(sT2)}, {s(sCB)}, 7
    v_add_u32 {v(vWo)}, {s(sT2)}, {v(vWo)}
    s_lshl_b32 {s(sT2)}, {s(sRBL)}, 1
    s_add_u32 {s(sT2)}, {s(sT2)}, {s(sCB)}
    s_and_b32 {s(sXOFF)}, {s(sT2)}, 7
    s_mov_b32 {s(sSLOTW)}, {WRING}
    s_mov_b32 {s(sXL)}, 0
    """)
    def dma_chunk():
        g = []
        g.append(f"""
        s_lshl_b32 {s(sT0)}, {s(sXOFF)}, 7
        s_lshl_b32 {s(sT1)}, {s(sW)}, 11
        s_add_u32 {s(sT1)}, {s(sT1)}, {s(sXL)}
        s_mov_b32 m0, {s(sT1)}
        s_mul_i32 {s(sT2)}, {s(sXOFF)}, 196608
        buffer_load_dwordx4 {v(vXo0)}, {s(SX,4)}, {s(sT0)} offen lds
        """)
        g.append(f"""
        s_add_u32 m0, {s(sT1)}, 1024
        s_lshl_b32 {s(sT1)}, {s(sW)}, 9
        buffer_load_dwordx4 {v(vXo1)}, {s(SX,4)}, {s(sT0)} offen lds
        """)
        g.append(f"""
        s_add_u32 {s(sT1)}, {s(sT1)}, {s(sXL)}
        s_add_u32 m0, {s(sT1)}, 8192
        s_mov_b64 exec, {s(sEXH,2)}
        buffer_load_dwordx4 {v(vXh)}, {s(SX,4)}, {s(sT0)} offen lds
        s_mov_b64 exec, -1
        """)
        g.append(f"""
        s_mul_i32 {s(sT1)}, {s(sW)}, 3072
        s_add_u32 {s(sT1)}, {s(sT1)}, {s(sSLOTW)}
        s_mov_b32 m0, {s(sT1)}
        s_add_u32 {s(sT3)}, {s(sT2)}, {32*3072}
        buffer_load_dwordx4 {v(vWo)}, {s(SW1,4)}, {s(sT2)} offen lds
        """)
        g.append(f"buffer_load_dwordx4 {v(vWo)}, {s(SW1,4)}, {s(sT2)} offen offset:1024 lds")
        g.append(f"buffer_load_dwordx4 {v(vWo)}, {s(SW1,4)}, {s(sT2)} offen offset:2048 lds")
        g.append(f"""
        s_add_u32 m0, {s(sT1)}, {4*3072}
        s_nop 0
        buffer_load_dwordx4 {v(vWo)}, {s(SW1,4)}, {s(sT3)} offen lds
        """)
        g.append(f"buffer_load_dwordx4 {v(vWo)}, {s(SW1,4)}, {s(sT3)} offen offset:1024 lds")
        g.append(f"""
        buffer_load_dwordx4 {v(vWo)}, {s(SW1,4)}, {s(sT3)} offen offset:2048 lds
        s_add_u32 {s(sXOFF)}, {s(sXOFF)}, 1
        s_and_b32 {s(sXOFF)}, {s(sXOFF)}, 7
        s_add_u32 {s(sXL)}, {s(sXL)}, {XCH}
        s_add_u32 {s(sSLOTW)}, {s(sSLOTW)}, {WSLOT}
        s_cmp_eq_u32 {s(sSLOTW)}, {WRING + 3*WSLOT}
        s_cselect_b32 {s(sSLOTW)}, {WRING}, {s(sSLOTW)}
        """)
        return g
    for x in dma_chunk(): G(x)
    for x in dma_chunk(): G(x)
    registration(G)
    for x in dma_chunk(): G(x)
    A.c("---- LDS read addresses")
    G(f"""
    v_lshrrev_b32 {v(t2)}, 4, {v(vL)}
    v_and_b32 {v(t0)}, 15, {v(vL)}
    v_lshrrev_b32 {v(t1)}, 1, {v(t0)}
    v_xor_b32 {v(t1)}, {v(t1)}, {v(t2)}
    v_lshlrev_b32 {v(t1)}, 4, {v(t1)}
    v_lshl_add_u32 {v(vXa0)}, {v(t0)}, 7, {v(t1)}
    v_xor_b32 {v(vXa1)}, 64, {v(vXa0)}
    v_mul_u32_u24 {v(vWa)}, 3072, {v(t2)}
    v_bfe_u32 {v(t1)}, {v(vL)}, 2, 2
    v_lshl_add_u32 {v(vWa)}, {v(t1)}, 7, {v(vWa)}
    v_lshrrev_b32 {v(t1)}, 1, {v(t1)}
    v_and_b32 {v(t3)}, 1, {v(t2)}
    v_lshl_or_b32 {v(t1)}, {v(t3)}, 1, {v(t1)}
    v_xor_b32 {v(t1)}, {s(sW)}, {v(t1)}
    v_lshl_add_u32 {v(vWa)}, {v(t1)}, 5, {v(vWa)}
    v_and_b32 {v(t1)}, 3, {v(vL)}
    v_lshl_add_u32 {v(vWa)}, {v(t1)}, 3, {v(vWa)}
    v_add_u32 {v(vWa)}, {WRING}, {v(vWa)}
    s_lshl_b32 {s(sT0)}, {s(sW)}, 11
    s_lshl_b32 {s(sT1)}, {s(sW)}, 9
    s_add_u32 {s(sT1)}, {s(sT1)}, 8192
    v_add_u32 {v(vSh)}, {s(sT1)}, {v(vL16)}
    v_add_u32 {v(vSa)}, {s(sT0)}, {v(vL16)}
    v_lshrrev_b32 {v(t1)}, 3, {v(vL)}
    v_mul_u32_u24 {v(t1)}, {XCH}, {v(t1)}
    v_and_b32 {v(t3)}, 7, {v(vL)}
    v_lshl_add_u32 {v(t1)}, {v(t3)}, 4, {v(t1)}
    v_mov_b32 {v(FA)}, {s(sONE)}
    v_mov_b32 {v(FA+1)}, {s(sONE)}
    v_mov_b32 {v(FA+2)}, {s(sONE)}
    v_mov_b32 {v(FA+3)}, {s(sONE)}
    ds_write_b128 {v(t1)}, {v(FA,4)} offset:8192
    """)
    for i in range(60): G(f"v_mov_b32 {v(ACC+i)}, 0")
    for i in range(6): G(f"v_mov_b32 {v(SACC+i)}, 0")
    NEG = "0xf149f2ca"
    G(f"""
    v_mov_b32 {v(t4)}, {NEG}
    v_lshlrev_b32 {v(t1)}, 2, {v(t2)}
    v_sub_u32 {v(t3)}, {v(t0)}, {v(t1)}
    s_cmp_eq_u32 {s(sRB)}, 0
    s_cselect_b32 {s(sT0)}, 64, 2
    """)
    for r in range(4):
        G(f"""
        v_subrev_u32 {v(t1)}, {r}, {v(t3)}
        v_cmp_ge_u32 vcc, 7, {v(t1)}
        v_cndmask_b32 {v(BIAS+r)}, {v(t4)}, 0, vcc
        v_cmp_ge_i32 vcc, -9, {v(t1)}
        v_cndmask_b32 {v(BIAS+4+r)}, {v(t4)}, 0, vcc
        """)
    G(f"""
    v_lshlrev_b32 {v(t1)}, 2, {v(t2)}
    v_lshlrev_b32 {v(t3)}, 1, {v(t0)}
    v_sub_u32 {v(t3)}, {v(t1)}, {v(t3)}
    v_subrev_u32 {v(t3)}, {s(sT0)}, {v(t3)}
    """)
    for p in range(2):
        for r in range(4):
            if (r - p) & 1: G(f"v_mov_b32 {v(BIAS+8+4*p+r)}, {v(t4)}")
            else:
                G(f"""
                v_cmp_le_i32 vcc, {-(r-p)}, {v(t3)}
                v_cndmask_b32 {v(BIAS+8+4*p+r)}, {v(t4)}, 0, vcc
                """)
    w3_setup(G)
    G(f"""
    v_lshrrev_b32 {v(t0)}, 4, {v(vL)}
    v_and_b32 {v(t1)}, 15, {v(vL)}
    v_lshlrev_b32 {v(vWoff)}, 12, {v(t0)}
    v_lshl_add_u32 {v(vWoff)}, {v(t1)}, 3, {v(vWoff)}
    s_lshl_b32 {s(sT0)}, {s(sCB)}, 7
    v_add_u32 {v(vWoff)}, {s(sT0)}, {v(vWoff)}
    s_lshl_b32 {s(sT1)}, {s(sW)}, 2
    """)
    for j in range(4):
        G(f"""
        s_add_u32 {s(sT0)}, {s(sRBL)}, {j}
        s_and_b32 {s(sT0)}, {s(sT0)}, 3
        s_add_u32 {s(sT0)}, {s(sT0)}, {s(sT1)}
        s_lshl_b32 {s(sKO+j)}, {s(sT0)}, 10
        """)
    def reads(F, kh):
        xs = [f"ds_read_b128 {v(F+4*T,4)}, {v(vXa1 if kh else vXa0)} offset:{T*2048}" for T in range(5)]
        ws = []
        for sct in range(3):
            for half in range(2):
                ws.append(f"ds_read_b64_tr_b16 {v(F+20+4*sct+2*half,2)}, {v(vWa)} offset:{kh*12288+sct*1024+half*512}")
        return ws[:2] + xs[:1] + ws[2:4] + xs[1:2] + ws[4:] + xs[2:]
    def mfmas(F):
        out = []
        for T in range(5):
            x = v(F+4*T, 4)
            out.append(f"v_mfma_f32_16x16x32_bf16 {v(Qa(T),4)}, {v(F+20,4)}, {x}, {v(Qa(T),4)}")
            out.append(f"v_mfma_f32_16x16x32_bf16 {v(Ka(T),4)}, {v(F+24,4)}, {x}, {v(Ka(T),4)}")
            out.append(f"v_mfma_f32_16x16x32_bf16 {v(Va(T),4)}, {x}, {v(F+28,4)}, {v(Va(T),4)}")
        return out
    def dots():
        out = []
        for j in range(4):
            for b in range(3):
                out.append(f"v_dot2c_f32_bf16 {v(SACC+2*b)}, {s(sONE)}, {v(SF+4*b+j)}\nv_dot2c_f32_bf16 {v(SACC+2*b+1)}, {v(SF+4*b+j)}, {v(SF+4*b+j)}")
        return out
    def advance():
        G(f"""
        s_add_u32 {s(sT4)}, {s(sSLOTR)}, {WSLOT}
        s_cmp_eq_u32 {s(sT4)}, {WRING + 3*WSLOT}
        s_cselect_b32 {s(sT4)}, {WRING}, {s(sT4)}
        s_sub_u32 {s(sT5)}, {s(sT4)}, {s(sSLOTR)}
        s_mov_b32 {s(sSLOTR)}, {s(sT4)}
        s_waitcnt lgkmcnt(0)
        v_add_u32 {v(vWa)}, {s(sT5)}, {v(vWa)}
        v_add_u32 {v(vXa0)}, {XCH}, {v(vXa0)}
        v_add_u32 {v(vXa1)}, {XCH}, {v(vXa1)}
        v_add_u32 {v(vSa)}, {XCH}, {v(vSa)}
        v_add_u32 {v(vSh)}, {XCH}, {v(vSh)}
        """)
    def first_half(fill=()):
        for x in reads(FB, 1): G(x)
        G(f"""
        ds_read_b128 {v(SF,4)}, {v(vSa)}
        ds_read_b128 {v(SF+4,4)}, {v(vSa)} offset:1024
        ds_read_b128 {v(SF+8,4)}, {v(vSh)}
        s_waitcnt lgkmcnt(14)
        """)
        spread(G, mfmas(FA), list(fill))
        advance()
    G(f"""
    s_mov_b32 {s(sI)}, 0
    s_mov_b32 {s(sSLOTR)}, {WRING}
    s_waitcnt vmcnt(18) lgkmcnt(0)
    s_barrier
    """)
    G.stamp()
    for x in reads(FA, 0): G(x)
    A.label("P1_LOOP")
    first_half()
    G("""
    s_waitcnt vmcnt(9)
    s_barrier
    """)
    for x in reads(FA, 0): G(x)
    mf = mfmas(FB); dd = dots()
    dm = dma_chunk()
    fill = []
    for i in range(12):
        fill.append(dd[i])
        if i < 9: fill.append(dm[i])
    spread(G, mf, fill)
    G(f"""
    s_add_u32 {s(sI)}, {s(sI)}, 1
    s_cmp_lt_u32 {s(sI)}, 5
    s_cbranch_scc1 P1_LOOP
    """)
    G.vm = 18; G.tags['c6'] = 9; G.tags['c7'] = 18
    t5 = 5
    G(f"""
    s_lshl_b32 {s(sT0)}, {s(sRB)}, 6
    s_lshr_b32 {s(sT2)}, {s(sW)}, 1
    s_lshl_b32 {s(sT2)}, {s(sT2)}, 5
    s_add_u32 {s(sT0)}, {s(sT0)}, {s(sT2)}
    s_and_b32 {s(sT2)}, {s(sW)}, 1
    s_add_u32 {s(sT0)}, {s(sT0)}, {s(sT2)}
    s_lshl_b32 {s(sT0)}, {s(sT0)}, 10
    s_lshl_b32 {s(sT2)}, {s(sCB)}, 7
    s_add_u32 {s(sT0)}, {s(sT0)}, {s(sT2)}
    v_and_b32 v2, 15, v0
    v_lshlrev_b32 v2, 11, v2
    v_lshrrev_b32 v3, 4, v0
    v_lshl_add_u32 v1, v3, 5, v2
    v_add_u32 v1, {s(sT0)}, v1
    """)
    first_half(wraw_loads(SWO, sKO+0, RAW)); G.tag('wo0')
    G.wait_tag('c6'); G("s_barrier")
    for x in reads(FA, 0): G(x)
    spread(G, mf, dd + wraw_loads(SWO, sKO+1, RAW+16)); G.tag('wo1')
    first_half(w3_dma(0, 0))
    G.wait_tag('wo0')
    G("s_barrier")
    for x in reads(FA, 0): G(x)
    spread(G, mf, dd + wraw_perms(RAW, aWO, 2) + wraw_loads(SWO, sKO+2, RAW)); G.tag('wo2')
    for x in reads(FB, 1): G(x)
    G(f"""
    ds_read_b128 {v(SF,4)}, {v(vSa)}
    ds_read_b128 {v(SF+4,4)}, {v(vSa)} offset:1024
    ds_read_b128 {v(SF+8,4)}, {v(vSh)}
    """)
    G.wait_tag('wo1', 'lgkmcnt(14)')
    spread(G, mfmas(FA), wraw_perms(RAW+16, aWO+16, 2) + wraw_loads(SWO, sKO+3, RAW+16)); G.tag('wo3')
    G("s_waitcnt lgkmcnt(0)")
    xl = [f"buffer_load_dwordx4 {R(aXR,4)}, v1, {s(SX,4)}, 0 offen", f"buffer_load_dwordx4 {R(aXR+4,4)}, v1, {s(SX,4)}, 0 offen offset:16",
          f"s_lshl_b32 {s(sT0)}, {s(sG)}, 3\nv_mov_b32 v5, {s(sT0)}\nbuffer_load_dwordx2 {v(vFE,2)}, v5, {s(SDBG,4)}, 0 offen offset:128 sc1"]
    spread(G, mf, dd + xl); G.tag('reg')
    for x in w3_dma(1, 1): G(x)
    G.stamp()
    A.c("---- P1 epilogue: row stats")
    for dpp in ("quad_perm:[1,0,3,2]", "quad_perm:[2,3,0,1]", "row_half_mirror"):
        for i in range(6):
            G(f"v_add_f32_dpp {v(SACC+i)}, {v(SACC+i)}, {v(SACC+i)} {dpp} row_mask:0xf bank_mask:0xf")
    G(f"""
    s_mov_b32 {s(sT0)}, 0x3b000000
    s_mov_b32 {s(sT1)}, 0x3727c5ac
    """)
    B3 = range(3)
    for b in B3: G(f"v_pk_mul_f32 {v(SACC+2*b,2)}, {v(SACC+2*b,2)}, {s(sT0,2)} op_sel:[0,0] op_sel_hi:[1,0]")
    for b in B3: G(f"v_fma_f32 {v(SACC+2*b+1)}, -{v(SACC+2*b)}, {v(SACC+2*b)}, {v(SACC+2*b+1)}")
    for b in B3: G(f"v_max_f32 {v(SACC+2*b+1)}, 0, {v(SACC+2*b+1)}")
    for b in B3: G(f"v_add_f32 {v(SACC+2*b+1)}, {s(sT1)}, {v(SACC+2*b+1)}")
    for b in B3: G(f"v_rsq_f32 {v(SACC+2*b+1)}, {v(SACC+2*b+1)}")
    G(f"""
    v_lshrrev_b32 {v(t1)}, 3, {v(vL)}
    v_lshlrev_b32 {v(t1)}, 2, {v(t1)}
    s_lshl_b32 {s(sT0)}, {s(sW)}, 6
    s_add_u32 {s(sT0)}, {s(sT0)}, {STATS1}
    v_add_u32 {v(t2)}, {s(sT0)}, {v(t1)}
    s_lshl_b32 {s(sT0)}, {s(sW)}, 4
    s_add_u32 {s(sT0)}, {s(sT0)}, {STATS1 + 256}
    v_add_u32 {v(t3)}, {s(sT0)}, {v(t1)}
    """)
    for b in B3: G(f"v_mul_f32 {v(SACC+2*b)}, -{v(SACC+2*b)}, {v(SACC+2*b+1)}")
    G(f"""
    ds_write_b32 {v(t2)}, {v(SACC+1)}
    ds_write_b32 {v(t2)}, {v(SACC)} offset:512
    ds_write_b32 {v(t2)}, {v(SACC+3)} offset:32
    ds_write_b32 {v(t2)}, {v(SACC+2)} offset:544
    s_mov_b32 exec_hi, 0
    ds_write_b32 {v(t3)}, {v(SACC+5)}
    ds_write_b32 {v(t3)}, {v(SACC+4)} offset:512
    s_mov_b64 exec, -1
    v_and_b32 {v(t1)}, 15, {v(vL)}
    v_lshlrev_b32 {v(t1)}, 2, {v(t1)}
    v_add_u32 {v(t1)}, {STATS1}, {v(t1)}
    v_lshrrev_b32 {v(t2)}, 4, {v(vL)}
    v_lshlrev_b32 {v(t2)}, 4, {v(t2)}
    v_add_u32 {v(t2)}, {STATS1}, {v(t2)}
    """)
    LA = 16; LBa = 28; LBb = 48
    CSQ, CSK, CSV = 68, 72, 76
    TMP = 80
    for r in range(4):
        G(f"v_mov_b32_dpp {v(CSQ+r)}, {v(Qa(4)+r)} row_newbcast:0 row_mask:0xf bank_mask:0xf")
        G(f"v_mov_b32_dpp {v(CSK+r)}, {v(Ka(4)+r)} row_newbcast:0 row_mask:0xf bank_mask:0xf")
    G(f"""
    v_mov_b32 {v(CSV)}, {v(Va(4))}
    v_mov_b32 {v(CSV+1)}, {v(Va(4))}
    s_waitcnt lgkmcnt(0)
    s_barrier
    """)
    for T in range(5):
        G(f"ds_read2_b32 {v(LA+2*T,2)}, {v(t1)} offset0:{T*16} offset1:{T*16+128}")
    for T in range(5):
        G(f"ds_read_b128 {v(LBa+4*T,4)}, {v(t2)} offset:{T*64}")
        G(f"ds_read_b128 {v(LBb+4*T,4)}, {v(t2)} offset:{T*64+512}")
    G(f"""
    v_permlane16_swap_b32 {v(CSV)}, {v(CSV+1)}
    v_mov_b32 {v(CSV+1)}, {v(CSV)}
    v_permlane32_swap_b32 {v(CSV)}, {v(CSV+1)}
    v_mov_b32 {v(CSV+1)}, {v(CSV)}
    s_waitcnt lgkmcnt(10)
    """)
    QP = 176; KP = 184; VP = 196
    vpos = {2: 0, 0: 2, 4: 4, 1: 6, 3: 8}
    def norm_qk(acc, cs, T, dst, tmp):
        ab = v(LA+2*T, 2)
        for hlf in range(2):
            G(f"v_pk_mul_f32 {v(tmp+2*hlf,2)}, {v(cs+2*hlf,2)}, {ab} op_sel:[0,1] op_sel_hi:[1,1]")
        for hlf in range(2):
            G(f"v_pk_fma_f32 {v(acc+2*hlf,2)}, {v(acc+2*hlf,2)}, {ab}, {v(tmp+2*hlf,2)} op_sel:[0,0,0] op_sel_hi:[1,0,1]")
        for hlf in range(2):
            G(f"v_cvt_pk_bf16_f32 {v(dst+hlf)}, {v(acc+2*hlf)}, {v(acc+2*hlf+1)}")
    for T in range(5):
        norm_qk(Ka(T), CSK, T, KP+2*T, TMP)
        if T < 4: norm_qk(Qa(T), CSQ, T, QP+2*T, TMP+4)
    SC = lambda T: ACC + 8*T
    for T in range(4):
        prev = T - 2 if T >= 2 else 4
        bprev = BIAS + 4 if T >= 2 else BIAS + 8 + 4*T
        G(f"v_mfma_f32_16x16x16_bf16 {v(SC(T),4)}, {v(KP+2*T,2)}, {v(QP+2*T,2)}, {v(BIAS,4)}")
        G(f"v_mfma_f32_16x16x16_bf16 {v(SC(T)+4,4)}, {v(KP+2*prev,2)}, {v(QP+2*T,2)}, {v(bprev,4)}")
    G("s_waitcnt lgkmcnt(0)")
    for T in range(5):
        acc = Va(T)
        tmp = TMP + 4*(T & 1)
        for hlf in range(2):
            G(f"v_pk_mul_f32 {v(tmp+2*hlf,2)}, {v(LBb+4*T+2*hlf,2)}, {v(CSV,2)}")
        for hlf in range(2):
            G(f"v_pk_fma_f32 {v(acc+2*hlf,2)}, {v(acc+2*hlf,2)}, {v(LBa+4*T+2*hlf,2)}, {v(tmp+2*hlf,2)}")
        for hlf in range(2):
            G(f"v_cvt_pk_bf16_f32 {v(VP+vpos[T]+hlf)}, {v(acc+2*hlf)}, {v(acc+2*hlf+1)}")
    MX = 16; M2 = 20; SM = 24; S2 = 28
    PP = 32
    G(f"s_mov_b32 {s(sT0)}, 0x3eb8aa3b")
    for T in range(4):
        b = SC(T)
        G(f"""
        v_max3_f32 {v(MX+T)}, {v(b)}, {v(b+1)}, {v(b+2)}
        v_max3_f32 {v(M2+T)}, {v(b+3)}, {v(b+4)}, {v(b+5)}
        """)
    for T in range(4):
        b = SC(T)
        G(f"v_max3_f32 {v(MX+T)}, {v(MX+T)}, {v(b+6)}, {v(b+7)}")
    for T in range(4): G(f"v_max_f32 {v(MX+T)}, {v(MX+T)}, {v(M2+T)}")
    def allreduce(X, Y, op):
        for T in range(4): G(f"v_mov_b32 {v(Y+T)}, {v(X+T)}")
        for T in range(4): G(f"v_permlane16_swap_b32 {v(X+T)}, {v(Y+T)}")
        for T in range(4): G(f"{op} {v(X+T)}, {v(X+T)}, {v(Y+T)}")
        for T in range(4): G(f"v_mov_b32 {v(Y+T)}, {v(X+T)}")
        for T in range(4): G(f"v_permlane32_swap_b32 {v(X+T)}, {v(Y+T)}")
        for T in range(4): G(f"{op} {v(X+T)}, {v(X+T)}, {v(Y+T)}")
    allreduce(MX, M2, "v_max_f32")
    for T in range(4): G(f"v_mul_f32 {v(MX+T)}, {s(sT0)}, {v(MX+T)}")
    for T in range(4):
        for i in range(8):
            G(f"v_fma_f32 {v(SC(T)+i)}, {v(SC(T)+i)}, {s(sT0)}, -{v(MX+T)}")
    for T in range(4):
        for i in range(8):
            G(f"v_exp_f32 {v(SC(T)+i)}, {v(SC(T)+i)}")
    OA = 48
    win = {2: 0, 0: 2, 1: 4, 3: 6}
    for T in range(4):
        b = SC(T)
        first, second = (b, b+4) if T in (0, 2) else (b+4, b)
        G(f"""
        v_cvt_pk_bf16_f32 {v(PP+4*T)}, {v(first)}, {v(first+1)}
        v_cvt_pk_bf16_f32 {v(PP+4*T+1)}, {v(first+2)}, {v(first+3)}
        v_cvt_pk_bf16_f32 {v(PP+4*T+2)}, {v(second)}, {v(second+1)}
        v_cvt_pk_bf16_f32 {v(PP+4*T+3)}, {v(second+2)}, {v(second+3)}
        """)
    for T in range(4):
        G(f"v_mfma_f32_16x16x32_bf16 {v(OA+4*T,4)}, {v(VP+win[T],4)}, {v(PP+4*T,4)}, 0")
    for T in range(4):
        b = SC(T)
        G(f"""
        v_pk_add_f32 {v(b,2)}, {v(b,2)}, {v(b+2,2)}
        v_pk_add_f32 {v(b+4,2)}, {v(b+4,2)}, {v(b+6,2)}
        """)
    for T in range(4):
        b = SC(T)
        G(f"v_pk_add_f32 {v(b,2)}, {v(b,2)}, {v(b+4,2)}")
    for T in range(4):
        b = SC(T)
        G(f"v_add_f32 {v(SM+T)}, {v(b)}, {v(b+1)}")
    allreduce(SM, S2, "v_add_f32")
    for T in range(4): G(f"v_rcp_f32 {v(SM+T)}, {v(SM+T)}")
    G.wait_tag('reg')
    G(f"s_mov_b32 {s(sCNT)}, 0")
    A.label("REGPOLL")
    A(f"""
    v_readfirstlane_b32 {s(sT0)}, {v(vFE)}
    v_readfirstlane_b32 {s(sT1)}, {v(vFE+1)}
    s_and_b32 {s(sT2)}, {s(sT0)}, 31
    s_cmp_eq_u32 {s(sT2)}, 16
    s_cbranch_scc1 REGOK
    s_add_u32 {s(sCNT)}, {s(sCNT)}, 1
    s_cmp_ge_u32 {s(sCNT)}, 20000
    s_cbranch_scc1 REGOK
    buffer_load_dwordx2 {v(vFE,2)}, v5, {s(SDBG,4)}, 0 offen offset:128 sc1
    s_waitcnt vmcnt(0)
    s_branch REGPOLL
    """)
    A.label("REGOK")
    G(f"""
    s_bfe_u32 {s(sT2)}, {s(sT0)}, {5 | (7 << 16)}
    s_bfe_u32 {s(sT3)}, {s(sT0)}, {12 | (10 << 16)}
    s_mul_i32 {s(sT2)}, {s(sT2)}, {s(sT2)}
    s_lshl_b32 {s(sT3)}, {s(sT3)}, 4
    s_cmp_lg_u32 {s(sT2)}, {s(sT3)}
    s_cselect_b32 {s(sMODE)}, 1, {1 if G.cfg.force_slow else 0}
    s_and_b32 {s(sT0)}, {s(sT0)}, 0xffc00000
    s_or_b32 {s(sT0)}, {s(sT0)}, 0x5a5a0
    v_mov_b32 {v(vFE)}, {s(sT0)}
    v_mov_b32 {v(vFE+1)}, {s(sT1)}
    s_and_b32 {s(sT0)}, {s(sRB)}, 1
    s_lshl_b32 {s(sT0)}, {s(sT0)}, 16
    s_lshl_b32 {s(sT1)}, {s(sCB)}, 11
    s_add_u32 {s(sT0)}, {s(sT0)}, {s(sT1)}
    s_lshr_b32 {s(sT1)}, {s(sW)}, 1
    s_lshl_b32 {s(sT1)}, {s(sT1)}, 10
    s_add_u32 {s(sT0)}, {s(sT0)}, {s(sT1)}
    s_and_b32 {s(sT1)}, {s(sW)}, 1
    s_lshl_b32 {s(sT1)}, {s(sT1)}, 3
    s_add_u32 {s(sT0)}, {s(sT0)}, {s(sT1)}
    s_add_u32 {s(sT0)}, {s(sT0)}, {L.O_OFF}
    s_add_u32 {s(sT1)}, {s(sT0)}, 16384
    s_add_u32 {s(sT2)}, {s(sT0)}, 32768
    s_add_u32 {s(sT3)}, {s(sT0)}, 49152
    """)
    for T in range(4):
        for h in range(2):
            G(f"v_pk_mul_f32 {v(OA+4*T+2*h,2)}, {v(OA+4*T+2*h,2)}, {v(SM+T-(T&1),2)} op_sel:[0,{T&1}] op_sel_hi:[1,{T&1}]")
    for T in range(4):
        G(f"""
        v_cvt_pk_bf16_f32 {v(OA+4*T)}, {v(OA+4*T)}, {v(OA+4*T+1)}
        v_cvt_pk_bf16_f32 {v(OA+4*T+1)}, {v(OA+4*T+2)}, {v(OA+4*T+3)}
        """)
    stores(G, [f"buffer_store_dwordx2 {v(OA+4*T,2)}, {v(vL16)}, {s(SWS,4)}, {s(sT0+T)} offen" for T in range(4)], "ST1")
    G.stamp()
    signal(G, 0)
    G.stamp()

def colsum_mfmas(wreg):
    return [f"v_mfma_f32_16x16x32_bf16 {v(CS+4*k,4)}, {R(wreg+4*k,4)}, {v(ONES,4)}, {v(CS+4*k,4)}" for k in range(3)]

def service(G, chunks):
    G("s_barrier")
    for ri, slot in chunks:
        if slot == 3:
            for va in (vX3, vY3, vZ3): G(f"v_add_u32 {v(va)}, {W3SL}, {v(va)}")
        for u in range(2):
            emit_w3_reads(G, aW3 + 24*ri + 12*u, slot if slot < 3 else 2, u)
        if slot == 3:
            G("s_waitcnt lgkmcnt(0)")
            for va in (vX3, vY3, vZ3): G(f"v_subrev_u32 {v(va)}, {W3SL}, {v(va)}")
        G("s_waitcnt lgkmcnt(0)")
    for ri, slot in chunks:
        for u in range(2):
            for x in colsum_mfmas(aW3 + 24*ri + 12*u): G(x)

def ksplit_core(G, nks, wreg, afr, a_base, a_tile_stride, after_issue, ACC=16, RED=80):
    vAo = [6, 7, 8, 9]
    t2 = 10; vRd = 11
    G(f"""
    s_and_b32 {s(sT1)}, {s(sRB)}, 1
    s_lshl_b32 {s(sT1)}, {s(sT1)}, 2
    """)
    for u in range(4):
        G(f"""
        s_add_u32 {s(sT0)}, {s(sW)}, {1+u}
        s_and_b32 {s(sT0)}, {s(sT0)}, 3
        s_add_u32 {s(sT0)}, {s(sT0)}, {s(sT1)}
        s_mul_i32 {s(sT0)}, {s(sT0)}, {a_tile_stride}
        s_add_u32 {s(sT0)}, {s(sT0)}, {a_base}
        v_add_u32 {v(vAo[u])}, {s(sT0)}, {v(vL16)}
        """)
    return vAo

def gen_p2(G):
    A = G.A
    ACC, RED = 16, 80
    A.c("---- service 1 / remaining Wo perms")
    for x in wraw_perms(RAW, aWO+32, 2) + wraw_perms(RAW+16, aWO+48, 2): G(x)
    w3_read_setup(G)
    for i in range(4): G(f"v_mov_b32 {v(ONES+i)}, {s(sONE)}")
    for i in range(12): G(f"v_mov_b32 {v(CS+i)}, 0")
    service(G, [(0, 0), (1, 1)])
    vAo = ksplit_core(G, 4, None, None, L.O_OFF, 16384, None)
    G(f"""
    v_mov_b32 v12, v6
    v_mov_b32 v13, v7
    """)
    vAo = [12, 13, 8, 9]
    G.stamp()
    poll(G, 0)
    G.vm = 0
    G.stamp()
    afr = lambda u, j: aA2 + 4*(u*4 + j)
    for u in range(4):
        for j in range(4):
            G(f"buffer_load_dwordx4 {R(afr(u,j),4)}, {v(vAo[u])}, {s(SWS,4)}, {s(sKO+j)} offen sc1")
            G.tag(f"a2_{u}_{j}")
    pf = w3_dma(2, 2) + w3_dma(3, 3)
    if G.cfg.nb2 > 2:
        G("s_barrier")
        for c in range(4, 2 + G.cfg.nb2): pf += w3_dma(c, c - 4)
    pfi = 0
    per = (len(pf) + 15) // 16
    for u in range(4):
        for j in range(4):
            G.wait_tag(f"a2_{u}_{j}")
            for jt in range(4):
                c = "0" if j == 0 else v(ACC+16*u+4*jt, 4)
                G(f"v_mfma_f32_16x16x32_bf16 {v(ACC+16*u+4*jt,4)}, {R(aWO+16*j+4*jt,4)}, {R(afr(u,j),4)}, {c}")
            for _ in range(per):
                if pfi < len(pf): G(pf[pfi]); pfi += 1
            if j == 0 and u >= 1: red_write(G, u - 1, ACC)
            if u == 3 and j == 2: red_read(G, RED)
    XH = 128
    for i in range(8): G(f"v_accvgpr_read_b32 {v(XH+i)}, {R(aXR+i)}")
    F = ACC + 48
    for u in range(3):
        G(f"s_waitcnt lgkmcnt({8-4*u})")
        for i in range(8):
            G(f"v_pk_add_f32 {v(F+2*i,2)}, {v(F+2*i,2)}, {v(RED+16*u+2*i,2)}")
    OUTR = 136
    add_residual_pack(G, XH, F, OUTR, 16)
    sm, sq = 16, 17
    G(f"""
    s_and_b32 {s(sT0)}, {s(sRB)}, 1
    s_lshl_b32 {s(sT0)}, {s(sT0)}, 2
    s_add_u32 {s(sT0)}, {s(sT0)}, {s(sW)}
    s_lshl_b32 {s(sT1)}, {s(sT0)}, 10
    s_lshl_b32 {s(sT0)}, {s(sT0)}, 14
    s_lshl_b32 {s(sT2)}, {s(sCB)}, 11
    s_add_u32 {s(sT0)}, {s(sT0)}, {s(sT2)}
    s_add_u32 {s(sT0)}, {s(sT0)}, {L.H_OFF}
    s_lshl_b32 {s(sT2)}, {s(sCB)}, 3
    s_add_u32 {s(sT1)}, {s(sT1)}, {s(sT2)}
    s_add_u32 {s(sT1)}, {s(sT1)}, {L.ST_OFF}
    v_mov_b32 {v(sm)}, 0
    v_mov_b32 {v(sq)}, 0
    """)
    stores(G, [f"buffer_store_dwordx4 {v(OUTR,4)}, {v(vL16)}, {s(SWS,4)}, {s(sT0)} offen",
               f"buffer_store_dwordx4 {v(OUTR+4,4)}, {v(vL16)}, {s(SWS,4)}, {s(sT0)} offen offset:1024"], "ST2")
    for i in range(8):
        G(f"v_dot2c_f32_bf16 {v(sm)}, {s(sONE)}, {v(OUTR+i)}")
        G(f"v_dot2c_f32_bf16 {v(sq)}, {v(OUTR+i)}, {v(OUTR+i)}")
    G(f"""
    v_and_b32 v2, 15, v0
    v_lshlrev_b32 v2, 6, v2
    v_lshrrev_b32 v3, 5, v0
    v_lshl_add_u32 v2, v3, 2, v2
    v_permlane32_swap_b32 {v(sm)}, {v(sq)}
    v_add_f32 {v(sm)}, {v(sm)}, {v(sq)}
    v_mov_b32 {v(sq)}, {v(sm)}
    v_permlane16_swap_b32 {v(sm)}, {v(sq)}
    v_add_f32 {v(sm)}, {v(sm)}, {v(sq)}
    """)
    stores(G, [f"buffer_store_dword {v(sm)}, v2, {s(SWS,4)}, {s(sT1)} offen"], "ST2B")
    for i in range(8): G(f"v_accvgpr_write_b32 {R(aH+i)}, {v(OUTR+i)}")
    G.stamp()
    signal(G, 1)
    G.stamp()

def red_write(G, u, ACC):
    G(f"""
    s_add_u32 {s(sT5)}, {s(sW)}, {1+u}
    s_and_b32 {s(sT5)}, {s(sT5)}, 3
    s_mul_i32 {s(sT5)}, {s(sT5)}, 12288
    s_add_u32 {s(sT5)}, {s(sT5)}, {RING}
    v_add_u32 v10, {s(sT5)}, {v(vL16)}
    """)
    for jt in range(4):
        G(f"ds_write_b128 v10, {v(ACC+16*u+4*jt,4)} offset:{u*4096+jt*1024}")

def red_read(G, RED):
    G(f"""
    s_mul_i32 {s(sT5)}, {s(sW)}, 12288
    s_add_u32 {s(sT5)}, {s(sT5)}, {RING}
    v_add_u32 v10, {s(sT5)}, {v(vL16)}
    s_waitcnt lgkmcnt(0)
    s_barrier
    """)
    for i in range(12): G(f"ds_read_b128 {v(RED+4*i,4)}, v10 offset:{i*1024}")

def add_residual_pack(G, XH, F, OUTR, tmp):
    for r in range(4):
        for hf in range(2):
            x = XH + 2*r + hf
            lo, hi = F + 4*(2*hf) + r, F + 4*(2*hf+1) + r
            t = tmp + 2*((2*r+hf) & 1)
            G(f"""
            v_lshlrev_b32 {v(t)}, 16, {v(x)}
            v_and_b32 {v(t+1)}, 0xffff0000, {v(x)}
            v_add_f32 {v(lo)}, {v(lo)}, {v(t)}
            v_add_f32 {v(hi)}, {v(hi)}, {v(t+1)}
            """)
    for r in range(4):
        for hf in range(2):
            lo, hi = F + 4*(2*hf) + r, F + 4*(2*hf+1) + r
            G(f"v_cvt_pk_bf16_f32 {v(OUTR+2*r+hf)}, {v(lo)}, {v(hi)}")

def gen_p3(G):
    A = G.A; cfg = G.cfg
    ACC = 16
    ST = 112
    SL = 128
    TMP = 136
    FA3, FB3 = AG + 0, AG + 32
    vAr = 14
    sA3 = 81
    A.c("---- service 2")
    service(G, [(2, 2), (3, 3)])
    G(f"""
    s_cmp_eq_u32 {s(sW)}, 3
    s_cselect_b32 {s(sT1)}, 10, 11
    s_mul_i32 {s(sT0)}, {s(sRBL)}, 3
    s_mul_i32 {s(sT2)}, {s(sW)}, 11
    """)
    for j in range(11):
        G(f"""
        s_add_u32 {s(sT3)}, {s(sT0)}, {s(sT2)}
        s_lshl_b32 {s(sKO+j)}, {s(sT3)}, 10
        s_add_u32 {s(sT0)}, {s(sT0)}, 1
        s_cmp_eq_u32 {s(sT0)}, {s(sT1)}
        s_cselect_b32 {s(sT0)}, 0, {s(sT0)}
        """)
    sKW10 = 82
    G(f"""
    s_cmp_eq_u32 {s(sW)}, 3
    s_cselect_b32 {s(sKW10)}, {43*1024}, {s(sKO+10)}
    v_add_u32 {v(vAr)}, {RING}, {v(vL16)}
    s_lshl_b32 {s(sA3)}, {s(sW)}, 15
    s_add_u32 {s(sA3)}, {s(sA3)}, {L.H_OFF}
    v_and_b32 v8, 15, v0
    v_lshrrev_b32 v9, 4, v0
    v_lshlrev_b32 v12, 6, v8
    v_lshl_add_u32 v12, v9, 4, v12
    s_barrier
    """)
    for i in range(96): G(f"v_mov_b32 {v(ACC+i)}, 0")
    G.stamp()
    poll(G, 1)
    G.vm = 0
    G.stamp()
    def a_dma(c):
        r = RING + (c % 3) * 16384
        g = []
        g.append(f"""
        s_add_u32 {s(sT0)}, {s(sROT3)}, {c}
        s_and_b32 {s(sT0)}, {s(sT0)}, 7
        s_lshl_b32 {s(sT0)}, {s(sT0)}, 11
        s_add_u32 {s(sT0)}, {s(sT0)}, {s(sA3)}
        s_lshl_b32 {s(sT1)}, {s(sW)}, 12
        s_add_u32 m0, {s(sT1)}, {r}
        s_add_u32 {s(sT4)}, {s(sT0)}, 16384
        buffer_load_dwordx4 {v(vL16)}, {s(SWS,4)}, {s(sT0)} offen sc1 lds
        """)
        g.append(f"buffer_load_dwordx4 {v(vL16)}, {s(SWS,4)}, {s(sT0)} offen offset:1024 sc1 lds")
        g.append(f"""
        s_add_u32 m0, {s(sT1)}, {r + 2048}
        s_nop 0
        buffer_load_dwordx4 {v(vL16)}, {s(SWS,4)}, {s(sT4)} offen sc1 lds
        """)
        g.append(f"buffer_load_dwordx4 {v(vL16)}, {s(SWS,4)}, {s(sT4)} offen offset:1024 sc1 lds")
        return g
    for c in range(3):
        for x in a_dma(c): G(x)
        G.tag(f"a3_{c}")
        if c == 0:
            G(f"""
            s_lshl_b32 {s(sT0)}, {s(sW)}, 11
            s_add_u32 {s(sT0)}, {s(sT0)}, {L.ST_OFF}
            buffer_load_dwordx4 {v(SL,4)}, v12, {s(SWS,4)}, {s(sT0)} offen sc1
            buffer_load_dwordx4 {v(SL+4,4)}, v12, {s(SWS,4)}, {s(sT0)} offen offset:1024 sc1
            """)
            G.tag("st")
    done_w3 = 2 + cfg.nb2
    pf = []
    for c in range(done_w3, 8):
        gs = w3_dma(c, c - 4)
        for i, x in enumerate(gs): pf.append((x, f"w3_{c}" if i == 5 else None))
    for c in range(4, done_w3): G.tags[f"w3_{c}"] = 0
    def areads(F, c, u):
        r = (c % 3) * 16384
        return [f"ds_read_b128 {R(F+4*t,4)}, {v(vAr)} offset:{r + (t*2+u)*1024}" for t in range(8)]
    def wsrc(c, u):
        return (aW3 + 24*c + 12*u) if c < 4 else (aJIT + 12*u)
    def mfmas(F, c, u):
        out = []
        w = wsrc(c, u)
        for t in range(8):
            for k in range(3):
                out.append(f"v_mfma_f32_16x16x32_bf16 {v(ACC+12*t+4*k,4)}, {R(w+4*k,4)}, {R(F+4*t,4)}, {v(ACC+12*t+4*k,4)}")
        if c >= 4: out += colsum_mfmas(w)
        return out
    def all_reads(F, c, u):
        n = 0
        if c >= 4:
            slot = c - 4
            if slot == 3 and u == 0:
                for va in (vX3, vY3, vZ3): G(f"v_add_u32 {v(va)}, {W3SL}, {v(va)}")
            emit_w3_reads(G, aJIT + 12*u, min(slot, 2), u); n += 6
        for x in areads(F, c, u): G(x)
        return n + 8
    wd_load_hs = {0: 3, 1: 4, 2: 5, 3: 6, 4: 7, 5: 8, 6: 9, 7: 10, 8: 11, 9: 12, 10: 13}
    wd_perm_hs = {j: h + 2 for j, h in wd_load_hs.items()}
    pfi = 0
    G.wait_tag("a3_0"); G("s_barrier")
    G.stamp()
    all_reads(FA3, 0, 0)
    for c in range(8):
        for u in range(2):
            hs = 2*c + u
            F, Fn = (FA3, FB3) if u == 0 else (FB3, FA3)
            fill = []
            if u == 0:
                n = all_reads(Fn, c, 1)
                G(f"s_waitcnt lgkmcnt({n})")
            else:
                G("s_waitcnt lgkmcnt(0)")
                if c < 7:
                    need = [f"a3_{c+1}"] + ([f"w3_{c+1}"] if c + 1 >= 4 else [])
                    tg = max(need, key=lambda n_: G.tags[n_])
                    G.wait_tag(tg); G("s_barrier")
                    all_reads(Fn, c+1, 0)
                    if c + 3 < 8:
                        fill += [(x, f"a3_{c+3}" if i == 3 else None) for i, x in enumerate(a_dma(c+3))]
            if hs == 1:
                stats3 = f"""
                v_add_f32 {v(SL)}, {v(SL)}, {v(SL+2)}
                v_add_f32 {v(SL+1)}, {v(SL+1)}, {v(SL+3)}
                v_add_f32 {v(SL+4)}, {v(SL+4)}, {v(SL+6)}
                v_add_f32 {v(SL+5)}, {v(SL+5)}, {v(SL+7)}
                v_permlane32_swap_b32 {v(SL)}, {v(SL+4)}
                v_permlane32_swap_b32 {v(SL+1)}, {v(SL+5)}
                v_add_f32 {v(SL)}, {v(SL)}, {v(SL+4)}
                v_add_f32 {v(SL+1)}, {v(SL+1)}, {v(SL+5)}
                v_mov_b32 {v(SL+2)}, {v(SL)}
                v_mov_b32 {v(SL+3)}, {v(SL+1)}
                v_permlane16_swap_b32 {v(SL)}, {v(SL+2)}
                v_permlane16_swap_b32 {v(SL+1)}, {v(SL+3)}
                v_add_f32 {v(SL)}, {v(SL)}, {v(SL+2)}
                v_add_f32 {v(SL+1)}, {v(SL+1)}, {v(SL+3)}
                v_mul_f32 {v(SL)}, 0x3b000000, {v(SL)}
                v_mul_f32 {v(SL+1)}, 0x3b000000, {v(SL+1)}
                v_fma_f32 {v(SL+1)}, -{v(SL)}, {v(SL)}, {v(SL+1)}
                v_max_f32 {v(SL+1)}, 0, {v(SL+1)}
                v_add_f32 {v(SL+1)}, 0x3727c5ac, {v(SL+1)}
                v_rcp_f32 {v(SL+1)}, {v(SL+1)}
                v_sub_f32 {v(SL)}, 0, {v(SL)}
                v_lshrrev_b32 v2, 5, v0
                v_lshlrev_b32 v2, 7, v2
                v_lshl_add_u32 v2, v8, 3, v2
                s_lshl_b32 {s(sT5)}, {s(sW)}, 8
                s_add_u32 {s(sT5)}, {s(sT5)}, {STATS3}
                v_add_u32 v2, {s(sT5)}, v2
                v_lshlrev_b32 v13, 3, v8
                v_add_u32 v13, {STATS3}, v13
                """
                fill += [(x.strip(), None) for x in stats3.strip().split('\n')]
            if hs == 2:
                fill.append((f"ds_write_b64 v2, {v(SL,2)}", None))
            for _ in range(6):
                if pfi < len(pf): fill.append(pf[pfi]); pfi += 1
            for j, h in wd_perm_hs.items():
                if h == hs:
                    fill.append((('WAIT', f"wd_{j}"), None))
                    fill += [(x, None) for x in wraw_perms(RAW + 16*(j & 1), WD_SLOT[j], TMP)]
            for j, h in wd_load_hs.items():
                if h == hs:
                    gl = wraw_loads(SWD, sKW10 if j == 10 else sKO + j, RAW + 16*(j & 1))
                    fill += [(x, f"wd_{j}" if i == 7 else None) for i, x in enumerate(gl)]
            mf = mfmas(F, c, u)
            n, m = len(mf), len(fill); fi = 0
            for i, x in enumerate(mf):
                G(x)
                while fi < m and fi * n < (i + 1) * m:
                    it, tg = fill[fi]; fi += 1
                    if isinstance(it, tuple): G.wait_tag(it[1])
                    else: G(it)
                    if tg: G.tag(tg)
            assert fi == m
    G.stamp()
    A.c("---- P3 epilogue")
    for t in range(8): G(f"ds_read_b64 {v(ST+2*t,2)}, v13 offset:{t*128}")
    G(f"""
    s_mul_i32 {s(sT0)}, {s(sM)}, 3072
    s_add_u32 {s(sT0)}, {s(sT0)}, {L.HH_OFF}
    s_lshr_b32 {s(sT1)}, {s(sW)}, 1
    s_lshl_b32 {s(sT2)}, {s(sT1)}, 10
    s_add_u32 {s(sT2)}, {s(sT2)}, {s(sT0)}
    s_and_b32 {s(sT3)}, {s(sW)}, 1
    s_lshl_b32 {s(sT4)}, {s(sT3)}, 3
    s_add_u32 {s(sT2)}, {s(sT2)}, {s(sT4)}
    s_lshl_b32 {s(sT1)}, {s(sT1)}, 3
    s_add_u32 {s(sT0)}, {s(sT0)}, {s(sT1)}
    s_lshl_b32 {s(sT3)}, {s(sT3)}, 9
    s_add_u32 {s(sT0)}, {s(sT0)}, {s(sT3)}
    s_add_u32 {s(sT0)}, {s(sT0)}, 2048
    v_and_b32 v2, 31, v0
    v_lshlrev_b32 v2, 4, v2
    v_lshrrev_b32 v3, 5, v0
    v_mul_u32_u24 v3, {43*1024}, v3
    v_add_u32 v2, v2, v3
    s_mov_b32 vcc_lo, -1
    s_mov_b32 vcc_hi, 0
    s_waitcnt lgkmcnt(0)
    """)
    xy_st = []; z_st = []
    for t in range(8):
        X, Y = ACC+12*t, ACC+12*t+4
        st = v(ST+2*t, 2)
        for h in range(2):
            G(f"v_pk_fma_f32 {v(X+2*h,2)}, {v(CS+2*h,2)}, {st}, {v(X+2*h,2)} op_sel:[0,0,0] op_sel_hi:[1,0,1]")
            G(f"v_pk_fma_f32 {v(Y+2*h,2)}, {v(CS+4+2*h,2)}, {st}, {v(Y+2*h,2)} op_sel:[0,0,0] op_sel_hi:[1,0,1]")
        for i in range(4): G(f"v_max_f32 {v(X+i)}, 0, {v(X+i)}")
        for h in range(2): G(f"v_pk_mul_f32 {v(Y+2*h,2)}, {v(Y+2*h,2)}, {st} op_sel:[0,1] op_sel_hi:[1,1]")
        for h in range(2): G(f"v_pk_mul_f32 {v(X+2*h,2)}, {v(X+2*h,2)}, {v(Y+2*h,2)}")
        G(f"""
        v_cvt_pk_bf16_f32 {v(X)}, {v(X)}, {v(X+1)}
        v_cvt_pk_bf16_f32 {v(X+1)}, {v(X+2)}, {v(X+3)}
        """)
        xy_st += [f"buffer_store_dwordx2 {v(X,2)}, {v(vL16)}, {s(SWS,4)}, {s(sT2)} offen", f"s_add_u32 {s(sT2)}, {s(sT2)}, {43*1024}"]
    A(f"""
    s_lshl_b32 {s(sT4)}, {s(sM)}, 2
    s_add_u32 {s(sT4)}, {s(sT4)}, {s(sW)}
    s_cmp_ge_u32 {s(sT4)}, 58
    s_cbranch_scc1 ST3_DONE
    """)
    stores(G, xy_st, "ST3")
    for p in range(4):
        ZA, ZB = ACC+12*(2*p)+8, ACC+12*(2*p+1)+8
        for Z, t in ((ZA, 2*p), (ZB, 2*p+1)):
            st = v(ST+2*t, 2)
            for h in range(2):
                G(f"v_pk_fma_f32 {v(Z+2*h,2)}, {v(CS+8+2*h,2)}, {st}, {v(Z+2*h,2)} op_sel:[0,0,0] op_sel_hi:[1,0,1]")
        G(f"v_cndmask_b32 {v(TMP+2*(p&1))}, {v(ST+2*(2*p+1)+1)}, {v(ST+2*(2*p)+1)}, vcc")
        for i in range(4): G(f"v_permlane32_swap_b32 {v(ZA+i)}, {v(ZB+i)}")
        for i in range(4): G(f"v_max_f32 {v(ZA+i)}, 0, {v(ZA+i)}")
        for h in range(2): G(f"v_pk_mul_f32 {v(ZB+2*h,2)}, {v(ZB+2*h,2)}, {v(TMP+2*(p&1),2)} op_sel:[0,0] op_sel_hi:[1,0]")
        for h in range(2): G(f"v_pk_mul_f32 {v(ZA+2*h,2)}, {v(ZA+2*h,2)}, {v(ZB+2*h,2)}")
        G(f"""
        v_cvt_pk_bf16_f32 {v(ZA)}, {v(ZA)}, {v(ZA+1)}
        v_cvt_pk_bf16_f32 {v(ZA+1)}, {v(ZA+2)}, {v(ZA+3)}
        """)
        z_st += [f"buffer_store_dwordx2 {v(ZA,2)}, v2, {s(SWS,4)}, {s(sT0)} offen", f"s_add_u32 {s(sT0)}, {s(sT0)}, {2*43*1024}"]
    A(f"""
    s_cmp_ge_u32 {s(sM)}, 14
    s_cbranch_scc1 ST3Z_DONE
    """)
    stores(G, z_st, "ST3Z")
    G.stamp()
    signal(G, 2)
    G.stamp()

def gen_p4(G):
    A = G.A
    ACC, RED = 16, 80
    vAo = ksplit_core(G, 11, None, None, L.HH_OFF, 43*1024, None)
    G(f"""
    v_mov_b32 v12, v6
    v_mov_b32 v13, v7
    s_barrier
    """)
    vAo = [12, 13, 8, 9]
    poll(G, 2)
    G.vm = 0
    G.stamp()
    afr = lambda u, j: A4_FR[(u & 1) * 11 + j]
    def aload(u, j):
        G(f"buffer_load_dwordx4 {R(afr(u,j),4)}, {v(vAo[u])}, {s(SWS,4)}, {s(sKO+j)} offen sc1")
        G.tag(f"a4_{u}_{j}")
    for u in range(2):
        for j in range(11): aload(u, j)
    for u in range(4):
        for j in range(11):
            G.wait_tag(f"a4_{u}_{j}")
            for jt in range(4):
                c = "0" if j == 0 else v(ACC+16*u+4*jt, 4)
                G(f"v_mfma_f32_16x16x32_bf16 {v(ACC+16*u+4*jt,4)}, {R(WD_SLOT[j]+4*jt,4)}, {R(afr(u,j),4)}, {c}")
            if u < 2: aload(u + 2, j)
            if j == 2 and u >= 1: red_write(G, u - 1, ACC)
            if u == 3 and j == 6: red_read(G, RED)
    XH = 128
    for i in range(8): G(f"v_accvgpr_read_b32 {v(XH+i)}, {R(aH+i)}")
    F = ACC + 48
    G("s_waitcnt lgkmcnt(0)")
    for i in range(8): G(f"v_pk_add_f32 {v(RED+2*i,2)}, {v(RED+2*i,2)}, {v(RED+16+2*i,2)}")
    for i in range(8): G(f"v_pk_add_f32 {v(RED+2*i,2)}, {v(RED+2*i,2)}, {v(RED+32+2*i,2)}")
    for i in range(8): G(f"v_pk_add_f32 {v(F+2*i,2)}, {v(F+2*i,2)}, {v(RED+2*i,2)}")
    OUTR = 136
    add_residual_pack(G, XH, F, OUTR, 16)
    G(f"""
    buffer_store_dwordx4 {v(OUTR,4)}, v1, {s(SOUT,4)}, 0 offen
    buffer_store_dwordx4 {v(OUTR+4,4)}, v1, {s(SOUT,4)}, 0 offen offset:16
    """)
    G.stamp()

def main(path, cfg):
    G = Gen(cfg); A = G.A
    A.raw(HDR.rstrip('\n'))
    A.raw(f"; @launch grid=(256,1,1) block=(256,1,1) lds={LDS_TOTAL}")
    A.raw('.amdgcn_target "amdgcn-amd-amdhsa--gfx950"\n.text')
    n = NAME + "_kernel"
    A.raw(f".globl {n}\n.p2align 8\n.type {n},@function\n{n}:")
    prologue(G)
    if cfg.diag:
        G(f"""
        s_not_b32 s100, {s(sTS)}
        s_memtime s[98:99]
        """)
    gen_p1(G); gen_p2(G); gen_p3(G); gen_p4(G)
    if cfg.diag:
        G(f"""
        s_waitcnt vmcnt(0)
        s_memrealtime {s(sTS,2)}
        s_memtime {s(sT0,2)}
        s_waitcnt lgkmcnt(0)
        s_sub_u32 {s(sT0)}, {s(sT0)}, s98
        v_mov_b32 v2, s100
        v_mov_b32 v3, {s(sTS)}
        v_mov_b32 v4, {s(sT0)}
        v_mov_b32 v5, 0
        s_mov_b64 exec, 1
        buffer_atomic_umax v2, v5, {s(SDBG,4)}, 0 offen sc1
        buffer_atomic_umax v3, v5, {s(SDBG,4)}, 0 offen offset:4 sc1
        buffer_atomic_umax v4, v5, {s(SDBG,4)}, 0 offen offset:8 sc1
        """)
    A.label("K_END")
    A("s_endpgm")
    A.raw('.section .rodata,"a"\n.p2align 6')
    A.raw(f""".amdhsa_kernel {n}
  .amdhsa_next_free_vgpr 512
  .amdhsa_next_free_sgpr 102
  .amdhsa_accum_offset 256
  .amdhsa_group_segment_fixed_size 0
  .amdhsa_kernarg_size 80
  .amdhsa_user_sgpr_count 2
  .amdhsa_user_sgpr_kernarg_segment_ptr 1
  .amdhsa_system_sgpr_workgroup_id_x 1
.end_amdhsa_kernel""")
    open(path, 'w').write(A.finalize())
    print("stamps:", G.nstamp)

if __name__ == '__main__':
    cfg = Cfg()
    for a_ in sys.argv[2:]:
        k, val = a_.split('=')
        setattr(cfg, k, type(getattr(cfg, k))(int(val)))
    main(sys.argv[1], cfg)
```

```python
import numpy as np
GSTRIDE = 640 * 1024
O_OFF = 0
H_OFF = 128 * 1024
HH_OFF = 256 * 1024
ST_OFF = 608 * 1024
FL_OFF = 624 * 1024
STAMP_OFF = 16 * GSTRIDE
WS_USED = STAMP_OFF + 256 * 4 * 256

def bf2f(a16): return (a16.astype(np.uint32) << 16).view(np.float32)
def rows_of(G, T):
    j = np.arange(32)
    return 128 * G + 32 * T + 2 * (j & 15) + (j >> 4)
def std_cols(ks):
    h = np.arange(2)[:, None]; e = np.arange(8)[None, :]
    return 16 * ks + 8 * (e >> 2) + 4 * h + (e & 3)
def h_cols(ks):
    h = np.arange(2)[:, None]; e = np.arange(8)[None, :]
    return 32 * (ks >> 1) + 16 * h + 8 * (ks & 1) + e
def unpack(ws, off, nks, colf, ncol, stride=None):
    stride = stride or nks
    out = np.full((2048, ncol), np.nan, np.float32)
    for G in range(16):
        blk = ws[G * GSTRIDE + off: G * GSTRIDE + off + 4 * stride * 1024].view(np.uint16).reshape(4, stride, 2, 32, 8)
        f = bf2f(blk)
        for T in range(4):
            r = rows_of(G, T)
            for ks in range(nks):
                c = colf(ks)
                out[r[None, :, None], c[:, None, :]] = f[T, ks]
    return out
def unpack_o(ws): return unpack(ws, O_OFF, 32, std_cols, 512)
def unpack_h(ws): return unpack(ws, H_OFF, 32, h_cols, 512)
def unpack_hh(ws): return unpack(ws, HH_OFF, 86, std_cols, 1376, 88)
def unpack_st(ws):
    s = np.zeros(2048, np.float32); q = np.zeros(2048, np.float32)
    for G in range(16):
        blk = ws[G * GSTRIDE + ST_OFF: G * GSTRIDE + ST_OFF + 16384].view(np.float32).reshape(4, 8, 32, 2, 2)
        for T in range(4):
            r = rows_of(G, T)
            s[r] = blk[T, :, :, :, 0].sum((0, 2)); q[r] = blk[T, :, :, :, 1].sum((0, 2))
    return s, q
def print_stamps(ws, n):
    st = ws[STAMP_OFF: STAMP_OFF + 256 * 4 * 256].view(np.uint64).reshape(256, 4, 32)[:, :, :n].astype(np.int64)
    t0 = st[:, :, 0].min()
    rel = (st - t0) * 0.01
    print("mean    :", " ".join("%.2f" % x for x in rel.reshape(-1, n).mean(0)))
    print("all max :", " ".join("%.2f" % x for x in rel.reshape(-1, n).max(0)))
    print("all min :", " ".join("%.2f" % x for x in rel.reshape(-1, n).min(0)))
def print_cycles(ws, n):
    st = ws[STAMP_OFF: STAMP_OFF + 256 * 4 * 256].view(np.uint64).reshape(256, 4, 32)[:, :, :n].astype(np.int64)
    d = np.diff(st, axis=2)
    print("cycles mean per seg:", " ".join("%d" % x for x in d.reshape(-1, n-1).mean(0)))
    print("cycles min  per seg:", " ".join("%d" % x for x in d.reshape(-1, n-1).min(0)))
    print("cycles max  per seg:", " ".join("%d" % x for x in d.reshape(-1, n-1).max(0)))
    print("total mean", (st[:, :, -1] - st[:, :, 0]).mean())
```

```python
import sys, re
from asmlib import *
import layout as L

NAME = "sequential_preLN__sliding_local_dilated__glu_gated_reglu__prompt"
HDR = open('cdna_kernels/' + NAME + '.s.ref').read().split('; Override launch')[0]

class Cfg:
    stamps = 0
    force_slow = 0
    nb2 = 3
    wd_start = 10
    wd_delta = 3
    skew = 6
    r4 = 15
    r5 = 19
    touch = 0
    p1rot = 1
    rot3 = 1
    pre4 = 10
    pre2 = 10
    z2 = 0
    l2early = 1
    wd_cold = 5
    wd2 = 14
    wd_late = 4
    lead_cold = 2000
    lead_warm = 700
    d6 = 12
    r6 = 23
    r7 = 27
    t_epi = 1
    t_p2 = 2
    t_p3 = 4
    gap = 64
    t5 = 2
    fine = 0
    abl = 0
    t6 = 2

SX, SW1, SWO, SWD, SOUT, SWS, SDBG, SMU, sST = 4, 8, 12, 16, 20, 24, 28, 32, 36
sXCD, sIDX, sRBL, sCB, sW, sG, sRB, sM = 40, 41, 42, 43, 44, 45, 46, 47
sONE, sMODE = 48, 49
sT0, sT1, sT2, sT3, sT4, sT5 = 50, 51, 52, 53, 54, 55
sB0, sCNT = 56, 57
sB1 = 87
sEXH = 58
sMX, sMH, sMW, sSX = 60, 61, 62, 63
sSW, sMW0, sMWL = 101, 3, 86
sKO = 64
sROT3, sW3S, sW3G, sA3, sWB, sKW0, sKW1 = 88, 89, 90, 91, 92, 93, 94
sXCC = 95
sTS = 96
AG = 256

class Gen:
    def __init__(self, cfg):
        self.A = Asm(); self.cfg = cfg
        self.vm = 0; self.tags = {}; self.nstamp = 0; self.names = []
        self.t = 0; self.tm = 0; self.nv = 0
        self.q = []
        self.cur = []
        self.inbg = False
        self.bg_on = True
        self.ttime = {}
        self.lg = 0; self.ldone = 0; self.lpend = {}; self.vdone = 0; self.vpend = {}
    def _autowait(self, ins):
        regs = [r for r in list(ins.rd) + list(ins.wr) if r[0] in 'va']
        nl = max([self.lpend.get(r, 0) for r in regs] + [0])
        nvm = max([self.vpend.get(r, 0) for r in regs] + [0])
        parts = []
        if nvm > self.vdone:
            parts.append(f"vmcnt({min(self.vm - nvm, 63)})"); self.vdone = nvm
        if nl > self.ldone:
            parts.append(f"lgkmcnt({min(self.lg - nl, 15)})"); self.ldone = nl
        if parts:
            self.A("s_waitcnt " + " ".join(parts)); self.t += 4
    def _note_wait(self, ln):
        m = re.search(r'vmcnt\((\d+)\)', ln)
        if m: self.vdone = max(self.vdone, self.vm - int(m.group(1)))
        m = re.search(r'lgkmcnt\((\d+)\)', ln)
        if m: self.ldone = max(self.ldone, self.lg - int(m.group(1)))
    def lwait_all(self):
        if self.ldone < self.lg: self._emit("s_waitcnt lgkmcnt(0)")
    def lwait(self, idx):
        if self.ldone < idx: self._emit(f"s_waitcnt lgkmcnt({min(self.lg - idx, 15)})")
    def _emit(self, ln):
        ins = Ins(ln)
        if ins.cls in ('valu', 'mfma', 'lds', 'vmem'): self._autowait(ins)
        self.A(ln)
        op = ln.split()[0]
        if op == 's_waitcnt': self._note_wait(ln)
        if ins.cls == 'lds':
            self.lg += 1
            for r in ins.wr: self.lpend[r] = self.lg
        if ins.cls == 'vmem':
            for r in ins.wr: self.vpend[r] = self.vm + 1
        if op.startswith('v_mfma'):
            st = max(self.t, self.tm); self.t = st + 8; self.tm = st + (32 if '32x32' in op else 16)
        elif op.startswith(('buffer_', 'global_')):
            self.vm += 1
            cost = self.cfg.gap
            if 'dword ' in ln and 'store' not in op: cost = cost * 2
            elif f"s[{SMU}:{SMU+3}]" in ln: cost = cost * 3 // 2
            elif 'dwordx2' in op or 'store_dword ' in ln or 'atomic' in op: cost = cost // 2
            self.t = max(self.t, self.nv) + 4; self.nv = self.t + cost
        elif op.startswith(('v_exp', 'v_rcp', 'v_rsq', 'v_permlane')): self.t += 8
        elif op.startswith(('s_barrier',)): self.t += 30
        elif op.startswith('ds_write_b128'): self.t += 16
        else: self.t += 4
    def __call__(self, t):
        for ln in t.strip().split('\n'):
            ln = ln.strip()
            if ln: self._emit(ln)
        self.pump()
    def _next(self):
        while not self.cur and self.q: self.cur = list(self.q.pop(0))
        return self.cur.pop(0) if self.cur else None
    def _has(self): return bool(self.cur) or any(self.q)
    def _one(self):
        it = self._next()
        self.inbg = True
        self.item(it)
        while self.cur and isinstance(self.cur[0], tuple) and self.cur[0][0] == 'TAG': self.item(self.cur.pop(0))
        self.inbg = False
    def pump(self):
        if self.inbg or not self.bg_on: return
        while self._has() and self.t >= self.nv: self._one()
    def bg(self, group, front=False):
        if front: self.q.insert(0, list(group))
        else: self.q.append(list(group))
    def flush(self, tag=None):
        while self._has() and (tag is None or tag not in self.tags): self._one()
    def tag(self, name): self.tags[name] = self.vm; self.ttime[name] = self.t
    def ld(self, text, name):
        self._emit(text); self.tags[name] = self.vm; self.pump()
    def wait_tag(self, name, extra=''):
        if name not in self.tags: self.flush(name)
        n = self.vm - self.tags[name]
        assert n >= 0
        if self.tags[name] <= self.vdone and not extra: return
        self._emit(f"s_waitcnt vmcnt({min(n,63)}) {extra}".strip())
    def stamp(self, name=''):
        if not self.cfg.stamps: return
        i = self.nstamp; self.nstamp += 1; self.names.append(name)
        self(f"""
        {'s_memtime' if self.cfg.stamps == 2 else 's_memrealtime'} {s(sTS,2)}
        s_waitcnt lgkmcnt(0)
        v_mov_b32 v254, {s(sTS)}
        v_mov_b32 v255, {s(sTS+1)}
        buffer_store_dwordx2 v[254:255], v253, {s(sST,4)}, 0 offen offset:{i*8}
        """)
    def item(self, it):
        if isinstance(it, tuple):
            if it[0] == 'WAIT': self.wait_tag(it[1])
            elif it[0] == 'TAG': self.tag(it[1])
            elif it[0] == 'LD': self.ld(it[1], it[2])
            elif it[0] == 'BG': self.bg(it[1])
            elif it[0] == 'BGF': self.bg(it[1], front=True)
        else: self(it)
    def spread(self, main, fill):
        n, m = len(main), len(fill); fi = 0
        for i, x in enumerate(main):
            self(x)
            while fi < m and fi * n < (i + 1) * m:
                self.item(fill[fi]); fi += 1
        while fi < m: self.item(fill[fi]); fi += 1

XCH = 10240
WRING = 8 * XCH
WSLOT = 24576
S0, S1, S2 = WRING, WRING + WSLOT, WRING + 2 * WSLOT
STATS1 = WRING + 3 * WSLOT
STATS3 = STATS1 + 1024
CSX = STATS3 + 1024
WDT = 49152
HHS = 88 * 1024
LDS_TOTAL = 163840

vL = 0
vP3 = 240
vWD = 243
vWT = 244
vFE = 246
vL16 = 248
vW3o, vW3s = 249, 250
vA01, vA23 = 251, 252
vTL = 15
aTD = AG + 239
sTB, sTB3, sTB1 = 98, 99, 100
CSA = 112
SEL = 124
aW3 = AG + 64
aAD = AG + 192
aXR = AG + 240
aH = AG + 248
WD_SLOT = [128 + 8*j for j in range(14)] + [AG + 8*j for j in range(8)]
A4_FR = [aW3 + 4*i for i in range(44)]
WO_FR = [AG + 8*j for j in range(8)]
A2_FR = [128 + 4*i for i in range(16)]

def srd(G, dst, src, size):
    G(f"""
    s_mov_b32 {s(dst)}, {s(src)}
    s_and_b32 {s(dst+1)}, {s(src+1)}, 0xffff
    s_mov_b32 {s(dst+2)}, {size}
    s_mov_b32 {s(dst+3)}, 0x20000
    """)

def stores(G, lst, label):
    A = G.A
    A(f"""
    s_cmp_lg_u32 {s(sMODE)}, 0
    s_cbranch_scc1 {label}_SLOW
    """)
    for x in lst: A(x)
    A(f"s_branch {label}_DONE")
    A.label(f"{label}_SLOW")
    for x in lst: A((x + " sc1") if x.startswith('buffer_store') else x)
    A.label(f"{label}_DONE")
    G.vm += sum(1 for x in lst if x.startswith('buffer_'))

def signal(G, phase):
    G.bg_on = False
    G(f"""
    v_add_u32 v2, {phase}, {v(vFE)}
    v_mov_b32 v3, {v(vFE+1)}
    s_lshl_b32 {s(sT0)}, {s(sM)}, 2
    s_add_u32 {s(sT0)}, {s(sT0)}, {s(sW)}
    s_lshl_b32 {s(sT0)}, {s(sT0)}, 3
    s_add_u32 {s(sT0)}, {s(sT0)}, {L.FL_OFF + phase*512}
    v_mov_b32 v4, {s(sT0)}
    s_waitcnt vmcnt(0)
    s_mov_b64 exec, 1
    """)
    stores(G, [f"buffer_store_dwordx2 v[2:3], v4, {s(SWS,4)}, 0 offen"], f"SIG{phase}")
    G.bg_on = True
    G.nv = G.t
    G("s_mov_b64 exec, -1")

def poll(G, phase):
    A = G.A
    if phase == 0:
        A(f"""
        v_and_b32 v4, 31, v0
        s_and_b32 {s(sT0)}, {s(sM)}, 8
        s_lshl_b32 {s(sT0)}, {s(sT0)}, 2
        v_add_u32 v4, {s(sT0)}, v4
        v_lshlrev_b32 v4, 3, v4
        """)
    else:
        A("v_lshlrev_b32 v4, 3, v0")
    A(f"""
    v_add_u32 v2, {phase}, {v(vFE)}
    v_mov_b32 v3, {v(vFE+1)}
    s_mov_b32 {s(sCNT)}, 0
    s_mov_b32 {s(sT0)}, {L.FL_OFF + phase*512}
    """)
    A.label(f"POLL{phase}")
    A(f"""
    buffer_load_dwordx2 v[6:7], v4, {s(SWS,4)}, {s(sT0)} offen sc1
    s_add_u32 {s(sCNT)}, {s(sCNT)}, 1
    s_waitcnt vmcnt(0)
    v_cmp_ne_u64 vcc, v[6:7], v[2:3]
    s_cmp_ge_u32 {s(sCNT)}, 20000
    s_cbranch_scc1 POLL{phase}_DONE
    s_cbranch_vccnz POLL{phase}
    """)
    A.label(f"POLL{phase}_DONE")
    G.vdone = G.vm; G.nv = G.t

def touch(kind, r):
    srd, base, stride = {'x': (SX, sTB, 0), 'w1': (SW1, sTB1, 196608), 'wo': (SWO, sTB, 262144), 'w3': (SMU, sTB3, 131072), 'wd': (SWD, sTB, 262144)}[kind]
    if kind == 'x':
        return f"""
        s_lshl_b32 {s(sB0)}, {s(sXCD)}, 18
        s_add_u32 {s(sB0)}, {s(sB0)}, {s(sTB)}
        buffer_load_dword {R(aTD)}, {v(vTL)}, {s(srd,4)}, {s(sB0)} offen
        """
    return f"""
    s_add_u32 {s(sB0)}, {s(base)}, {r*stride}
    buffer_load_dword {R(aTD)}, {v(vTL)}, {s(srd,4)}, {s(sB0)} offen
    """

def lch(l): return ((l >> 1) & 1) * 4 + (l >> 2) * 2 + (l & 1)
def w3_dma(c, base):
    g = []
    g.append(f"""
    s_xor_b32 {s(sB0)}, {s(sROT3)}, {lch(c)}
    s_mul_i32 {s(sB0)}, {s(sB0)}, {64*2752}
    s_add_u32 {s(sB0)}, {s(sB0)}, {s(sW3G)}
    s_add_u32 m0, {s(sW3S)}, {base}
    s_add_u32 {s(sB1)}, {s(sB0)}, {16*2752}
    buffer_load_dwordx4 {v(vP3+0)}, {s(SMU,4)}, {s(sB0)} offen lds
    """)
    g.append(f"buffer_load_dwordx4 {v(vP3+1)}, {s(SMU,4)}, {s(sB0)} offen offset:1024 lds")
    g.append(f"buffer_load_dwordx4 {v(vP3+2)}, {s(SMU,4)}, {s(sB0)} offen offset:2048 lds")
    g.append(f"""
    s_add_u32 m0, {s(sW3S)}, {base + 3072}
    s_nop 0
    buffer_load_dwordx4 {v(vP3+0)}, {s(SMU,4)}, {s(sB1)} offen lds
    """)
    g.append(f"buffer_load_dwordx4 {v(vP3+1)}, {s(SMU,4)}, {s(sB1)} offen offset:1024 lds")
    g.append(f"buffer_load_dwordx4 {v(vP3+2)}, {s(SMU,4)}, {s(sB1)} offen offset:2048 lds")
    g.append(('TAG', f"w3_{c}"))
    return g

def w3_reads(blk, base):
    out = []
    for s4 in range(4):
        for k, va in enumerate((vW3o, vW3s)):
            for half in range(2):
                o = (base - S0) + (32*(s4 >> 1) + 8*(s4 & 1) + 4*half) * 192
                assert o < 65536
                out.append(f"ds_read_b64_tr_b16 {R(aW3 + 32*blk + 8*s4 + 4*k + 2*half, 2)}, {v(va)} offset:{o}")
    return out
def w3_colsum(blk):
    return [f"v_mfma_f32_16x16x32_bf16 {v(CSA+4*k,4)}, {R(aW3+32*blk+8*s4+4*k,4)}, {v(SEL,4)}, {v(CSA+4*k,4)}" for s4 in range(4) for k in range(2)]

def wt_dma(SWT, sko, ldsoff, tagname):
    return [f"""
    s_lshl_b32 {s(sB0)}, {s(sko)}, 4
    s_add_u32 m0, {s(sWB)}, {ldsoff}
    s_add_u32 {s(sB1)}, {s(sB0)}, 7168
    buffer_load_dwordx4 {v(vWD)}, {s(SWT,4)}, {s(sB0)} offen lds
    """, f"buffer_load_dwordx4 {v(vWD)}, {s(SWT,4)}, {s(sB1)} offen offset:1024 lds", ('TAG', tagname)]
def wt_reads(dst, ldsoff):
    return [f"ds_read_b64_tr_b16 {R(dst + 4*k + 2*half, 2)}, {v(vWT+k)} offset:{ldsoff + half*1024}" for k in range(2) for half in range(2)]

def gen_p1(G):
    A = G.A; cfg = G.cfg
    vXo0, vXo1, vXh, vWo = 6, 7, 8, 9
    vXa0, vXa1, vWa, vSa, vSh = 10, 11, 12, 13, 14
    t0, t1, t2, t3, t4 = 1, 2, 3, 4, 5
    FA, FB = 16, 48
    SF = 80
    ACC = 92
    SACC = 152
    BIAS = 160
    Qa = lambda T: ACC + 4 * T
    Ka = lambda T: ACC + 20 + 4 * T
    Va = lambda T: ACC + 40 + 4 * T
    G(f"""
    s_cmp_ge_u32 s2, 256
    s_cbranch_scc1 K_END
    s_load_dwordx16 s[64:79], s[0:1], 0
    s_load_dwordx4 s[80:83], s[0:1], 64
    s_memrealtime {s(sTS,2)}
    s_getreg_b32 {s(sXCC)}, hwreg(HW_REG_XCC_ID, 0, 4)
    v_lshrrev_b32 v1, 6, v0
    v_and_b32 v0, 63, v0
    v_readfirstlane_b32 {s(sW)}, v1
    s_and_b32 {s(sXCD)}, s2, 7
    s_lshr_b32 {s(sIDX)}, s2, 3
    s_lshr_b32 {s(sRBL)}, {s(sIDX)}, 3
    s_and_b32 {s(sCB)}, {s(sIDX)}, 7
    s_lshl_b32 {s(sRB)}, {s(sXCD)}, 2
    s_add_u32 {s(sRB)}, {s(sRB)}, {s(sRBL)}
    s_lshl_b32 {s(sT0)}, {s(sRB)}, 6
    s_lshr_b32 {s(sT1)}, {s(sW)}, 1
    s_lshl_b32 {s(sT1)}, {s(sT1)}, 5
    s_add_u32 {s(sT1)}, {s(sT1)}, {s(sT0)}
    s_and_b32 {s(sT2)}, {s(sW)}, 1
    s_add_u32 {s(sT1)}, {s(sT1)}, {s(sT2)}
    v_lshrrev_b32 {v(t0)}, 3, {v(vL)}
    v_and_b32 {v(t1)}, 7, {v(vL)}
    v_lshrrev_b32 {v(t2)}, 4, {v(vL)}
    v_xor_b32 {v(t3)}, {v(t1)}, {v(t2)}
    v_lshlrev_b32 {v(t4)}, 1, {v(t0)}
    v_add_u32 {v(t4)}, {s(sT1)}, {v(t4)}
    v_lshlrev_b32 {v(t4)}, 10, {v(t4)}
    v_lshl_add_u32 {v(vXo0)}, {v(t3)}, 4, {v(t4)}
    v_xor_b32 {v(t3)}, 4, {v(t3)}
    v_lshl_add_u32 {v(vXo1)}, {v(t3)}, 4, {v(t4)}
    v_add_u32 {v(vXo1)}, {0x4000 - 1024}, {v(vXo1)}
    s_lshl_b32 {s(sT2)}, {s(sW)}, 2
    v_add_u32 {v(t3)}, {s(sT2)}, {v(t0)}
    v_lshrrev_b32 {v(t4)}, 1, {v(t3)}
    v_and_b32 {v(t4)}, 7, {v(t4)}
    v_xor_b32 {v(t4)}, {v(t4)}, {v(t1)}
    s_sub_u32 {s(sT3)}, {s(sT0)}, 16
    v_add_u32 {v(t3)}, {s(sT3)}, {v(t3)}
    v_max_i32 {v(t3)}, 0, {v(t3)}
    v_lshlrev_b32 {v(t3)}, 10, {v(t3)}
    v_lshl_add_u32 {v(vXh)}, {v(t4)}, 4, {v(t3)}
    s_mov_b32 {s(sEXH)}, -1
    s_cmp_eq_u32 {s(sW)}, 0
    s_cselect_b32 {s(sEXH)}, 0xffffff00, {s(sEXH)}
    s_mov_b32 {s(sEXH+1)}, 0
    s_lshl_b32 {s(sT2)}, {s(sW)}, 3
    v_add_u32 {v(t3)}, {s(sT2)}, {v(t0)}
    v_mul_u32_u24 {v(t3)}, 3072, {v(t3)}
    v_and_b32 {v(t4)}, 1, {v(t2)}
    v_lshlrev_b32 {v(t4)}, 1, {v(t4)}
    s_and_b32 {s(sT2)}, {s(sW)}, 1
    s_lshl_b32 {s(sT2)}, {s(sT2)}, 2
    v_or_b32 {v(t4)}, {s(sT2)}, {v(t4)}
    v_xor_b32 {v(t4)}, {v(t4)}, {v(t1)}
    v_lshl_add_u32 {v(vWo)}, {v(t4)}, 4, {v(t3)}
    s_lshl_b32 {s(sT2)}, {s(sCB)}, 7
    v_add_u32 {v(vWo)}, {s(sT2)}, {v(vWo)}
    s_lshl_b32 {s(sT2)}, {s(sRBL)}, 1
    s_add_u32 {s(sT2)}, {s(sT2)}, {s(sCB)}
    s_and_b32 {s(sT2)}, {s(sT2)}, {7 if cfg.p1rot else 0}
    s_lshl_b32 {s(sT4)}, {s(sIDX)}, 2
    s_add_u32 {s(sT4)}, {s(sT4)}, {s(sW)}
    s_lshl_b32 {s(sTB)}, {s(sT4)}, 11
    s_mul_i32 {s(sTB1)}, {s(sT4)}, 1536
    s_lshr_b32 {s(sT4)}, {s(sT4)}, 1
    s_lshl_b32 {s(sTB3)}, {s(sT4)}, 11
    v_lshrrev_b32 {v(vTL)}, 2, {v(vL)}
    v_lshlrev_b32 {v(vTL)}, 7, {v(vTL)}
    s_lshl_b32 {s(sSX)}, {s(sT2)}, 7
    s_mul_i32 {s(sSW)}, {s(sT2)}, 196608
    s_lshl_b32 {s(sMX)}, {s(sW)}, 11
    s_lshl_b32 {s(sMH)}, {s(sW)}, 9
    s_add_u32 {s(sMH)}, {s(sMH)}, 8192
    s_mul_i32 {s(sMW0)}, {s(sW)}, 3072
    s_add_u32 {s(sMW0)}, {s(sMW0)}, {WRING}
    s_mov_b32 {s(sMW)}, {s(sMW0)}
    s_add_u32 {s(sMWL)}, {s(sMW0)}, {3*WSLOT}
    s_mov_b32 {s(SX+2)}, {2048*1024}
    s_mov_b32 {s(SX+3)}, 0x20000
    s_mov_b32 {s(SW1+2)}, {512*3072}
    s_mov_b32 {s(SW1+3)}, 0x20000
    s_waitcnt lgkmcnt(0)
    s_mov_b32 {s(SX)}, s64
    s_and_b32 {s(SX+1)}, s65, 0xffff
    s_mov_b32 {s(SW1)}, s66
    s_and_b32 {s(SW1+1)}, s67, 0xffff
    """)
    def dma_chunk(c):
        g = []
        g.append(f"""
        s_mov_b32 m0, {s(sMW)}
        s_add_u32 {s(sB0)}, {s(sSW)}, {32*3072}
        buffer_load_dwordx4 {v(vWo)}, {s(SW1,4)}, {s(sSW)} offen lds
        """)
        g.append(f"buffer_load_dwordx4 {v(vWo)}, {s(SW1,4)}, {s(sSW)} offen offset:1024 lds")
        g.append(f"buffer_load_dwordx4 {v(vWo)}, {s(SW1,4)}, {s(sSW)} offen offset:2048 lds")
        g.append(f"""
        s_mov_b32 m0, {s(sMX)}
        s_add_u32 {s(sMX)}, {s(sMX)}, {XCH}
        buffer_load_dwordx4 {v(vXo0)}, {s(SX,4)}, {s(sSX)} offen lds
        """)
        g.append(f"buffer_load_dwordx4 {v(vXo1)}, {s(SX,4)}, {s(sSX)} offen offset:1024 lds")
        g.append(f"""
        s_mov_b32 m0, {s(sMH)}
        s_mov_b64 exec, {s(sEXH,2)}
        buffer_load_dwordx4 {v(vXh)}, {s(SX,4)}, {s(sSX)} offen lds
        s_mov_b64 exec, -1
        """)
        g.append(f"""
        s_add_u32 m0, {s(sMW)}, {4*3072}
        s_add_u32 {s(sMH)}, {s(sMH)}, {XCH}
        buffer_load_dwordx4 {v(vWo)}, {s(SW1,4)}, {s(sB0)} offen lds
        """)
        g.append(f"""
        buffer_load_dwordx4 {v(vWo)}, {s(SW1,4)}, {s(sB0)} offen offset:1024 lds
        s_add_u32 {s(sSX)}, {s(sSX)}, 128
        s_and_b32 {s(sSX)}, {s(sSX)}, 1023
        s_add_u32 {s(sSW)}, {s(sSW)}, 196608
        s_cmp_eq_u32 {s(sSW)}, {8*196608}
        s_cselect_b32 {s(sSW)}, 0, {s(sSW)}
        """)
        g.append(f"""
        buffer_load_dwordx4 {v(vWo)}, {s(SW1,4)}, {s(sB0)} offen offset:2048 lds
        s_add_u32 {s(sMW)}, {s(sMW)}, {WSLOT}
        s_cmp_eq_u32 {s(sMW)}, {s(sMWL)}
        s_cselect_b32 {s(sMW)}, {s(sMW0)}, {s(sMW)}
        """)
        g.append(('TAG', f"c{c}"))
        return g
    TT = (lambda k, r: [touch(k, r)]) if cfg.touch else (lambda k, r: [])
    T1 = (lambda r: [touch('w1', r)]) if (cfg.touch and not cfg.p1rot) else (lambda r: [])
    G.bg_on = False
    for x in (TT('x', 0) if not cfg.p1rot else []) + dma_chunk(0) + T1(1) + T1(2): G.item(x)
    setup = []
    def S(txt): setup.append(txt)
    S(f"""
    s_and_b32 {s(sM)}, {s(sIDX)}, 15
    s_lshr_b32 {s(sG)}, {s(sRB)}, 1
    s_mov_b32 {s(sONE)}, 0x3f803f80
    v_lshlrev_b32 {v(vL16)}, 4, v0
    s_mov_b32 {s(SWO)}, s68
    s_and_b32 {s(SWO+1)}, s69, 0xffff
    s_mov_b32 {s(SWO+2)}, {512*1024}
    s_mov_b32 {s(SWO+3)}, 0x20000
    s_mov_b32 {s(SWD)}, s76
    s_and_b32 {s(SWD+1)}, s77, 0xffff
    s_mov_b32 {s(SWD+2)}, {1376*1024}
    s_mov_b32 {s(SWD+3)}, 0x20000
    s_mov_b32 {s(SOUT)}, s78
    s_and_b32 {s(SOUT+1)}, s79, 0xffff
    s_mov_b32 {s(SOUT+2)}, {2048*1024}
    s_mov_b32 {s(SOUT+3)}, 0x20000
    s_mov_b32 {s(SDBG)}, s80
    s_and_b32 {s(SDBG+1)}, s81, 0xffff
    s_mov_b32 {s(SDBG+2)}, 256
    s_mov_b32 {s(SDBG+3)}, 0x20000
    s_mul_i32 {s(sT0)}, {s(sG)}, {L.GSTRIDE}
    s_add_u32 {s(SWS)}, s82, {s(sT0)}
    s_addc_u32 {s(SWS+1)}, s83, 0
    s_and_b32 {s(SWS+1)}, {s(SWS+1)}, 0xffff
    s_mov_b32 {s(SWS+2)}, {L.GSTRIDE}
    s_mov_b32 {s(SWS+3)}, 0x20000
    s_bitcmp1_b32 {s(sW)}, 0
    s_cselect_b32 {s(SMU)}, s74, s72
    s_cselect_b32 {s(SMU+1)}, s75, s73
    s_and_b32 {s(SMU+1)}, {s(SMU+1)}, 0xffff
    s_mov_b32 {s(SMU+2)}, {512*2752}
    s_mov_b32 {s(SMU+3)}, 0x20000
    """)
    for x in setup: G(x)
    if cfg.stamps:
        G(f"""
        s_lshl_b32 {s(sT0)}, s2, 10
        s_lshl_b32 {s(sT1)}, {s(sW)}, 8
        s_add_u32 {s(sT0)}, {s(sT0)}, {s(sT1)}
        s_add_u32 {s(sT0)}, {s(sT0)}, {L.STAMP_OFF}
        s_add_u32 {s(sST)}, s82, {s(sT0)}
        s_addc_u32 {s(sST+1)}, s83, 0
        s_and_b32 {s(sST+1)}, {s(sST+1)}, 0xffff
        s_mov_b32 {s(sST+2)}, 256
        s_mov_b32 {s(sST+3)}, 0x20000
        v_mov_b32 v253, 0
        """)
    A(f"""
    s_cmp_lg_u32 {s(sW)}, 0
    s_cbranch_scc1 REG_DONE
    s_and_b32 {s(sXCC)}, {s(sXCC)}, 7
    s_mul_i32 {s(sT0)}, {s(sXCC)}, {s(sXCC)}
    s_lshl_b32 {s(sT0)}, {s(sT0)}, 12
    s_lshl_b32 {s(sT1)}, {s(sXCC)}, 5
    s_or_b32 {s(sT0)}, {s(sT0)}, {s(sT1)}
    s_or_b32 {s(sT0)}, {s(sT0)}, 1
    s_lshl_b64 {s(sT4,2)}, {s(sTS,2)}, 22
    s_or_b32 {s(sT0)}, {s(sT0)}, {s(sT4)}
    v_mov_b32 v2, {s(sT0)}
    v_mov_b32 v3, {s(sT5)}
    s_lshl_b32 {s(sT1)}, {s(sG)}, 3
    v_mov_b32 v4, {s(sT1)}
    s_mov_b64 exec, 1
    buffer_atomic_add_x2 v[2:3], v4, {s(SDBG,4)}, 0 offen offset:128 sc1
    s_mov_b64 exec, -1
    """)
    A.label("REG_DONE")
    if cfg.stamps == 1:
        G(f"""
        v_mov_b32 v254, {s(sTS)}
        v_mov_b32 v255, {s(sTS+1)}
        buffer_store_dwordx2 v[254:255], v253, {s(sST,4)}, 0 offen
        """)
        G.nstamp = 1; G.names.append('start')
    else:
        G.stamp('start')
    G.bg_on = True; G.nv = G.t
    G.bg(dma_chunk(1) + T1(3)); G.bg(dma_chunk(2) + T1(4))
    V = []
    def W(txt):
        for ln in txt.strip().split('\n'):
            if ln.strip(): V.append(ln.strip())
    W(f"""
    v_lshrrev_b32 {v(t2)}, 4, {v(vL)}
    v_and_b32 {v(t0)}, 15, {v(vL)}
    v_lshrrev_b32 {v(t1)}, 1, {v(t0)}
    v_xor_b32 {v(t1)}, {v(t1)}, {v(t2)}
    v_lshlrev_b32 {v(t1)}, 4, {v(t1)}
    v_lshl_add_u32 {v(vXa0)}, {v(t0)}, 7, {v(t1)}
    v_xor_b32 {v(vXa1)}, 64, {v(vXa0)}
    v_mul_u32_u24 {v(vWa)}, 3072, {v(t2)}
    v_bfe_u32 {v(t1)}, {v(vL)}, 2, 2
    v_lshl_add_u32 {v(vWa)}, {v(t1)}, 7, {v(vWa)}
    v_lshrrev_b32 {v(t1)}, 1, {v(t1)}
    v_and_b32 {v(t3)}, 1, {v(t2)}
    v_lshl_or_b32 {v(t1)}, {v(t3)}, 1, {v(t1)}
    v_xor_b32 {v(t1)}, {s(sW)}, {v(t1)}
    v_lshl_add_u32 {v(vWa)}, {v(t1)}, 5, {v(vWa)}
    v_and_b32 {v(t1)}, 3, {v(vL)}
    v_lshl_add_u32 {v(vWa)}, {v(t1)}, 3, {v(vWa)}
    v_add_u32 {v(vWa)}, {WRING}, {v(vWa)}
    s_lshl_b32 {s(sT0)}, {s(sW)}, 11
    s_lshl_b32 {s(sT1)}, {s(sW)}, 9
    s_add_u32 {s(sT1)}, {s(sT1)}, 8192
    v_add_u32 {v(vSh)}, {s(sT1)}, {v(vL16)}
    v_add_u32 {v(vSa)}, {s(sT0)}, {v(vL16)}
    v_lshrrev_b32 {v(t1)}, 3, {v(vL)}
    v_mul_u32_u24 {v(t1)}, {XCH}, {v(t1)}
    v_and_b32 {v(t3)}, 7, {v(vL)}
    v_lshl_add_u32 {v(t1)}, {v(t3)}, 4, {v(t1)}
    v_mov_b32 {v(FA)}, {s(sONE)}
    v_mov_b32 {v(FA+1)}, {s(sONE)}
    v_mov_b32 {v(FA+2)}, {s(sONE)}
    v_mov_b32 {v(FA+3)}, {s(sONE)}
    ds_write_b128 {v(t1)}, {v(FA,4)} offset:8192
    """)
    for i in range(30): W(f"v_mov_b64 {v(ACC+2*i,2)}, 0")
    for i in range(3): W(f"v_mov_b64 {v(SACC+2*i,2)}, 0")
    NEG = "0xf149f2ca"
    W(f"""
    v_mov_b32 {v(t4)}, {NEG}
    v_lshlrev_b32 {v(t1)}, 2, {v(t2)}
    v_sub_u32 {v(t3)}, {v(t0)}, {v(t1)}
    """)
    for r in range(4):
        W(f"""
        v_subrev_u32 {v(t1)}, {r}, {v(t3)}
        v_cmp_ge_u32 vcc, 7, {v(t1)}
        v_cmp_ge_i32 {s(sT4,2)}, -9, {v(t1)}
        v_cndmask_b32 {v(BIAS+r)}, {v(t4)}, 0, vcc
        v_cndmask_b32 {v(BIAS+4+r)}, {v(t4)}, 0, {s(sT4,2)}
        """)
    W(f"""
    s_min_u32 {s(sT0)}, {s(sRB)}, 1
    s_mul_i32 {s(sT0)}, {s(sT0)}, 62
    s_sub_u32 {s(sT0)}, 64, {s(sT0)}
    v_lshlrev_b32 {v(t1)}, 2, {v(t2)}
    v_lshlrev_b32 {v(t3)}, 1, {v(t0)}
    v_sub_u32 {v(t3)}, {v(t1)}, {v(t3)}
    v_subrev_u32 {v(t3)}, {s(sT0)}, {v(t3)}
    v_cmp_le_i32 vcc, 0, {v(t3)}
    v_cmp_le_i32 {s(sT4,2)}, -2, {v(t3)}
    v_mov_b32 {v(BIAS+9)}, {v(t4)}
    v_mov_b32 {v(BIAS+11)}, {v(t4)}
    v_mov_b32 {v(BIAS+12)}, {v(t4)}
    v_mov_b32 {v(BIAS+14)}, {v(t4)}
    v_cndmask_b32 {v(BIAS+8)}, {v(t4)}, 0, vcc
    v_cndmask_b32 {v(BIAS+10)}, {v(t4)}, 0, {s(sT4,2)}
    v_cndmask_b32 {v(BIAS+13)}, {v(t4)}, 0, vcc
    v_cndmask_b32 {v(BIAS+15)}, {v(t4)}, 0, {s(sT4,2)}
    """)
    W(f"""
    s_mul_i32 {s(sT0)}, {s(sM)}, 192
    s_mov_b32 {s(sT1)}, 0x15555556
    s_and_b32 {s(sT2)}, {s(sW)}, 1
    s_lshr_b32 {s(sT4)}, {s(sW)}, 1
    s_mul_i32 {s(sW3S)}, {s(sT2)}, 12288
    s_mul_i32 {s(sT5)}, {s(sT4)}, 6144
    s_add_u32 {s(sW3S)}, {s(sW3S)}, {s(sT5)}
    s_mul_i32 {s(sW3G)}, {s(sT4)}, {32*2752}
    s_and_b32 {s(sROT3)}, {s(sG)}, {1 if cfg.rot3 else 0}
    s_lshl_b32 {s(sROT3)}, {s(sROT3)}, 2
    s_lshl_b32 {s(sT2)}, {s(sT2)}, 1
    """)
    for i in range(3):
        W(f"""
        v_add_u32 {v(t0)}, {64*i}, {v(vL)}
        v_mul_hi_u32 {v(t1)}, {v(t0)}, {s(sT1)}
        v_mul_u32_u24 {v(t2)}, 12, {v(t1)}
        v_sub_u32 {v(t2)}, {v(t0)}, {v(t2)}
        v_mul_u32_u24 {v(t1)}, 2752, {v(t1)}
        v_add_u32 {v(t1)}, {s(sT0)}, {v(t1)}
        v_subrev_u32 {v(t1)}, {1024*i}, {v(t1)}
        v_subrev_u32 {v(t2)}, {s(sT2)}, {v(t2)}
        v_add_u32 {v(t0)}, 12, {v(t2)}
        v_cmp_gt_i32 vcc, 0, {v(t2)}
        v_cndmask_b32 {v(t2)}, {v(t2)}, {v(t0)}, vcc
        v_lshl_add_u32 {v(vP3+i)}, {v(t2)}, 4, {v(t1)}
        """)
    W(f"""
    v_lshrrev_b32 {v(t0)}, 3, {v(vL)}
    v_and_b32 {v(t1)}, 7, {v(vL)}
    v_bfe_u32 {v(t2)}, {v(vL)}, 4, 1
    v_lshlrev_b32 {v(t2)}, 2, {v(t2)}
    v_xor_b32 {v(t1)}, {v(t1)}, {v(t2)}
    v_lshlrev_b32 {v(t0)}, 10, {v(t0)}
    v_lshl_add_u32 {v(vWD)}, {v(t1)}, 4, {v(t0)}
    s_lshl_b32 {s(sT0)}, {s(sCB)}, 7
    v_add_u32 {v(vWD)}, {s(sT0)}, {v(vWD)}
    s_lshl_b32 {s(sT1)}, {s(sW)}, 3
    s_lshl_b32 {s(sT2)}, {s(sRBL)}, 1
    s_lshl_b32 {s(sWB)}, {s(sW)}, 11
    """)
    W(f"s_lshl_b32 {s(sT1)}, {s(sW)}, 10")
    for j in range(8):
        W(f"""
        s_add_u32 {s(sT0)}, {s(sT2)}, {j}
        s_and_b32 {s(sT0)}, {s(sT0)}, 7
        s_lshl_b32 {s(sT0)}, {s(sT0)}, 12
        s_add_u32 {s(sKO+j)}, {s(sT0)}, {s(sT1)}
        """)
    W(f"""
    v_lshrrev_b32 {v(t0)}, 5, {v(vL)}
    v_bfe_u32 {v(t1)}, {v(vL)}, 2, 2
    v_lshl_add_u32 {v(t0)}, {v(t0)}, 2, {v(t1)}
    v_lshlrev_b32 {v(t0)}, 7, {v(t0)}
    v_and_b32 {v(t1)}, 1, {v(vL)}
    v_lshl_add_u32 {v(t0)}, {v(t1)}, 5, {v(t0)}
    v_bfe_u32 {v(t1)}, {v(vL)}, 4, 1
    v_lshl_add_u32 {v(t0)}, {v(t1)}, 4, {v(t0)}
    v_bfe_u32 {v(t1)}, {v(vL)}, 1, 1
    v_lshl_add_u32 {v(t0)}, {v(t1)}, 3, {v(t0)}
    v_bfe_u32 {v(t1)}, {v(vL)}, 3, 1
    s_and_b32 {s(sT0)}, {s(sW)}, 1
    v_xor_b32 {v(t1)}, {s(sT0)}, {v(t1)}
    v_lshl_add_u32 {v(vWT+1)}, {v(t1)}, 6, {v(t0)}
    v_add_u32 {v(vWT+1)}, {s(sWB)}, {v(vWT+1)}
    v_xor_b32 {v(vWT)}, 64, {v(vWT+1)}
    s_mov_b32 {s(sT4)}, {S0}
    s_lshl_b32 {s(sT0)}, {s(sW)}, 5
    s_lshr_b32 {s(sT1)}, {s(sW)}, 1
    s_lshl_b32 {s(sT1)}, {s(sT1)}, 5
    s_add_u32 {s(sT1)}, {s(sT1)}, 128
    v_lshrrev_b32 {v(t0)}, 5, {v(vL)}
    v_bfe_u32 {v(t1)}, {v(vL)}, 2, 2
    v_lshl_add_u32 {v(t0)}, {v(t0)}, 4, {v(t1)}
    v_mul_u32_u24 {v(t0)}, 192, {v(t0)}
    v_bfe_u32 {v(t1)}, {v(vL)}, 4, 1
    v_mul_u32_u24 {v(t2)}, 12288, {v(t1)}
    v_add3_u32 {v(t0)}, {v(t0)}, {v(t2)}, {s(sT4)}
    v_and_b32 {v(t2)}, 3, {v(vL)}
    v_lshlrev_b32 {v(t2)}, 3, {v(t2)}
    v_lshl_add_u32 {v(t2)}, {v(t1)}, 5, {v(t2)}
    v_add3_u32 {v(vW3o)}, {v(t0)}, {v(t2)}, {s(sT0)}
    v_add_u32 {v(t2)}, {s(sT1)}, {v(t2)}
    v_subrev_u32 {v(t3)}, 192, {v(t2)}
    v_cmp_le_u32 vcc, 192, {v(t2)}
    v_cndmask_b32 {v(t2)}, {v(t2)}, {v(t3)}, vcc
    v_add_u32 {v(vW3s)}, {v(t0)}, {v(t2)}
    s_and_b32 {s(sT0)}, {s(sW)}, 1
    s_lshl_b32 {s(sT0)}, {s(sT0)}, 13
    v_add_u32 {v(vA01)}, {s(sT0)}, {v(vL16)}
    v_xor_b32 {v(vA23)}, 0x2000, {v(vA01)}
    s_lshl_b32 {s(sA3)}, {s(sW)}, 15
    s_add_u32 {s(sA3)}, {s(sA3)}, {L.H_OFF}
    """)
    W(f"""
    s_lshl_b32 {s(sT0)}, {s(sRB)}, 6
    s_lshr_b32 {s(sT2)}, {s(sW)}, 1
    s_lshl_b32 {s(sT2)}, {s(sT2)}, 5
    s_add_u32 {s(sT0)}, {s(sT0)}, {s(sT2)}
    s_lshl_b32 {s(sT0)}, {s(sT0)}, 10
    s_lshl_b32 {s(sT2)}, {s(sCB)}, 7
    s_add_u32 {s(sT0)}, {s(sT0)}, {s(sT2)}
    s_and_b32 {s(sT2)}, {s(sW)}, 1
    s_lshl_b32 {s(sT2)}, {s(sT2)}, 6
    s_add_u32 {s(sT0)}, {s(sT0)}, {s(sT2)}
    v_and_b32 v2, 15, v0
    v_lshlrev_b32 v2, 11, v2
    v_bfe_u32 v3, v0, 4, 1
    v_lshl_add_u32 v2, v3, 10, v2
    v_lshrrev_b32 v3, 5, v0
    v_lshl_add_u32 v1, v3, 5, v2
    v_add_u32 v1, {s(sT0)}, v1
    s_lshl_b32 {s(sT0)}, {s(sG)}, 3
    v_mov_b32 v5, {s(sT0)}
    """)
    for x in V: G(x)
    def reads(F, kh):
        xs = [f"ds_read_b128 {v(F+4*T,4)}, {v(vXa1 if kh else vXa0)} offset:{T*2048}" for T in range(5)]
        ws = []
        for sct in range(3):
            for half in range(2):
                ws.append(f"ds_read_b64_tr_b16 {v(F+20+4*sct+2*half,2)}, {v(vWa)} offset:{kh*12288+sct*1024+half*512}")
        return ws[:2] + xs[:1] + ws[2:4] + xs[1:2] + ws[4:] + xs[2:]
    def mfmas(F):
        out = []
        for T in range(5):
            x = v(F+4*T, 4)
            out.append(f"v_mfma_f32_16x16x32_bf16 {v(Qa(T),4)}, {v(F+20,4)}, {x}, {v(Qa(T),4)}")
            out.append(f"v_mfma_f32_16x16x32_bf16 {v(Ka(T),4)}, {v(F+24,4)}, {x}, {v(Ka(T),4)}")
            out.append(f"v_mfma_f32_16x16x32_bf16 {v(Va(T),4)}, {x}, {v(F+28,4)}, {v(Va(T),4)}")
        return out
    def dots():
        for j in range(4):
            for b in range(3):
                G(f"v_dot2c_f32_bf16 {v(SACC+2*b)}, {s(sONE)}, {v(SF+4*b+j)}\nv_dot2c_f32_bf16 {v(SACC+2*b+1)}, {v(SF+4*b+j)}, {v(SF+4*b+j)}")
    sreads = [f"ds_read_b128 {v(SF,4)}, {v(vSa)}", f"ds_read_b128 {v(SF+4,4)}, {v(vSa)} offset:1024", f"ds_read_b128 {v(SF+8,4)}, {v(vSh)}"]
    def adv_s(i):
        d = WSLOT if (i + 1) % 3 else (-2 * WSLOT) & 0xffffffff
        return [f"v_add_u32 {v(vWa)}, {d}, {v(vWa)}", f"v_add_u32 {v(vXa0)}, {XCH}, {v(vXa0)}", f"v_add_u32 {v(vXa1)}, {XCH}, {v(vXa1)}",
                f"v_add_u32 {v(vSa)}, {XCH}, {v(vSa)}", f"v_add_u32 {v(vSh)}, {XCH}, {v(vSh)}"]
    def front(main, fill):
        fi = 0
        for x in main:
            G(x)
            if fi < len(fill): G.item(fill[fi]); fi += 1
        while fi < len(fill): G.item(fill[fi]); fi += 1
    def first_half(i, fill=(), last=False):
        rd = reads(FB, 1)
        items = [rd[0] + "\n" + rd[1]] + rd[2:] + sreads
        if not last:
            ad = adv_s(i); items += [ad[0] + "\n" + ad[1] + "\n" + ad[2], ad[3] + "\n" + ad[4]]
        front(mfmas(FA), items + list(fill))
        dots()
        G.lwait_all()
    def second_half(fill=(), last=False):
        if last: G.spread(mfmas(FB), list(fill))
        else: front(mfmas(FB), reads(FA, 0) + list(fill))
    G.wait_tag('c0', 'lgkmcnt(0)')
    G("s_barrier")
    G.stamp('c0')
    for x in reads(FA, 0): G(x)
    wo = lambda j: wt_dma(SWO, sKO + j, j*8192, f"wo{j}")
    xl = [f"buffer_load_dwordx4 {R(aXR,4)}, v1, {s(SX,4)}, 0 offen", f"buffer_load_dwordx4 {R(aXR+4,4)}, v1, {s(SX,4)}, 0 offen offset:16",
          f"buffer_load_dwordx2 {v(vFE,2)}, v5, {s(SDBG,4)}, 0 offen offset:128 sc1", ('TAG', 'reg')]
    enq = {i: [] for i in range(8)}
    for i in range(5): enq[i].append(dma_chunk(i + 3) + (T1(i + 5) if i < 3 else []))
    G.w3r = 0
    def tw3(n):
        out = []
        for _ in range(n):
            if cfg.touch and G.w3r < 11: out.append(touch('w3', G.w3r)); G.w3r += 1
        return out
    G.tw3 = tw3
    enq[4] += [wo(j) for j in range(6)]
    enq[5] += [wo(6), xl, w3_dma(0, S2)]
    enq[6] += [wo(7), w3_dma(1, S0)]
    for i in range(7):
        first_half(i)
        G.wait_tag(f"c{i+1}"); G("s_barrier")
        for g in enq[i]: G.bg(g)
        second_half()
        if cfg.fine == 1: G.stamp(f'p1_{i}')
    first_half(7, last=True)
    st = []
    for dpp in ("quad_perm:[1,0,3,2]", "quad_perm:[2,3,0,1]", "row_half_mirror"):
        for i in range(6):
            st.append(f"v_add_f32_dpp {v(SACC+i)}, {v(SACC+i)}, {v(SACC+i)} {dpp} row_mask:0xf bank_mask:0xf")
    B3 = range(3)
    for i in range(6): st.append(f"v_mul_f32 {v(SACC+i)}, 0x3b000000, {v(SACC+i)}")
    for b in B3: st.append(f"v_fma_f32 {v(SACC+2*b+1)}, -{v(SACC+2*b)}, {v(SACC+2*b)}, {v(SACC+2*b+1)}")
    for b in B3: st.append(f"v_max_f32 {v(SACC+2*b+1)}, 0, {v(SACC+2*b+1)}")
    for b in B3: st.append(f"v_add_f32 {v(SACC+2*b+1)}, 0x3727c5ac, {v(SACC+2*b+1)}")
    for b in B3: st.append(f"v_rsq_f32 {v(SACC+2*b+1)}, {v(SACC+2*b+1)}")
    st += f"""
    v_lshrrev_b32 {v(t1)}, 3, {v(vL)}
    v_lshlrev_b32 {v(t1)}, 2, {v(t1)}
    s_lshl_b32 {s(sT0)}, {s(sW)}, 6
    s_add_u32 {s(sT0)}, {s(sT0)}, {STATS1}
    v_add_u32 {v(t2)}, {s(sT0)}, {v(t1)}
    s_lshl_b32 {s(sT0)}, {s(sW)}, 4
    s_add_u32 {s(sT0)}, {s(sT0)}, {STATS1 + 256}
    v_add_u32 {v(t3)}, {s(sT0)}, {v(t1)}""".strip().split('\n')
    for b in B3: st.append(f"v_mul_f32 {v(SACC+2*b)}, -{v(SACC+2*b)}, {v(SACC+2*b+1)}")
    st += f"""
    ds_write_b32 {v(t2)}, {v(SACC+1)}
    ds_write_b32 {v(t2)}, {v(SACC)} offset:512
    ds_write_b32 {v(t2)}, {v(SACC+3)} offset:32
    ds_write_b32 {v(t2)}, {v(SACC+2)} offset:544
    ds_write_b32 {v(t3)}, {v(SACC+5)}
    ds_write_b32 {v(t3)}, {v(SACC+4)} offset:512
    v_and_b32 {v(t1)}, 15, {v(vL)}
    v_lshlrev_b32 {v(t1)}, 2, {v(t1)}
    v_add_u32 {v(t1)}, {STATS1}, {v(t1)}
    v_lshrrev_b32 {v(t2)}, 4, {v(vL)}
    v_lshlrev_b32 {v(t2)}, 4, {v(t2)}
    v_add_u32 {v(t2)}, {STATS1}, {v(t2)}""".strip().split('\n')
    second_half(st, last=True)
    G.stamp('p1loop')
    LA = 16; LBa = 28; LBb = 208
    CSQ, CSK, CSV = 228, 232, 236
    TMP = 80
    G(f"""
    s_waitcnt lgkmcnt(0)
    s_barrier
    """)
    for T in range(5):
        G(f"ds_read2_b32 {v(LA+2*T,2)}, {v(t1)} offset0:{T*16} offset1:{T*16+128}")
    for T in range(5):
        G(f"ds_read_b128 {v(LBa+4*T,4)}, {v(t2)} offset:{T*64}")
        G(f"ds_read_b128 {v(LBb+4*T,4)}, {v(t2)} offset:{T*64+512}")
    for r in range(4):
        G(f"v_mov_b32_dpp {v(CSQ+r)}, {v(Qa(4)+r)} row_newbcast:0 row_mask:0xf bank_mask:0xf")
        G(f"v_mov_b32_dpp {v(CSK+r)}, {v(Ka(4)+r)} row_newbcast:0 row_mask:0xf bank_mask:0xf")
    G(f"""
    v_mov_b32 {v(CSV)}, {v(Va(4))}
    v_mov_b32 {v(CSV+1)}, {v(Va(4))}
    v_permlane16_swap_b32 {v(CSV)}, {v(CSV+1)}
    v_mov_b32 {v(CSV+1)}, {v(CSV)}
    v_permlane32_swap_b32 {v(CSV)}, {v(CSV+1)}
    v_mov_b32 {v(CSV+1)}, {v(CSV)}
    s_waitcnt lgkmcnt(10)
    """)
    QP = 176; KP = 184; VP = 196
    vpos = {2: 0, 0: 2, 4: 4, 1: 6, 3: 8}
    def norm_qk(acc, cs, T, dst, tmp):
        ab = v(LA+2*T, 2)
        for hlf in range(2):
            G(f"v_pk_mul_f32 {v(tmp+2*hlf,2)}, {v(cs+2*hlf,2)}, {ab} op_sel:[0,1] op_sel_hi:[1,1]")
        for hlf in range(2):
            G(f"v_pk_fma_f32 {v(acc+2*hlf,2)}, {v(acc+2*hlf,2)}, {ab}, {v(tmp+2*hlf,2)} op_sel:[0,0,0] op_sel_hi:[1,0,1]")
        for hlf in range(2):
            G(f"v_cvt_pk_bf16_f32 {v(dst+hlf)}, {v(acc+2*hlf)}, {v(acc+2*hlf+1)}")
    for T in range(5):
        norm_qk(Ka(T), CSK, T, KP+2*T, TMP)
        if T < 4: norm_qk(Qa(T), CSQ, T, QP+2*T, TMP+4)
    G("s_waitcnt lgkmcnt(0)")
    for T in range(5):
        acc = Va(T)
        tmp = TMP + 4*(T & 1)
        for hlf in range(2):
            G(f"v_pk_mul_f32 {v(tmp+2*hlf,2)}, {v(LBb+4*T+2*hlf,2)}, {v(CSV,2)}")
        for hlf in range(2):
            G(f"v_pk_fma_f32 {v(acc+2*hlf,2)}, {v(acc+2*hlf,2)}, {v(LBa+4*T+2*hlf,2)}, {v(tmp+2*hlf,2)}")
    SC = lambda T: ACC + 8*T
    vcv = [f"v_cvt_pk_bf16_f32 {v(VP+vpos[T]+hlf)}, {v(Va(T)+2*hlf)}, {v(Va(T)+2*hlf+1)}" for T in range(5) for hlf in range(2)]
    sm = []
    for T in range(4):
        prev = T - 2 if T >= 2 else 4
        bprev = BIAS + 4 if T >= 2 else BIAS + 8 + 4*T
        sm.append(f"v_mfma_f32_16x16x16_bf16 {v(SC(T),4)}, {v(KP+2*T,2)}, {v(QP+2*T,2)}, {v(BIAS,4)}")
        sm.append(f"v_mfma_f32_16x16x16_bf16 {v(SC(T)+4,4)}, {v(KP+2*prev,2)}, {v(QP+2*T,2)}, {v(bprev,4)}")
    G.spread(sm, vcv)
    MX = 16; M2 = 20; SM = 24; S2_ = 28
    PP = 32
    G(f"s_mov_b32 {s(sT0)}, 0x3eb8aa3b")
    for T in range(4):
        b = SC(T)
        G(f"""
        v_max3_f32 {v(MX+T)}, {v(b)}, {v(b+1)}, {v(b+2)}
        v_max3_f32 {v(M2+T)}, {v(b+3)}, {v(b+4)}, {v(b+5)}
        """)
    for T in range(4):
        b = SC(T)
        G(f"v_max3_f32 {v(MX+T)}, {v(MX+T)}, {v(b+6)}, {v(b+7)}")
    for T in range(4): G(f"v_max_f32 {v(MX+T)}, {v(MX+T)}, {v(M2+T)}")
    def allreduce(X, Y, op):
        for T in range(4): G(f"v_mov_b32 {v(Y+T)}, {v(X+T)}")
        for T in range(4): G(f"v_permlane16_swap_b32 {v(X+T)}, {v(Y+T)}")
        for T in range(4): G(f"{op} {v(X+T)}, {v(X+T)}, {v(Y+T)}")
        for T in range(4): G(f"v_mov_b32 {v(Y+T)}, {v(X+T)}")
        for T in range(4): G(f"v_permlane32_swap_b32 {v(X+T)}, {v(Y+T)}")
        for T in range(4): G(f"{op} {v(X+T)}, {v(X+T)}, {v(Y+T)}")
    allreduce(MX, M2, "v_max_f32")
    for T in range(4): G(f"v_mul_f32 {v(MX+T)}, {s(sT0)}, {v(MX+T)}")
    OA = 48
    win = {2: 0, 0: 2, 1: 4, 3: 6}
    for T in range(4):
        b = SC(T)
        for i in range(8): G(f"v_fma_f32 {v(b+i)}, {v(b+i)}, {s(sT0)}, -{v(MX+T)}")
        for i in range(8): G(f"v_exp_f32 {v(b+i)}, {v(b+i)}")
        first, second = (b, b+4) if T in (0, 2) else (b+4, b)
        G(f"""
        v_cvt_pk_bf16_f32 {v(PP+4*T)}, {v(first)}, {v(first+1)}
        v_cvt_pk_bf16_f32 {v(PP+4*T+1)}, {v(first+2)}, {v(first+3)}
        v_cvt_pk_bf16_f32 {v(PP+4*T+2)}, {v(second)}, {v(second+1)}
        v_cvt_pk_bf16_f32 {v(PP+4*T+3)}, {v(second+2)}, {v(second+3)}
        v_pk_add_f32 {v(b,2)}, {v(b,2)}, {v(b+2,2)}
        v_pk_add_f32 {v(b+4,2)}, {v(b+4,2)}, {v(b+6,2)}
        v_pk_add_f32 {v(b,2)}, {v(b,2)}, {v(b+4,2)}
        v_mfma_f32_16x16x32_bf16 {v(OA+4*T,4)}, {v(VP+win[T],4)}, {v(PP+4*T,4)}, 0
        v_add_f32 {v(SM+T)}, {v(b)}, {v(b+1)}
        """)
    allreduce(SM, S2_, "v_add_f32")
    for T in range(4): G(f"v_rcp_f32 {v(SM+T)}, {v(SM+T)}")
    G.wait_tag('reg')
    G(f"s_mov_b32 {s(sCNT)}, 0")
    A.label("REGPOLL")
    A(f"""
    v_readfirstlane_b32 {s(sT0)}, {v(vFE)}
    v_readfirstlane_b32 {s(sT1)}, {v(vFE+1)}
    s_and_b32 {s(sT2)}, {s(sT0)}, 31
    s_cmp_eq_u32 {s(sT2)}, 16
    s_cbranch_scc1 REGOK
    s_add_u32 {s(sCNT)}, {s(sCNT)}, 1
    s_cmp_ge_u32 {s(sCNT)}, 20000
    s_cbranch_scc1 REGOK
    buffer_load_dwordx2 {v(vFE,2)}, v5, {s(SDBG,4)}, 0 offen offset:128 sc1
    s_waitcnt vmcnt(0)
    s_branch REGPOLL
    """)
    A.label("REGOK")
    G(f"""
    s_bfe_u32 {s(sT2)}, {s(sT0)}, {5 | (7 << 16)}
    s_bfe_u32 {s(sT3)}, {s(sT0)}, {12 | (10 << 16)}
    s_mul_i32 {s(sT2)}, {s(sT2)}, {s(sT2)}
    s_lshl_b32 {s(sT3)}, {s(sT3)}, 4
    s_cmp_lg_u32 {s(sT2)}, {s(sT3)}
    s_cselect_b32 {s(sMODE)}, 1, {1 if cfg.force_slow else 0}
    s_and_b32 {s(sT0)}, {s(sT0)}, 0xffc00000
    s_or_b32 {s(sT0)}, {s(sT0)}, 0x5a5a0
    v_mov_b32 {v(vFE)}, {s(sT0)}
    v_mov_b32 {v(vFE+1)}, {s(sT1)}
    s_and_b32 {s(sT0)}, {s(sRB)}, 1
    s_lshl_b32 {s(sT0)}, {s(sT0)}, 16
    s_lshl_b32 {s(sT1)}, {s(sCB)}, 12
    s_add_u32 {s(sT0)}, {s(sT0)}, {s(sT1)}
    s_lshl_b32 {s(sT1)}, {s(sW)}, 10
    s_add_u32 {s(sT0)}, {s(sT0)}, {s(sT1)}
    s_add_u32 {s(sT0)}, {s(sT0)}, {L.O_OFF}
    s_add_u32 {s(sT1)}, {s(sT0)}, 32768
    v_and_b32 v2, 15, v0
    v_bfe_u32 v3, v0, 4, 1
    v_lshl_add_u32 v2, v3, 5, v2
    v_lshrrev_b32 v3, 5, v0
    v_lshl_add_u32 v2, v3, 4, v2
    v_lshlrev_b32 v2, 4, v2
    """)
    for T in range(4):
        for h in range(2):
            G(f"v_pk_mul_f32 {v(OA+4*T+2*h,2)}, {v(OA+4*T+2*h,2)}, {v(SM+T-(T&1),2)} op_sel:[0,{T&1}] op_sel_hi:[1,{T&1}]")
    OP = 64
    for T in range(4):
        q, p = T >> 1, T & 1
        G(f"""
        v_cvt_pk_bf16_f32 {v(OP+4*q+2*p)}, {v(OA+4*T)}, {v(OA+4*T+1)}
        v_cvt_pk_bf16_f32 {v(OP+4*q+2*p+1)}, {v(OA+4*T+2)}, {v(OA+4*T+3)}
        """)
    for q in range(2):
        G(f"""
        v_permlane32_swap_b32 {v(OP+4*q)}, {v(OP+4*q+2)}
        v_permlane32_swap_b32 {v(OP+4*q+1)}, {v(OP+4*q+3)}
        """)
    stores(G, [f"buffer_store_dwordx4 {v(OP+4*q,4)}, v2, {s(SWS,4)}, {s(sT0+q)} offen" for q in range(2)], "ST1")
    G.stamp('p1epi')
    signal(G, 0)
    G.stamp('sig0')

ACC2, RED2 = 16, 80
REDB = 0
def ks_addr_setup(G, a_base, tile_stride):
    G(f"""
    s_and_b32 {s(sT1)}, {s(sRB)}, 1
    s_lshl_b32 {s(sT1)}, {s(sT1)}, 1
    s_lshr_b32 {s(sT0)}, {s(sW)}, 1
    s_add_u32 {s(sT2)}, {s(sT1)}, {s(sT0)}
    s_xor_b32 {s(sT1)}, {s(sT2)}, 1
    s_mul_i32 {s(sT1)}, {s(sT1)}, {tile_stride}
    s_mul_i32 {s(sT2)}, {s(sT2)}, {tile_stride}
    s_add_u32 {s(sT1)}, {s(sT1)}, {a_base}
    s_add_u32 {s(sT2)}, {s(sT2)}, {a_base}
    v_add_u32 v12, {s(sT1)}, {v(vL16)}
    v_add_u32 v13, {s(sT2)}, {v(vL16)}
    """)
def red_write(u):
    out = [f"""
    s_xor_b32 {s(sT5)}, {s(sW)}, {3-u}
    s_mul_i32 {s(sT5)}, {s(sT5)}, 12288
    v_add_u32 v10, {s(sT5)}, {v(vL16)}
    """]
    out += [f"ds_write_b128 v10, {v(ACC2+16*u+4*i,4)} offset:{REDB+u*4096+i*1024}" for i in range(4)]
    return out
def red_read():
    out = [f"""
    s_mul_i32 {s(sT5)}, {s(sW)}, 12288
    v_add_u32 v10, {s(sT5)}, {v(vL16)}
    s_waitcnt lgkmcnt(0)
    s_barrier
    """]
    out += [f"ds_read_b128 {v(RED2+4*i,4)}, v10 offset:{REDB+i*1024}" for i in range(12)]
    return out

def ks_main(G, n, wfr, afr, tagp, skew, loads, pre, fill):
    def mf(u, rs, cs, j):
        c = "0" if j == 0 else v(ACC2+16*u, 16)
        return f"v_mfma_f32_32x32x16_bf16 {v(ACC2+16*u,16)}, {R(wfr[j]+4*cs,4)}, {R(afr(rs,j),4)}, {c}"
    seq = []
    for j in range(n):
        seq.append(([('WAIT', f"{tagp}_0_{j}")], mf(0, 0, 0, j)))
        seq.append(([], mf(1, 0, 1, j)))
    for j in range(n + skew):
        if j < n: seq.append(([('WAIT', f"{tagp}_1_{j}")], mf(2, 1, 0, j)))
        if j >= skew: seq.append(([], mf(3, 1, 1, j - skew)))
    extra = {}
    i = 2*n + 1
    for it in red_write(0) + red_write(1):
        extra.setdefault(i, []).append(it); i += 1
    last2 = max(i for i, (it, m) in enumerate(seq) if m.startswith(f"v_mfma_f32_32x32x16_bf16 {v(ACC2+32,16)}"))
    w2 = red_write(2)
    extra.setdefault(min(last2 + 1, len(seq) - 1), []).extend(w2[:3])
    extra.setdefault(min(last2 + 2, len(seq) - 1), []).extend(w2[3:])
    extra.setdefault(min(last2 + 3, len(seq) - 1), []).extend(red_read())
    li = 0
    for it in loads[:pre]: G.item(it); li += 1
    fi = 0
    for i, (prew, m) in enumerate(seq):
        for it in prew: G.item(it)
        G(m)
        if li < len(loads):
            if prew or G.t >= G.nv: G.item(loads[li]); li += 1
        else:
            for _ in range(2):
                if fi < len(fill): G.item(fill[fi]); fi += 1
        if G.cfg.fine == 4 and n > 8 and i in (0, 21, 43, 60, len(seq) - 1): G.stamp(f'p4_{i}')
        if G.cfg.fine == 2 and n == 8 and i in (0, 15, len(seq) - 1): G.stamp(f'p2_{i}')
        for it in extra.get(i, []): G.item(it)
    assert li == len(loads)
    while fi < len(fill): G.item(fill[fi]); fi += 1

def ks_final(G, ares, OUTR):
    XH = 128 - 8 - 0
    XH = 8
    XH = OUTR + 8
    F = ACC2 + 48
    for i in range(8): G(f"v_accvgpr_read_b32 {v(XH+i)}, {R(ares+i)}")
    G("s_waitcnt lgkmcnt(4)")
    for i in range(8): G(f"v_pk_add_f32 {v(RED2+2*i,2)}, {v(RED2+2*i,2)}, {v(RED2+16+2*i,2)}")
    for i in range(8):
        G(f"""
        v_lshlrev_b32 {v(RED2+16+2*i)}, 16, {v(XH+i)}
        v_and_b32 {v(RED2+17+2*i)}, 0xffff0000, {v(XH+i)}
        """)
    G("s_waitcnt lgkmcnt(0)")
    for i in range(8): G(f"v_pk_add_f32 {v(RED2+32+2*i,2)}, {v(RED2+32+2*i,2)}, {v(RED2+16+2*i,2)}")
    for i in range(8): G(f"v_pk_add_f32 {v(RED2+2*i,2)}, {v(RED2+2*i,2)}, {v(RED2+32+2*i,2)}")
    for i in range(8): G(f"v_pk_add_f32 {v(F+2*i,2)}, {v(F+2*i,2)}, {v(RED2+2*i,2)}")
    for i in range(8): G(f"v_cvt_pk_bf16_f32 {v(OUTR+i)}, {v(F+2*i)}, {v(F+2*i+1)}")

def gen_p2(G):
    A = G.A; cfg = G.cfg
    A.c("---- service 1")
    G.flush()
    if cfg.l2early: G.bg(w3_dma(2, S1))
    G.wait_tag('wo7')
    for j in range(8):
        for x in wt_reads(WO_FR[j], j*8192): G(x)
    G.wait_tag('w3_1')
    G("s_barrier")
    for x in w3_reads(0, S2) + w3_reads(1, S0): G(x)
    ks_addr_setup(G, L.O_OFF, 32768)
    G.flush()
    G("s_waitcnt lgkmcnt(0)")
    G("s_barrier")
    G.stamp('svc1')
    poll(G, 0)
    G.stamp('poll0')
    afr = lambda rs, j: A2_FR[rs*8 + j]
    loads = [('LD', f"buffer_load_dwordx4 {R(afr(rs,j),4)}, {v(12+rs)}, {s(SWS,4)}, {s(sKO+j)} offen sc1", f"a2_{rs}_{j}") for rs in range(2) for j in range(8)]
    after = []
    if not cfg.l2early: after.append(('BG', w3_dma(2, S1)))
    after.append(('BG', w3_dma(3, S0)))
    if cfg.z2: after.append(('BG', w3_dma(4, S2)))
    tb = [f"""
    s_mul_i32 {s(sT0)}, {s(sRBL)}, 11
    s_lshr_b32 {s(sT0)}, {s(sT0)}, 1
    s_lshl_b32 {s(sT0)}, {s(sT0)}, 12
    s_lshl_b32 {s(sT1)}, {s(sW)}, 10
    """]
    for j in range(22):
        tb.append(f"""
        s_add_u32 {s(sKO+j)}, {s(sT0)}, {s(sT1)}
        s_add_u32 {s(sT0)}, {s(sT0)}, 4096
        s_cmp_eq_u32 {s(sT0)}, {22*4096}
        s_cselect_b32 {s(sT0)}, 0, {s(sT0)}
        """)
    ks_main(G, 8, WO_FR, afr, "a2", min(cfg.skew, 4), loads, cfg.pre2, after + tb)
    OUTR = 192
    ks_final(G, aXR, OUTR)
    sm, sq = 16, 17
    G(f"""
    s_and_b32 {s(sT0)}, {s(sRB)}, 1
    s_lshl_b32 {s(sT0)}, {s(sT0)}, 1
    s_lshr_b32 {s(sT1)}, {s(sW)}, 1
    s_add_u32 {s(sT0)}, {s(sT0)}, {s(sT1)}
    s_lshl_b32 {s(sT1)}, {s(sT0)}, 12
    s_lshl_b32 {s(sT0)}, {s(sT0)}, 15
    s_lshl_b32 {s(sT2)}, {s(sCB)}, 1
    s_and_b32 {s(sT3)}, {s(sW)}, 1
    s_add_u32 {s(sT2)}, {s(sT2)}, {s(sT3)}
    s_lshl_b32 {s(sT3)}, {s(sT2)}, 11
    s_add_u32 {s(sT0)}, {s(sT0)}, {s(sT3)}
    s_add_u32 {s(sT0)}, {s(sT0)}, {L.H_OFF}
    s_lshl_b32 {s(sT2)}, {s(sCB)}, 9
    s_add_u32 {s(sT1)}, {s(sT1)}, {s(sT2)}
    s_and_b32 {s(sT2)}, {s(sW)}, 1
    s_lshl_b32 {s(sT2)}, {s(sT2)}, 3
    s_add_u32 {s(sT1)}, {s(sT1)}, {s(sT2)}
    s_add_u32 {s(sT1)}, {s(sT1)}, {L.ST_OFF}
    v_mov_b32 {v(sm)}, 0
    v_mov_b32 {v(sq)}, 0
    """)
    stores(G, [f"buffer_store_dwordx4 {v(OUTR,4)}, {v(vL16)}, {s(SWS,4)}, {s(sT0)} offen",
               f"buffer_store_dwordx4 {v(OUTR+4,4)}, {v(vL16)}, {s(SWS,4)}, {s(sT0)} offen offset:1024"], "ST2")
    for i in range(8):
        G(f"v_dot2c_f32_bf16 {v(sm)}, {s(sONE)}, {v(OUTR+i)}")
        G(f"v_dot2c_f32_bf16 {v(sq)}, {v(OUTR+i)}, {v(OUTR+i)}")
    G(f"""
    v_and_b32 v2, 31, v0
    v_lshlrev_b32 v2, 4, v2
    v_lshrrev_b32 v3, 5, v0
    v_lshl_add_u32 v2, v3, 2, v2
    v_permlane32_swap_b32 {v(sm)}, {v(sq)}
    v_add_f32 {v(sm)}, {v(sm)}, {v(sq)}
    """)
    stores(G, [f"buffer_store_dword {v(sm)}, v2, {s(SWS,4)}, {s(sT1)} offen"], "ST2B")
    for i in range(8): G(f"v_accvgpr_write_b32 {R(aH+i)}, {v(OUTR+i)}")
    G.stamp('p2')
    signal(G, 1)
    G.stamp('sig1')

def gen_p3(G):
    A = G.A; cfg = G.cfg
    ACC = 16
    SL = 192
    FA3, FB3 = aAD, aAD + 16
    A.c("---- service 2")
    G(f"""
    v_lshrrev_b32 v2, 4, v0
    v_xor_b32 v2, v2, v0
    v_and_b32 v2, 1, v2
    v_cmp_eq_u32 vcc, 0, v2
    v_mov_b32 v3, {s(sONE)}
    v_cndmask_b32 {v(SEL)}, 0, v3, vcc
    v_cndmask_b32 {v(SEL+1)}, 0, v3, vcc
    v_cndmask_b32 {v(SEL+2)}, 0, v3, vcc
    v_cndmask_b32 {v(SEL+3)}, 0, v3, vcc
    """)
    for i in range(4): G(f"v_mov_b64 {v(CSA+2*i,2)}, 0")
    G.wait_tag('w3_3')
    G("s_barrier")
    G.spread(w3_colsum(0) + w3_colsum(1), w3_reads(2, S1) + w3_reads(3, S0))
    G(f"""
    s_mul_i32 {s(sT0)}, {s(sW)}, {8192 - 2048}
    s_add_u32 {s(sT0)}, {s(sT0)}, {WDT}
    s_add_u32 {s(sWB)}, {s(sWB)}, {s(sT0)}
    v_add_u32 {v(vWT)}, {s(sT0)}, {v(vWT)}
    v_add_u32 {v(vWT+1)}, {s(sT0)}, {v(vWT+1)}
    v_and_b32 v8, 31, v0
    s_lshl_b32 {s(sT4)}, {s(sW)}, 12
    s_add_u32 {s(sT4)}, {s(sT4)}, {L.ST_OFF}
    s_waitcnt lgkmcnt(0)
    s_barrier
    """)
    for x in w3_colsum(2) + w3_colsum(3): G(x)
    G.flush()
    G.stamp('svc2')
    poll(G, 1)
    G.stamp('poll1')
    def a_dma(c):
        r = (c % 3) * 16384
        g = [f"""
        s_xor_b32 {s(sB0)}, {s(sROT3)}, {lch(c)}
        s_lshl_b32 {s(sB0)}, {s(sB0)}, 12
        s_add_u32 {s(sB0)}, {s(sB0)}, {s(sA3)}
        s_lshl_b32 {s(sB1)}, {s(sW)}, 12
        s_add_u32 m0, {s(sB1)}, {r}
        s_nop 0
        buffer_load_dwordx4 {v(vL16)}, {s(SWS,4)}, {s(sB0)} offen sc1 lds
        """]
        for i in range(1, 4): g.append(f"buffer_load_dwordx4 {v(vL16)}, {s(SWS,4)}, {s(sB0)} offen offset:{1024*i} sc1 lds")
        g.append(('TAG', f"a3_{c}"))
        return g
    for x in a_dma(0) + a_dma(1): G.item(x)
    G.bg(a_dma(2))
    G.bg([f"buffer_load_dwordx4 {v(SL+4*i,4)}, {v(vL16)}, {s(SWS,4)}, {s(sT4)} offen offset:{1024*i} sc1" for i in range(4)] + [('TAG', 'st')])
    if not cfg.z2: G.bg(w3_dma(4, S2))
    G.bg(w3_dma(5, S1))
    NR = 4
    wd = lambda j: wt_dma(SWD, sKO + j, (j % NR) * 2048, f"wd_{j}")
    for j in range(NR): G.bg(wd(j))
    G.wd_next = 0
    G.wd_pend = []
    def wd_service(maxn, force=False):
        if G.wd_pend: G.lwait(max(G.lpend.get(r, 0) for j in G.wd_pend for r in regs_of(R(WD_SLOT[j-NR], 8))))
        for j in G.wd_pend: G.bg(wd(j))
        G.wd_pend = []
        out = []
        while G.wd_next < 22 and len(out) < 5 * maxn:
            j = G.wd_next; tg = f"wd_{j}"
            lead = cfg.lead_cold if j < cfg.wd_cold else cfg.lead_warm
            if not force and (tg not in G.ttime or G.t - G.ttime[tg] < lead): break
            if force and tg not in G.tags and not G._has(): break
            out += [('WAIT', tg)] + wt_reads(WD_SLOT[j], (j % NR) * 2048)
            if j + NR < 22: G.wd_pend.append(j + NR)
            G.wd_next += 1
        return out
    G.wd_service = wd_service
    def areads(F, st):
        c, s4 = st >> 2, st & 3
        r = (c % 3) * 16384 + s4 * 1024
        return [f"ds_read_b128 {R(F+4*sg,4)}, {v(vA01 if sg < 2 else vA23)} offset:{r + (sg & 1)*4096}" for sg in range(4)]
    def mfmas(F, st):
        c, s4 = st >> 2, st & 3
        w = aW3 + 32*(c % 4) + 8*s4
        out = []
        for sg in range(4):
            cc = "0" if st == 0 else v(ACC+16*sg, 16)
            out.append(f"v_mfma_f32_32x32x16_bf16 {v(ACC+16*sg,16)}, {R(w,4)}, {R(F+4*sg,4)}, {cc}")
            cc = "0" if st == 0 else v(ACC+64+16*sg, 16)
            if sg < 2: out.append(f"v_mfma_f32_32x32x16_bf16 {v(ACC+64+16*sg,16)}, {R(w+4,4)}, {R(F+4*sg,4)}, {cc}")
        return out
    fills = {st: [] for st in range(32)}
    for c in range(3, 8): fills[4*(c-3) + 3] += [('BGF', a_dma(c))]
    w3_need = {}
    def place_reads(c, base, b):
        rd = w3_reads(c % 4, base); cs = w3_colsum(c % 4)
        fills[b] += rd[0:8]; fills[b+1] += rd[8:16]
        fills[b+1] += [('CS', x) for x in cs[0:4]]
        fills[b+2] += [('CS', x) for x in cs[4:8]]
        w3_need.setdefault(b, []).append(f"w3_{c}")
    place_reads(4, S2, cfg.r4)
    place_reads(5, S1, cfg.r5)
    fills[cfg.d6] += [('BGF', w3_dma(6, S0))]
    fills[cfg.r4 + 4] += [('BGF', w3_dma(7, S2))]
    place_reads(6, S0, cfg.r6)
    place_reads(7, S2, cfg.r7)
    stats3 = []
    for i in range(4): stats3.append(f"v_add_f32 {v(SL+4*i)}, {v(SL+4*i)}, {v(SL+4*i+2)}\nv_add_f32 {v(SL+4*i+1)}, {v(SL+4*i+1)}, {v(SL+4*i+3)}")
    stats3 += f"""
    v_add_f32 {v(SL)}, {v(SL)}, {v(SL+4)}
    v_add_f32 {v(SL+1)}, {v(SL+1)}, {v(SL+5)}
    v_add_f32 {v(SL+8)}, {v(SL+8)}, {v(SL+12)}
    v_add_f32 {v(SL+9)}, {v(SL+9)}, {v(SL+13)}
    v_add_f32 {v(SL)}, {v(SL)}, {v(SL+8)}
    v_add_f32 {v(SL+1)}, {v(SL+1)}, {v(SL+9)}
    v_mov_b32 {v(SL+2)}, {v(SL)}
    v_mov_b32 {v(SL+3)}, {v(SL+1)}
    v_permlane32_swap_b32 {v(SL)}, {v(SL+2)}
    v_permlane32_swap_b32 {v(SL+1)}, {v(SL+3)}
    v_add_f32 {v(SL)}, {v(SL)}, {v(SL+2)}
    v_add_f32 {v(SL+1)}, {v(SL+1)}, {v(SL+3)}
    v_mul_f32 {v(SL)}, 0x3b000000, {v(SL)}
    v_mul_f32 {v(SL+1)}, 0x3b000000, {v(SL+1)}
    v_fma_f32 {v(SL+1)}, -{v(SL)}, {v(SL)}, {v(SL+1)}
    v_max_f32 {v(SL+1)}, 0, {v(SL+1)}
    v_add_f32 {v(SL+1)}, 0x3727c5ac, {v(SL+1)}
    v_rcp_f32 {v(SL+1)}, {v(SL+1)}
    v_sub_f32 {v(SL)}, 0, {v(SL)}
    s_lshl_b32 {s(sT5)}, {s(sW)}, 8
    s_add_u32 {s(sT5)}, {s(sT5)}, {STATS3}
    v_lshlrev_b32 v13, 3, v8
    v_add_u32 v2, {s(sT5)}, v13
    ds_write_b64 v2, {v(SL,2)}
    """.strip().split('\n')
    fills[8] = [('WAIT', 'st')] + stats3[:14] + fills[8]
    fills[9] = stats3[14:] + fills[9]
    G.wait_tag("a3_0"); G("s_barrier")
    G.stamp('a3_0')
    for x in areads(FA3, 0): G(x)
    for st in range(32):
        F, Fn = (FA3, FB3) if st % 2 == 0 else (FB3, FA3)
        if st % 4 == 3 and st < 31:
            G.lwait_all()
            need = [f"a3_{(st+1)//4}"] + w3_need.get(st, [])
            for n_ in need: G.flush(n_)
            tg = max(need, key=lambda n_: G.tags[n_])
            G.wait_tag(tg); G("s_barrier")
        fl = (areads(Fn, st+1) if st < 31 else [])
        mf = mfmas(F, st)
        if st >= 10: fl += wd_service(2)
        for it in fills[st]:
            if isinstance(it, tuple) and it[0] == 'CS': mf.append(it[1])
            else: fl.append(it)
        G.spread(mf, fl)
        if cfg.fine == 3 and st % 4 == 3 and st < 31: G.stamp(f'p3_{st}')
    G.stamp('p3loop')
    A.c("---- P3 epilogue")
    CSR = aAD
    CSV_ = 224
    G(f"""
    v_and_b32 v2, 1, v0
    v_lshrrev_b32 v3, 4, v0
    v_lshlrev_b32 v2, 6, v2
    v_lshl_add_u32 v2, v3, 4, v2
    s_lshl_b32 {s(sT5)}, {s(sW)}, 8
    s_add_u32 {s(sT5)}, {s(sT5)}, {CSX}
    v_add_u32 v2, {s(sT5)}, v2
    v_lshrrev_b32 v3, 5, v0
    v_lshlrev_b32 v3, 4, v3
    v_add_u32 v3, {s(sT5)}, v3
    ds_write_b128 v2, {v(CSA,4)}
    ds_write_b128 v2, {v(CSA+4,4)} offset:128
    s_and_b32 {s(sT0)}, {s(sW)}, 1
    s_lshl_b32 {s(sT0)}, {s(sT0)}, 9
    s_add_u32 {s(sT0)}, {s(sT0)}, {STATS3}
    v_add_u32 v13, {s(sT0)}, v13
    v_xor_b32 v14, 0x200, v13
    ds_read_b64 v[4:5], v13
    ds_read_b64 v[6:7], v13 offset:256
    ds_read_b64 v[8:9], v14
    ds_read_b64 v[10:11], v14 offset:256
    s_waitcnt lgkmcnt(0)
    """)
    CSo = 112
    def cs_read(tile):
        for i in range(4):
            G(f"ds_read_b128 {v(CSo+4*i,4)}, v3 offset:{tile*128 + (i>>1)*64 + (i&1)*32}")
        G("s_waitcnt lgkmcnt(0)")
    def unit_epi(U, stp):
        st = v(stp, 2)
        for h in range(8): G(f"v_pk_fma_f32 {v(U+2*h,2)}, {v(CSo+2*h,2)}, {st}, {v(U+2*h,2)} op_sel:[0,0,0] op_sel_hi:[1,0,1]")
        for i in range(8): G(f"v_max_f32 {v(U+i)}, 0, {v(U+i)}")
        for h in range(4): G(f"v_pk_mul_f32 {v(U+8+2*h,2)}, {v(U+8+2*h,2)}, {st} op_sel:[0,1] op_sel_hi:[1,1]")
        for h in range(4): G(f"v_pk_mul_f32 {v(U+2*h,2)}, {v(U+2*h,2)}, {v(U+8+2*h,2)}")
        for h in range(4): G(f"v_cvt_pk_bf16_f32 {v(U+h)}, {v(U+2*h)}, {v(U+2*h+1)}")
    G(f"""
    s_mul_i32 {s(sT0)}, {s(sM)}, 6144
    s_add_u32 {s(sT0)}, {s(sT0)}, {L.HH_OFF}
    s_and_b32 {s(sT1)}, {s(sW)}, 1
    s_mul_i32 {s(sT1)}, {s(sT1)}, {2*HHS}
    s_add_u32 {s(sT2)}, {s(sT0)}, {s(sT1)}
    s_sub_u32 {s(sT3)}, {s(sT0)}, {s(sT1)}
    s_add_u32 {s(sT3)}, {s(sT3)}, {2*HHS}
    s_lshl_b32 {s(sT0)}, {s(sW)}, 10
    v_add_u32 v12, {s(sT0)}, {v(vL16)}
    v_add_u32 v13, {HHS}, v12
    s_lshr_b32 {s(sT0)}, {s(sW)}, 1
    s_lshl_b32 {s(sT0)}, {s(sT0)}, 10
    s_add_u32 {s(sT0)}, {s(sT0)}, 4096
    v_add_u32 v14, {s(sT0)}, {v(vL16)}
    v_add_u32 v15, {HHS}, v14
    """)
    cs_read(0)
    for it in wd_service(2): G.item(it)
    for sg in range(4): unit_epi(ACC + 16*sg, 4 + 2*sg)
    A(f"""
    s_lshl_b32 {s(sT4)}, {s(sM)}, 2
    s_add_u32 {s(sT4)}, {s(sT4)}, {s(sW)}
    s_cmp_ge_u32 {s(sT4)}, 58
    s_cbranch_scc1 ST3_DONE
    """)
    stores(G, [f"buffer_store_dwordx4 {v(ACC+16*sg,4)}, {v(12 + (sg & 1))}, {s(SWS,4)}, {s(sT2 if sg < 2 else sT3)} offen" for sg in range(4)], "ST3")
    cs_read(1)
    G.bg_on = False
    for sg in range(2): unit_epi(ACC + 64 + 16*sg, 4 + 2*sg)
    A(f"""
    s_cmp_ge_u32 {s(sM)}, 14
    s_cbranch_scc1 ST3Z_DONE
    """)
    stores(G, [f"buffer_store_dwordx4 {v(ACC+64+16*sg,4)}, {v(14 + sg)}, {s(SWS,4)}, {s(sT2)} offen" for sg in range(2)], "ST3Z")
    A(f"""
    s_cmp_lg_u32 {s(sM)}, 15
    s_cbranch_scc1 ST3P_DONE
    v_mov_b64 {v(ACC,2)}, 0
    v_mov_b64 {v(ACC+2,2)}, 0
    s_mul_i32 {s(sT0)}, {s(sW)}, {HHS}
    s_add_u32 {s(sT0)}, {s(sT0)}, {L.HH_OFF + 86*1024}
    """)
    stores(G, [f"buffer_store_dwordx4 {v(ACC,4)}, {v(vL16)}, {s(SWS,4)}, {s(sT0)} offen offset:{1024*i}" for i in range(2)], "ST3P")
    G.stamp('p3epi')
    signal(G, 2)
    G.stamp('sig2')
    while G.wd_next < 22:
        G("s_waitcnt lgkmcnt(0)")
        its = wd_service(4, force=True)
        G.flush()
        for it in its: G.item(it)
    G("s_waitcnt lgkmcnt(0)")

def gen_p4(G):
    A = G.A; cfg = G.cfg
    ks_addr_setup(G, L.HH_OFF, HHS)
    G("s_barrier")
    poll(G, 2)
    G.stamp('poll2')
    afr = lambda rs, j: A4_FR[rs*22 + j]
    loads = [('LD', f"buffer_load_dwordx4 {R(afr(rs,j),4)}, {v(12+rs)}, {s(SWS,4)}, {s(sKO+j)} offen sc1", f"a4_{rs}_{j}") for rs in range(2) for j in range(22)]
    ks_main(G, 22, WD_SLOT, afr, "a4", cfg.skew, loads, cfg.pre4, [])
    OUTR = 128 - 0
    OUTR = 128
    ks_final(G, aH, OUTR)
    G(f"""
    buffer_store_dwordx4 {v(OUTR,4)}, v1, {s(SOUT,4)}, 0 offen
    buffer_store_dwordx4 {v(OUTR+4,4)}, v1, {s(SOUT,4)}, 0 offen offset:16
    """)
    G.stamp('p4')

def main(path, cfg):
    G = Gen(cfg); A = G.A
    A.raw(HDR.rstrip('\n'))
    A.raw(f"; @launch grid=(256,1,1) block=(256,1,1) lds={LDS_TOTAL}")
    A.raw('.amdgcn_target "amdgcn-amd-amdhsa--gfx950"\n.text')
    n = NAME + "_kernel"
    A.raw(f".globl {n}\n.p2align 8\n.type {n},@function\n{n}:")
    gen_p1(G); gen_p2(G); gen_p3(G); gen_p4(G)
    A.label("K_END")
    A("s_endpgm")
    A.raw('.section .rodata,"a"\n.p2align 6')
    A.raw(f""".amdhsa_kernel {n}
  .amdhsa_next_free_vgpr 512
  .amdhsa_next_free_sgpr 102
  .amdhsa_accum_offset 256
  .amdhsa_group_segment_fixed_size 0
  .amdhsa_kernarg_size 80
  .amdhsa_user_sgpr_count 2
  .amdhsa_user_sgpr_kernarg_segment_ptr 1
  .amdhsa_system_sgpr_workgroup_id_x 1
.end_amdhsa_kernel""")
    open(path, 'w').write(A.finalize())
    print("stamps:", G.nstamp, G.names)

if __name__ == '__main__':
    cfg = Cfg()
    for a_ in sys.argv[2:]:
        k, val = a_.split('=')
        setattr(cfg, k, int(val))
    main(sys.argv[1], cfg)
```

```python
import numpy as np
GSTRIDE = 640 * 1024
O_OFF = 4 * 1024
H_OFF = 132 * 1024
HH_OFF = 260 * 1024
ST_OFF = 612 * 1024
FL_OFF = 628 * 1024
STAMP_OFF = 16 * GSTRIDE
WS_USED = STAMP_OFF + 256 * 8 * 256

def bf2f(a16): return (a16.astype(np.uint32) << 16).view(np.float32)
def rows_of(G, T):
    j = np.arange(32)
    return 128 * G + 32 * T + 2 * (j & 15) + (j >> 4)
def std_cols(ks):
    h = np.arange(2)[:, None]; e = np.arange(8)[None, :]
    return 16 * ks + 8 * (e >> 2) + 4 * h + (e & 3)
def h_cols(ks):
    h = np.arange(2)[:, None]; e = np.arange(8)[None, :]
    return 32 * (ks >> 1) + 16 * h + 8 * (ks & 1) + e
def unpack(ws, off, nks, colf, ncol, stride=None):
    stride = stride or nks
    out = np.full((2048, ncol), np.nan, np.float32)
    for G in range(16):
        blk = ws[G * GSTRIDE + off: G * GSTRIDE + off + 4 * stride * 1024].view(np.uint16).reshape(4, stride, 2, 32, 8)
        f = bf2f(blk)
        for T in range(4):
            r = rows_of(G, T)
            for ks in range(nks):
                c = colf(ks)
                out[r[None, :, None], c[:, None, :]] = f[T, ks]
    return out
def unpack_o(ws): return unpack(ws, O_OFF, 32, std_cols, 512)
def unpack_h(ws): return unpack(ws, H_OFF, 32, h_cols, 512)
def unpack_hh(ws): return unpack(ws, HH_OFF, 86, std_cols, 1376, 88)
def unpack_st(ws):
    s = np.zeros(2048, np.float32); q = np.zeros(2048, np.float32)
    for G in range(16):
        blk = ws[G * GSTRIDE + ST_OFF: G * GSTRIDE + ST_OFF + 16384].view(np.float32).reshape(4, 8, 32, 2, 2)
        for T in range(4):
            r = rows_of(G, T)
            s[r] = blk[T, :, :, :, 0].sum((0, 2)); q[r] = blk[T, :, :, :, 1].sum((0, 2))
    return s, q
def print_stamps(ws, n):
    st = ws[STAMP_OFF: STAMP_OFF + 256 * 4 * 256].view(np.uint64).reshape(256, 4, 32)[:, :, :n].astype(np.int64)
    t0 = st[:, :, 0].min()
    rel = (st - t0) * 0.01
    print("mean    :", " ".join("%.2f" % x for x in rel.reshape(-1, n).mean(0)))
    print("all max :", " ".join("%.2f" % x for x in rel.reshape(-1, n).max(0)))
    print("all min :", " ".join("%.2f" % x for x in rel.reshape(-1, n).min(0)))
def print_cycles(ws, n):
    st = ws[STAMP_OFF: STAMP_OFF + 256 * 4 * 256].view(np.uint64).reshape(256, 4, 32)[:, :, :n].astype(np.int64)
    d = np.diff(st, axis=2)
    print("cycles mean per seg:", " ".join("%d" % x for x in d.reshape(-1, n-1).mean(0)))
    print("cycles min  per seg:", " ".join("%d" % x for x in d.reshape(-1, n-1).min(0)))
    print("cycles max  per seg:", " ".join("%d" % x for x in d.reshape(-1, n-1).max(0)))
    print("total mean", (st[:, :, -1] - st[:, :, 0]).mean())

def print_stamps8(ws, n):
    st = ws[STAMP_OFF: STAMP_OFF + 256 * 8 * 256].view(np.uint64).reshape(256, 8, 32).astype(np.int64)
    na, nb = n // 100, n % 100
    keep = ((np.arange(256) >> 3) & 15) < 14
    st = st[keep]
    t0 = st[:, :, 0].min()
    a = (st[:, :4, :na] - t0) * 0.01; b = (st[:, 4:, :nb] - t0) * 0.01
    print("A mean:", " ".join("%.2f" % x for x in a.reshape(-1, na).mean(0)))
    print("A max :", " ".join("%.2f" % x for x in a.reshape(-1, na).max(0)))
    print("B mean:", " ".join("%.2f" % x for x in b.reshape(-1, nb).mean(0)))
    print("B max :", " ".join("%.2f" % x for x in b.reshape(-1, nb).max(0)))

def print_cycles8(ws, n):
    st = ws[STAMP_OFF: STAMP_OFF + 256 * 8 * 256].view(np.uint64).reshape(256, 8, 32).astype(np.int64)
    na, nb = n // 100, n % 100
    a = np.diff(st[:, :4, :na], axis=2); b = np.diff(st[:, 4:, :nb], axis=2)
    print("A mean cyc:", " ".join("%d" % x for x in a.reshape(-1, na-1).mean(0)))
    print("B mean cyc:", " ".join("%d" % x for x in b.reshape(-1, nb-1).mean(0)))
```

```python
import sys, re
from asmlib import *
import layout as L

NAME = "sequential_preLN__sliding_local_dilated__glu_gated_reglu__prompt"
HDR = open('cdna_kernels/' + NAME + '.s.ref').read().split('; Override launch')[0]

class Cfg:
    stamps = 0
    force_slow = 0
    touch = 0
    skew = 6
    pre2 = 7
    gap = 64
    prioA = 0
    prioB = 0
    wd_early = 1
    fine = 0
    skipwd = 1
    wd0 = 3
    ndma = 9
    ndma7 = 4
    rotm = 1
    rots = 2
    abl = 0
    bflush = 5
    gapB = 32
    npf = 3
    l345 = 2

SX, SW1, SWO, SWD, SOUT, SWS, SDBG, SMU, sST = 4, 8, 12, 16, 20, 24, 28, 32, 36
sXCD, sIDX, sRBL, sCB, sW, sG, sRB, sM = 40, 41, 42, 43, 44, 45, 46, 47
sONE, sMODE = 48, 49
sT0, sT1, sT2, sT3, sT4, sT5 = 50, 51, 52, 53, 54, 55
sB0, sCNT = 56, 57
sEXH = 58
sMX, sMH, sMW, sSX = 60, 61, 62, 63
sKO = 64
sMWL, sB1 = 86, 87
sROT3, sW3S, sW3G, sA3, sWB, sO0, sO1 = 88, 89, 90, 91, 92, 93, 94
sXCC = 95
sTS = 96
sTB, sTB1, sW8, sSW = 98, 99, 100, 101
sMW0 = 3
sR2, sW1K = 98, 99

class Gen:
    def __init__(self, cfg, A, pfx):
        self.A = A; self.cfg = cfg; self.pfx = pfx
        self.vm = 0; self.tags = {}; self.nstamp = 0; self.names = []
        self.t = 0; self.tm = 0; self.nv = 0
        self.q = []; self.cur = []; self.inbg = False; self.bg_on = True
        self.lg = 0; self.ldone = 0; self.lpend = {}; self.vdone = 0; self.vpend = {}
        self.bars = []
        self.dummy = None
        self.sv = (253, 254)
    def _autowait(self, ins):
        regs = [r for r in list(ins.rd) + list(ins.wr) if r[0] in 'va']
        nl = max([self.lpend.get(r, 0) for r in regs] + [0])
        nvm = max([self.vpend.get(r, 0) for r in regs] + [0])
        parts = []
        if nvm > self.vdone:
            parts.append(f"vmcnt({min(self.vm - nvm, 63)})"); self.vdone = nvm
        if nl > self.ldone:
            parts.append(f"lgkmcnt({min(self.lg - nl, 15)})"); self.ldone = nl
        if parts:
            self.A("s_waitcnt " + " ".join(parts)); self.t += 4
    def _note_wait(self, ln):
        m = re.search(r'vmcnt\((\d+)\)', ln)
        if m: self.vdone = max(self.vdone, self.vm - int(m.group(1)))
        m = re.search(r'lgkmcnt\((\d+)\)', ln)
        if m: self.ldone = max(self.ldone, self.lg - int(m.group(1)))
    def lwait_all(self):
        if self.ldone < self.lg: self._emit("s_waitcnt lgkmcnt(0)")
    def lwait(self, idx):
        if self.ldone < idx: self._emit(f"s_waitcnt lgkmcnt({min(self.lg - idx, 15)})")
    def _emit(self, ln):
        ins = Ins(ln)
        if ins.cls in ('valu', 'mfma', 'lds', 'vmem'): self._autowait(ins)
        self.A(ln)
        op = ins.op
        if op == 's_waitcnt': self._note_wait(ln)
        if ins.cls == 'lds':
            self.lg += 1
            for r in ins.wr: self.lpend[r] = self.lg
        if ins.cls == 'vmem':
            for r in ins.wr:
                if r != self.dummy: self.vpend[r] = self.vm + 1
        if op.startswith('v_mfma'):
            st = max(self.t, self.tm); self.t = st + 8; self.tm = st + (32 if '32x32' in op else 16)
        elif ins.cls == 'vmem':
            self.vm += 1
            self.t = max(self.t, self.nv) + 8; self.nv = self.t + (self.cfg.gapB if self.pfx == 'B_' else self.cfg.gap)
        elif ins.cls == 'lds': self.t += 10
        else: self.t += 4
    def __call__(self, t):
        for ln in t.strip().split('\n'):
            ln = ln.strip()
            if ln: self._emit(ln)
        self.pump()
    def _next(self):
        while not self.cur and self.q: self.cur = list(self.q.pop(0))
        return self.cur.pop(0) if self.cur else None
    def _has(self): return bool(self.cur) or any(self.q)
    def _one(self):
        it = self._next()
        self.inbg = True
        self.item(it)
        while self.cur and isinstance(self.cur[0], tuple) and self.cur[0][0] == 'TAG': self.item(self.cur.pop(0))
        self.inbg = False
    def pump(self):
        if self.inbg or not self.bg_on: return
        while self._has() and self.t >= self.nv: self._one()
    def bg(self, group): self.q.append(list(group))
    def flush(self, tag=None):
        while self._has() and (tag is None or tag not in self.tags): self._one()
    def tag(self, name): self.tags[name] = self.vm
    def wait_tag(self, name):
        if name not in self.tags: self.flush(name)
        if self.tags[name] <= self.vdone: return
        self._emit(f"s_waitcnt vmcnt({min(self.vm - self.tags[name], 63)})")
    def bar(self, name):
        if self.cfg.fine and name.startswith({1: 'c', 2: 'zz', 3: 'p3_', 4: 'p4_'}[self.cfg.fine]): self.stamp('@' + name)
        self.bars.append(name); self._emit("s_barrier"); self.nv = self.t
        if self.cfg.fine == 3 and name.startswith('p3_') and self.pfx == 'A_': self.stamp('>' + name)
    def bsync(self, name):
        off = CNT + (0 if name == 'red2' else 4)
        self.bg_on = False
        self(f"""
        v_mov_b32 v2, {off}
        v_mov_b32 v3, 1
        s_mov_b64 exec, 1
        ds_add_u32 v2, v3
        s_mov_b64 exec, -1
        s_mov_b32 {s(sCNT)}, 0
        """)
        self.A.label("BS_" + name)
        self.A(f"""
        ds_read_b32 v3, v2
        s_add_u32 {s(sCNT)}, {s(sCNT)}, 1
        s_waitcnt lgkmcnt(0)
        v_readfirstlane_b32 {s(sT5)}, v3
        s_cmp_ge_u32 {s(sCNT)}, 0x100000
        s_cbranch_scc1 BS_{name}_D
        s_cmp_lt_u32 {s(sT5)}, 4
        s_cbranch_scc1 BS_{name}
        """)
        self.A.label(f"BS_{name}_D")
        self.ldone = self.lg
        self.bg_on = True
    def items(self, lst):
        for it in lst: self.item(it)
    def stamp(self, name=''):
        if not self.cfg.stamps: return
        i = self.nstamp; self.nstamp += 1; self.names.append(name)
        a_, d_ = self.sv
        self(f"""
        {'s_memtime' if self.cfg.stamps == 2 else 's_memrealtime'} {s(sTS,2)}
        s_waitcnt lgkmcnt(0)
        v_mov_b32 v{d_}, {s(sTS)}
        v_mov_b32 v{d_+1}, {s(sTS+1)}
        v_mov_b32 v{a_}, 0
        buffer_store_dwordx2 v[{d_}:{d_+1}], v{a_}, {s(sST,4)}, 0 offen offset:{i*8}
        """)
    def item(self, it):
        if isinstance(it, tuple):
            if it[0] == 'WAIT': self.wait_tag(it[1])
            elif it[0] == 'TAG': self.tag(it[1])
            elif it[0] == 'BG': self.bg(it[1])
            elif it[0] == 'BAR': self.lwait_all(); self.bar(it[1])
            elif it[0] == 'BSYNC': self.bsync(it[1])
        else: self(it)
    def spread(self, main, fill):
        n, m = len(main), len(fill); fi = 0
        for i, x in enumerate(main):
            self(x)
            while fi < m and fi * n < (i + 1) * m:
                self.item(fill[fi]); fi += 1
        while fi < m: self.item(fill[fi]); fi += 1
    def front(self, main, fill, per=1):
        fi = 0
        for x in main:
            self(x)
            for _ in range(per):
                if fi < len(fill): self.item(fill[fi]); fi += 1
        while fi < len(fill): self.item(fill[fi]); fi += 1

XCH = 10240
WRING = 8 * XCH
WSLOT = 24576
S0, S1, S2 = WRING, WRING + WSLOT, WRING + 2 * WSLOT
STATS1 = WRING + 3 * WSLOT
STATS3 = STATS1 + 1024
CSX = STATS3 + 1024
WDT = 49152
HHS = 88 * 1024
RING4 = 49152
LDS_TOTAL = 163840
SG_OFF = L.FL_OFF + 2048
CNT = STATS1 + 1000
STG = STATS1 + 896
vL = 0

def srd(dst, src, size):
    return f"""
    s_mov_b32 {s(dst)}, {s(src)}
    s_and_b32 {s(dst+1)}, {s(src+1)}, 0xffff
    s_mov_b32 {s(dst+2)}, {size}
    s_mov_b32 {s(dst+3)}, 0x20000
    """
def common_srds(cfg):
    t = f"""
    s_mul_i32 {s(sT0)}, {s(sG)}, {L.GSTRIDE}
    s_add_u32 {s(SWS)}, s82, {s(sT0)}
    s_addc_u32 {s(SWS+1)}, s83, 0
    s_and_b32 {s(SWS+1)}, {s(SWS+1)}, 0xffff
    s_mov_b32 {s(SWS+2)}, {L.GSTRIDE}
    s_mov_b32 {s(SWS+3)}, 0x20000
    s_bitcmp1_b32 {s(sW)}, 0
    s_cselect_b32 {s(SMU)}, s74, s72
    s_cselect_b32 {s(SMU+1)}, s75, s73
    s_and_b32 {s(SMU+1)}, {s(SMU+1)}, 0xffff
    s_mov_b32 {s(SMU+2)}, {512*2752}
    s_mov_b32 {s(SMU+3)}, 0x20000
    """ + srd(SDBG, 80, 256)
    if cfg.stamps:
        t += f"""
        s_lshl_b32 {s(sT0)}, s2, 11
        s_lshl_b32 {s(sT1)}, {s(sW8)}, 8
        s_add_u32 {s(sT0)}, {s(sT0)}, {s(sT1)}
        s_add_u32 {s(sT0)}, {s(sT0)}, {L.STAMP_OFF}
        s_add_u32 {s(sST)}, s82, {s(sT0)}
        s_addc_u32 {s(sST+1)}, s83, 0
        s_and_b32 {s(sST+1)}, {s(sST+1)}, 0xffff
        s_mov_b32 {s(sST+2)}, 256
        s_mov_b32 {s(sST+3)}, 0x20000
        """
    return t

def stores(G, lst, label):
    A = G.A; label = G.pfx + label
    for x in lst: G._autowait(Ins(x))
    A(f"""
    s_cmp_lg_u32 {s(sMODE)}, 0
    s_cbranch_scc1 {label}_SLOW
    """)
    for x in lst: A(x)
    A(f"s_branch {label}_DONE")
    A.label(f"{label}_SLOW")
    for x in lst: A((x + " sc1") if x.startswith('buffer_store') else x)
    A.label(f"{label}_DONE")
    G.vm += sum(1 for x in lst if x.startswith('buffer_'))

def signal(G, phase, vFE):
    G.bg_on = False
    G(f"""
    v_add_u32 v2, {phase}, {v(vFE)}
    v_mov_b32 v3, {v(vFE+1)}
    s_lshl_b32 {s(sT0)}, {s(sM)}, 2
    s_add_u32 {s(sT0)}, {s(sT0)}, {s(sW)}
    s_lshl_b32 {s(sT0)}, {s(sT0)}, 3
    s_add_u32 {s(sT0)}, {s(sT0)}, {L.FL_OFF + phase*512}
    v_mov_b32 v4, {s(sT0)}
    s_waitcnt vmcnt(0)
    s_mov_b64 exec, 1
    """)
    stores(G, [f"buffer_store_dwordx2 v[2:3], v4, {s(SWS,4)}, 0 offen"], f"SIG{phase}")
    G.bg_on = True; G.nv = G.t
    G("s_mov_b64 exec, -1")

def poll(G, phase, vFE):
    A = G.A
    if phase == 0:
        A(f"""
        v_and_b32 v4, 31, v0
        s_and_b32 {s(sT0)}, {s(sM)}, 8
        s_lshl_b32 {s(sT0)}, {s(sT0)}, 2
        v_add_u32 v4, {s(sT0)}, v4
        v_lshlrev_b32 v4, 3, v4
        """)
    else:
        A("v_lshlrev_b32 v4, 3, v0")
    A(f"""
    v_add_u32 v2, {phase}, {v(vFE)}
    v_mov_b32 v3, {v(vFE+1)}
    s_mov_b32 {s(sCNT)}, 0
    s_mov_b32 {s(sT0)}, {L.FL_OFF + phase*512}
    """)
    A.label(f"POLL{phase}")
    A(f"""
    buffer_load_dwordx2 v[6:7], v4, {s(SWS,4)}, {s(sT0)} offen sc1
    s_add_u32 {s(sCNT)}, {s(sCNT)}, 1
    s_waitcnt vmcnt(0)
    v_cmp_ne_u64 vcc, v[6:7], v[2:3]
    s_cmp_ge_u32 {s(sCNT)}, 20000
    s_cbranch_scc1 POLL{phase}_DONE
    s_cbranch_vccnz POLL{phase}
    """)
    A.label(f"POLL{phase}_DONE")
    G.vdone = G.vm; G.nv = G.t

def regdecode(G, vFE, vaddr):
    A = G.A; p = G.pfx
    G._autowait(Ins(f"v_mov_b32 {v(vFE)}, {v(vFE+1)}"))
    G(f"s_mov_b32 {s(sCNT)}, 0")
    A.label(p + "REGPOLL")
    A(f"""
    v_readfirstlane_b32 {s(sT0)}, {v(vFE)}
    v_readfirstlane_b32 {s(sT1)}, {v(vFE+1)}
    s_and_b32 {s(sT2)}, {s(sT0)}, 31
    s_cmp_eq_u32 {s(sT2)}, 16
    s_cbranch_scc1 {p}REGOK
    s_add_u32 {s(sCNT)}, {s(sCNT)}, 1
    s_cmp_ge_u32 {s(sCNT)}, 20000
    s_cbranch_scc1 {p}REGOK
    buffer_load_dwordx2 {v(vFE,2)}, {v(vaddr)}, {s(SDBG,4)}, 0 offen offset:128 sc1
    s_waitcnt vmcnt(0)
    s_branch {p}REGPOLL
    """)
    A.label(p + "REGOK")
    G(f"""
    s_bfe_u32 {s(sT2)}, {s(sT0)}, {5 | (7 << 16)}
    s_bfe_u32 {s(sT3)}, {s(sT0)}, {12 | (10 << 16)}
    s_mul_i32 {s(sT2)}, {s(sT2)}, {s(sT2)}
    s_lshl_b32 {s(sT3)}, {s(sT3)}, 4
    s_cmp_lg_u32 {s(sT2)}, {s(sT3)}
    s_cselect_b32 {s(sMODE)}, 1, {1 if G.cfg.force_slow else 0}
    s_and_b32 {s(sT0)}, {s(sT0)}, 0xffc00000
    s_or_b32 {s(sT0)}, {s(sT0)}, 0x5a5a0
    v_mov_b32 {v(vFE)}, {s(sT0)}
    v_mov_b32 {v(vFE+1)}, {s(sT1)}
    """)

def lch(l): return ((l >> 1) & 1) * 4 + (l >> 2) * 2 + (l & 1)
def w3_setup(vP3, t0, t1, t2):
    out = f"""
    s_mul_i32 {s(sT0)}, {s(sM)}, 192
    s_mov_b32 {s(sT1)}, 0x15555556
    s_and_b32 {s(sT2)}, {s(sW)}, 1
    s_lshr_b32 {s(sT4)}, {s(sW)}, 1
    s_mul_i32 {s(sW3S)}, {s(sT2)}, 12288
    s_mul_i32 {s(sT5)}, {s(sT4)}, 6144
    s_add_u32 {s(sW3S)}, {s(sW3S)}, {s(sT5)}
    s_mul_i32 {s(sW3G)}, {s(sT4)}, {32*2752}
    s_and_b32 {s(sROT3)}, {s(sG)}, 1
    s_lshl_b32 {s(sROT3)}, {s(sROT3)}, 2
    s_lshl_b32 {s(sT2)}, {s(sT2)}, 1
    """
    for i in range(3):
        out += f"""
        v_add_u32 {v(t0)}, {64*i}, {v(vL)}
        v_mul_hi_u32 {v(t1)}, {v(t0)}, {s(sT1)}
        v_mul_u32_u24 {v(t2)}, 12, {v(t1)}
        v_sub_u32 {v(t2)}, {v(t0)}, {v(t2)}
        v_mul_u32_u24 {v(t1)}, 2752, {v(t1)}
        v_add_u32 {v(t1)}, {s(sT0)}, {v(t1)}
        v_subrev_u32 {v(t1)}, {1024*i}, {v(t1)}
        v_subrev_u32 {v(t2)}, {s(sT2)}, {v(t2)}
        v_add_u32 {v(t0)}, 12, {v(t2)}
        v_cmp_gt_i32 vcc, 0, {v(t2)}
        v_cndmask_b32 {v(t2)}, {v(t2)}, {v(t0)}, vcc
        v_lshl_add_u32 {v(vP3+i)}, {v(t2)}, 4, {v(t1)}
        """
    return out
def w3_dma(c, base, vP3):
    g = [f"""
    s_xor_b32 {s(sB0)}, {s(sROT3)}, {lch(c)}
    s_mul_i32 {s(sB0)}, {s(sB0)}, {64*2752}
    s_add_u32 {s(sB0)}, {s(sB0)}, {s(sW3G)}
    s_add_u32 m0, {s(sW3S)}, {base}
    s_add_u32 {s(sB1)}, {s(sB0)}, {16*2752}
    buffer_load_dwordx4 {v(vP3+0)}, {s(SMU,4)}, {s(sB0)} offen lds
    """]
    g.append(f"buffer_load_dwordx4 {v(vP3+1)}, {s(SMU,4)}, {s(sB0)} offen offset:1024 lds")
    g.append(f"buffer_load_dwordx4 {v(vP3+2)}, {s(SMU,4)}, {s(sB0)} offen offset:2048 lds")
    g.append(f"""
    s_add_u32 m0, {s(sW3S)}, {base + 3072}
    s_nop 0
    buffer_load_dwordx4 {v(vP3+0)}, {s(SMU,4)}, {s(sB1)} offen lds
    """)
    g.append(f"buffer_load_dwordx4 {v(vP3+1)}, {s(SMU,4)}, {s(sB1)} offen offset:1024 lds")
    g.append(f"buffer_load_dwordx4 {v(vP3+2)}, {s(SMU,4)}, {s(sB1)} offen offset:2048 lds")
    g.append(('TAG', f"w3_{c}"))
    return g
def p4_table():
    tb = [f"""
    s_mul_i32 {s(sT0)}, {s(sRBL)}, 11
    s_lshr_b32 {s(sT0)}, {s(sT0)}, 1
    s_lshl_b32 {s(sT0)}, {s(sT0)}, 12
    s_lshl_b32 {s(sT1)}, {s(sW)}, 10
    """]
    for j in range(22):
        tb.append(f"""
        s_add_u32 {s(sKO+j)}, {s(sT0)}, {s(sT1)}
        s_add_u32 {s(sT0)}, {s(sT0)}, 4096
        s_cmp_eq_u32 {s(sT0)}, {22*4096}
        s_cselect_b32 {s(sT0)}, 0, {s(sT0)}
        """)
    return tb
def ks_addr(a_base, tile_stride, vL16, d0, d1):
    return f"""
    s_and_b32 {s(sT1)}, {s(sRB)}, 1
    s_lshl_b32 {s(sT1)}, {s(sT1)}, 1
    s_lshr_b32 {s(sT0)}, {s(sW)}, 1
    s_add_u32 {s(sT2)}, {s(sT1)}, {s(sT0)}
    s_xor_b32 {s(sT1)}, {s(sT2)}, 1
    s_mul_i32 {s(sT1)}, {s(sT1)}, {tile_stride}
    s_mul_i32 {s(sT2)}, {s(sT2)}, {tile_stride}
    s_add_u32 {s(sT1)}, {s(sT1)}, {a_base}
    s_add_u32 {s(sT2)}, {s(sT2)}, {a_base}
    v_add_u32 {v(d0)}, {s(sT1)}, {v(vL16)}
    v_add_u32 {v(d1)}, {s(sT2)}, {v(vL16)}
    """
W3SLOT = {0: S2, 1: S0, 2: S1, 3: S2, 4: S0, 5: S1, 6: S2, 7: S0}
W3BAR = {3: 3, 4: 7, 5: 11, 6: 15, 7: 19}
NB4 = 11
PFORD = [2, 3, 4]

def prog_a(G):
    A = G.A; cfg = G.cfg
    t0, t1, t2, t3, t4 = 1, 2, 3, 4, 5
    vXa0, vXa1, vWa, vS1, vS2, vOA, vRA = 8, 9, 10, 11, 12, 13, 14
    FA, FB = 16, 48
    ACC = 80
    vL16, vFE, vW3o, vW3s, vA01, vA23, vP3 = 148, 150, 149, 152, 153, 154, 155
    BIAS = 160
    G.sv = (158, 146)
    Qa = lambda T: ACC + 4 * T
    Ka = lambda T: ACC + 20 + 4 * T
    Va = lambda T: ACC + 40 + 4 * T
    if cfg.prioA: G(f"s_setprio {cfg.prioA}")
    G(f"""
    v_lshlrev_b32 {v(vL16)}, 4, v0
    s_mul_i32 {s(sT0)}, {s(sCB)}, 10
    s_mul_i32 {s(sT1)}, {s(sW)}, 3
    s_add_u32 {s(sT0)}, {s(sT0)}, {s(sT1)}
    s_lshl_b32 {s(sT5)}, {s(sRB)}, 6
    s_mov_b32 {s(SX+2)}, {2048*1024}
    s_mov_b32 {s(SX+3)}, 0x20000
    """)
    for k in range(3):
        G(f"""
        s_add_u32 {s(sT1)}, {s(sT0)}, {k}
        s_min_u32 {s(sT1)}, {s(sT1)}, 79
        s_and_b32 {s(sT2)}, {s(sT1)}, 15
        s_lshr_b32 {s(sT3)}, {s(sT1)}, 5
        s_lshl_b32 {s(sT3)}, {s(sT3)}, 5
        s_lshl_b32 {s(sT4)}, {s(sT2)}, 1
        s_add_u32 {s(sT3)}, {s(sT3)}, {s(sT4)}
        s_bfe_u32 {s(sT4)}, {s(sT1)}, {4 | (1 << 16)}
        s_add_u32 {s(sT3)}, {s(sT3)}, {s(sT4)}
        s_add_u32 {s(sT3)}, {s(sT3)}, {s(sT5)}
        s_add_u32 {s(sT2)}, {s(sT2)}, {s(sT5)}
        s_sub_i32 {s(sT2)}, {s(sT2)}, 16
        s_max_i32 {s(sT2)}, {s(sT2)}, 0
        s_cmp_ge_u32 {s(sT1)}, 64
        s_cselect_b32 {s(sT3)}, {s(sT2)}, {s(sT3)}
        s_lshl_b32 {s(sMX+k)}, {s(sT3)}, 10
        """)
    XS = 208
    G(f"""
    s_waitcnt lgkmcnt(0)
    s_mov_b32 {s(SX)}, s64
    s_and_b32 {s(SX+1)}, s65, 0xffff
    buffer_load_dwordx4 {v(XS,4)}, {v(vL16)}, {s(SX,4)}, {s(sMX)} offen
    buffer_load_dwordx4 {v(XS+4,4)}, {v(vL16)}, {s(SX,4)}, {s(sMX+1)} offen
    buffer_load_dwordx4 {v(XS+8,4)}, {v(vL16)}, {s(SX,4)}, {s(sMX+2)} offen
    v_lshrrev_b32 {v(t2)}, 4, {v(vL)}
    v_and_b32 {v(t0)}, 15, {v(vL)}
    v_lshrrev_b32 {v(t1)}, 1, {v(t0)}
    v_xor_b32 {v(t1)}, {v(t1)}, {v(t2)}
    v_lshlrev_b32 {v(t1)}, 4, {v(t1)}
    v_lshl_add_u32 {v(vXa0)}, {v(t0)}, 7, {v(t1)}
    v_xor_b32 {v(vXa1)}, 64, {v(vXa0)}
    v_mul_u32_u24 {v(vWa)}, 3072, {v(t2)}
    v_bfe_u32 {v(t1)}, {v(vL)}, 2, 2
    v_lshl_add_u32 {v(vWa)}, {v(t1)}, 7, {v(vWa)}
    v_lshrrev_b32 {v(t1)}, 1, {v(t1)}
    v_and_b32 {v(t3)}, 1, {v(t2)}
    v_lshl_or_b32 {v(t1)}, {v(t3)}, 1, {v(t1)}
    v_xor_b32 {v(t1)}, {s(sW)}, {v(t1)}
    v_lshl_add_u32 {v(vWa)}, {v(t1)}, 5, {v(vWa)}
    v_and_b32 {v(t1)}, 3, {v(vL)}
    v_lshl_add_u32 {v(vWa)}, {v(t1)}, 3, {v(vWa)}
    v_add_u32 {v(vWa)}, {WRING}, {v(vWa)}
    v_lshlrev_b32 {v(vS1)}, 2, {v(t0)}
    v_add_u32 {v(vS1)}, {STATS1}, {v(vS1)}
    v_lshlrev_b32 {v(vS2)}, 4, {v(t2)}
    v_add_u32 {v(vS2)}, {STATS1}, {v(vS2)}
    v_lshrrev_b32 {v(t1)}, 3, {v(vL)}
    v_mul_u32_u24 {v(t1)}, {XCH}, {v(t1)}
    v_and_b32 {v(t3)}, 7, {v(vL)}
    v_lshl_add_u32 {v(t1)}, {v(t3)}, 4, {v(t1)}
    v_mov_b32 {v(FA)}, {s(sONE)}
    v_mov_b32 {v(FA+1)}, {s(sONE)}
    v_mov_b32 {v(FA+2)}, {s(sONE)}
    v_mov_b32 {v(FA+3)}, {s(sONE)}
    ds_write_b128 {v(t1)}, {v(FA,4)} offset:8192
    """)
    NEG = "0xf149f2ca"
    G(f"""
    v_mov_b32 {v(t4)}, {NEG}
    v_lshlrev_b32 {v(t1)}, 2, {v(t2)}
    v_sub_u32 {v(t3)}, {v(t0)}, {v(t1)}
    """)
    for r in range(4):
        G(f"""
        v_subrev_u32 {v(t1)}, {r}, {v(t3)}
        v_cmp_ge_u32 vcc, 7, {v(t1)}
        v_cmp_ge_i32 {s(sT4,2)}, -9, {v(t1)}
        v_cndmask_b32 {v(BIAS+r)}, {v(t4)}, 0, vcc
        v_cndmask_b32 {v(BIAS+4+r)}, {v(t4)}, 0, {s(sT4,2)}
        """)
    G(f"""
    s_cmp_eq_u32 {s(sRB)}, 0
    s_cselect_b32 {s(sT0)}, 64, 2
    v_lshlrev_b32 {v(t1)}, 2, {v(t2)}
    v_lshlrev_b32 {v(t3)}, 1, {v(t0)}
    v_sub_u32 {v(t3)}, {v(t1)}, {v(t3)}
    v_subrev_u32 {v(t3)}, {s(sT0)}, {v(t3)}
    v_cmp_le_i32 vcc, 0, {v(t3)}
    v_cmp_le_i32 {s(sT4,2)}, -2, {v(t3)}
    v_mov_b32 {v(BIAS+9)}, {v(t4)}
    v_mov_b32 {v(BIAS+11)}, {v(t4)}
    v_mov_b32 {v(BIAS+12)}, {v(t4)}
    v_mov_b32 {v(BIAS+14)}, {v(t4)}
    v_cndmask_b32 {v(BIAS+8)}, {v(t4)}, 0, vcc
    v_cndmask_b32 {v(BIAS+10)}, {v(t4)}, 0, {s(sT4,2)}
    v_cndmask_b32 {v(BIAS+13)}, {v(t4)}, 0, vcc
    v_cndmask_b32 {v(BIAS+15)}, {v(t4)}, 0, {s(sT4,2)}
    s_waitcnt lgkmcnt(0)
    """)
    G(common_srds(cfg))
    G.stamp('start')
    G(w3_setup(vP3, t0, t1, t2))
    G(f"""
    s_mov_b32 {s(sT4)}, {S0}
    s_lshl_b32 {s(sT0)}, {s(sW)}, 5
    s_lshr_b32 {s(sT1)}, {s(sW)}, 1
    s_lshl_b32 {s(sT1)}, {s(sT1)}, 5
    s_add_u32 {s(sT1)}, {s(sT1)}, 128
    v_lshrrev_b32 {v(t0)}, 5, {v(vL)}
    v_bfe_u32 {v(t1)}, {v(vL)}, 2, 2
    v_lshl_add_u32 {v(t0)}, {v(t0)}, 4, {v(t1)}
    v_mul_u32_u24 {v(t0)}, 192, {v(t0)}
    v_bfe_u32 {v(t1)}, {v(vL)}, 4, 1
    v_mul_u32_u24 {v(t2)}, 12288, {v(t1)}
    v_add3_u32 {v(t0)}, {v(t0)}, {v(t2)}, {s(sT4)}
    v_and_b32 {v(t2)}, 3, {v(vL)}
    v_lshlrev_b32 {v(t2)}, 3, {v(t2)}
    v_lshl_add_u32 {v(t2)}, {v(t1)}, 5, {v(t2)}
    v_add3_u32 {v(vW3o)}, {v(t0)}, {v(t2)}, {s(sT0)}
    v_add_u32 {v(t2)}, {s(sT1)}, {v(t2)}
    v_subrev_u32 {v(t3)}, 192, {v(t2)}
    v_cmp_le_u32 vcc, 192, {v(t2)}
    v_cndmask_b32 {v(t2)}, {v(t2)}, {v(t3)}, vcc
    v_add_u32 {v(vW3s)}, {v(t0)}, {v(t2)}
    s_and_b32 {s(sT0)}, {s(sW)}, 1
    s_lshl_b32 {s(sT0)}, {s(sT0)}, 13
    v_add_u32 {v(vA01)}, {s(sT0)}, {v(vL16)}
    v_xor_b32 {v(vA23)}, 0x2000, {v(vA01)}
    s_and_b32 {s(sO0)}, {s(sRB)}, 1
    s_lshl_b32 {s(sO0)}, {s(sO0)}, 16
    s_lshl_b32 {s(sT1)}, {s(sCB)}, 12
    s_add_u32 {s(sO0)}, {s(sO0)}, {s(sT1)}
    s_lshl_b32 {s(sT1)}, {s(sW)}, 10
    s_add_u32 {s(sO0)}, {s(sO0)}, {s(sT1)}
    s_add_u32 {s(sO0)}, {s(sO0)}, {L.O_OFF}
    s_add_u32 {s(sO1)}, {s(sO0)}, 32768
    v_and_b32 {v(vOA)}, 15, v0
    v_bfe_u32 v3, v0, 4, 1
    v_lshl_add_u32 {v(vOA)}, v3, 5, {v(vOA)}
    v_lshrrev_b32 v3, 5, v0
    v_lshl_add_u32 {v(vOA)}, v3, 4, {v(vOA)}
    v_lshlrev_b32 {v(vOA)}, 4, {v(vOA)}
    s_lshl_b32 {s(sT0)}, {s(sG)}, 3
    v_mov_b32 {v(vRA)}, {s(sT0)}
    """)
    G.items(p4_table())
    SA = 224
    for i in range(3): G(f"v_mov_b64 {v(SA+2*i,2)}, 0")
    for j in range(4):
        for k in range(3):
            G(f"v_dot2c_f32_bf16 {v(SA+2*k)}, {s(sONE)}, {v(XS+4*k+j)}\nv_dot2c_f32_bf16 {v(SA+2*k+1)}, {v(XS+4*k+j)}, {v(XS+4*k+j)}")
    for dpp in ("quad_perm:[1,0,3,2]", "quad_perm:[2,3,0,1]", "row_half_mirror", "row_mirror"):
        for i in range(6): G(f"v_add_f32_dpp {v(SA+i)}, {v(SA+i)}, {v(SA+i)} {dpp} row_mask:0xf bank_mask:0xf")
    for sw in ("v_permlane16_swap_b32", "v_permlane32_swap_b32"):
        for i in range(6): G(f"v_mov_b32 {v(SA+8+i)}, {v(SA+i)}")
        for i in range(6): G(f"{sw} {v(SA+i)}, {v(SA+8+i)}")
        for i in range(6): G(f"v_add_f32 {v(SA+i)}, {v(SA+i)}, {v(SA+8+i)}")
    for i in range(6): G(f"v_mul_f32 {v(SA+i)}, 0x3b000000, {v(SA+i)}")
    for k in range(3): G(f"v_fma_f32 {v(SA+2*k+1)}, -{v(SA+2*k)}, {v(SA+2*k)}, {v(SA+2*k+1)}")
    for k in range(3): G(f"v_max_f32 {v(SA+2*k+1)}, 0, {v(SA+2*k+1)}")
    for k in range(3): G(f"v_add_f32 {v(SA+2*k+1)}, 0x3727c5ac, {v(SA+2*k+1)}")
    for k in range(3): G(f"v_rsq_f32 {v(SA+2*k+1)}, {v(SA+2*k+1)}")
    G(f"""
    s_mul_i32 {s(sT0)}, {s(sW)}, 24
    s_add_u32 {s(sT0)}, {s(sT0)}, {STG}
    v_mov_b32 v2, {s(sT0)}
    """)
    for k in range(3): G(f"v_mul_f32 {v(SA+2*k)}, -{v(SA+2*k)}, {v(SA+2*k+1)}")
    for k in range(3): G(f"ds_write_b64 v2, {v(SA+2*k,2)} offset:{8*k}")
    G(f"v_mov_b32 v2, {CNT}\nv_mov_b64 v[4:5], 0\nds_write_b64 v2, v[4:5]")
    G.lwait_all()
    def reads(F, kh):
        xs = [f"ds_read_b128 {v(F+4*T,4)}, {v(vXa1 if kh else vXa0)} offset:{T*2048}" for T in range(5)]
        ws = [f"ds_read_b64_tr_b16 {v(F+20+4*sct+2*half,2)}, {v(vWa)} offset:{kh*12288+sct*1024+half*512}" for sct in range(3) for half in range(2)]
        return ws[:2] + xs[:1] + ws[2:4] + xs[1:2] + ws[4:] + xs[2:]
    def mfmas(F, first=False):
        out = []
        for T in range(5):
            x = v(F+4*T, 4)
            c = lambda r: "0" if first else v(r, 4)
            out.append(f"v_mfma_f32_16x16x32_bf16 {v(Qa(T),4)}, {v(F+20,4)}, {x}, {c(Qa(T))}")
            out.append(f"v_mfma_f32_16x16x32_bf16 {v(Ka(T),4)}, {v(F+24,4)}, {x}, {c(Ka(T))}")
            out.append(f"v_mfma_f32_16x16x32_bf16 {v(Va(T),4)}, {x}, {v(F+28,4)}, {c(Va(T))}")
        return out
    def adv(i):
        d = WSLOT if (i + 1) % 3 else (-2 * WSLOT) & 0xffffffff
        return [f"v_add_u32 {v(vWa)}, {d}, {v(vWa)}", f"v_add_u32 {v(vXa0)}, {XCH}, {v(vXa0)}", f"v_add_u32 {v(vXa1)}, {XCH}, {v(vXa1)}"]
    G.bar('c0')
    G.stamp('c0')
    for x in reads(FA, 0): G(x)
    for i in range(8):
        extra = [f"buffer_load_dwordx2 {v(vFE,2)}, {v(vRA)}, {s(SDBG,4)}, 0 offen offset:128 sc1"] if i == 6 else []
        G.front(mfmas(FA, i == 0), reads(FB, 1) + (adv(i) if i < 7 else []) + extra)
        G.lwait_all()
        G.bar(f'c{i+1}' if i < 7 else 'stats')
        LA = 16; LBa = 28; LBb = 208
        if i < 7: G.front(mfmas(FB), reads(FA, 0))
        else:
            sr = [f"ds_read2_b32 {v(LA+2*T,2)}, {v(vS1)} offset0:{T*16} offset1:{T*16+128}" for T in range(5)]
            for T in range(5): sr += [f"ds_read_b128 {v(LBa+4*T,4)}, {v(vS2)} offset:{T*64}", f"ds_read_b128 {v(LBb+4*T,4)}, {v(vS2)} offset:{T*64+512}"]
            m = mfmas(FB)
            G.front(m[12:] + m[:12], sr)
    G.stamp('p1loop')
    CSQ, CSK, CSV = 228, 232, 236
    TMP = 140
    regdecode(G, vFE, vRA)
    for r in range(4):
        G(f"v_mov_b32_dpp {v(CSQ+r)}, {v(Qa(4)+r)} row_newbcast:0 row_mask:0xf bank_mask:0xf")
        G(f"v_mov_b32_dpp {v(CSK+r)}, {v(Ka(4)+r)} row_newbcast:0 row_mask:0xf bank_mask:0xf")
    G(f"""
    v_mov_b32 {v(CSV)}, {v(Va(4))}
    v_mov_b32 {v(CSV+1)}, {v(Va(4))}
    v_permlane16_swap_b32 {v(CSV)}, {v(CSV+1)}
    v_mov_b32 {v(CSV+1)}, {v(CSV)}
    v_permlane32_swap_b32 {v(CSV)}, {v(CSV+1)}
    v_mov_b32 {v(CSV+1)}, {v(CSV)}
    """)
    QP = 176; KP = 184; VP = 196
    vpos = {2: 0, 0: 2, 4: 4, 1: 6, 3: 8}
    def norm_qk(acc, cs, T, dst, tmp):
        ab = v(LA+2*T, 2)
        for hlf in range(2): G(f"v_pk_mul_f32 {v(tmp+2*hlf,2)}, {v(cs+2*hlf,2)}, {ab} op_sel:[0,1] op_sel_hi:[1,1]")
        for hlf in range(2): G(f"v_pk_fma_f32 {v(acc+2*hlf,2)}, {v(acc+2*hlf,2)}, {ab}, {v(tmp+2*hlf,2)} op_sel:[0,0,0] op_sel_hi:[1,0,1]")
        for hlf in range(2): G(f"v_cvt_pk_bf16_f32 {v(dst+hlf)}, {v(acc+2*hlf)}, {v(acc+2*hlf+1)}")
    for T in (4, 0, 1, 2, 3):
        norm_qk(Ka(T), CSK, T, KP+2*T, TMP)
        if T < 4: norm_qk(Qa(T), CSQ, T, QP+2*T, 240)
    for T in range(5):
        acc = Va(T); tmp = TMP if T & 1 else 240
        for hlf in range(2): G(f"v_pk_mul_f32 {v(tmp+2*hlf,2)}, {v(LBb+4*T+2*hlf,2)}, {v(CSV,2)}")
        for hlf in range(2): G(f"v_pk_fma_f32 {v(acc+2*hlf,2)}, {v(acc+2*hlf,2)}, {v(LBa+4*T+2*hlf,2)}, {v(tmp+2*hlf,2)}")
    SC = lambda T: ACC + 8*T
    ONE4 = 244
    vcv = [f"v_cvt_pk_bf16_f32 {v(VP+vpos[T]+hlf)}, {v(Va(T)+2*hlf)}, {v(Va(T)+2*hlf+1)}" for T in range(5) for hlf in range(2)]
    vcv += [f"v_mov_b32 {v(ONE4+i)}, {s(sONE)}" for i in range(4)] + [f"s_mov_b32 {s(sT0)}, 0x3eb8aa3b"]
    sm = []
    for T in range(4):
        prev = T - 2 if T >= 2 else 4
        bprev = BIAS + 4 if T >= 2 else BIAS + 8 + 4*T
        sm.append(f"v_mfma_f32_16x16x16_bf16 {v(SC(T),4)}, {v(KP+2*T,2)}, {v(QP+2*T,2)}, {v(BIAS,4)}")
        sm.append(f"v_mfma_f32_16x16x16_bf16 {v(SC(T)+4,4)}, {v(KP+2*prev,2)}, {v(QP+2*T,2)}, {v(bprev,4)}")
    G.spread(sm, vcv)
    MX = 16; M2 = 20
    PP = 32; OA = 48; LS = 208
    for T in range(4):
        b = SC(T)
        G(f"""
        v_max3_f32 {v(MX+T)}, {v(b)}, {v(b+1)}, {v(b+2)}
        v_max3_f32 {v(M2+T)}, {v(b+3)}, {v(b+4)}, {v(b+5)}
        """)
    for T in range(4): G(f"v_max3_f32 {v(MX+T)}, {v(MX+T)}, {v(SC(T)+6)}, {v(SC(T)+7)}")
    for T in range(4): G(f"v_max_f32 {v(MX+T)}, {v(MX+T)}, {v(M2+T)}")
    G(f"""
    v_permlane16_swap_b32 {v(MX)}, {v(MX+1)}
    v_permlane16_swap_b32 {v(MX+2)}, {v(MX+3)}
    v_max_f32 {v(MX)}, {v(MX)}, {v(MX+1)}
    v_max_f32 {v(MX+2)}, {v(MX+2)}, {v(MX+3)}
    v_permlane32_swap_b32 {v(MX)}, {v(MX+2)}
    v_max_f32 {v(MX)}, {v(MX)}, {v(MX+2)}
    v_mul_f32 {v(MX)}, {s(sT0)}, {v(MX)}
    v_mov_b32 {v(MX+2)}, {v(MX)}
    v_permlane32_swap_b32 {v(MX)}, {v(MX+2)}
    v_mov_b32 {v(MX+1)}, {v(MX)}
    v_mov_b32 {v(MX+3)}, {v(MX+2)}
    v_permlane16_swap_b32 {v(MX)}, {v(MX+1)}
    v_permlane16_swap_b32 {v(MX+2)}, {v(MX+3)}
    """)
    win = {2: 0, 0: 2, 1: 4, 3: 6}
    for T in range(4):
        b = SC(T)
        for i in range(8): G(f"v_fma_f32 {v(b+i)}, {v(b+i)}, {s(sT0)}, -{v(MX+T)}")
        for i in range(8): G(f"v_exp_f32 {v(b+i)}, {v(b+i)}")
        first, second = (b, b+4) if T in (0, 2) else (b+4, b)
        G(f"""
        v_cvt_pk_bf16_f32 {v(PP+4*T)}, {v(first)}, {v(first+1)}
        v_cvt_pk_bf16_f32 {v(PP+4*T+1)}, {v(first+2)}, {v(first+3)}
        v_cvt_pk_bf16_f32 {v(PP+4*T+2)}, {v(second)}, {v(second+1)}
        v_cvt_pk_bf16_f32 {v(PP+4*T+3)}, {v(second+2)}, {v(second+3)}
        """)
        if T >= 1:
            U = T - 1
            G(f"v_rcp_f32 {v(LS+4*U)}, {v(LS+4*U)}")
        G(f"""
        v_mfma_f32_16x16x32_bf16 {v(LS+4*T,4)}, {v(ONE4,4)}, {v(PP+4*T,4)}, 0
        v_mfma_f32_16x16x32_bf16 {v(OA+4*T,4)}, {v(VP+win[T],4)}, {v(PP+4*T,4)}, 0
        """)
    OP = 64
    def fin(T):
        q, p = T >> 1, T & 1
        for h in range(2): G(f"v_pk_mul_f32 {v(OA+4*T+2*h,2)}, {v(OA+4*T+2*h,2)}, {v(LS+4*T,2)} op_sel:[0,0] op_sel_hi:[1,0]")
        G(f"""
        v_cvt_pk_bf16_f32 {v(OP+4*q+2*p)}, {v(OA+4*T)}, {v(OA+4*T+1)}
        v_cvt_pk_bf16_f32 {v(OP+4*q+2*p+1)}, {v(OA+4*T+2)}, {v(OA+4*T+3)}
        """)
    fin(0); fin(1); fin(2)
    G(f"""
    v_permlane32_swap_b32 {v(OP)}, {v(OP+2)}
    v_permlane32_swap_b32 {v(OP+1)}, {v(OP+3)}
    v_rcp_f32 {v(LS+12)}, {v(LS+12)}
    """)
    fin(3)
    G(f"""
    v_permlane32_swap_b32 {v(OP+4)}, {v(OP+6)}
    v_permlane32_swap_b32 {v(OP+5)}, {v(OP+7)}
    """)
    stores(G, [f"buffer_store_dwordx4 {v(OP+4*q,4)}, {v(vOA)}, {s(SWS,4)}, {s(sO0+q)} offen" for q in range(2)], "ST1")
    G.stamp('p1epi')
    signal(G, 0, vFE)
    G.stamp('sig0')
    G.bar('w3a')
    ACC = 16; CSA = 112; SEL = 120; AB = 124; W3R = 160
    G.sv = (15, 6)
    def w3_reads(l):
        out = []; blk = l % 3; base = W3SLOT[l]
        for s4 in range(4):
            for k, va in enumerate((vW3o, vW3s)):
                for half in range(2):
                    o = (base - S0) + (32*(s4 >> 1) + 8*(s4 & 1) + 4*half) * 192
                    out.append(f"ds_read_b64_tr_b16 {v(W3R + 32*blk + 8*s4 + 4*k + 2*half, 2)}, {v(va)} offset:{o}")
        return out
    def w3_colsum(l):
        blk = l % 3
        return [f"v_mfma_f32_16x16x32_bf16 {v(CSA+4*k,4)}, {v(W3R+32*blk+8*s4+4*k,4)}, {v(SEL,4)}, {v(CSA+4*k,4)}" for s4 in range(4) for k in range(2)]
    for x in w3_reads(0): G(x)
    G(f"""
    v_lshrrev_b32 v2, 4, v0
    v_xor_b32 v2, v2, v0
    v_and_b32 v2, 1, v2
    v_cmp_eq_u32 vcc, 0, v2
    v_mov_b32 v3, {s(sONE)}
    v_cndmask_b32 {v(SEL)}, 0, v3, vcc
    v_cndmask_b32 {v(SEL+1)}, 0, v3, vcc
    v_cndmask_b32 {v(SEL+2)}, 0, v3, vcc
    v_cndmask_b32 {v(SEL+3)}, 0, v3, vcc
    """)
    for i in range(4): G(f"v_mov_b64 {v(CSA+2*i,2)}, 0")
    G.front(w3_colsum(0), w3_reads(1), 2)
    for x in w3_colsum(1): G(x)
    G.lwait_all()
    G.stamp('svc')
    G.bar('a2iss')
    for l in PFORD[:cfg.npf]: G.items(w3_dma(l, W3SLOT[l], vP3))
    G.stamp('pf')
    G.wait_tag('w3_2')
    G.bar('a3_0')
    G.stamp('a3_0')
    NAB = 6
    def aread(n):
        st, sg = n >> 2, n & 3
        c, s4 = st >> 2, st & 3
        r = (c % 3) * 16384 + s4 * 1024
        return f"ds_read_b128 {v(AB+4*(n % NAB),4)}, {v(vA01 if sg < 2 else vA23)} offset:{r + (sg & 1)*4096}"
    LEAD = 4
    nread = 0
    for n in range(LEAD): G(aread(n)); nread += 1
    fills = {st: [] for st in range(34)}; cs_at = {st: [] for st in range(34)}
    for l, b in list(W3BAR.items()) + [(2, -1)]:
        rd = w3_reads(l); cs = w3_colsum(l)
        fills[b+1] += rd[0:6]; fills[b+2] += rd[6:12]; fills[b+3] += rd[12:16]
        cs_at[b+2] += cs[0:2]; cs_at[b+3] += cs[2:6]; cs_at[b+4] += cs[6:8]
    for st in range(32):
        c, s4 = st >> 2, st & 3
        if s4 == 3 and st < 31:
            for l, b in W3BAR.items():
                if b == st and f"w3_{l}" in G.tags: G.wait_tag(f"w3_{l}")
            G.lwait_all()
            G.bar(f'p3_{st}')
        w = W3R + 32*(c % 3) + 8*s4
        fl = list(fills[st]); fi = 0
        for sg in range(4):
            n = 4*st + sg
            fr = v(AB+4*(n % NAB), 4)
            ms = [f"v_mfma_f32_32x32x16_bf16 {v(ACC+16*sg,16)}, {v(w,4)}, {fr}, {'0' if st == 0 else v(ACC+16*sg,16)}"]
            if sg < 2: ms.append(f"v_mfma_f32_32x32x16_bf16 {v(ACC+64+16*sg,16)}, {v(w+4,4)}, {fr}, {'0' if st == 0 else v(ACC+64+16*sg,16)}")
            for k, m in enumerate(ms):
                G(m)
                if k == 0 and nread < 128 and nread <= n + LEAD: G(aread(nread)); nread += 1
                if fi < len(fl): G(fl[fi]); fi += 1
        while fi < len(fl): G(fl[fi]); fi += 1
        for x in cs_at[st]: G(x)
    G.stamp('p3loop')
    G(f"""
    v_and_b32 v2, 1, v0
    v_lshrrev_b32 v3, 4, v0
    v_lshlrev_b32 v2, 6, v2
    v_lshl_add_u32 v2, v3, 4, v2
    s_lshl_b32 {s(sT5)}, {s(sW)}, 8
    s_add_u32 {s(sT5)}, {s(sT5)}, {CSX}
    v_add_u32 v2, {s(sT5)}, v2
    v_lshrrev_b32 v3, 5, v0
    v_lshlrev_b32 v3, 4, v3
    v_add_u32 v3, {s(sT5)}, v3
    ds_write_b128 v2, {v(CSA,4)}
    ds_write_b128 v2, {v(CSA+4,4)} offset:128
    s_and_b32 {s(sT0)}, {s(sW)}, 1
    s_lshl_b32 {s(sT0)}, {s(sT0)}, 9
    s_add_u32 {s(sT0)}, {s(sT0)}, {STATS3}
    v_and_b32 v13, 31, v0
    v_lshlrev_b32 v13, 3, v13
    v_add_u32 v13, {s(sT0)}, v13
    v_xor_b32 v14, 0x200, v13
    ds_read_b64 v[160:161], v13
    ds_read_b64 v[162:163], v13 offset:256
    ds_read_b64 v[164:165], v14
    ds_read_b64 v[166:167], v14 offset:256
    """)
    CS0, CS1 = 176, 192
    for tile, CSo in ((0, CS0), (1, CS1)):
        for i in range(4): G(f"ds_read_b128 {v(CSo+4*i,4)}, v3 offset:{tile*128 + (i>>1)*64 + (i&1)*32}")
    def unit_epi(U, stp, CSo):
        st = v(stp, 2)
        for h in range(8): G(f"v_pk_fma_f32 {v(U+2*h,2)}, {v(CSo+2*h,2)}, {st}, {v(U+2*h,2)} op_sel:[0,0,0] op_sel_hi:[1,0,1]")
        for i in range(8): G(f"v_max_f32 {v(U+i)}, 0, {v(U+i)}")
        for h in range(4): G(f"v_pk_mul_f32 {v(U+8+2*h,2)}, {v(U+8+2*h,2)}, {st} op_sel:[0,1] op_sel_hi:[1,1]")
        for h in range(4): G(f"v_pk_mul_f32 {v(U+2*h,2)}, {v(U+2*h,2)}, {v(U+8+2*h,2)}")
        for h in range(4): G(f"v_cvt_pk_bf16_f32 {v(U+h)}, {v(U+2*h)}, {v(U+2*h+1)}")
    G(f"""
    s_mul_i32 {s(sT0)}, {s(sM)}, 6144
    s_add_u32 {s(sT0)}, {s(sT0)}, {L.HH_OFF}
    s_and_b32 {s(sT1)}, {s(sW)}, 1
    s_mul_i32 {s(sT1)}, {s(sT1)}, {2*HHS}
    s_add_u32 {s(sT2)}, {s(sT0)}, {s(sT1)}
    s_sub_u32 {s(sT3)}, {s(sT0)}, {s(sT1)}
    s_add_u32 {s(sT3)}, {s(sT3)}, {2*HHS}
    s_lshl_b32 {s(sT0)}, {s(sW)}, 10
    v_add_u32 v8, {s(sT0)}, {v(vL16)}
    v_add_u32 v9, {HHS}, v8
    s_lshr_b32 {s(sT0)}, {s(sW)}, 1
    s_lshl_b32 {s(sT0)}, {s(sT0)}, 10
    s_add_u32 {s(sT0)}, {s(sT0)}, 4096
    v_add_u32 v10, {s(sT0)}, {v(vL16)}
    v_add_u32 v11, {HHS}, v10
    """)
    for sg in range(4): unit_epi(ACC + 16*sg, 160 + 2*sg, CS0)
    A(f"""
    s_lshl_b32 {s(sT4)}, {s(sM)}, 2
    s_add_u32 {s(sT4)}, {s(sT4)}, {s(sW)}
    s_cmp_ge_u32 {s(sT4)}, 58
    s_cbranch_scc1 A_ST3_DONE
    """)
    stores(G, [f"buffer_store_dwordx4 {v(ACC+16*sg,4)}, {v(8 + (sg & 1))}, {s(SWS,4)}, {s(sT2 if sg < 2 else sT3)} offen" for sg in range(4)], "ST3")
    for sg in range(2): unit_epi(ACC + 64 + 16*sg, 160 + 2*sg, CS1)
    A(f"""
    s_cmp_ge_u32 {s(sM)}, 14
    s_cbranch_scc1 A_ST3Z_DONE
    """)
    stores(G, [f"buffer_store_dwordx4 {v(ACC+64+16*sg,4)}, {v(10 + sg)}, {s(SWS,4)}, {s(sT2)} offen" for sg in range(2)], "ST3Z")
    A(f"""
    s_cmp_lg_u32 {s(sM)}, 15
    s_cbranch_scc1 A_ST3P_DONE
    v_mov_b64 {v(ACC,2)}, 0
    v_mov_b64 {v(ACC+2,2)}, 0
    s_mul_i32 {s(sT0)}, {s(sW)}, {HHS}
    s_add_u32 {s(sT0)}, {s(sT0)}, {L.HH_OFF + 86*1024}
    """)
    stores(G, [f"buffer_store_dwordx4 {v(ACC,4)}, {v(vL16)}, {s(SWS,4)}, {s(sT0)} offen offset:{1024*i}" for i in range(2)], "ST3P")
    G.stamp('p3epi')
    signal(G, 2, vFE)
    G.stamp('sig2')
    G(ks_addr(L.HH_OFF, HHS, vL16, 12, 13))
    G(f"""
    s_mul_i32 {s(sWB)}, {s(sW)}, 24576
    s_add_u32 {s(sWB)}, {s(sWB)}, {RING4}
    """)
    G.bar('p4start')
    poll(G, 2, vFE)
    G.stamp('poll2')
    def batch(b):
        for q in range(4*b, 4*b + 4):
            rs, j = q // 22, q % 22
            G(f"""
            s_add_u32 m0, {s(sWB)}, {(q % 24) * 1024}
            buffer_load_dwordx4 {v(12+rs)}, {s(SWS,4)}, {s(sKO+j)} offen sc1 lds
            """)
        G.tag(f"b4_{b}")
    nb = 0
    for b in range(3): batch(b); nb += 1
    for b in range(NB4):
        G.wait_tag(f"b4_{b}")
        G.bar(f"p4_{b}")
        while nb < NB4 and (nb < 6 and nb <= b + 4 or nb - 6 + 3 <= b): batch(nb); nb += 1
    G.stamp('end')

def prog_b(G):
    A = G.A; cfg = G.cfg
    t0, t1, t2, t3, t4 = 1, 2, 3, 4, 5
    vXo0, vXo1, vXh, vWo, vTL, vSa, vSh, vRA = 8, 9, 10, 11, 12, 13, 14, 15
    SF = 16; SACC = 28
    vP3, vWD, vWT, vFE, vL16, vXA = 240, 243, 244, 246, 248, 249
    G.dummy = ('v', 250)
    G.sv = (251, 252)
    if cfg.prioB: G(f"s_setprio {cfg.prioB}")
    G(f"""
    s_lshl_b32 {s(sT0)}, {s(sRB)}, 6
    s_lshr_b32 {s(sT1)}, {s(sW)}, 1
    s_lshl_b32 {s(sT1)}, {s(sT1)}, 5
    s_add_u32 {s(sT1)}, {s(sT1)}, {s(sT0)}
    s_and_b32 {s(sT2)}, {s(sW)}, 1
    s_add_u32 {s(sT1)}, {s(sT1)}, {s(sT2)}
    v_lshrrev_b32 {v(t0)}, 3, {v(vL)}
    v_and_b32 {v(t1)}, 7, {v(vL)}
    v_lshrrev_b32 {v(t2)}, 4, {v(vL)}
    v_xor_b32 {v(t3)}, {v(t1)}, {v(t2)}
    v_lshlrev_b32 {v(t4)}, 1, {v(t0)}
    v_add_u32 {v(t4)}, {s(sT1)}, {v(t4)}
    v_lshlrev_b32 {v(t4)}, 10, {v(t4)}
    v_lshl_add_u32 {v(vXo0)}, {v(t3)}, 4, {v(t4)}
    v_xor_b32 {v(t3)}, 4, {v(t3)}
    v_lshl_add_u32 {v(vXo1)}, {v(t3)}, 4, {v(t4)}
    v_add_u32 {v(vXo1)}, {0x4000 - 1024}, {v(vXo1)}
    s_lshl_b32 {s(sT2)}, {s(sW)}, 2
    v_add_u32 {v(t3)}, {s(sT2)}, {v(t0)}
    v_lshrrev_b32 {v(t4)}, 1, {v(t3)}
    v_and_b32 {v(t4)}, 7, {v(t4)}
    v_xor_b32 {v(t4)}, {v(t4)}, {v(t1)}
    s_sub_u32 {s(sT3)}, {s(sT0)}, 16
    v_add_u32 {v(t3)}, {s(sT3)}, {v(t3)}
    v_max_i32 {v(t3)}, 0, {v(t3)}
    v_lshlrev_b32 {v(t3)}, 10, {v(t3)}
    v_lshl_add_u32 {v(vXh)}, {v(t4)}, 4, {v(t3)}
    s_mov_b32 {s(sEXH)}, -1
    s_cmp_eq_u32 {s(sW)}, 0
    s_cselect_b32 {s(sEXH)}, 0xffffff00, {s(sEXH)}
    s_mov_b32 {s(sEXH+1)}, 0
    s_lshl_b32 {s(sT2)}, {s(sW)}, 3
    v_add_u32 {v(t3)}, {s(sT2)}, {v(t0)}
    v_mul_u32_u24 {v(t3)}, 3072, {v(t3)}
    v_and_b32 {v(t4)}, 1, {v(t2)}
    v_lshlrev_b32 {v(t4)}, 1, {v(t4)}
    s_and_b32 {s(sT2)}, {s(sW)}, 1
    s_lshl_b32 {s(sT2)}, {s(sT2)}, 2
    v_or_b32 {v(t4)}, {s(sT2)}, {v(t4)}
    v_xor_b32 {v(t4)}, {v(t4)}, {v(t1)}
    v_lshl_add_u32 {v(vWo)}, {v(t4)}, 4, {v(t3)}
    s_lshl_b32 {s(sT2)}, {s(sCB)}, 7
    v_add_u32 {v(vWo)}, {s(sT2)}, {v(vWo)}
    s_lshl_b32 {s(sT4)}, {s(sIDX)}, 2
    s_add_u32 {s(sT4)}, {s(sT4)}, {s(sW)}
    s_lshl_b32 {s(sTB)}, {s(sT4)}, 11
    s_mul_i32 {s(sTB1)}, {s(sT4)}, 1536
    v_lshrrev_b32 {v(vTL)}, 2, {v(vL)}
    v_lshlrev_b32 {v(vTL)}, 7, {v(vTL)}
    s_and_b32 {s(sSX)}, {s(sRBL)}, {cfg.rotm}
    s_lshl_b32 {s(sSX)}, {s(sSX)}, {cfg.rots}
    s_add_u32 {s(sSX)}, {s(sSX)}, {s(sCB)}
    s_lshl_b32 {s(sMX)}, {s(sW)}, 11
    s_lshl_b32 {s(sMH)}, {s(sW)}, 9
    s_add_u32 {s(sMH)}, {s(sMH)}, 8192
    s_mul_i32 {s(sMW)}, {s(sW)}, 3072
    s_add_u32 {s(sMW)}, {s(sMW)}, {WRING}
    s_mov_b32 {s(SX+2)}, {2048*1024}
    s_mov_b32 {s(SX+3)}, 0x20000
    s_mov_b32 {s(SW1+2)}, {512*3072}
    s_mov_b32 {s(SW1+3)}, 0x20000
    s_waitcnt lgkmcnt(0)
    s_mov_b32 {s(SX)}, s64
    s_and_b32 {s(SX+1)}, s65, 0xffff
    s_mov_b32 {s(SW1)}, s66
    s_and_b32 {s(SW1+1)}, s67, 0xffff
    """)
    def dma_chunk(c):
        sl = (c % 3) * WSLOT
        W = lambda o: f"buffer_load_dwordx4 {v(vWo)}, {s(SW1,4)}, {s(sB0)} offen offset:{o} lds"
        return [f"""
        s_add_u32 m0, {s(sMW)}, {sl}
        s_add_u32 {s(sB1)}, {s(sSX)}, {c}
        s_and_b32 {s(sB1)}, {s(sB1)}, 7
        s_mul_i32 {s(sB0)}, {s(sB1)}, 196608
        s_lshl_b32 {s(sB1)}, {s(sB1)}, 7
        {W(0)}
        """, W(1024), W(2048), f"""
        s_add_u32 m0, {s(sMX)}, {c*XCH}
        s_add_u32 {s(sB0)}, {s(sB0)}, {32*3072}
        buffer_load_dwordx4 {v(vXo0)}, {s(SX,4)}, {s(sB1)} offen lds
        """, f"buffer_load_dwordx4 {v(vXo1)}, {s(SX,4)}, {s(sB1)} offen offset:1024 lds", f"""
        s_add_u32 m0, {s(sMH)}, {c*XCH}
        s_mov_b64 exec, {s(sEXH,2)}
        buffer_load_dwordx4 {v(vXh)}, {s(SX,4)}, {s(sB1)} offen lds
        s_mov_b64 exec, -1
        """, f"""
        s_add_u32 m0, {s(sMW)}, {sl + 4*3072}
        s_nop 0
        {W(0)}
        """, W(1024), W(2048), ('TAG', f"c{c}")]
    def t1w(r):
        if not cfg.touch or r > 7: return []
        return [f"""
        s_add_u32 {s(sB0)}, {s(sTB1)}, {r*196608}
        buffer_load_dword v250, {v(vTL)}, {s(SW1,4)}, {s(sB0)} offen
        """]
    if cfg.touch:
        G(f"""
        s_lshl_b32 {s(sB0)}, {s(sXCD)}, 18
        s_add_u32 {s(sB0)}, {s(sB0)}, {s(sTB)}
        buffer_load_dword v250, {v(vTL)}, {s(SX,4)}, {s(sB0)} offen
        """)
    G.items(dma_chunk(0) + t1w(1) + t1w(2))
    G(common_srds(cfg) + srd(SWO, 68, 512*1024) + srd(SWD, 76, 1376*1024) + srd(SOUT, 78, 2048*1024))
    A(f"""
    s_cmp_lg_u32 {s(sW)}, 0
    s_cbranch_scc1 REG_DONE
    s_and_b32 {s(sXCC)}, {s(sXCC)}, 7
    s_mul_i32 {s(sT0)}, {s(sXCC)}, {s(sXCC)}
    s_lshl_b32 {s(sT0)}, {s(sT0)}, 12
    s_lshl_b32 {s(sT1)}, {s(sXCC)}, 5
    s_or_b32 {s(sT0)}, {s(sT0)}, {s(sT1)}
    s_or_b32 {s(sT0)}, {s(sT0)}, 1
    s_lshl_b64 {s(sT4,2)}, {s(sTS,2)}, 22
    s_or_b32 {s(sT0)}, {s(sT0)}, {s(sT4)}
    v_mov_b32 v2, {s(sT0)}
    v_mov_b32 v3, {s(sT5)}
    s_lshl_b32 {s(sT1)}, {s(sG)}, 3
    v_mov_b32 v4, {s(sT1)}
    s_mov_b64 exec, 1
    buffer_atomic_add_x2 v[2:3], v4, {s(SDBG,4)}, 0 offen offset:128 sc1
    s_mov_b64 exec, -1
    """)
    A.label("REG_DONE")
    G.stamp('start')
    G.items(dma_chunk(1) + t1w(3))
    G(f"""
    v_lshlrev_b32 {v(vL16)}, 4, v0
    s_lshl_b32 {s(sT0)}, {s(sW)}, 11
    s_lshl_b32 {s(sT1)}, {s(sW)}, 9
    s_add_u32 {s(sT1)}, {s(sT1)}, 8192
    v_add_u32 {v(vSh)}, {s(sT1)}, {v(vL16)}
    v_add_u32 {v(vSa)}, {s(sT0)}, {v(vL16)}
    v_mov_b64 {v(SACC,2)}, 0
    v_mov_b64 {v(SACC+2,2)}, 0
    v_mov_b64 {v(SACC+4,2)}, 0
    """)
    G.wait_tag('c0')
    G.bar('c0')
    G.stamp('c0')
    G.bg_on = False
    G.bg(dma_chunk(2) + t1w(4))
    setups = [w3_setup(vP3, t0, t1, t2), f"""
    v_lshrrev_b32 {v(t0)}, 3, {v(vL)}
    v_and_b32 {v(t1)}, 7, {v(vL)}
    v_bfe_u32 {v(t2)}, {v(vL)}, 4, 1
    v_lshlrev_b32 {v(t2)}, 2, {v(t2)}
    v_xor_b32 {v(t1)}, {v(t1)}, {v(t2)}
    v_lshlrev_b32 {v(t0)}, 10, {v(t0)}
    v_lshl_add_u32 {v(vWD)}, {v(t1)}, 4, {v(t0)}
    s_lshl_b32 {s(sT0)}, {s(sCB)}, 7
    v_add_u32 {v(vWD)}, {s(sT0)}, {v(vWD)}
    s_lshl_b32 {s(sT2)}, {s(sRBL)}, 1
    s_lshl_b32 {s(sWB)}, {s(sW)}, 11
    s_lshl_b32 {s(sR2)}, {s(sRBL)}, 13
    s_lshl_b32 {s(sW1K)}, {s(sW)}, 10
    """, f"""
    v_lshrrev_b32 {v(t0)}, 5, {v(vL)}
    v_bfe_u32 {v(t1)}, {v(vL)}, 2, 2
    v_lshl_add_u32 {v(t0)}, {v(t0)}, 2, {v(t1)}
    v_lshlrev_b32 {v(t0)}, 7, {v(t0)}
    v_and_b32 {v(t1)}, 1, {v(vL)}
    v_lshl_add_u32 {v(t0)}, {v(t1)}, 5, {v(t0)}
    v_bfe_u32 {v(t1)}, {v(vL)}, 4, 1
    v_lshl_add_u32 {v(t0)}, {v(t1)}, 4, {v(t0)}
    v_bfe_u32 {v(t1)}, {v(vL)}, 1, 1
    v_lshl_add_u32 {v(t0)}, {v(t1)}, 3, {v(t0)}
    v_bfe_u32 {v(t1)}, {v(vL)}, 3, 1
    s_and_b32 {s(sT0)}, {s(sW)}, 1
    v_xor_b32 {v(t1)}, {s(sT0)}, {v(t1)}
    v_lshl_add_u32 {v(vWT+1)}, {v(t1)}, 6, {v(t0)}
    v_add_u32 {v(vWT+1)}, {s(sWB)}, {v(vWT+1)}
    v_xor_b32 {v(vWT)}, 64, {v(vWT+1)}
    s_lshl_b32 {s(sA3)}, {s(sW)}, 15
    s_add_u32 {s(sA3)}, {s(sA3)}, {L.H_OFF}
    s_lshl_b32 {s(sT0)}, {s(sRB)}, 6
    s_lshr_b32 {s(sT2)}, {s(sW)}, 1
    s_lshl_b32 {s(sT2)}, {s(sT2)}, 5
    s_add_u32 {s(sT0)}, {s(sT0)}, {s(sT2)}
    s_lshl_b32 {s(sT0)}, {s(sT0)}, 10
    s_lshl_b32 {s(sT2)}, {s(sCB)}, 7
    s_add_u32 {s(sT0)}, {s(sT0)}, {s(sT2)}
    s_and_b32 {s(sT2)}, {s(sW)}, 1
    s_lshl_b32 {s(sT2)}, {s(sT2)}, 6
    s_add_u32 {s(sT0)}, {s(sT0)}, {s(sT2)}
    v_and_b32 v2, 15, v0
    v_lshlrev_b32 v2, 11, v2
    v_bfe_u32 v3, v0, 4, 1
    v_lshl_add_u32 v2, v3, 10, v2
    v_lshrrev_b32 v3, 5, v0
    v_lshl_add_u32 {v(vXA)}, v3, 5, v2
    v_add_u32 {v(vXA)}, {s(sT0)}, {v(vXA)}
    s_lshl_b32 {s(sT0)}, {s(sG)}, 3
    v_mov_b32 {v(vRA)}, {s(sT0)}
    s_and_b32 {s(sT0)}, {s(sRB)}, 1
    s_lshl_b32 {s(sT0)}, {s(sT0)}, 1
    s_lshr_b32 {s(sT1)}, {s(sW)}, 1
    s_add_u32 {s(sT0)}, {s(sT0)}, {s(sT1)}
    s_lshl_b32 {s(sO1)}, {s(sT0)}, 12
    s_lshl_b32 {s(sO0)}, {s(sT0)}, 15
    s_lshl_b32 {s(sT2)}, {s(sCB)}, 1
    s_and_b32 {s(sT3)}, {s(sW)}, 1
    s_add_u32 {s(sT2)}, {s(sT2)}, {s(sT3)}
    s_lshl_b32 {s(sT2)}, {s(sT2)}, 11
    s_add_u32 {s(sO0)}, {s(sO0)}, {s(sT2)}
    s_add_u32 {s(sO0)}, {s(sO0)}, {L.H_OFF}
    s_lshl_b32 {s(sT2)}, {s(sCB)}, 9
    s_add_u32 {s(sO1)}, {s(sO1)}, {s(sT2)}
    s_lshl_b32 {s(sT3)}, {s(sT3)}, 3
    s_add_u32 {s(sO1)}, {s(sO1)}, {s(sT3)}
    s_add_u32 {s(sO1)}, {s(sO1)}, {L.ST_OFF}
    """]
    def wt_dma(SWT, sko, ldsoff, tagname, vWD_):
        return [f"""
        s_lshl_b32 {s(sB0)}, {s(sko)}, 4
        s_add_u32 m0, {s(sWB)}, {ldsoff}
        s_add_u32 {s(sB1)}, {s(sB0)}, 7168
        buffer_load_dwordx4 {v(vWD_)}, {s(SWT,4)}, {s(sB0)} offen lds
        """, f"buffer_load_dwordx4 {v(vWD_)}, {s(SWT,4)}, {s(sB1)} offen offset:1024 lds", ('TAG', tagname)]
    def wt_reads(dst, ldsoff, vWT_):
        return [f"ds_read_b64_tr_b16 {v(dst + 4*k + 2*half, 2)}, {v(vWT_+k)} offset:{ldsoff + half*1024}" for k in range(2) for half in range(2)]
    def wo(j):
        g = wt_dma(SWO, sB0, j*8192, f"wo{j}", vWD)
        g[0] = f"""
        s_add_u32 {s(sB0)}, {s(sR2)}, {j*4096}
        s_and_b32 {s(sB0)}, {s(sB0)}, 32767
        s_add_u32 {s(sB0)}, {s(sB0)}, {s(sW1K)}
        """ + g[0]
        return g
    assert not cfg.touch
    XR = 224
    def one():
        if G._has(): G._one()
    G.bg_on = False
    for i in range(8):
        su = setups[i].strip().split('\n') if i < len(setups) else []
        nd = cfg.ndma if i < 7 else cfg.ndma7
        per = (len(su) + nd - 1) // max(nd, 1)
        for k in range(nd):
            one()
            for ln in su[k*per:(k+1)*per]: G(ln)
        if i == 2:
            G(f"buffer_load_dwordx2 {v(vFE,2)}, {v(vRA)}, {s(SDBG,4)}, 0 offen offset:128 sc1")
        if i == 3:
            regdecode(G, vFE, vRA)
            G(f"""
            v_min_u32 v2, 2, v0
            s_mul_i32 {s(sT0)}, {s(sW)}, 24
            s_add_u32 {s(sT0)}, {s(sT0)}, {STG}
            v_lshlrev_b32 v3, 3, v2
            v_add_u32 v3, {s(sT0)}, v3
            ds_read_b64 v[16:17], v3
            s_mul_i32 {s(sT0)}, {s(sCB)}, 10
            s_mul_i32 {s(sT1)}, {s(sW)}, 3
            s_add_u32 {s(sT0)}, {s(sT0)}, {s(sT1)}
            v_add_u32 v2, {s(sT0)}, v2
            v_min_u32 v2, 79, v2
            v_lshlrev_b32 v2, 4, v2
            s_and_b32 {s(sT4)}, {s(sRB)}, 1
            s_mul_i32 {s(sT4)}, {s(sT4)}, 1280
            s_add_u32 {s(sT4)}, {s(sT4)}, {SG_OFF}
            v_mov_b32 v18, {v(vFE)}
            v_mov_b32 v19, {v(vFE+1)}
            v_min_u32 v20, 19, v0
            s_mul_i32 {s(sT0)}, {s(sW)}, 20
            v_add_u32 v20, {s(sT0)}, v20
            v_lshlrev_b32 v21, 2, v20
            v_add_u32 v21, {STATS1}, v21
            v_lshlrev_b32 v20, 4, v20
            s_mov_b32 {s(sMWL)}, {s(sT4)}
            """)
            stores(G, [f"buffer_store_dwordx4 v[16:19], v2, {s(SWS,4)}, {s(sT4)} offen"], "STG")
        if i == 6:
            G(f"buffer_load_dwordx4 v[24:27], v20, {s(SWS,4)}, {s(sMWL)} offen sc1")
        if cfg.fine == 1: G.stamp(f'd{i}')
        if i == 7: break
        G.wait_tag(f"c{i+1}")
        G.bar(f"c{i+1}")
        if i + 3 < 8: G.bg(dma_chunk(i + 3) + t1w(i + 5))
        if i == 4:
            for j in range(6): G.bg(wo(j))
        if i == 5:
            G.bg(wo(6))
            G.bg([f"buffer_load_dwordx4 {v(XR,4)}, {v(vXA)}, {s(SX,4)}, 0 offen", f"buffer_load_dwordx4 {v(XR+4,4)}, {v(vXA)}, {s(SX,4)}, 0 offen offset:16"])
            G.bg(w3_dma(0, W3SLOT[0], vP3))
        if i == 6:
            G.bg(wo(7))
            G.bg(w3_dma(1, W3SLOT[1], vP3))
    G._autowait(Ins("v_mov_b32 v24, v27"))
    G(f"s_mov_b32 {s(sCNT)}, 0")
    A.label("SGPOLL")
    A(f"""
    v_cmp_ne_u64 vcc, v[26:27], {v(vFE,2)}
    s_add_u32 {s(sCNT)}, {s(sCNT)}, 1
    s_cbranch_vccz SGOK
    s_cmp_ge_u32 {s(sCNT)}, 20000
    s_cbranch_scc1 SGOK
    buffer_load_dwordx4 v[24:27], v20, {s(SWS,4)}, {s(sMWL)} offen sc1
    s_waitcnt vmcnt(0)
    s_branch SGPOLL
    """)
    A.label("SGOK")
    G(f"""
    ds_write_b32 v21, v25
    ds_write_b32 v21, v24 offset:512
    """)
    G.lwait_all()
    G.bar('stats')
    G.stamp('p1loop')
    G.bg_on = True
    G.flush()
    WO_FR = [80 + 8*j for j in range(8)]
    G.wait_tag('wo7')
    for j in range(8):
        for x in wt_reads(WO_FR[j], j*8192, vWT): G(x)
    G(ks_addr(L.O_OFF, 32768, vL16, 12, 13))
    K2 = [60, 61, 62, 63, 86, 58, 59, 101]
    for j in range(8):
        G(f"""
        s_add_u32 {s(K2[j])}, {s(sR2)}, {j*4096}
        s_and_b32 {s(K2[j])}, {s(K2[j])}, 32767
        s_add_u32 {s(K2[j])}, {s(K2[j])}, {s(sW1K)}
        """)
    G.items(p4_table())
    G(f"""
    v_mov_b32 v11, {v(vL16)}
    v_and_b32 v14, 31, v0
    v_lshlrev_b32 v14, 4, v14
    v_lshrrev_b32 v3, 5, v0
    v_lshl_add_u32 v14, v3, 2, v14
    """)
    G.wait_tag('w3_1')
    G.lwait_all()
    G.stamp('pre')
    G.bar('w3a')
    G.stamp('w3a')
    poll(G, 0, vFE)
    G.stamp('poll0')
    ACC2 = 16
    def red_write(u, reg):
        out = [f"""
        s_xor_b32 {s(sT5)}, {s(sW)}, {3-u}
        s_mul_i32 {s(sT5)}, {s(sT5)}, 12288
        v_add_u32 v10, {s(sT5)}, v11
        """]
        out += [f"ds_write_b128 v10, {v(reg+4*i,4)} offset:{u*4096+i*1024}" for i in range(4)]
        return out
    def red_read(RED, barname):
        out = [f"""
        s_mul_i32 {s(sT5)}, {s(sW)}, 12288
        v_add_u32 v10, {s(sT5)}, v11
        """, ('BSYNC', barname)]
        out += [f"ds_read_b128 {v(RED[i>>2]+4*(i&3),4)}, v10 offset:{i*1024}" for i in range(12)]
        return out
    def final(F, RED, XH, OUTR):
        for i in range(8): G(f"v_pk_add_f32 {v(RED[0]+2*i,2)}, {v(RED[0]+2*i,2)}, {v(RED[1]+2*i,2)}")
        for i in range(8):
            G(f"""
            v_lshlrev_b32 {v(RED[1]+2*i)}, 16, {v(XH+i)}
            v_and_b32 {v(RED[1]+2*i+1)}, 0xffff0000, {v(XH+i)}
            """)
        for i in range(8): G(f"v_pk_add_f32 {v(RED[2]+2*i,2)}, {v(RED[2]+2*i,2)}, {v(RED[1]+2*i,2)}")
        for i in range(8): G(f"v_pk_add_f32 {v(RED[0]+2*i,2)}, {v(RED[0]+2*i,2)}, {v(RED[2]+2*i,2)}")
        for i in range(8): G(f"v_pk_add_f32 {v(F+2*i,2)}, {v(F+2*i,2)}, {v(RED[0]+2*i,2)}")
        for i in range(8): G(f"v_cvt_pk_bf16_f32 {v(OUTR+i)}, {v(F+2*i)}, {v(F+2*i+1)}")
    afr = lambda rs, j: 144 + 32*rs + 4*j
    loads = [f"buffer_load_dwordx4 {v(afr(rs,j),4)}, {v(12+rs)}, {s(SWS,4)}, {s(K2[j])} offen sc1" for rs in range(2) for j in range(8)]
    n = 8; skew = 4
    mf = lambda u, rs, cs, j: f"v_mfma_f32_32x32x16_bf16 {v(ACC2+16*u,16)}, {v(WO_FR[j]+4*cs,4)}, {v(afr(rs,j),4)}, {'0' if j == 0 else v(ACC2+16*u,16)}"
    seq = []
    for j in range(n): seq += [mf(0, 0, 0, j), mf(1, 0, 1, j)]
    for j in range(n + skew):
        if j < n: seq.append(mf(2, 1, 0, j))
        if j >= skew: seq.append(mf(3, 1, 1, j - skew))
    RED = [144, 160, 208]
    extra = {}
    i = 2*n + 1
    for it in red_write(0, ACC2) + red_write(1, ACC2+16): extra.setdefault(i, []).append(it); i += 1
    last2 = max(i for i, m in enumerate(seq) if m.startswith(f"v_mfma_f32_32x32x16_bf16 {v(ACC2+32,16)}"))
    w2 = red_write(2, ACC2+32)
    extra.setdefault(last2 + 1, []).extend(w2[:3]); extra.setdefault(last2 + 2, []).extend(w2[3:])
    extra.setdefault(last2 + 3, []).extend(red_read(RED, 'red2'))
    li = 0
    for x in loads[:cfg.pre2]: G(x); li += 1
    tb = []; ti = 0
    for i, m in enumerate(seq):
        G(m)
        if li < len(loads):
            if True:
                G(loads[li]); li += 1
                if li == len(loads): G.bar('a2iss')
        elif ti < len(tb):
            G.item(tb[ti]); ti += 1
            if ti < len(tb): G.item(tb[ti]); ti += 1
        if cfg.fine == 2 and i in (0, 9, 16, last2, last2 + 2): G.stamp(f'm{i}')
        G.items(extra.get(i, []))
        if cfg.fine == 2 and i in (last2 + 3, len(seq) - 1): G.stamp(f'e{i}')
    while ti < len(tb): G.item(tb[ti]); ti += 1
    OUTR = 232
    G(f"v_mov_b64 v[16:17], 0\nv_mov_b64 v[18:19], 0")
    final(ACC2 + 48, RED, XR, OUTR)
    sm, sq = 16, 17
    if cfg.fine == 2: G.stamp('fin')
    stores(G, [f"buffer_store_dwordx4 {v(OUTR,4)}, {v(vL16)}, {s(SWS,4)}, {s(sO0)} offen",
               f"buffer_store_dwordx4 {v(OUTR+4,4)}, {v(vL16)}, {s(SWS,4)}, {s(sO0)} offen offset:1024"], "ST2")
    for i in range(8):
        G(f"v_dot2c_f32_bf16 {v(sm+2*(i&1))}, {s(sONE)}, {v(OUTR+i)}")
        G(f"v_dot2c_f32_bf16 {v(sq+2*(i&1))}, {v(OUTR+i)}, {v(OUTR+i)}")
    G(f"""
    v_add_f32 {v(sm)}, {v(sm)}, {v(sm+2)}
    v_add_f32 {v(sq)}, {v(sq)}, {v(sq+2)}
    v_permlane32_swap_b32 {v(sm)}, {v(sq)}
    v_add_f32 {v(sm)}, {v(sm)}, {v(sq)}
    """)
    stores(G, [f"buffer_store_dword {v(sm)}, v14, {s(SWS,4)}, {s(sO1)} offen"], "ST2B")
    G.stamp('p2')
    signal(G, 1, vFE)
    G.stamp('sig1')
    nP3, nWD, nWT, nXA = 20, 23, 24, 1
    G(f"""
    s_mul_i32 {s(sT0)}, {s(sW)}, {8192 - 2048}
    s_add_u32 {s(sT0)}, {s(sT0)}, {WDT}
    s_add_u32 {s(sWB)}, {s(sWB)}, {s(sT0)}
    v_add_u32 {v(nWT)}, {s(sT0)}, {v(vWT)}
    v_add_u32 {v(nWT+1)}, {s(sT0)}, {v(vWT+1)}
    v_mov_b32 {v(nP3)}, {v(vP3)}
    v_mov_b32 {v(nP3+1)}, {v(vP3+1)}
    v_mov_b32 {v(nP3+2)}, {v(vP3+2)}
    v_mov_b32 {v(nWD)}, {v(vWD)}
    v_mov_b32 {v(nXA)}, {v(vXA)}
    s_lshl_b32 {s(sT4)}, {s(sW)}, 12
    s_add_u32 {s(sT4)}, {s(sT4)}, {L.ST_OFF}
    """)
    G.sv = (26, 28)
    poll(G, 1, vFE)
    G.stamp('poll1')
    def a_dma(c):
        r = (c % 3) * 16384
        g = [f"""
        s_xor_b32 {s(sB0)}, {s(sROT3)}, {lch(c)}
        s_lshl_b32 {s(sB0)}, {s(sB0)}, 12
        s_add_u32 {s(sB0)}, {s(sB0)}, {s(sA3)}
        s_lshl_b32 {s(sB1)}, {s(sW)}, 12
        s_add_u32 m0, {s(sB1)}, {r}
        s_nop 0
        buffer_load_dwordx4 v11, {s(SWS,4)}, {s(sB0)} offen sc1 lds
        """]
        for i in range(1, 4): g.append(f"buffer_load_dwordx4 v11, {s(SWS,4)}, {s(sB0)} offen offset:{1024*i} sc1 lds")
        g.append(('TAG', f"a3_{c}"))
        return g
    G.items(a_dma(0) + a_dma(1))
    G.wait_tag('a3_0')
    G.bar('a3_0')
    G.stamp('a3_0')
    G.items(a_dma(2))
    SL = 32
    for i in range(4): G(f"buffer_load_dwordx4 {v(SL+4*i,4)}, v11, {s(SWS,4)}, {s(sT4)} offen offset:{1024*i} sc1")
    for l in PFORD[cfg.npf:]: G.items(w3_dma(l, W3SLOT[l], nP3))
    NR = 4
    WD_SLOT = [80 + 8*j for j in range(22)]
    wd = lambda j: wt_dma(SWD, sKO + j, (j % NR) * 2048, f"wd_{j}", nWD)
    wd_issue_period = {}
    st3 = []
    for i in range(4): st3.append(f"v_add_f32 {v(SL+4*i)}, {v(SL+4*i)}, {v(SL+4*i+2)}\nv_add_f32 {v(SL+4*i+1)}, {v(SL+4*i+1)}, {v(SL+4*i+3)}")
    st3.append(f"""
    v_add_f32 {v(SL)}, {v(SL)}, {v(SL+4)}
    v_add_f32 {v(SL+1)}, {v(SL+1)}, {v(SL+5)}
    v_add_f32 {v(SL+8)}, {v(SL+8)}, {v(SL+12)}
    v_add_f32 {v(SL+9)}, {v(SL+9)}, {v(SL+13)}
    v_add_f32 {v(SL)}, {v(SL)}, {v(SL+8)}
    v_add_f32 {v(SL+1)}, {v(SL+1)}, {v(SL+9)}
    v_mov_b32 {v(SL+2)}, {v(SL)}
    v_mov_b32 {v(SL+3)}, {v(SL+1)}
    v_permlane32_swap_b32 {v(SL)}, {v(SL+2)}
    v_permlane32_swap_b32 {v(SL+1)}, {v(SL+3)}
    v_add_f32 {v(SL)}, {v(SL)}, {v(SL+2)}
    v_add_f32 {v(SL+1)}, {v(SL+1)}, {v(SL+3)}
    v_mul_f32 {v(SL)}, 0x3b000000, {v(SL)}
    v_mul_f32 {v(SL+1)}, 0x3b000000, {v(SL+1)}
    v_fma_f32 {v(SL+1)}, -{v(SL)}, {v(SL)}, {v(SL+1)}
    v_max_f32 {v(SL+1)}, 0, {v(SL+1)}
    v_add_f32 {v(SL+1)}, 0x3727c5ac, {v(SL+1)}
    v_rcp_f32 {v(SL+1)}, {v(SL+1)}
    v_sub_f32 {v(SL)}, 0, {v(SL)}
    s_lshl_b32 {s(sT5)}, {s(sW)}, 8
    s_add_u32 {s(sT5)}, {s(sT5)}, {STATS3}
    v_and_b32 v2, 31, v0
    v_lshlrev_b32 v2, 3, v2
    v_add_u32 v2, {s(sT5)}, v2
    ds_write_b64 v2, {v(SL,2)}
    """)
    G.items(st3)
    wd_next = 0; wd_iss = 0
    def wd_cycle(period, force=False):
        nonlocal wd_next, wd_iss
        did = []
        while wd_next < wd_iss:
            j = wd_next
            lead = 2 if j < NR else 1
            if not force and period - wd_issue_period[j] < lead: break
            G.wait_tag(f"wd_{j}")
            for x in wt_reads(WD_SLOT[j], (j % NR) * 2048, nWT): G(x)
            did.append(j); wd_next += 1
        if did:
            G.lwait_all()
            for j in did:
                if wd_iss < 22:
                    G.items(wd(wd_iss)); wd_issue_period[wd_iss] = period; wd_iss += 1
    for c in range(7):
        st = 4*c + 3
        G.wait_tag(f"a3_{c+1}")
        for l, b in W3BAR.items():
            if b == st and f"w3_{l}" in G.tags: G.wait_tag(f"w3_{l}")
        G.lwait_all()
        G.bar(f'p3_{st}')
        if c + 3 < 8: G.items(a_dma(c + 3))
        heavy = False
        for l in (5, 6, 7):
            if 4*(l-5) + 3 == st: G.items(w3_dma(l, W3SLOT[l], nP3)); heavy = True
        if c == cfg.wd0:
            for j in range(NR): G.items(wd(j)); wd_issue_period[j] = c + 1
            wd_iss = NR
        elif not (heavy and cfg.skipwd): wd_cycle(c + 1)
    G.stamp('p3ld')
    while wd_next < 22: wd_cycle(99, force=True)
    G.lwait_all()
    G.stamp('wd')
    G.sv = (15, 8)
    G(f"""
    s_mul_i32 {s(sT0)}, {s(sW)}, 24576
    s_add_u32 {s(sT0)}, {s(sT0)}, {RING4}
    v_add_u32 v12, {s(sT0)}, v11
    """)
    G.bar('p4start')
    U = [16, 32, 48, 16]
    AB = 64; NAB = 4
    n = 22; skew = cfg.skew
    ops = []
    for j in range(n): ops += [(0, 0, j, j, True), (1, 1, j, j, False)]
    for j in range(n + skew):
        if j < n: ops.append((2, 0, j, 22 + j, True))
        if j >= skew: ops.append((3, 1, j - skew, 22 + j - skew, True))
    rd_list = [(k, o[3]) for k, o in enumerate(ops) if o[4]]
    slot_of = {}
    for r, (k, q) in enumerate(rd_list): slot_of[k] = r % NAB
    for k, o in enumerate(ops):
        if not o[4]: slot_of[k] = slot_of[k-1]
    barred = -1
    nr = 0
    def issue_read():
        nonlocal nr, barred
        k, q = rd_list[nr]
        while barred < q // 4:
            barred += 1
            G.lwait_all() if False else None
            G.bar(f"p4_{barred}")
        G(f"ds_read_b128 {v(AB + 4*(nr % NAB), 4)}, v12 offset:{(q % 24) * 1024}")
        nr += 1
    RED = [80, 96, 112]
    XH = 128; OUTR = 136
    extra = {}
    w0 = red_write(0, U[0])
    extra.setdefault(2*n, []).extend(w0[:2]); extra.setdefault(2*n + 1, []).append(w0[2]); extra.setdefault(2*n + 2, []).append(w0[3]); extra.setdefault(2*n + 3, []).append(w0[4])
    i = 2*n + skew + 2
    for it in red_write(1, U[1]): extra.setdefault(i, []).append(it); i += 2
    last2 = max(k for k, o in enumerate(ops) if o[0] == 2)
    w2 = red_write(2, U[2])
    extra.setdefault(last2 + 1, []).extend(w2[:3]); extra.setdefault(last2 + 2, []).extend(w2[3:])
    extra.setdefault(last2 + 3, []).extend(red_read(RED, 'red4'))
    extra.setdefault(last2 - 6, []).append(f"""
    buffer_load_dwordx4 {v(XH,4)}, v11, {s(SWS,4)}, {s(sO0)} offen sc1
    buffer_load_dwordx4 {v(XH+4,4)}, v11, {s(SWS,4)}, {s(sO0)} offen offset:1024 sc1
    """)
    for _ in range(NAB - 1): issue_read()
    G.stamp('p4_0')
    rdone = 0
    for k, (u, cs, j, q, fresh) in enumerate(ops):
        if u == 3 and j == 0: G.lwait(G.w0idx)
        G(f"v_mfma_f32_32x32x16_bf16 {v(U[u],16)}, {v(WD_SLOT[j]+4*cs,4)}, {v(AB+4*slot_of[k],4)}, {'0' if j == 0 else v(U[u],16)}")
        if fresh: rdone += 1
        nxt_fresh = (k + 1 == len(ops)) or ops[k+1][4]
        while nr < len(rd_list) and nr - NAB < rdone - (0 if nxt_fresh else 1): issue_read()
        G.items(extra.get(k, []))
        if k == 2*n + 3: G.w0idx = G.lg
    final(U[3], RED, XH, OUTR)
    G(f"""
    buffer_store_dwordx4 {v(OUTR,4)}, {v(nXA)}, {s(SOUT,4)}, 0 offen
    buffer_store_dwordx4 {v(OUTR+4,4)}, {v(nXA)}, {s(SOUT,4)}, 0 offen offset:16
    """)
    G.stamp('end')

def main(path, cfg):
    A = Asm()
    A.raw(HDR.rstrip('\n'))
    A.raw(f"; @launch grid=(256,1,1) block=(512,1,1) lds={LDS_TOTAL}")
    A.raw('.amdgcn_target "amdgcn-amd-amdhsa--gfx950"\n.text')
    n = NAME + "_kernel"
    A.raw(f".globl {n}\n.p2align 8\n.type {n},@function\n{n}:")
    A(f"""
    s_cmp_ge_u32 s2, 256
    s_cbranch_scc1 K_END
    s_load_dwordx16 s[64:79], s[0:1], 0
    s_load_dwordx4 s[80:83], s[0:1], 64
    s_memrealtime {s(sTS,2)}
    s_getreg_b32 {s(sXCC)}, hwreg(HW_REG_XCC_ID, 0, 4)
    v_lshrrev_b32 v1, 6, v0
    v_and_b32 v0, 63, v0
    v_readfirstlane_b32 {s(sW8)}, v1
    s_and_b32 {s(sXCD)}, s2, 7
    s_lshr_b32 {s(sIDX)}, s2, 3
    s_lshr_b32 {s(sRBL)}, {s(sIDX)}, 3
    s_and_b32 {s(sCB)}, {s(sIDX)}, 7
    s_lshl_b32 {s(sRB)}, {s(sXCD)}, 2
    s_add_u32 {s(sRB)}, {s(sRB)}, {s(sRBL)}
    s_and_b32 {s(sM)}, {s(sIDX)}, 15
    s_lshr_b32 {s(sG)}, {s(sRB)}, 1
    s_mov_b32 {s(sONE)}, 0x3f803f80
    s_and_b32 {s(sW)}, {s(sW8)}, 3
    s_cmp_lt_u32 {s(sW8)}, 4
    s_cbranch_scc1 PROG_A
    """)
    GB = Gen(cfg, A, "B_"); prog_b(GB)
    A("s_endpgm")
    A.label("PROG_A")
    GA = Gen(cfg, A, "A_"); prog_a(GA)
    A.label("K_END")
    A("s_endpgm")
    assert GA.bars == GB.bars, (GA.bars, GB.bars)
    A.raw('.section .rodata,"a"\n.p2align 6')
    A.raw(f""".amdhsa_kernel {n}
  .amdhsa_next_free_vgpr 256
  .amdhsa_next_free_sgpr 102
  .amdhsa_accum_offset 256
  .amdhsa_group_segment_fixed_size 0
  .amdhsa_kernarg_size 80
  .amdhsa_user_sgpr_count 2
  .amdhsa_user_sgpr_kernarg_segment_ptr 1
  .amdhsa_system_sgpr_workgroup_id_x 1
.end_amdhsa_kernel""")
    open(path, 'w').write(A.finalize())
    print("barriers:", len(GA.bars)); print("stampsA:", GA.names); print("stampsB:", GB.names)

if __name__ == '__main__':
    cfg = Cfg()
    for a_ in sys.argv[2:]:
        k, val = a_.split('=')
        setattr(cfg, k, int(val))
    main(sys.argv[1], cfg)
```

```python
import sys, re
from asmlib import *
import layout as L

NAME = "sequential_preLN__sliding_local_dilated__glu_gated_reglu__prompt"
HDR = open('cdna_kernels/' + NAME + '.s.ref').read().split('; Override launch')[0]

class Cfg:
    stamps = 0
    probe = ''
    force_slow = 0
    touch = 0
    skew = 6
    pre2 = 7
    gap = 64
    prioA = 0
    prioB = 0
    wd_early = 1
    fine = 0
    skipwd = 1
    wd0 = 3
    ndma = 9
    ndma7 = 4
    rotm = 1
    rots = 2
    abl = 0
    bflush = 5
    gapB = 32
    npf = 3
    l345 = 2

SX, SW1, SWO, SWD, SOUT, SWS, SDBG, SMU, sST = 4, 8, 12, 16, 20, 24, 28, 32, 36
sXCD, sIDX, sRBL, sCB, sW, sG, sRB, sM = 40, 41, 42, 43, 44, 45, 46, 47
sONE, sMODE = 48, 49
sT0, sT1, sT2, sT3, sT4, sT5 = 50, 51, 52, 53, 54, 55
sB0, sCNT = 56, 57
sEXH = 58
sMX, sMH, sMW, sSX = 60, 61, 62, 63
sKO = 64
sMWL, sB1 = 86, 87
sROT3, sW3S, sW3G, sA3, sWB, sO0, sO1 = 88, 89, 90, 91, 92, 93, 94
sXCC = 95
sTS = 96
sTB, sTB1, sW8, sSW = 98, 99, 100, 101
sMW0 = 3
sR2, sW1K = 98, 99

class Gen:
    def __init__(self, cfg, A, pfx):
        self.A = A; self.cfg = cfg; self.pfx = pfx
        self.vm = 0; self.tags = {}; self.nstamp = 0; self.names = []
        self.t = 0; self.tm = 0; self.nv = 0
        self.q = []; self.cur = []; self.inbg = False; self.bg_on = True
        self.lg = 0; self.ldone = 0; self.lpend = {}; self.vdone = 0; self.vpend = {}
        self.bars = []
        self.dummy = None
        self.probed = False
        self.sv = (253, 254)
    def _autowait(self, ins):
        regs = [r for r in list(ins.rd) + list(ins.wr) if r[0] in 'va']
        nl = max([self.lpend.get(r, 0) for r in regs] + [0])
        nvm = max([self.vpend.get(r, 0) for r in regs] + [0])
        parts = []
        if nvm > self.vdone:
            parts.append(f"vmcnt({min(self.vm - nvm, 63)})"); self.vdone = nvm
        if nl > self.ldone:
            parts.append(f"lgkmcnt({min(self.lg - nl, 15)})"); self.ldone = nl
        if parts:
            self.A("s_waitcnt " + " ".join(parts)); self.t += 4
    def _note_wait(self, ln):
        m = re.search(r'vmcnt\((\d+)\)', ln)
        if m: self.vdone = max(self.vdone, self.vm - int(m.group(1)))
        m = re.search(r'lgkmcnt\((\d+)\)', ln)
        if m: self.ldone = max(self.ldone, self.lg - int(m.group(1)))
    def lwait_all(self):
        if self.ldone < self.lg: self._emit("s_waitcnt lgkmcnt(0)")
    def lwait(self, idx):
        if self.ldone < idx: self._emit(f"s_waitcnt lgkmcnt({min(self.lg - idx, 15)})")
    def _emit(self, ln):
        ins = Ins(ln)
        if ins.cls in ('valu', 'mfma', 'lds', 'vmem'): self._autowait(ins)
        self.A(ln)
        op = ins.op
        if op == 's_waitcnt': self._note_wait(ln)
        if ins.cls == 'lds':
            self.lg += 1
            for r in ins.wr: self.lpend[r] = self.lg
        if ins.cls == 'vmem':
            for r in ins.wr:
                if r != self.dummy: self.vpend[r] = self.vm + 1
        if op.startswith('v_mfma'):
            st = max(self.t, self.tm); self.t = st + 8; self.tm = st + (32 if '32x32' in op else 16)
        elif ins.cls == 'vmem':
            self.vm += 1
            self.t = max(self.t, self.nv) + 8; self.nv = self.t + (self.cfg.gapB if self.pfx == 'B_' else self.cfg.gap)
        elif ins.cls == 'lds': self.t += 10
        else: self.t += 4
    def __call__(self, t):
        for ln in t.strip().split('\n'):
            ln = ln.strip()
            if ln: self._emit(ln)
        self.pump()
    def _next(self):
        while not self.cur and self.q: self.cur = list(self.q.pop(0))
        return self.cur.pop(0) if self.cur else None
    def _has(self): return bool(self.cur) or any(self.q)
    def _one(self):
        it = self._next()
        self.inbg = True
        self.item(it)
        while self.cur and isinstance(self.cur[0], tuple) and self.cur[0][0] == 'TAG': self.item(self.cur.pop(0))
        self.inbg = False
    def pump(self):
        if self.inbg or not self.bg_on: return
        while self._has() and self.t >= self.nv: self._one()
    def bg(self, group): self.q.append(list(group))
    def flush(self, tag=None):
        while self._has() and (tag is None or tag not in self.tags): self._one()
    def tag(self, name): self.tags[name] = self.vm
    def wait_tag(self, name):
        if name not in self.tags: self.flush(name)
        if self.tags[name] <= self.vdone: return
        self._emit(f"s_waitcnt vmcnt({min(self.vm - self.tags[name], 63)})")
    def bar(self, name):
        if self.cfg.fine and name.startswith({1: 'c', 2: 'zz', 3: 'p3_', 4: 'p4_'}[self.cfg.fine]): self.stamp('@' + name)
        self.bars.append(name); self._emit("s_barrier"); self.nv = self.t
        if self.cfg.fine == 3 and name.startswith('p3_') and self.pfx == 'A_': self.stamp('>' + name)
    def bsync(self, name):
        off = CNT + (0 if name == 'red2' else 4)
        self.bg_on = False
        self(f"""
        v_mov_b32 v2, {off}
        v_mov_b32 v3, 1
        s_mov_b64 exec, 1
        ds_add_u32 v2, v3
        s_mov_b64 exec, -1
        s_mov_b32 {s(sCNT)}, 0
        """)
        self.A.label("BS_" + name)
        self.A(f"""
        ds_read_b32 v3, v2
        s_add_u32 {s(sCNT)}, {s(sCNT)}, 1
        s_waitcnt lgkmcnt(0)
        v_readfirstlane_b32 {s(sT5)}, v3
        s_cmp_ge_u32 {s(sCNT)}, 0x100000
        s_cbranch_scc1 BS_{name}_D
        s_cmp_lt_u32 {s(sT5)}, 4
        s_cbranch_scc1 BS_{name}
        """)
        self.A.label(f"BS_{name}_D")
        self.ldone = self.lg
        self.bg_on = True
    def items(self, lst):
        for it in lst: self.item(it)
    def stamp(self, name=''):
        if self.cfg.probe == self.pfx + name:
            self(f"s_memrealtime s[36:37]\ns_waitcnt lgkmcnt(0)"); self.probed = True
        if not self.cfg.stamps: return
        i = self.nstamp; self.nstamp += 1; self.names.append(name)
        a_, d_ = self.sv
        self(f"""
        {'s_memtime' if self.cfg.stamps == 2 else 's_memrealtime'} {s(sTS,2)}
        s_waitcnt lgkmcnt(0)
        v_mov_b32 v{d_}, {s(sTS)}
        v_mov_b32 v{d_+1}, {s(sTS+1)}
        v_mov_b32 v{a_}, 0
        buffer_store_dwordx2 v[{d_}:{d_+1}], v{a_}, {s(sST,4)}, 0 offen offset:{i*8}
        """)
    def item(self, it):
        if isinstance(it, tuple):
            if it[0] == 'WAIT': self.wait_tag(it[1])
            elif it[0] == 'TAG': self.tag(it[1])
            elif it[0] == 'BG': self.bg(it[1])
            elif it[0] == 'BAR': self.lwait_all(); self.bar(it[1])
            elif it[0] == 'BSYNC': self.bsync(it[1])
        else: self(it)
    def spread(self, main, fill):
        n, m = len(main), len(fill); fi = 0
        for i, x in enumerate(main):
            self(x)
            while fi < m and fi * n < (i + 1) * m:
                self.item(fill[fi]); fi += 1
        while fi < m: self.item(fill[fi]); fi += 1
    def front(self, main, fill, per=1):
        fi = 0
        for x in main:
            self(x)
            for _ in range(per):
                if fi < len(fill): self.item(fill[fi]); fi += 1
        while fi < len(fill): self.item(fill[fi]); fi += 1

XCH = 10240
WRING = 8 * XCH
WSLOT = 24576
S0, S1, S2 = WRING, WRING + WSLOT, WRING + 2 * WSLOT
STATS1 = WRING + 3 * WSLOT
STATS3 = STATS1 + 1024
CSX = STATS3 + 1024
WDT = 49152
HHS = 88 * 1024
RING4 = 49152
LDS_TOTAL = 163840
SG_OFF = L.FL_OFF + 2048
CNT = STATS1 + 1000
STG = STATS1 + 896
vL = 0

def srd(dst, src, size):
    return f"""
    s_mov_b32 {s(dst)}, {s(src)}
    s_and_b32 {s(dst+1)}, {s(src+1)}, 0xffff
    s_mov_b32 {s(dst+2)}, {size}
    s_mov_b32 {s(dst+3)}, 0x20000
    """
def common_srds(cfg):
    t = f"""
    s_mul_i32 {s(sT0)}, {s(sG)}, {L.GSTRIDE}
    s_add_u32 {s(SWS)}, s82, {s(sT0)}
    s_addc_u32 {s(SWS+1)}, s83, 0
    s_and_b32 {s(SWS+1)}, {s(SWS+1)}, 0xffff
    s_mov_b32 {s(SWS+2)}, {L.GSTRIDE}
    s_mov_b32 {s(SWS+3)}, 0x20000
    s_bitcmp1_b32 {s(sW)}, 0
    s_cselect_b32 {s(SMU)}, s74, s72
    s_cselect_b32 {s(SMU+1)}, s75, s73
    s_and_b32 {s(SMU+1)}, {s(SMU+1)}, 0xffff
    s_mov_b32 {s(SMU+2)}, {512*2752}
    s_mov_b32 {s(SMU+3)}, 0x20000
    """ + srd(SDBG, 80, 256)
    if cfg.stamps:
        t += f"""
        s_lshl_b32 {s(sT0)}, s2, 11
        s_lshl_b32 {s(sT1)}, {s(sW8)}, 8
        s_add_u32 {s(sT0)}, {s(sT0)}, {s(sT1)}
        s_add_u32 {s(sT0)}, {s(sT0)}, {L.STAMP_OFF}
        s_add_u32 {s(sST)}, s82, {s(sT0)}
        s_addc_u32 {s(sST+1)}, s83, 0
        s_and_b32 {s(sST+1)}, {s(sST+1)}, 0xffff
        s_mov_b32 {s(sST+2)}, 256
        s_mov_b32 {s(sST+3)}, 0x20000
        """
    return t

def stores(G, lst, label):
    A = G.A; label = G.pfx + label
    for x in lst: G._autowait(Ins(x))
    A(f"""
    s_cmp_lg_u32 {s(sMODE)}, 0
    s_cbranch_scc1 {label}_SLOW
    """)
    for x in lst: A(x)
    A(f"s_branch {label}_DONE")
    A.label(f"{label}_SLOW")
    for x in lst: A((x + " sc1") if x.startswith('buffer_store') else x)
    A.label(f"{label}_DONE")
    G.vm += sum(1 for x in lst if x.startswith('buffer_'))

def signal(G, phase, vFE):
    G.bg_on = False
    G(f"""
    v_add_u32 v2, {phase}, {v(vFE)}
    v_mov_b32 v3, {v(vFE+1)}
    s_lshl_b32 {s(sT0)}, {s(sM)}, 2
    s_add_u32 {s(sT0)}, {s(sT0)}, {s(sW)}
    s_lshl_b32 {s(sT0)}, {s(sT0)}, 3
    s_add_u32 {s(sT0)}, {s(sT0)}, {L.FL_OFF + phase*512}
    v_mov_b32 v4, {s(sT0)}
    s_waitcnt vmcnt(0)
    s_mov_b64 exec, 1
    """)
    stores(G, [f"buffer_store_dwordx2 v[2:3], v4, {s(SWS,4)}, 0 offen"], f"SIG{phase}")
    G.bg_on = True; G.nv = G.t
    G("s_mov_b64 exec, -1")

def poll(G, phase, vFE):
    A = G.A
    if phase == 0:
        A(f"""
        v_and_b32 v4, 31, v0
        s_and_b32 {s(sT0)}, {s(sM)}, 8
        s_lshl_b32 {s(sT0)}, {s(sT0)}, 2
        v_add_u32 v4, {s(sT0)}, v4
        v_lshlrev_b32 v4, 3, v4
        """)
    else:
        A("v_lshlrev_b32 v4, 3, v0")
    A(f"""
    v_add_u32 v2, {phase}, {v(vFE)}
    v_mov_b32 v3, {v(vFE+1)}
    s_mov_b32 {s(sCNT)}, 0
    s_mov_b32 {s(sT0)}, {L.FL_OFF + phase*512}
    """)
    A.label(f"POLL{phase}")
    A(f"""
    buffer_load_dwordx2 v[6:7], v4, {s(SWS,4)}, {s(sT0)} offen sc1
    s_add_u32 {s(sCNT)}, {s(sCNT)}, 1
    s_waitcnt vmcnt(0)
    v_cmp_ne_u64 vcc, v[6:7], v[2:3]
    s_cmp_ge_u32 {s(sCNT)}, 20000
    s_cbranch_scc1 POLL{phase}_DONE
    s_cbranch_vccnz POLL{phase}
    """)
    A.label(f"POLL{phase}_DONE")
    G.vdone = G.vm; G.nv = G.t

def regdecode(G, vFE, vaddr):
    A = G.A; p = G.pfx
    G._autowait(Ins(f"v_mov_b32 {v(vFE)}, {v(vFE+1)}"))
    G(f"s_mov_b32 {s(sCNT)}, 0")
    A.label(p + "REGPOLL")
    A(f"""
    v_readfirstlane_b32 {s(sT0)}, {v(vFE)}
    v_readfirstlane_b32 {s(sT1)}, {v(vFE+1)}
    s_and_b32 {s(sT2)}, {s(sT0)}, 31
    s_cmp_eq_u32 {s(sT2)}, 16
    s_cbranch_scc1 {p}REGOK
    s_add_u32 {s(sCNT)}, {s(sCNT)}, 1
    s_cmp_ge_u32 {s(sCNT)}, 20000
    s_cbranch_scc1 {p}REGOK
    buffer_load_dwordx2 {v(vFE,2)}, {v(vaddr)}, {s(SDBG,4)}, 0 offen offset:128 sc1
    s_waitcnt vmcnt(0)
    s_branch {p}REGPOLL
    """)
    A.label(p + "REGOK")
    G(f"""
    s_bfe_u32 {s(sT2)}, {s(sT0)}, {5 | (7 << 16)}
    s_bfe_u32 {s(sT3)}, {s(sT0)}, {12 | (10 << 16)}
    s_mul_i32 {s(sT2)}, {s(sT2)}, {s(sT2)}
    s_lshl_b32 {s(sT3)}, {s(sT3)}, 4
    s_cmp_lg_u32 {s(sT2)}, {s(sT3)}
    s_cselect_b32 {s(sMODE)}, 1, {1 if G.cfg.force_slow else 0}
    s_and_b32 {s(sT0)}, {s(sT0)}, 0xffc00000
    s_or_b32 {s(sT0)}, {s(sT0)}, 0x5a5a0
    v_mov_b32 {v(vFE)}, {s(sT0)}
    v_mov_b32 {v(vFE+1)}, {s(sT1)}
    """)

def lch(l): return ((l >> 1) & 1) * 4 + (l >> 2) * 2 + (l & 1)
def w3_setup(vP3, t0, t1, t2):
    out = f"""
    s_mul_i32 {s(sT0)}, {s(sM)}, 192
    s_mov_b32 {s(sT1)}, 0x15555556
    s_and_b32 {s(sT2)}, {s(sW)}, 1
    s_lshr_b32 {s(sT4)}, {s(sW)}, 1
    s_mul_i32 {s(sW3S)}, {s(sT2)}, 12288
    s_mul_i32 {s(sT5)}, {s(sT4)}, 6144
    s_add_u32 {s(sW3S)}, {s(sW3S)}, {s(sT5)}
    s_mul_i32 {s(sW3G)}, {s(sT4)}, {32*2752}
    s_and_b32 {s(sROT3)}, {s(sG)}, 1
    s_lshl_b32 {s(sROT3)}, {s(sROT3)}, 2
    s_lshl_b32 {s(sT2)}, {s(sT2)}, 1
    """
    for i in range(3):
        out += f"""
        v_add_u32 {v(t0)}, {64*i}, {v(vL)}
        v_mul_hi_u32 {v(t1)}, {v(t0)}, {s(sT1)}
        v_mul_u32_u24 {v(t2)}, 12, {v(t1)}
        v_sub_u32 {v(t2)}, {v(t0)}, {v(t2)}
        v_mul_u32_u24 {v(t1)}, 2752, {v(t1)}
        v_add_u32 {v(t1)}, {s(sT0)}, {v(t1)}
        v_subrev_u32 {v(t1)}, {1024*i}, {v(t1)}
        v_subrev_u32 {v(t2)}, {s(sT2)}, {v(t2)}
        v_add_u32 {v(t0)}, 12, {v(t2)}
        v_cmp_gt_i32 vcc, 0, {v(t2)}
        v_cndmask_b32 {v(t2)}, {v(t2)}, {v(t0)}, vcc
        v_lshl_add_u32 {v(vP3+i)}, {v(t2)}, 4, {v(t1)}
        """
    return out
def w3_dma(c, base, vP3):
    g = [f"""
    s_xor_b32 {s(sB0)}, {s(sROT3)}, {lch(c)}
    s_mul_i32 {s(sB0)}, {s(sB0)}, {64*2752}
    s_add_u32 {s(sB0)}, {s(sB0)}, {s(sW3G)}
    s_add_u32 m0, {s(sW3S)}, {base}
    s_add_u32 {s(sB1)}, {s(sB0)}, {16*2752}
    buffer_load_dwordx4 {v(vP3+0)}, {s(SMU,4)}, {s(sB0)} offen lds
    """]
    g.append(f"buffer_load_dwordx4 {v(vP3+1)}, {s(SMU,4)}, {s(sB0)} offen offset:1024 lds")
    g.append(f"buffer_load_dwordx4 {v(vP3+2)}, {s(SMU,4)}, {s(sB0)} offen offset:2048 lds")
    g.append(f"""
    s_add_u32 m0, {s(sW3S)}, {base + 3072}
    s_nop 0
    buffer_load_dwordx4 {v(vP3+0)}, {s(SMU,4)}, {s(sB1)} offen lds
    """)
    g.append(f"buffer_load_dwordx4 {v(vP3+1)}, {s(SMU,4)}, {s(sB1)} offen offset:1024 lds")
    g.append(f"buffer_load_dwordx4 {v(vP3+2)}, {s(SMU,4)}, {s(sB1)} offen offset:2048 lds")
    g.append(('TAG', f"w3_{c}"))
    return g
def p4_table():
    tb = [f"""
    s_mul_i32 {s(sT0)}, {s(sRBL)}, 11
    s_lshr_b32 {s(sT0)}, {s(sT0)}, 1
    s_lshl_b32 {s(sT0)}, {s(sT0)}, 12
    s_lshl_b32 {s(sT1)}, {s(sW)}, 10
    """]
    for j in range(22):
        tb.append(f"""
        s_add_u32 {s(sKO+j)}, {s(sT0)}, {s(sT1)}
        s_add_u32 {s(sT0)}, {s(sT0)}, 4096
        s_cmp_eq_u32 {s(sT0)}, {22*4096}
        s_cselect_b32 {s(sT0)}, 0, {s(sT0)}
        """)
    return tb
def ks_addr(a_base, tile_stride, vL16, d0, d1):
    return f"""
    s_and_b32 {s(sT1)}, {s(sRB)}, 1
    s_lshl_b32 {s(sT1)}, {s(sT1)}, 1
    s_lshr_b32 {s(sT0)}, {s(sW)}, 1
    s_add_u32 {s(sT2)}, {s(sT1)}, {s(sT0)}
    s_xor_b32 {s(sT1)}, {s(sT2)}, 1
    s_mul_i32 {s(sT1)}, {s(sT1)}, {tile_stride}
    s_mul_i32 {s(sT2)}, {s(sT2)}, {tile_stride}
    s_add_u32 {s(sT1)}, {s(sT1)}, {a_base}
    s_add_u32 {s(sT2)}, {s(sT2)}, {a_base}
    v_add_u32 {v(d0)}, {s(sT1)}, {v(vL16)}
    v_add_u32 {v(d1)}, {s(sT2)}, {v(vL16)}
    """
W3SLOT = {0: S2, 1: S0, 2: S1, 3: S2, 4: S0, 5: S1, 6: S2, 7: S0}
W3BAR = {3: 3, 4: 7, 5: 11, 6: 15, 7: 19}
NB4 = 11
PFORD = [2, 3, 4]

def prog_a(G):
    A = G.A; cfg = G.cfg
    t0, t1, t2, t3, t4 = 1, 2, 3, 4, 5
    vXa0, vXa1, vWa, vS1, vS2, vOA, vRA = 8, 9, 10, 11, 12, 13, 14
    FA, FB = 16, 48
    ACC = 80
    vL16, vFE, vW3o, vW3s, vA01, vA23, vP3 = 148, 150, 149, 152, 153, 154, 155
    BIAS = 160
    G.sv = (158, 146)
    Qa = lambda T: ACC + 4 * T
    Ka = lambda T: ACC + 20 + 4 * T
    Va = lambda T: ACC + 40 + 4 * T
    if cfg.prioA: G(f"s_setprio {cfg.prioA}")
    G(f"""
    v_lshlrev_b32 {v(vL16)}, 4, v0
    s_mul_i32 {s(sT0)}, {s(sCB)}, 10
    s_mul_i32 {s(sT1)}, {s(sW)}, 3
    s_add_u32 {s(sT0)}, {s(sT0)}, {s(sT1)}
    s_lshl_b32 {s(sT5)}, {s(sRB)}, 6
    s_mov_b32 {s(SX+2)}, {2048*1024}
    s_mov_b32 {s(SX+3)}, 0x20000
    """)
    for k in range(3):
        G(f"""
        s_add_u32 {s(sT1)}, {s(sT0)}, {k}
        s_min_u32 {s(sT1)}, {s(sT1)}, 79
        s_and_b32 {s(sT2)}, {s(sT1)}, 15
        s_lshr_b32 {s(sT3)}, {s(sT1)}, 5
        s_lshl_b32 {s(sT3)}, {s(sT3)}, 5
        s_lshl_b32 {s(sT4)}, {s(sT2)}, 1
        s_add_u32 {s(sT3)}, {s(sT3)}, {s(sT4)}
        s_bfe_u32 {s(sT4)}, {s(sT1)}, {4 | (1 << 16)}
        s_add_u32 {s(sT3)}, {s(sT3)}, {s(sT4)}
        s_add_u32 {s(sT3)}, {s(sT3)}, {s(sT5)}
        s_add_u32 {s(sT2)}, {s(sT2)}, {s(sT5)}
        s_sub_i32 {s(sT2)}, {s(sT2)}, 16
        s_max_i32 {s(sT2)}, {s(sT2)}, 0
        s_cmp_ge_u32 {s(sT1)}, 64
        s_cselect_b32 {s(sT3)}, {s(sT2)}, {s(sT3)}
        s_lshl_b32 {s(sMX+k)}, {s(sT3)}, 10
        """)
    XS = 208
    G(f"""
    s_waitcnt lgkmcnt(0)
    s_mov_b32 {s(SX)}, s64
    s_and_b32 {s(SX+1)}, s65, 0xffff
    buffer_load_dwordx4 {v(XS,4)}, {v(vL16)}, {s(SX,4)}, {s(sMX)} offen
    buffer_load_dwordx4 {v(XS+4,4)}, {v(vL16)}, {s(SX,4)}, {s(sMX+1)} offen
    buffer_load_dwordx4 {v(XS+8,4)}, {v(vL16)}, {s(SX,4)}, {s(sMX+2)} offen
    v_lshrrev_b32 {v(t2)}, 4, {v(vL)}
    v_and_b32 {v(t0)}, 15, {v(vL)}
    v_lshrrev_b32 {v(t1)}, 1, {v(t0)}
    v_xor_b32 {v(t1)}, {v(t1)}, {v(t2)}
    v_lshlrev_b32 {v(t1)}, 4, {v(t1)}
    v_lshl_add_u32 {v(vXa0)}, {v(t0)}, 7, {v(t1)}
    v_xor_b32 {v(vXa1)}, 64, {v(vXa0)}
    v_mul_u32_u24 {v(vWa)}, 3072, {v(t2)}
    v_bfe_u32 {v(t1)}, {v(vL)}, 2, 2
    v_lshl_add_u32 {v(vWa)}, {v(t1)}, 7, {v(vWa)}
    v_lshrrev_b32 {v(t1)}, 1, {v(t1)}
    v_and_b32 {v(t3)}, 1, {v(t2)}
    v_lshl_or_b32 {v(t1)}, {v(t3)}, 1, {v(t1)}
    v_xor_b32 {v(t1)}, {s(sW)}, {v(t1)}
    v_lshl_add_u32 {v(vWa)}, {v(t1)}, 5, {v(vWa)}
    v_and_b32 {v(t1)}, 3, {v(vL)}
    v_lshl_add_u32 {v(vWa)}, {v(t1)}, 3, {v(vWa)}
    v_add_u32 {v(vWa)}, {WRING}, {v(vWa)}
    v_lshlrev_b32 {v(vS1)}, 2, {v(t0)}
    v_add_u32 {v(vS1)}, {STATS1}, {v(vS1)}
    v_lshlrev_b32 {v(vS2)}, 4, {v(t2)}
    v_add_u32 {v(vS2)}, {STATS1}, {v(vS2)}
    v_lshrrev_b32 {v(t1)}, 3, {v(vL)}
    v_mul_u32_u24 {v(t1)}, {XCH}, {v(t1)}
    v_and_b32 {v(t3)}, 7, {v(vL)}
    v_lshl_add_u32 {v(t1)}, {v(t3)}, 4, {v(t1)}
    v_mov_b32 {v(FA)}, {s(sONE)}
    v_mov_b32 {v(FA+1)}, {s(sONE)}
    v_mov_b32 {v(FA+2)}, {s(sONE)}
    v_mov_b32 {v(FA+3)}, {s(sONE)}
    ds_write_b128 {v(t1)}, {v(FA,4)} offset:8192
    """)
    NEG = "0xf149f2ca"
    G(f"""
    v_mov_b32 {v(t4)}, {NEG}
    v_lshlrev_b32 {v(t1)}, 2, {v(t2)}
    v_sub_u32 {v(t3)}, {v(t0)}, {v(t1)}
    """)
    for r in range(4):
        G(f"""
        v_subrev_u32 {v(t1)}, {r}, {v(t3)}
        v_cmp_ge_u32 vcc, 7, {v(t1)}
        v_cmp_ge_i32 {s(sT4,2)}, -9, {v(t1)}
        v_cndmask_b32 {v(BIAS+r)}, {v(t4)}, 0, vcc
        v_cndmask_b32 {v(BIAS+4+r)}, {v(t4)}, 0, {s(sT4,2)}
        """)
    G(f"""
    s_cmp_eq_u32 {s(sRB)}, 0
    s_cselect_b32 {s(sT0)}, 64, 2
    v_lshlrev_b32 {v(t1)}, 2, {v(t2)}
    v_lshlrev_b32 {v(t3)}, 1, {v(t0)}
    v_sub_u32 {v(t3)}, {v(t1)}, {v(t3)}
    v_subrev_u32 {v(t3)}, {s(sT0)}, {v(t3)}
    v_cmp_le_i32 vcc, 0, {v(t3)}
    v_cmp_le_i32 {s(sT4,2)}, -2, {v(t3)}
    v_mov_b32 {v(BIAS+9)}, {v(t4)}
    v_mov_b32 {v(BIAS+11)}, {v(t4)}
    v_mov_b32 {v(BIAS+12)}, {v(t4)}
    v_mov_b32 {v(BIAS+14)}, {v(t4)}
    v_cndmask_b32 {v(BIAS+8)}, {v(t4)}, 0, vcc
    v_cndmask_b32 {v(BIAS+10)}, {v(t4)}, 0, {s(sT4,2)}
    v_cndmask_b32 {v(BIAS+13)}, {v(t4)}, 0, vcc
    v_cndmask_b32 {v(BIAS+15)}, {v(t4)}, 0, {s(sT4,2)}
    s_waitcnt lgkmcnt(0)
    """)
    G(common_srds(cfg))
    G.stamp('start')
    G(w3_setup(vP3, t0, t1, t2))
    G(f"""
    s_mov_b32 {s(sT4)}, {S0}
    s_lshl_b32 {s(sT0)}, {s(sW)}, 5
    s_lshr_b32 {s(sT1)}, {s(sW)}, 1
    s_lshl_b32 {s(sT1)}, {s(sT1)}, 5
    s_add_u32 {s(sT1)}, {s(sT1)}, 128
    v_lshrrev_b32 {v(t0)}, 5, {v(vL)}
    v_bfe_u32 {v(t1)}, {v(vL)}, 2, 2
    v_lshl_add_u32 {v(t0)}, {v(t0)}, 4, {v(t1)}
    v_mul_u32_u24 {v(t0)}, 192, {v(t0)}
    v_bfe_u32 {v(t1)}, {v(vL)}, 4, 1
    v_mul_u32_u24 {v(t2)}, 12288, {v(t1)}
    v_add3_u32 {v(t0)}, {v(t0)}, {v(t2)}, {s(sT4)}
    v_and_b32 {v(t2)}, 3, {v(vL)}
    v_lshlrev_b32 {v(t2)}, 3, {v(t2)}
    v_lshl_add_u32 {v(t2)}, {v(t1)}, 5, {v(t2)}
    v_add3_u32 {v(vW3o)}, {v(t0)}, {v(t2)}, {s(sT0)}
    v_add_u32 {v(t2)}, {s(sT1)}, {v(t2)}
    v_subrev_u32 {v(t3)}, 192, {v(t2)}
    v_cmp_le_u32 vcc, 192, {v(t2)}
    v_cndmask_b32 {v(t2)}, {v(t2)}, {v(t3)}, vcc
    v_add_u32 {v(vW3s)}, {v(t0)}, {v(t2)}
    s_and_b32 {s(sT0)}, {s(sW)}, 1
    s_lshl_b32 {s(sT0)}, {s(sT0)}, 13
    v_add_u32 {v(vA01)}, {s(sT0)}, {v(vL16)}
    v_xor_b32 {v(vA23)}, 0x2000, {v(vA01)}
    s_and_b32 {s(sO0)}, {s(sRB)}, 1
    s_lshl_b32 {s(sO0)}, {s(sO0)}, 16
    s_lshl_b32 {s(sT1)}, {s(sCB)}, 12
    s_add_u32 {s(sO0)}, {s(sO0)}, {s(sT1)}
    s_lshl_b32 {s(sT1)}, {s(sW)}, 10
    s_add_u32 {s(sO0)}, {s(sO0)}, {s(sT1)}
    s_add_u32 {s(sO0)}, {s(sO0)}, {L.O_OFF}
    s_add_u32 {s(sO1)}, {s(sO0)}, 32768
    v_and_b32 {v(vOA)}, 15, v0
    v_bfe_u32 v3, v0, 4, 1
    v_lshl_add_u32 {v(vOA)}, v3, 5, {v(vOA)}
    v_lshrrev_b32 v3, 5, v0
    v_lshl_add_u32 {v(vOA)}, v3, 4, {v(vOA)}
    v_lshlrev_b32 {v(vOA)}, 4, {v(vOA)}
    s_lshl_b32 {s(sT0)}, {s(sG)}, 3
    v_mov_b32 {v(vRA)}, {s(sT0)}
    """)
    G.items(p4_table())
    SA = 224
    for i in range(3): G(f"v_mov_b64 {v(SA+2*i,2)}, 0")
    for j in range(4):
        for k in range(3):
            G(f"v_dot2c_f32_bf16 {v(SA+2*k)}, {s(sONE)}, {v(XS+4*k+j)}\nv_dot2c_f32_bf16 {v(SA+2*k+1)}, {v(XS+4*k+j)}, {v(XS+4*k+j)}")
    for dpp in ("quad_perm:[1,0,3,2]", "quad_perm:[2,3,0,1]", "row_half_mirror", "row_mirror"):
        for i in range(6): G(f"v_add_f32_dpp {v(SA+i)}, {v(SA+i)}, {v(SA+i)} {dpp} row_mask:0xf bank_mask:0xf")
    for sw in ("v_permlane16_swap_b32", "v_permlane32_swap_b32"):
        for i in range(6): G(f"v_mov_b32 {v(SA+8+i)}, {v(SA+i)}")
        for i in range(6): G(f"{sw} {v(SA+i)}, {v(SA+8+i)}")
        for i in range(6): G(f"v_add_f32 {v(SA+i)}, {v(SA+i)}, {v(SA+8+i)}")
    for i in range(6): G(f"v_mul_f32 {v(SA+i)}, 0x3b000000, {v(SA+i)}")
    for k in range(3): G(f"v_fma_f32 {v(SA+2*k+1)}, -{v(SA+2*k)}, {v(SA+2*k)}, {v(SA+2*k+1)}")
    for k in range(3): G(f"v_max_f32 {v(SA+2*k+1)}, 0, {v(SA+2*k+1)}")
    for k in range(3): G(f"v_add_f32 {v(SA+2*k+1)}, 0x3727c5ac, {v(SA+2*k+1)}")
    for k in range(3): G(f"v_rsq_f32 {v(SA+2*k+1)}, {v(SA+2*k+1)}")
    G(f"""
    s_mul_i32 {s(sT0)}, {s(sW)}, 24
    s_add_u32 {s(sT0)}, {s(sT0)}, {STG}
    v_mov_b32 v2, {s(sT0)}
    """)
    for k in range(3): G(f"v_mul_f32 {v(SA+2*k)}, -{v(SA+2*k)}, {v(SA+2*k+1)}")
    for k in range(3): G(f"ds_write_b64 v2, {v(SA+2*k,2)} offset:{8*k}")
    G(f"v_mov_b32 v2, {CNT}\nv_mov_b64 v[4:5], 0\nds_write_b64 v2, v[4:5]")
    G.lwait_all()
    def reads(F, kh):
        xs = [f"ds_read_b128 {v(F+4*T,4)}, {v(vXa1 if kh else vXa0)} offset:{T*2048}" for T in range(5)]
        ws = [f"ds_read_b64_tr_b16 {v(F+20+4*sct+2*half,2)}, {v(vWa)} offset:{kh*12288+sct*1024+half*512}" for sct in range(3) for half in range(2)]
        return ws[:2] + xs[:1] + ws[2:4] + xs[1:2] + ws[4:] + xs[2:]
    def mfmas(F, first=False):
        out = []
        for T in range(5):
            x = v(F+4*T, 4)
            c = lambda r: "0" if first else v(r, 4)
            out.append(f"v_mfma_f32_16x16x32_bf16 {v(Qa(T),4)}, {v(F+20,4)}, {x}, {c(Qa(T))}")
            out.append(f"v_mfma_f32_16x16x32_bf16 {v(Ka(T),4)}, {v(F+24,4)}, {x}, {c(Ka(T))}")
            out.append(f"v_mfma_f32_16x16x32_bf16 {v(Va(T),4)}, {x}, {v(F+28,4)}, {c(Va(T))}")
        return out
    def adv(i):
        d = WSLOT if (i + 1) % 3 else (-2 * WSLOT) & 0xffffffff
        return [f"v_add_u32 {v(vWa)}, {d}, {v(vWa)}", f"v_add_u32 {v(vXa0)}, {XCH}, {v(vXa0)}", f"v_add_u32 {v(vXa1)}, {XCH}, {v(vXa1)}"]
    G.bar('c0')
    G.stamp('c0')
    for x in reads(FA, 0): G(x)
    for i in range(8):
        extra = [f"buffer_load_dwordx2 {v(vFE,2)}, {v(vRA)}, {s(SDBG,4)}, 0 offen offset:128 sc1"] if i == 6 else []
        G.front(mfmas(FA, i == 0), reads(FB, 1) + (adv(i) if i < 7 else []) + extra)
        G.lwait_all()
        G.bar(f'c{i+1}' if i < 7 else 'stats')
        LA = 16; LBa = 28; LBb = 208
        if i < 7: G.front(mfmas(FB), reads(FA, 0))
        else:
            sr = [f"ds_read2_b32 {v(LA+2*T,2)}, {v(vS1)} offset0:{T*16} offset1:{T*16+128}" for T in range(5)]
            for T in range(5): sr += [f"ds_read_b128 {v(LBa+4*T,4)}, {v(vS2)} offset:{T*64}", f"ds_read_b128 {v(LBb+4*T,4)}, {v(vS2)} offset:{T*64+512}"]
            m = mfmas(FB)
            G.front(m[12:] + m[:12], sr)
    G.stamp('p1loop')
    CSQ, CSK, CSV = 228, 232, 236
    TMP = 140
    regdecode(G, vFE, vRA)
    for r in range(4):
        G(f"v_mov_b32_dpp {v(CSQ+r)}, {v(Qa(4)+r)} row_newbcast:0 row_mask:0xf bank_mask:0xf")
        G(f"v_mov_b32_dpp {v(CSK+r)}, {v(Ka(4)+r)} row_newbcast:0 row_mask:0xf bank_mask:0xf")
    G(f"""
    v_mov_b32 {v(CSV)}, {v(Va(4))}
    v_mov_b32 {v(CSV+1)}, {v(Va(4))}
    v_permlane16_swap_b32 {v(CSV)}, {v(CSV+1)}
    v_mov_b32 {v(CSV+1)}, {v(CSV)}
    v_permlane32_swap_b32 {v(CSV)}, {v(CSV+1)}
    v_mov_b32 {v(CSV+1)}, {v(CSV)}
    """)
    QP = 176; KP = 184; VP = 196
    vpos = {2: 0, 0: 2, 4: 4, 1: 6, 3: 8}
    def norm_qk(acc, cs, T, dst, tmp):
        ab = v(LA+2*T, 2)
        for hlf in range(2): G(f"v_pk_mul_f32 {v(tmp+2*hlf,2)}, {v(cs+2*hlf,2)}, {ab} op_sel:[0,1] op_sel_hi:[1,1]")
        for hlf in range(2): G(f"v_pk_fma_f32 {v(acc+2*hlf,2)}, {v(acc+2*hlf,2)}, {ab}, {v(tmp+2*hlf,2)} op_sel:[0,0,0] op_sel_hi:[1,0,1]")
        for hlf in range(2): G(f"v_cvt_pk_bf16_f32 {v(dst+hlf)}, {v(acc+2*hlf)}, {v(acc+2*hlf+1)}")
    for T in (4, 0, 1, 2, 3):
        norm_qk(Ka(T), CSK, T, KP+2*T, TMP)
        if T < 4: norm_qk(Qa(T), CSQ, T, QP+2*T, 240)
    for T in range(5):
        acc = Va(T); tmp = TMP if T & 1 else 240
        for hlf in range(2): G(f"v_pk_mul_f32 {v(tmp+2*hlf,2)}, {v(LBb+4*T+2*hlf,2)}, {v(CSV,2)}")
        for hlf in range(2): G(f"v_pk_fma_f32 {v(acc+2*hlf,2)}, {v(acc+2*hlf,2)}, {v(LBa+4*T+2*hlf,2)}, {v(tmp+2*hlf,2)}")
    SC = lambda T: ACC + 8*T
    ONE4 = 244
    vcv = [f"v_cvt_pk_bf16_f32 {v(VP+vpos[T]+hlf)}, {v(Va(T)+2*hlf)}, {v(Va(T)+2*hlf+1)}" for T in range(5) for hlf in range(2)]
    vcv += [f"v_mov_b32 {v(ONE4+i)}, {s(sONE)}" for i in range(4)] + [f"s_mov_b32 {s(sT0)}, 0x3eb8aa3b"]
    sm = []
    for T in range(4):
        prev = T - 2 if T >= 2 else 4
        bprev = BIAS + 4 if T >= 2 else BIAS + 8 + 4*T
        sm.append(f"v_mfma_f32_16x16x16_bf16 {v(SC(T),4)}, {v(KP+2*T,2)}, {v(QP+2*T,2)}, {v(BIAS,4)}")
        sm.append(f"v_mfma_f32_16x16x16_bf16 {v(SC(T)+4,4)}, {v(KP+2*prev,2)}, {v(QP+2*T,2)}, {v(bprev,4)}")
    G.spread(sm, vcv)
    MX = 16; M2 = 20
    PP = 32; OA = 48; LS = 208
    for T in range(4):
        b = SC(T)
        G(f"""
        v_max3_f32 {v(MX+T)}, {v(b)}, {v(b+1)}, {v(b+2)}
        v_max3_f32 {v(M2+T)}, {v(b+3)}, {v(b+4)}, {v(b+5)}
        """)
    for T in range(4): G(f"v_max3_f32 {v(MX+T)}, {v(MX+T)}, {v(SC(T)+6)}, {v(SC(T)+7)}")
    for T in range(4): G(f"v_max_f32 {v(MX+T)}, {v(MX+T)}, {v(M2+T)}")
    G(f"""
    v_permlane16_swap_b32 {v(MX)}, {v(MX+1)}
    v_permlane16_swap_b32 {v(MX+2)}, {v(MX+3)}
    v_max_f32 {v(MX)}, {v(MX)}, {v(MX+1)}
    v_max_f32 {v(MX+2)}, {v(MX+2)}, {v(MX+3)}
    v_permlane32_swap_b32 {v(MX)}, {v(MX+2)}
    v_max_f32 {v(MX)}, {v(MX)}, {v(MX+2)}
    v_mul_f32 {v(MX)}, {s(sT0)}, {v(MX)}
    v_mov_b32 {v(MX+2)}, {v(MX)}
    v_permlane32_swap_b32 {v(MX)}, {v(MX+2)}
    v_mov_b32 {v(MX+1)}, {v(MX)}
    v_mov_b32 {v(MX+3)}, {v(MX+2)}
    v_permlane16_swap_b32 {v(MX)}, {v(MX+1)}
    v_permlane16_swap_b32 {v(MX+2)}, {v(MX+3)}
    """)
    win = {2: 0, 0: 2, 1: 4, 3: 6}
    for T in range(4):
        b = SC(T)
        for i in range(8): G(f"v_fma_f32 {v(b+i)}, {v(b+i)}, {s(sT0)}, -{v(MX+T)}")
        for i in range(8): G(f"v_exp_f32 {v(b+i)}, {v(b+i)}")
        first, second = (b, b+4) if T in (0, 2) else (b+4, b)
        G(f"""
        v_cvt_pk_bf16_f32 {v(PP+4*T)}, {v(first)}, {v(first+1)}
        v_cvt_pk_bf16_f32 {v(PP+4*T+1)}, {v(first+2)}, {v(first+3)}
        v_cvt_pk_bf16_f32 {v(PP+4*T+2)}, {v(second)}, {v(second+1)}
        v_cvt_pk_bf16_f32 {v(PP+4*T+3)}, {v(second+2)}, {v(second+3)}
        """)
        if T >= 1:
            U = T - 1
            G(f"v_rcp_f32 {v(LS+4*U)}, {v(LS+4*U)}")
        G(f"""
        v_mfma_f32_16x16x32_bf16 {v(LS+4*T,4)}, {v(ONE4,4)}, {v(PP+4*T,4)}, 0
        v_mfma_f32_16x16x32_bf16 {v(OA+4*T,4)}, {v(VP+win[T],4)}, {v(PP+4*T,4)}, 0
        """)
    OP = 64
    def fin(T):
        q, p = T >> 1, T & 1
        for h in range(2): G(f"v_pk_mul_f32 {v(OA+4*T+2*h,2)}, {v(OA+4*T+2*h,2)}, {v(LS+4*T,2)} op_sel:[0,0] op_sel_hi:[1,0]")
        G(f"""
        v_cvt_pk_bf16_f32 {v(OP+4*q+2*p)}, {v(OA+4*T)}, {v(OA+4*T+1)}
        v_cvt_pk_bf16_f32 {v(OP+4*q+2*p+1)}, {v(OA+4*T+2)}, {v(OA+4*T+3)}
        """)
    fin(0); fin(1); fin(2)
    G(f"""
    v_permlane32_swap_b32 {v(OP)}, {v(OP+2)}
    v_permlane32_swap_b32 {v(OP+1)}, {v(OP+3)}
    v_rcp_f32 {v(LS+12)}, {v(LS+12)}
    """)
    fin(3)
    G(f"""
    v_permlane32_swap_b32 {v(OP+4)}, {v(OP+6)}
    v_permlane32_swap_b32 {v(OP+5)}, {v(OP+7)}
    """)
    stores(G, [f"buffer_store_dwordx4 {v(OP+4*q,4)}, {v(vOA)}, {s(SWS,4)}, {s(sO0+q)} offen" for q in range(2)], "ST1")
    G.stamp('p1epi')
    signal(G, 0, vFE)
    G.stamp('sig0')
    G.bar('w3a')
    ACC = 16; CSA = 112; SEL = 120; AB = 124; W3R = 160
    G.sv = (15, 6)
    def w3_reads(l):
        out = []; blk = l % 3; base = W3SLOT[l]
        for s4 in range(4):
            for k, va in enumerate((vW3o, vW3s)):
                for half in range(2):
                    o = (base - S0) + (32*(s4 >> 1) + 8*(s4 & 1) + 4*half) * 192
                    out.append(f"ds_read_b64_tr_b16 {v(W3R + 32*blk + 8*s4 + 4*k + 2*half, 2)}, {v(va)} offset:{o}")
        return out
    def w3_colsum(l):
        blk = l % 3
        return [f"v_mfma_f32_16x16x32_bf16 {v(CSA+4*k,4)}, {v(W3R+32*blk+8*s4+4*k,4)}, {v(SEL,4)}, {v(CSA+4*k,4)}" for s4 in range(4) for k in range(2)]
    for x in w3_reads(0): G(x)
    G(f"""
    v_lshrrev_b32 v2, 4, v0
    v_xor_b32 v2, v2, v0
    v_and_b32 v2, 1, v2
    v_cmp_eq_u32 vcc, 0, v2
    v_mov_b32 v3, {s(sONE)}
    v_cndmask_b32 {v(SEL)}, 0, v3, vcc
    v_cndmask_b32 {v(SEL+1)}, 0, v3, vcc
    v_cndmask_b32 {v(SEL+2)}, 0, v3, vcc
    v_cndmask_b32 {v(SEL+3)}, 0, v3, vcc
    """)
    for i in range(4): G(f"v_mov_b64 {v(CSA+2*i,2)}, 0")
    G.front(w3_colsum(0), w3_reads(1), 2)
    for x in w3_colsum(1): G(x)
    G.lwait_all()
    G.stamp('svc')
    G.bar('a2iss')
    for l in PFORD[:cfg.npf]: G.items(w3_dma(l, W3SLOT[l], vP3))
    G.stamp('pf')
    G.wait_tag('w3_2')
    G.bar('a3_0')
    G.stamp('a3_0')
    NAB = 6
    def aread(n):
        st, sg = n >> 2, n & 3
        c, s4 = st >> 2, st & 3
        r = (c % 3) * 16384 + s4 * 1024
        return f"ds_read_b128 {v(AB+4*(n % NAB),4)}, {v(vA01 if sg < 2 else vA23)} offset:{r + (sg & 1)*4096}"
    LEAD = 4
    nread = 0
    for n in range(LEAD): G(aread(n)); nread += 1
    fills = {st: [] for st in range(34)}; cs_at = {st: [] for st in range(34)}
    for l, b in list(W3BAR.items()) + [(2, -1)]:
        rd = w3_reads(l); cs = w3_colsum(l)
        fills[b+1] += rd[0:6]; fills[b+2] += rd[6:12]; fills[b+3] += rd[12:16]
        cs_at[b+2] += cs[0:2]; cs_at[b+3] += cs[2:6]; cs_at[b+4] += cs[6:8]
    for st in range(32):
        c, s4 = st >> 2, st & 3
        if s4 == 3 and st < 31:
            for l, b in W3BAR.items():
                if b == st and f"w3_{l}" in G.tags: G.wait_tag(f"w3_{l}")
            G.lwait_all()
            G.bar(f'p3_{st}')
        w = W3R + 32*(c % 3) + 8*s4
        fl = list(fills[st]); fi = 0
        for sg in range(4):
            n = 4*st + sg
            fr = v(AB+4*(n % NAB), 4)
            ms = [f"v_mfma_f32_32x32x16_bf16 {v(ACC+16*sg,16)}, {v(w,4)}, {fr}, {'0' if st == 0 else v(ACC+16*sg,16)}"]
            if sg < 2: ms.append(f"v_mfma_f32_32x32x16_bf16 {v(ACC+64+16*sg,16)}, {v(w+4,4)}, {fr}, {'0' if st == 0 else v(ACC+64+16*sg,16)}")
            for k, m in enumerate(ms):
                G(m)
                if k == 0 and nread < 128 and nread <= n + LEAD: G(aread(nread)); nread += 1
                if fi < len(fl): G(fl[fi]); fi += 1
        while fi < len(fl): G(fl[fi]); fi += 1
        for x in cs_at[st]: G(x)
    G.stamp('p3loop')
    G(f"""
    v_and_b32 v2, 1, v0
    v_lshrrev_b32 v3, 4, v0
    v_lshlrev_b32 v2, 6, v2
    v_lshl_add_u32 v2, v3, 4, v2
    s_lshl_b32 {s(sT5)}, {s(sW)}, 8
    s_add_u32 {s(sT5)}, {s(sT5)}, {CSX}
    v_add_u32 v2, {s(sT5)}, v2
    v_lshrrev_b32 v3, 5, v0
    v_lshlrev_b32 v3, 4, v3
    v_add_u32 v3, {s(sT5)}, v3
    ds_write_b128 v2, {v(CSA,4)}
    ds_write_b128 v2, {v(CSA+4,4)} offset:128
    s_and_b32 {s(sT0)}, {s(sW)}, 1
    s_lshl_b32 {s(sT0)}, {s(sT0)}, 9
    s_add_u32 {s(sT0)}, {s(sT0)}, {STATS3}
    v_and_b32 v13, 31, v0
    v_lshlrev_b32 v13, 3, v13
    v_add_u32 v13, {s(sT0)}, v13
    v_xor_b32 v14, 0x200, v13
    ds_read_b64 v[160:161], v13
    ds_read_b64 v[162:163], v13 offset:256
    ds_read_b64 v[164:165], v14
    ds_read_b64 v[166:167], v14 offset:256
    """)
    CS0, CS1 = 176, 192
    for tile, CSo in ((0, CS0), (1, CS1)):
        for i in range(4): G(f"ds_read_b128 {v(CSo+4*i,4)}, v3 offset:{tile*128 + (i>>1)*64 + (i&1)*32}")
    def unit_epi(U, stp, CSo):
        st = v(stp, 2)
        for h in range(8): G(f"v_pk_fma_f32 {v(U+2*h,2)}, {v(CSo+2*h,2)}, {st}, {v(U+2*h,2)} op_sel:[0,0,0] op_sel_hi:[1,0,1]")
        for i in range(8): G(f"v_max_f32 {v(U+i)}, 0, {v(U+i)}")
        for h in range(4): G(f"v_pk_mul_f32 {v(U+8+2*h,2)}, {v(U+8+2*h,2)}, {st} op_sel:[0,1] op_sel_hi:[1,1]")
        for h in range(4): G(f"v_pk_mul_f32 {v(U+2*h,2)}, {v(U+2*h,2)}, {v(U+8+2*h,2)}")
        for h in range(4): G(f"v_cvt_pk_bf16_f32 {v(U+h)}, {v(U+2*h)}, {v(U+2*h+1)}")
    G(f"""
    s_mul_i32 {s(sT0)}, {s(sM)}, 6144
    s_add_u32 {s(sT0)}, {s(sT0)}, {L.HH_OFF}
    s_and_b32 {s(sT1)}, {s(sW)}, 1
    s_mul_i32 {s(sT1)}, {s(sT1)}, {2*HHS}
    s_add_u32 {s(sT2)}, {s(sT0)}, {s(sT1)}
    s_sub_u32 {s(sT3)}, {s(sT0)}, {s(sT1)}
    s_add_u32 {s(sT3)}, {s(sT3)}, {2*HHS}
    s_lshl_b32 {s(sT0)}, {s(sW)}, 10
    v_add_u32 v8, {s(sT0)}, {v(vL16)}
    v_add_u32 v9, {HHS}, v8
    s_lshr_b32 {s(sT0)}, {s(sW)}, 1
    s_lshl_b32 {s(sT0)}, {s(sT0)}, 10
    s_add_u32 {s(sT0)}, {s(sT0)}, 4096
    v_add_u32 v10, {s(sT0)}, {v(vL16)}
    v_add_u32 v11, {HHS}, v10
    """)
    for sg in range(4): unit_epi(ACC + 16*sg, 160 + 2*sg, CS0)
    A(f"""
    s_lshl_b32 {s(sT4)}, {s(sM)}, 2
    s_add_u32 {s(sT4)}, {s(sT4)}, {s(sW)}
    s_cmp_ge_u32 {s(sT4)}, 58
    s_cbranch_scc1 A_ST3_DONE
    """)
    stores(G, [f"buffer_store_dwordx4 {v(ACC+16*sg,4)}, {v(8 + (sg & 1))}, {s(SWS,4)}, {s(sT2 if sg < 2 else sT3)} offen" for sg in range(4)], "ST3")
    for sg in range(2): unit_epi(ACC + 64 + 16*sg, 160 + 2*sg, CS1)
    A(f"""
    s_cmp_ge_u32 {s(sM)}, 14
    s_cbranch_scc1 A_ST3Z_DONE
    """)
    stores(G, [f"buffer_store_dwordx4 {v(ACC+64+16*sg,4)}, {v(10 + sg)}, {s(SWS,4)}, {s(sT2)} offen" for sg in range(2)], "ST3Z")
    A(f"""
    s_cmp_lg_u32 {s(sM)}, 15
    s_cbranch_scc1 A_ST3P_DONE
    v_mov_b64 {v(ACC,2)}, 0
    v_mov_b64 {v(ACC+2,2)}, 0
    s_mul_i32 {s(sT0)}, {s(sW)}, {HHS}
    s_add_u32 {s(sT0)}, {s(sT0)}, {L.HH_OFF + 86*1024}
    """)
    stores(G, [f"buffer_store_dwordx4 {v(ACC,4)}, {v(vL16)}, {s(SWS,4)}, {s(sT0)} offen offset:{1024*i}" for i in range(2)], "ST3P")
    G.stamp('p3epi')
    signal(G, 2, vFE)
    G.stamp('sig2')
    G(ks_addr(L.HH_OFF, HHS, vL16, 12, 13))
    G(f"""
    s_mul_i32 {s(sWB)}, {s(sW)}, 24576
    s_add_u32 {s(sWB)}, {s(sWB)}, {RING4}
    """)
    G.bar('p4start')
    poll(G, 2, vFE)
    G.stamp('poll2')
    def batch(b):
        for q in range(4*b, 4*b + 4):
            rs, j = q // 22, q % 22
            G(f"""
            s_add_u32 m0, {s(sWB)}, {(q % 24) * 1024}
            buffer_load_dwordx4 {v(12+rs)}, {s(SWS,4)}, {s(sKO+j)} offen sc1 lds
            """)
        G.tag(f"b4_{b}")
    nb = 0
    for b in range(3): batch(b); nb += 1
    for b in range(NB4):
        G.wait_tag(f"b4_{b}")
        G.bar(f"p4_{b}")
        while nb < NB4 and (nb < 6 and nb <= b + 4 or nb - 6 + 3 <= b): batch(nb); nb += 1
    G.stamp('end')

def prog_b(G):
    A = G.A; cfg = G.cfg
    t0, t1, t2, t3, t4 = 1, 2, 3, 4, 5
    vXo0, vXo1, vXh, vWo, vTL, vSa, vSh, vRA = 8, 9, 10, 11, 12, 13, 14, 15
    SF = 16; SACC = 28
    vP3, vWD, vWT, vFE, vL16, vXA = 240, 243, 244, 246, 248, 249
    G.dummy = ('v', 250)
    G.sv = (251, 252)
    if cfg.prioB: G(f"s_setprio {cfg.prioB}")
    G(f"""
    s_lshl_b32 {s(sT0)}, {s(sRB)}, 6
    s_lshr_b32 {s(sT1)}, {s(sW)}, 1
    s_lshl_b32 {s(sT1)}, {s(sT1)}, 5
    s_add_u32 {s(sT1)}, {s(sT1)}, {s(sT0)}
    s_and_b32 {s(sT2)}, {s(sW)}, 1
    s_add_u32 {s(sT1)}, {s(sT1)}, {s(sT2)}
    v_lshrrev_b32 {v(t0)}, 3, {v(vL)}
    v_and_b32 {v(t1)}, 7, {v(vL)}
    v_lshrrev_b32 {v(t2)}, 4, {v(vL)}
    v_xor_b32 {v(t3)}, {v(t1)}, {v(t2)}
    v_lshlrev_b32 {v(t4)}, 1, {v(t0)}
    v_add_u32 {v(t4)}, {s(sT1)}, {v(t4)}
    v_lshlrev_b32 {v(t4)}, 10, {v(t4)}
    v_lshl_add_u32 {v(vXo0)}, {v(t3)}, 4, {v(t4)}
    v_xor_b32 {v(t3)}, 4, {v(t3)}
    v_lshl_add_u32 {v(vXo1)}, {v(t3)}, 4, {v(t4)}
    v_add_u32 {v(vXo1)}, {0x4000 - 1024}, {v(vXo1)}
    s_lshl_b32 {s(sT2)}, {s(sW)}, 2
    v_add_u32 {v(t3)}, {s(sT2)}, {v(t0)}
    v_lshrrev_b32 {v(t4)}, 1, {v(t3)}
    v_and_b32 {v(t4)}, 7, {v(t4)}
    v_xor_b32 {v(t4)}, {v(t4)}, {v(t1)}
    s_sub_u32 {s(sT3)}, {s(sT0)}, 16
    v_add_u32 {v(t3)}, {s(sT3)}, {v(t3)}
    v_max_i32 {v(t3)}, 0, {v(t3)}
    v_lshlrev_b32 {v(t3)}, 10, {v(t3)}
    v_lshl_add_u32 {v(vXh)}, {v(t4)}, 4, {v(t3)}
    s_mov_b32 {s(sEXH)}, -1
    s_cmp_eq_u32 {s(sW)}, 0
    s_cselect_b32 {s(sEXH)}, 0xffffff00, {s(sEXH)}
    s_mov_b32 {s(sEXH+1)}, 0
    s_lshl_b32 {s(sT2)}, {s(sW)}, 3
    v_add_u32 {v(t3)}, {s(sT2)}, {v(t0)}
    v_mul_u32_u24 {v(t3)}, 3072, {v(t3)}
    v_and_b32 {v(t4)}, 1, {v(t2)}
    v_lshlrev_b32 {v(t4)}, 1, {v(t4)}
    s_and_b32 {s(sT2)}, {s(sW)}, 1
    s_lshl_b32 {s(sT2)}, {s(sT2)}, 2
    v_or_b32 {v(t4)}, {s(sT2)}, {v(t4)}
    v_xor_b32 {v(t4)}, {v(t4)}, {v(t1)}
    v_lshl_add_u32 {v(vWo)}, {v(t4)}, 4, {v(t3)}
    s_lshl_b32 {s(sT2)}, {s(sCB)}, 7
    v_add_u32 {v(vWo)}, {s(sT2)}, {v(vWo)}
    s_lshl_b32 {s(sT4)}, {s(sIDX)}, 2
    s_add_u32 {s(sT4)}, {s(sT4)}, {s(sW)}
    s_lshl_b32 {s(sTB)}, {s(sT4)}, 11
    s_mul_i32 {s(sTB1)}, {s(sT4)}, 1536
    v_lshrrev_b32 {v(vTL)}, 2, {v(vL)}
    v_lshlrev_b32 {v(vTL)}, 7, {v(vTL)}
    s_and_b32 {s(sSX)}, {s(sRBL)}, {cfg.rotm}
    s_lshl_b32 {s(sSX)}, {s(sSX)}, {cfg.rots}
    s_add_u32 {s(sSX)}, {s(sSX)}, {s(sCB)}
    s_lshl_b32 {s(sMX)}, {s(sW)}, 11
    s_lshl_b32 {s(sMH)}, {s(sW)}, 9
    s_add_u32 {s(sMH)}, {s(sMH)}, 8192
    s_mul_i32 {s(sMW)}, {s(sW)}, 3072
    s_add_u32 {s(sMW)}, {s(sMW)}, {WRING}
    s_mov_b32 {s(SX+2)}, {2048*1024}
    s_mov_b32 {s(SX+3)}, 0x20000
    s_mov_b32 {s(SW1+2)}, {512*3072}
    s_mov_b32 {s(SW1+3)}, 0x20000
    s_waitcnt lgkmcnt(0)
    s_mov_b32 {s(SX)}, s64
    s_and_b32 {s(SX+1)}, s65, 0xffff
    s_mov_b32 {s(SW1)}, s66
    s_and_b32 {s(SW1+1)}, s67, 0xffff
    """)
    def dma_chunk(c):
        sl = (c % 3) * WSLOT
        W = lambda o: f"buffer_load_dwordx4 {v(vWo)}, {s(SW1,4)}, {s(sB0)} offen offset:{o} lds"
        return [f"""
        s_add_u32 m0, {s(sMW)}, {sl}
        s_add_u32 {s(sB1)}, {s(sSX)}, {c}
        s_and_b32 {s(sB1)}, {s(sB1)}, 7
        s_mul_i32 {s(sB0)}, {s(sB1)}, 196608
        s_lshl_b32 {s(sB1)}, {s(sB1)}, 7
        {W(0)}
        """, W(1024), W(2048), f"""
        s_add_u32 m0, {s(sMX)}, {c*XCH}
        s_add_u32 {s(sB0)}, {s(sB0)}, {32*3072}
        buffer_load_dwordx4 {v(vXo0)}, {s(SX,4)}, {s(sB1)} offen lds
        """, f"buffer_load_dwordx4 {v(vXo1)}, {s(SX,4)}, {s(sB1)} offen offset:1024 lds", f"""
        s_add_u32 m0, {s(sMH)}, {c*XCH}
        s_mov_b64 exec, {s(sEXH,2)}
        buffer_load_dwordx4 {v(vXh)}, {s(SX,4)}, {s(sB1)} offen lds
        s_mov_b64 exec, -1
        """, f"""
        s_add_u32 m0, {s(sMW)}, {sl + 4*3072}
        s_nop 0
        {W(0)}
        """, W(1024), W(2048), ('TAG', f"c{c}")]
    def t1w(r):
        if not cfg.touch or r > 7: return []
        return [f"""
        s_add_u32 {s(sB0)}, {s(sTB1)}, {r*196608}
        buffer_load_dword v250, {v(vTL)}, {s(SW1,4)}, {s(sB0)} offen
        """]
    if cfg.touch:
        G(f"""
        s_lshl_b32 {s(sB0)}, {s(sXCD)}, 18
        s_add_u32 {s(sB0)}, {s(sB0)}, {s(sTB)}
        buffer_load_dword v250, {v(vTL)}, {s(SX,4)}, {s(sB0)} offen
        """)
    G.items(dma_chunk(0) + t1w(1) + t1w(2))
    G(common_srds(cfg) + srd(SWO, 68, 512*1024) + srd(SWD, 76, 1376*1024) + srd(SOUT, 78, 2048*1024))
    A(f"""
    s_cmp_lg_u32 {s(sW)}, 0
    s_cbranch_scc1 REG_DONE
    s_and_b32 {s(sXCC)}, {s(sXCC)}, 7
    s_mul_i32 {s(sT0)}, {s(sXCC)}, {s(sXCC)}
    s_lshl_b32 {s(sT0)}, {s(sT0)}, 12
    s_lshl_b32 {s(sT1)}, {s(sXCC)}, 5
    s_or_b32 {s(sT0)}, {s(sT0)}, {s(sT1)}
    s_or_b32 {s(sT0)}, {s(sT0)}, 1
    s_lshl_b64 {s(sT4,2)}, {s(sTS,2)}, 22
    s_or_b32 {s(sT0)}, {s(sT0)}, {s(sT4)}
    v_mov_b32 v2, {s(sT0)}
    v_mov_b32 v3, {s(sT5)}
    s_lshl_b32 {s(sT1)}, {s(sG)}, 3
    v_mov_b32 v4, {s(sT1)}
    s_mov_b64 exec, 1
    buffer_atomic_add_x2 v[2:3], v4, {s(SDBG,4)}, 0 offen offset:128 sc1
    s_mov_b64 exec, -1
    """)
    A.label("REG_DONE")
    G.stamp('start')
    G.items(dma_chunk(1) + t1w(3))
    G(f"""
    v_lshlrev_b32 {v(vL16)}, 4, v0
    s_lshl_b32 {s(sT0)}, {s(sW)}, 11
    s_lshl_b32 {s(sT1)}, {s(sW)}, 9
    s_add_u32 {s(sT1)}, {s(sT1)}, 8192
    v_add_u32 {v(vSh)}, {s(sT1)}, {v(vL16)}
    v_add_u32 {v(vSa)}, {s(sT0)}, {v(vL16)}
    v_mov_b64 {v(SACC,2)}, 0
    v_mov_b64 {v(SACC+2,2)}, 0
    v_mov_b64 {v(SACC+4,2)}, 0
    """)
    G.wait_tag('c0')
    G.bar('c0')
    G.stamp('c0')
    G.bg_on = False
    G.bg(dma_chunk(2) + t1w(4))
    setups = [w3_setup(vP3, t0, t1, t2), f"""
    v_lshrrev_b32 {v(t0)}, 3, {v(vL)}
    v_and_b32 {v(t1)}, 7, {v(vL)}
    v_bfe_u32 {v(t2)}, {v(vL)}, 4, 1
    v_lshlrev_b32 {v(t2)}, 2, {v(t2)}
    v_xor_b32 {v(t1)}, {v(t1)}, {v(t2)}
    v_lshlrev_b32 {v(t0)}, 10, {v(t0)}
    v_lshl_add_u32 {v(vWD)}, {v(t1)}, 4, {v(t0)}
    s_lshl_b32 {s(sT0)}, {s(sCB)}, 7
    v_add_u32 {v(vWD)}, {s(sT0)}, {v(vWD)}
    s_lshl_b32 {s(sT2)}, {s(sRBL)}, 1
    s_lshl_b32 {s(sWB)}, {s(sW)}, 11
    s_lshl_b32 {s(sR2)}, {s(sRBL)}, 13
    s_lshl_b32 {s(sW1K)}, {s(sW)}, 10
    """, f"""
    v_lshrrev_b32 {v(t0)}, 5, {v(vL)}
    v_bfe_u32 {v(t1)}, {v(vL)}, 2, 2
    v_lshl_add_u32 {v(t0)}, {v(t0)}, 2, {v(t1)}
    v_lshlrev_b32 {v(t0)}, 7, {v(t0)}
    v_and_b32 {v(t1)}, 1, {v(vL)}
    v_lshl_add_u32 {v(t0)}, {v(t1)}, 5, {v(t0)}
    v_bfe_u32 {v(t1)}, {v(vL)}, 4, 1
    v_lshl_add_u32 {v(t0)}, {v(t1)}, 4, {v(t0)}
    v_bfe_u32 {v(t1)}, {v(vL)}, 1, 1
    v_lshl_add_u32 {v(t0)}, {v(t1)}, 3, {v(t0)}
    v_bfe_u32 {v(t1)}, {v(vL)}, 3, 1
    s_and_b32 {s(sT0)}, {s(sW)}, 1
    v_xor_b32 {v(t1)}, {s(sT0)}, {v(t1)}
    v_lshl_add_u32 {v(vWT+1)}, {v(t1)}, 6, {v(t0)}
    v_add_u32 {v(vWT+1)}, {s(sWB)}, {v(vWT+1)}
    v_xor_b32 {v(vWT)}, 64, {v(vWT+1)}
    s_lshl_b32 {s(sA3)}, {s(sW)}, 15
    s_add_u32 {s(sA3)}, {s(sA3)}, {L.H_OFF}
    s_lshl_b32 {s(sT0)}, {s(sRB)}, 6
    s_lshr_b32 {s(sT2)}, {s(sW)}, 1
    s_lshl_b32 {s(sT2)}, {s(sT2)}, 5
    s_add_u32 {s(sT0)}, {s(sT0)}, {s(sT2)}
    s_lshl_b32 {s(sT0)}, {s(sT0)}, 10
    s_lshl_b32 {s(sT2)}, {s(sCB)}, 7
    s_add_u32 {s(sT0)}, {s(sT0)}, {s(sT2)}
    s_and_b32 {s(sT2)}, {s(sW)}, 1
    s_lshl_b32 {s(sT2)}, {s(sT2)}, 6
    s_add_u32 {s(sT0)}, {s(sT0)}, {s(sT2)}
    v_and_b32 v2, 15, v0
    v_lshlrev_b32 v2, 11, v2
    v_bfe_u32 v3, v0, 4, 1
    v_lshl_add_u32 v2, v3, 10, v2
    v_lshrrev_b32 v3, 5, v0
    v_lshl_add_u32 {v(vXA)}, v3, 5, v2
    v_add_u32 {v(vXA)}, {s(sT0)}, {v(vXA)}
    s_lshl_b32 {s(sT0)}, {s(sG)}, 3
    v_mov_b32 {v(vRA)}, {s(sT0)}
    s_and_b32 {s(sT0)}, {s(sRB)}, 1
    s_lshl_b32 {s(sT0)}, {s(sT0)}, 1
    s_lshr_b32 {s(sT1)}, {s(sW)}, 1
    s_add_u32 {s(sT0)}, {s(sT0)}, {s(sT1)}
    s_lshl_b32 {s(sO1)}, {s(sT0)}, 12
    s_lshl_b32 {s(sO0)}, {s(sT0)}, 15
    s_lshl_b32 {s(sT2)}, {s(sCB)}, 1
    s_and_b32 {s(sT3)}, {s(sW)}, 1
    s_add_u32 {s(sT2)}, {s(sT2)}, {s(sT3)}
    s_lshl_b32 {s(sT2)}, {s(sT2)}, 11
    s_add_u32 {s(sO0)}, {s(sO0)}, {s(sT2)}
    s_add_u32 {s(sO0)}, {s(sO0)}, {L.H_OFF}
    s_lshl_b32 {s(sT2)}, {s(sCB)}, 9
    s_add_u32 {s(sO1)}, {s(sO1)}, {s(sT2)}
    s_lshl_b32 {s(sT3)}, {s(sT3)}, 3
    s_add_u32 {s(sO1)}, {s(sO1)}, {s(sT3)}
    s_add_u32 {s(sO1)}, {s(sO1)}, {L.ST_OFF}
    """]
    def wt_dma(SWT, sko, ldsoff, tagname, vWD_):
        return [f"""
        s_lshl_b32 {s(sB0)}, {s(sko)}, 4
        s_add_u32 m0, {s(sWB)}, {ldsoff}
        s_add_u32 {s(sB1)}, {s(sB0)}, 7168
        buffer_load_dwordx4 {v(vWD_)}, {s(SWT,4)}, {s(sB0)} offen lds
        """, f"buffer_load_dwordx4 {v(vWD_)}, {s(SWT,4)}, {s(sB1)} offen offset:1024 lds", ('TAG', tagname)]
    def wt_reads(dst, ldsoff, vWT_):
        return [f"ds_read_b64_tr_b16 {v(dst + 4*k + 2*half, 2)}, {v(vWT_+k)} offset:{ldsoff + half*1024}" for k in range(2) for half in range(2)]
    def wo(j):
        g = wt_dma(SWO, sB0, j*8192, f"wo{j}", vWD)
        g[0] = f"""
        s_add_u32 {s(sB0)}, {s(sR2)}, {j*4096}
        s_and_b32 {s(sB0)}, {s(sB0)}, 32767
        s_add_u32 {s(sB0)}, {s(sB0)}, {s(sW1K)}
        """ + g[0]
        return g
    assert not cfg.touch
    XR = 224
    def one():
        if G._has(): G._one()
    G.bg_on = False
    for i in range(8):
        su = setups[i].strip().split('\n') if i < len(setups) else []
        nd = cfg.ndma if i < 7 else cfg.ndma7
        per = (len(su) + nd - 1) // max(nd, 1)
        for k in range(nd):
            one()
            for ln in su[k*per:(k+1)*per]: G(ln)
        if i == 2:
            G(f"buffer_load_dwordx2 {v(vFE,2)}, {v(vRA)}, {s(SDBG,4)}, 0 offen offset:128 sc1")
        if i == 3:
            regdecode(G, vFE, vRA)
            G(f"""
            v_min_u32 v2, 2, v0
            s_mul_i32 {s(sT0)}, {s(sW)}, 24
            s_add_u32 {s(sT0)}, {s(sT0)}, {STG}
            v_lshlrev_b32 v3, 3, v2
            v_add_u32 v3, {s(sT0)}, v3
            ds_read_b64 v[16:17], v3
            s_mul_i32 {s(sT0)}, {s(sCB)}, 10
            s_mul_i32 {s(sT1)}, {s(sW)}, 3
            s_add_u32 {s(sT0)}, {s(sT0)}, {s(sT1)}
            v_add_u32 v2, {s(sT0)}, v2
            v_min_u32 v2, 79, v2
            v_lshlrev_b32 v2, 4, v2
            s_and_b32 {s(sT4)}, {s(sRB)}, 1
            s_mul_i32 {s(sT4)}, {s(sT4)}, 1280
            s_add_u32 {s(sT4)}, {s(sT4)}, {SG_OFF}
            v_mov_b32 v18, {v(vFE)}
            v_mov_b32 v19, {v(vFE+1)}
            v_min_u32 v20, 19, v0
            s_mul_i32 {s(sT0)}, {s(sW)}, 20
            v_add_u32 v20, {s(sT0)}, v20
            v_lshlrev_b32 v21, 2, v20
            v_add_u32 v21, {STATS1}, v21
            v_lshlrev_b32 v20, 4, v20
            s_mov_b32 {s(sMWL)}, {s(sT4)}
            """)
            stores(G, [f"buffer_store_dwordx4 v[16:19], v2, {s(SWS,4)}, {s(sT4)} offen"], "STG")
        if i == 6:
            G(f"buffer_load_dwordx4 v[24:27], v20, {s(SWS,4)}, {s(sMWL)} offen sc1")
        if cfg.fine == 1: G.stamp(f'd{i}')
        if i == 7: break
        G.wait_tag(f"c{i+1}")
        G.bar(f"c{i+1}")
        if i + 3 < 8: G.bg(dma_chunk(i + 3) + t1w(i + 5))
        if i == 4:
            for j in range(6): G.bg(wo(j))
        if i == 5:
            G.bg(wo(6))
            G.bg([f"buffer_load_dwordx4 {v(XR,4)}, {v(vXA)}, {s(SX,4)}, 0 offen", f"buffer_load_dwordx4 {v(XR+4,4)}, {v(vXA)}, {s(SX,4)}, 0 offen offset:16"])
            G.bg(w3_dma(0, W3SLOT[0], vP3))
        if i == 6:
            G.bg(wo(7))
            G.bg(w3_dma(1, W3SLOT[1], vP3))
    G._autowait(Ins("v_mov_b32 v24, v27"))
    G(f"s_mov_b32 {s(sCNT)}, 0")
    A.label("SGPOLL")
    A(f"""
    v_cmp_ne_u64 vcc, v[26:27], {v(vFE,2)}
    s_add_u32 {s(sCNT)}, {s(sCNT)}, 1
    s_cbranch_vccz SGOK
    s_cmp_ge_u32 {s(sCNT)}, 20000
    s_cbranch_scc1 SGOK
    buffer_load_dwordx4 v[24:27], v20, {s(SWS,4)}, {s(sMWL)} offen sc1
    s_waitcnt vmcnt(0)
    s_branch SGPOLL
    """)
    A.label("SGOK")
    G(f"""
    ds_write_b32 v21, v25
    ds_write_b32 v21, v24 offset:512
    """)
    G.lwait_all()
    G.bar('stats')
    G.stamp('p1loop')
    G.bg_on = True
    G.flush()
    WO_FR = [80 + 8*j for j in range(8)]
    G.wait_tag('wo7')
    for j in range(8):
        for x in wt_reads(WO_FR[j], j*8192, vWT): G(x)
    G(ks_addr(L.O_OFF, 32768, vL16, 12, 13))
    K2 = [60, 61, 62, 63, 86, 58, 59, 101]
    for j in range(8):
        G(f"""
        s_add_u32 {s(K2[j])}, {s(sR2)}, {j*4096}
        s_and_b32 {s(K2[j])}, {s(K2[j])}, 32767
        s_add_u32 {s(K2[j])}, {s(K2[j])}, {s(sW1K)}
        """)
    G.items(p4_table())
    G(f"""
    v_mov_b32 v11, {v(vL16)}
    v_and_b32 v14, 31, v0
    v_lshlrev_b32 v14, 4, v14
    v_lshrrev_b32 v3, 5, v0
    v_lshl_add_u32 v14, v3, 2, v14
    """)
    G.wait_tag('w3_1')
    G.lwait_all()
    G.stamp('pre')
    G.bar('w3a')
    G.stamp('w3a')
    poll(G, 0, vFE)
    G.stamp('poll0')
    ACC2 = 16
    def red_write(u, reg):
        out = [f"""
        s_xor_b32 {s(sT5)}, {s(sW)}, {3-u}
        s_mul_i32 {s(sT5)}, {s(sT5)}, 12288
        v_add_u32 v10, {s(sT5)}, v11
        """]
        out += [f"ds_write_b128 v10, {v(reg+4*i,4)} offset:{u*4096+i*1024}" for i in range(4)]
        return out
    def red_read(RED, barname):
        out = [f"""
        s_mul_i32 {s(sT5)}, {s(sW)}, 12288
        v_add_u32 v10, {s(sT5)}, v11
        """, ('BSYNC', barname)]
        out += [f"ds_read_b128 {v(RED[i>>2]+4*(i&3),4)}, v10 offset:{i*1024}" for i in range(12)]
        return out
    def final(F, RED, XH, OUTR):
        for i in range(8): G(f"v_pk_add_f32 {v(RED[0]+2*i,2)}, {v(RED[0]+2*i,2)}, {v(RED[1]+2*i,2)}")
        for i in range(8):
            G(f"""
            v_lshlrev_b32 {v(RED[1]+2*i)}, 16, {v(XH+i)}
            v_and_b32 {v(RED[1]+2*i+1)}, 0xffff0000, {v(XH+i)}
            """)
        for i in range(8): G(f"v_pk_add_f32 {v(RED[2]+2*i,2)}, {v(RED[2]+2*i,2)}, {v(RED[1]+2*i,2)}")
        for i in range(8): G(f"v_pk_add_f32 {v(RED[0]+2*i,2)}, {v(RED[0]+2*i,2)}, {v(RED[2]+2*i,2)}")
        for i in range(8): G(f"v_pk_add_f32 {v(F+2*i,2)}, {v(F+2*i,2)}, {v(RED[0]+2*i,2)}")
        for i in range(8): G(f"v_cvt_pk_bf16_f32 {v(OUTR+i)}, {v(F+2*i)}, {v(F+2*i+1)}")
    afr = lambda rs, j: 144 + 32*rs + 4*j
    loads = [f"buffer_load_dwordx4 {v(afr(rs,j),4)}, {v(12+rs)}, {s(SWS,4)}, {s(K2[j])} offen sc1" for rs in range(2) for j in range(8)]
    n = 8; skew = 4
    mf = lambda u, rs, cs, j: f"v_mfma_f32_32x32x16_bf16 {v(ACC2+16*u,16)}, {v(WO_FR[j]+4*cs,4)}, {v(afr(rs,j),4)}, {'0' if j == 0 else v(ACC2+16*u,16)}"
    seq = []
    for j in range(n): seq += [mf(0, 0, 0, j), mf(1, 0, 1, j)]
    for j in range(n + skew):
        if j < n: seq.append(mf(2, 1, 0, j))
        if j >= skew: seq.append(mf(3, 1, 1, j - skew))
    RED = [144, 160, 208]
    extra = {}
    i = 2*n + 1
    for it in red_write(0, ACC2) + red_write(1, ACC2+16): extra.setdefault(i, []).append(it); i += 1
    last2 = max(i for i, m in enumerate(seq) if m.startswith(f"v_mfma_f32_32x32x16_bf16 {v(ACC2+32,16)}"))
    w2 = red_write(2, ACC2+32)
    extra.setdefault(last2 + 1, []).extend(w2[:3]); extra.setdefault(last2 + 2, []).extend(w2[3:])
    extra.setdefault(last2 + 3, []).extend(red_read(RED, 'red2'))
    li = 0
    for x in loads[:cfg.pre2]: G(x); li += 1
    tb = []; ti = 0
    for i, m in enumerate(seq):
        G(m)
        if li < len(loads):
            if True:
                G(loads[li]); li += 1
                if li == len(loads): G.bar('a2iss')
        elif ti < len(tb):
            G.item(tb[ti]); ti += 1
            if ti < len(tb): G.item(tb[ti]); ti += 1
        if cfg.fine == 2 and i in (0, 9, 16, last2, last2 + 2): G.stamp(f'm{i}')
        G.items(extra.get(i, []))
        if cfg.fine == 2 and i in (last2 + 3, len(seq) - 1): G.stamp(f'e{i}')
    while ti < len(tb): G.item(tb[ti]); ti += 1
    OUTR = 232
    G(f"v_mov_b64 v[16:17], 0\nv_mov_b64 v[18:19], 0")
    final(ACC2 + 48, RED, XR, OUTR)
    sm, sq = 16, 17
    if cfg.fine == 2: G.stamp('fin')
    stores(G, [f"buffer_store_dwordx4 {v(OUTR,4)}, {v(vL16)}, {s(SWS,4)}, {s(sO0)} offen",
               f"buffer_store_dwordx4 {v(OUTR+4,4)}, {v(vL16)}, {s(SWS,4)}, {s(sO0)} offen offset:1024"], "ST2")
    for i in range(8):
        G(f"v_dot2c_f32_bf16 {v(sm+2*(i&1))}, {s(sONE)}, {v(OUTR+i)}")
        G(f"v_dot2c_f32_bf16 {v(sq+2*(i&1))}, {v(OUTR+i)}, {v(OUTR+i)}")
    G(f"""
    v_add_f32 {v(sm)}, {v(sm)}, {v(sm+2)}
    v_add_f32 {v(sq)}, {v(sq)}, {v(sq+2)}
    v_permlane32_swap_b32 {v(sm)}, {v(sq)}
    v_add_f32 {v(sm)}, {v(sm)}, {v(sq)}
    """)
    stores(G, [f"buffer_store_dword {v(sm)}, v14, {s(SWS,4)}, {s(sO1)} offen"], "ST2B")
    G.stamp('p2')
    signal(G, 1, vFE)
    G.stamp('sig1')
    nP3, nWD, nWT, nXA = 20, 23, 24, 1
    G(f"""
    s_mul_i32 {s(sT0)}, {s(sW)}, {8192 - 2048}
    s_add_u32 {s(sT0)}, {s(sT0)}, {WDT}
    s_add_u32 {s(sWB)}, {s(sWB)}, {s(sT0)}
    v_add_u32 {v(nWT)}, {s(sT0)}, {v(vWT)}
    v_add_u32 {v(nWT+1)}, {s(sT0)}, {v(vWT+1)}
    v_mov_b32 {v(nP3)}, {v(vP3)}
    v_mov_b32 {v(nP3+1)}, {v(vP3+1)}
    v_mov_b32 {v(nP3+2)}, {v(vP3+2)}
    v_mov_b32 {v(nWD)}, {v(vWD)}
    v_mov_b32 {v(nXA)}, {v(vXA)}
    s_lshl_b32 {s(sT4)}, {s(sW)}, 12
    s_add_u32 {s(sT4)}, {s(sT4)}, {L.ST_OFF}
    """)
    G.sv = (26, 28)
    poll(G, 1, vFE)
    G.stamp('poll1')
    def a_dma(c):
        r = (c % 3) * 16384
        g = [f"""
        s_xor_b32 {s(sB0)}, {s(sROT3)}, {lch(c)}
        s_lshl_b32 {s(sB0)}, {s(sB0)}, 12
        s_add_u32 {s(sB0)}, {s(sB0)}, {s(sA3)}
        s_lshl_b32 {s(sB1)}, {s(sW)}, 12
        s_add_u32 m0, {s(sB1)}, {r}
        s_nop 0
        buffer_load_dwordx4 v11, {s(SWS,4)}, {s(sB0)} offen sc1 lds
        """]
        for i in range(1, 4): g.append(f"buffer_load_dwordx4 v11, {s(SWS,4)}, {s(sB0)} offen offset:{1024*i} sc1 lds")
        g.append(('TAG', f"a3_{c}"))
        return g
    G.items(a_dma(0) + a_dma(1))
    G.wait_tag('a3_0')
    G.bar('a3_0')
    G.stamp('a3_0')
    G.items(a_dma(2))
    SL = 32
    for i in range(4): G(f"buffer_load_dwordx4 {v(SL+4*i,4)}, v11, {s(SWS,4)}, {s(sT4)} offen offset:{1024*i} sc1")
    for l in PFORD[cfg.npf:]: G.items(w3_dma(l, W3SLOT[l], nP3))
    NR = 4
    WD_SLOT = [80 + 8*j for j in range(22)]
    wd = lambda j: wt_dma(SWD, sKO + j, (j % NR) * 2048, f"wd_{j}", nWD)
    wd_issue_period = {}
    st3 = []
    for i in range(4): st3.append(f"v_add_f32 {v(SL+4*i)}, {v(SL+4*i)}, {v(SL+4*i+2)}\nv_add_f32 {v(SL+4*i+1)}, {v(SL+4*i+1)}, {v(SL+4*i+3)}")
    st3.append(f"""
    v_add_f32 {v(SL)}, {v(SL)}, {v(SL+4)}
    v_add_f32 {v(SL+1)}, {v(SL+1)}, {v(SL+5)}
    v_add_f32 {v(SL+8)}, {v(SL+8)}, {v(SL+12)}
    v_add_f32 {v(SL+9)}, {v(SL+9)}, {v(SL+13)}
    v_add_f32 {v(SL)}, {v(SL)}, {v(SL+8)}
    v_add_f32 {v(SL+1)}, {v(SL+1)}, {v(SL+9)}
    v_mov_b32 {v(SL+2)}, {v(SL)}
    v_mov_b32 {v(SL+3)}, {v(SL+1)}
    v_permlane32_swap_b32 {v(SL)}, {v(SL+2)}
    v_permlane32_swap_b32 {v(SL+1)}, {v(SL+3)}
    v_add_f32 {v(SL)}, {v(SL)}, {v(SL+2)}
    v_add_f32 {v(SL+1)}, {v(SL+1)}, {v(SL+3)}
    v_mul_f32 {v(SL)}, 0x3b000000, {v(SL)}
    v_mul_f32 {v(SL+1)}, 0x3b000000, {v(SL+1)}
    v_fma_f32 {v(SL+1)}, -{v(SL)}, {v(SL)}, {v(SL+1)}
    v_max_f32 {v(SL+1)}, 0, {v(SL+1)}
    v_add_f32 {v(SL+1)}, 0x3727c5ac, {v(SL+1)}
    v_rcp_f32 {v(SL+1)}, {v(SL+1)}
    v_sub_f32 {v(SL)}, 0, {v(SL)}
    s_lshl_b32 {s(sT5)}, {s(sW)}, 8
    s_add_u32 {s(sT5)}, {s(sT5)}, {STATS3}
    v_and_b32 v2, 31, v0
    v_lshlrev_b32 v2, 3, v2
    v_add_u32 v2, {s(sT5)}, v2
    ds_write_b64 v2, {v(SL,2)}
    """)
    G.items(st3)
    wd_next = 0; wd_iss = 0
    def wd_cycle(period, force=False):
        nonlocal wd_next, wd_iss
        did = []
        while wd_next < wd_iss:
            j = wd_next
            lead = 2 if j < NR else 1
            if not force and period - wd_issue_period[j] < lead: break
            G.wait_tag(f"wd_{j}")
            for x in wt_reads(WD_SLOT[j], (j % NR) * 2048, nWT): G(x)
            did.append(j); wd_next += 1
        if did:
            G.lwait_all()
            for j in did:
                if wd_iss < 22:
                    G.items(wd(wd_iss)); wd_issue_period[wd_iss] = period; wd_iss += 1
    for c in range(7):
        st = 4*c + 3
        G.wait_tag(f"a3_{c+1}")
        for l, b in W3BAR.items():
            if b == st and f"w3_{l}" in G.tags: G.wait_tag(f"w3_{l}")
        G.lwait_all()
        G.bar(f'p3_{st}')
        if c + 3 < 8: G.items(a_dma(c + 3))
        heavy = False
        for l in (5, 6, 7):
            if 4*(l-5) + 3 == st: G.items(w3_dma(l, W3SLOT[l], nP3)); heavy = True
        if c == cfg.wd0:
            for j in range(NR): G.items(wd(j)); wd_issue_period[j] = c + 1
            wd_iss = NR
        elif not (heavy and cfg.skipwd): wd_cycle(c + 1)
    G.stamp('p3ld')
    while wd_next < 22: wd_cycle(99, force=True)
    G.lwait_all()
    G.stamp('wd')
    G.sv = (15, 8)
    G(f"""
    s_mul_i32 {s(sT0)}, {s(sW)}, 24576
    s_add_u32 {s(sT0)}, {s(sT0)}, {RING4}
    v_add_u32 v12, {s(sT0)}, v11
    """)
    G.bar('p4start')
    U = [16, 32, 48, 16]
    AB = 64; NAB = 4
    n = 22; skew = cfg.skew
    ops = []
    for j in range(n): ops += [(0, 0, j, j, True), (1, 1, j, j, False)]
    for j in range(n + skew):
        if j < n: ops.append((2, 0, j, 22 + j, True))
        if j >= skew: ops.append((3, 1, j - skew, 22 + j - skew, True))
    rd_list = [(k, o[3]) for k, o in enumerate(ops) if o[4]]
    slot_of = {}
    for r, (k, q) in enumerate(rd_list): slot_of[k] = r % NAB
    for k, o in enumerate(ops):
        if not o[4]: slot_of[k] = slot_of[k-1]
    barred = -1
    nr = 0
    def issue_read():
        nonlocal nr, barred
        k, q = rd_list[nr]
        while barred < q // 4:
            barred += 1
            G.lwait_all() if False else None
            G.bar(f"p4_{barred}")
        G(f"ds_read_b128 {v(AB + 4*(nr % NAB), 4)}, v12 offset:{(q % 24) * 1024}")
        nr += 1
    RED = [80, 96, 112]
    XH = 128; OUTR = 136
    extra = {}
    w0 = red_write(0, U[0])
    extra.setdefault(2*n, []).extend(w0[:2]); extra.setdefault(2*n + 1, []).append(w0[2]); extra.setdefault(2*n + 2, []).append(w0[3]); extra.setdefault(2*n + 3, []).append(w0[4])
    i = 2*n + skew + 2
    for it in red_write(1, U[1]): extra.setdefault(i, []).append(it); i += 2
    last2 = max(k for k, o in enumerate(ops) if o[0] == 2)
    w2 = red_write(2, U[2])
    extra.setdefault(last2 + 1, []).extend(w2[:3]); extra.setdefault(last2 + 2, []).extend(w2[3:])
    extra.setdefault(last2 + 3, []).extend(red_read(RED, 'red4'))
    extra.setdefault(last2 - 6, []).append(f"""
    buffer_load_dwordx4 {v(XH,4)}, v11, {s(SWS,4)}, {s(sO0)} offen sc1
    buffer_load_dwordx4 {v(XH+4,4)}, v11, {s(SWS,4)}, {s(sO0)} offen offset:1024 sc1
    """)
    for _ in range(NAB - 1): issue_read()
    G.stamp('p4_0')
    rdone = 0
    for k, (u, cs, j, q, fresh) in enumerate(ops):
        if u == 3 and j == 0: G.lwait(G.w0idx)
        G(f"v_mfma_f32_32x32x16_bf16 {v(U[u],16)}, {v(WD_SLOT[j]+4*cs,4)}, {v(AB+4*slot_of[k],4)}, {'0' if j == 0 else v(U[u],16)}")
        if fresh: rdone += 1
        nxt_fresh = (k + 1 == len(ops)) or ops[k+1][4]
        while nr < len(rd_list) and nr - NAB < rdone - (0 if nxt_fresh else 1): issue_read()
        G.items(extra.get(k, []))
        if k == 2*n + 3: G.w0idx = G.lg
    final(U[3], RED, XH, OUTR)
    G(f"""
    buffer_store_dwordx4 {v(OUTR,4)}, {v(nXA)}, {s(SOUT,4)}, 0 offen
    buffer_store_dwordx4 {v(OUTR+4,4)}, {v(nXA)}, {s(SOUT,4)}, 0 offen offset:16
    """)
    G.stamp('end')

def main(path, cfg):
    A = Asm()
    A.raw(HDR.rstrip('\n'))
    A.raw(f"; @launch grid=(256,1,1) block=(512,1,1) lds={LDS_TOTAL}")
    A.raw('.amdgcn_target "amdgcn-amd-amdhsa--gfx950"\n.text')
    n = NAME + "_kernel"
    A.raw(f".globl {n}\n.p2align 8\n.type {n},@function\n{n}:")
    A(f"""
    s_cmp_ge_u32 s2, 256
    s_cbranch_scc1 K_END
    s_load_dwordx16 s[64:79], s[0:1], 0
    s_load_dwordx4 s[80:83], s[0:1], 64
    s_memrealtime {s(sTS,2)}
    s_getreg_b32 {s(sXCC)}, hwreg(HW_REG_XCC_ID, 0, 4)
    v_lshrrev_b32 v1, 6, v0
    v_and_b32 v0, 63, v0
    v_readfirstlane_b32 {s(sW8)}, v1
    s_and_b32 {s(sXCD)}, s2, 7
    s_lshr_b32 {s(sIDX)}, s2, 3
    s_lshr_b32 {s(sRBL)}, {s(sIDX)}, 3
    s_and_b32 {s(sCB)}, {s(sIDX)}, 7
    s_lshl_b32 {s(sRB)}, {s(sXCD)}, 2
    s_add_u32 {s(sRB)}, {s(sRB)}, {s(sRBL)}
    s_and_b32 {s(sM)}, {s(sIDX)}, 15
    s_lshr_b32 {s(sG)}, {s(sRB)}, 1
    s_mov_b32 {s(sONE)}, 0x3f803f80
    s_and_b32 {s(sW)}, {s(sW8)}, 3
    s_cmp_lt_u32 {s(sW8)}, 4
    s_cbranch_scc1 PROG_A
    """)
    def pad(G):
        if not G.probed: return
        A(f"s_add_u32 s36, s36, 4000")
        A.label(G.pfx + "PADL")
        A(f"""
        s_memrealtime s[50:51]
        s_waitcnt lgkmcnt(0)
        s_sub_u32 s50, s50, s36
        s_cmp_lt_i32 s50, 0
        s_cbranch_scc1 {G.pfx}PADL
        """)
    GB = Gen(cfg, A, "B_"); prog_b(GB); pad(GB)
    A("s_endpgm")
    A.label("PROG_A")
    GA = Gen(cfg, A, "A_"); prog_a(GA); pad(GA)
    A.label("K_END")
    A("s_endpgm")
    assert GA.bars == GB.bars, (GA.bars, GB.bars)
    A.raw('.section .rodata,"a"\n.p2align 6')
    A.raw(f""".amdhsa_kernel {n}
  .amdhsa_next_free_vgpr 256
  .amdhsa_next_free_sgpr 102
  .amdhsa_accum_offset 256
  .amdhsa_group_segment_fixed_size 0
  .amdhsa_kernarg_size 80
  .amdhsa_user_sgpr_count 2
  .amdhsa_user_sgpr_kernarg_segment_ptr 1
  .amdhsa_system_sgpr_workgroup_id_x 1
.end_amdhsa_kernel""")
    open(path, 'w').write(A.finalize())
    print("barriers:", len(GA.bars)); print("stampsA:", GA.names); print("stampsB:", GB.names)

if __name__ == '__main__':
    cfg = Cfg()
    for a_ in sys.argv[2:]:
        k, val = a_.split('=')
        setattr(cfg, k, val if k == 'probe' else int(val))
    main(sys.argv[1], cfg)
```

```python
import sys, re
from asmlib import *
import layout as L

NAME = "sequential_preLN__sliding_local_dilated__glu_gated_reglu__prompt"
HDR = open('cdna_kernels/' + NAME + '.s.ref').read().split('; Override launch')[0]

class Cfg:
    stamps = 0
    probe = ''
    force_slow = 0
    touch = 0
    skew = 6
    pre2 = 7
    gap = 64
    prioA = 0
    prioB = 0
    wd_early = 1
    fine = 0
    skipwd = 1
    nb0 = 2
    ramp = 3
    wd0 = 3
    ndma = 9
    ndma7 = 4
    rotm = 1
    rots = 2
    abl = 0
    bflush = 5
    gapB = 32
    npf = 2
    l345 = 2

SX, SW1, SWO, SWD, SOUT, SWS, SDBG, SMU, sST = 4, 8, 12, 16, 20, 24, 28, 32, 36
sXCD, sIDX, sRBL, sCB, sW, sG, sRB, sM = 40, 41, 42, 43, 44, 45, 46, 47
sONE, sMODE = 48, 49
sT0, sT1, sT2, sT3, sT4, sT5 = 50, 51, 52, 53, 54, 55
sB0, sCNT = 56, 57
sEXH = 58
sMX, sMH, sMW, sSX = 60, 61, 62, 63
sKO = 64
sMWL, sB1 = 86, 87
sROT3, sW3S, sW3G, sA3, sWB, sO0, sO1 = 88, 89, 90, 91, 92, 93, 94
sXCC = 95
sTS = 96
sTB, sTB1, sW8, sSW = 98, 99, 100, 101
sMW0 = 3
sR2, sW1K = 98, 99

class Gen:
    def __init__(self, cfg, A, pfx):
        self.A = A; self.cfg = cfg; self.pfx = pfx
        self.vm = 0; self.tags = {}; self.nstamp = 0; self.names = []
        self.t = 0; self.tm = 0; self.nv = 0
        self.q = []; self.cur = []; self.inbg = False; self.bg_on = True
        self.lg = 0; self.ldone = 0; self.lpend = {}; self.vdone = 0; self.vpend = {}
        self.bars = []
        self.dummy = None
        self.probed = False
        self.sv = (253, 254)
    def _autowait(self, ins):
        regs = [r for r in list(ins.rd) + list(ins.wr) if r[0] in 'va']
        nl = max([self.lpend.get(r, 0) for r in regs] + [0])
        nvm = max([self.vpend.get(r, 0) for r in regs] + [0])
        parts = []
        if nvm > self.vdone:
            parts.append(f"vmcnt({min(self.vm - nvm, 63)})"); self.vdone = nvm
        if nl > self.ldone:
            parts.append(f"lgkmcnt({min(self.lg - nl, 15)})"); self.ldone = nl
        if parts:
            self.A("s_waitcnt " + " ".join(parts)); self.t += 4
    def _note_wait(self, ln):
        m = re.search(r'vmcnt\((\d+)\)', ln)
        if m: self.vdone = max(self.vdone, self.vm - int(m.group(1)))
        m = re.search(r'lgkmcnt\((\d+)\)', ln)
        if m: self.ldone = max(self.ldone, self.lg - int(m.group(1)))
    def lwait_all(self):
        if self.ldone < self.lg: self._emit("s_waitcnt lgkmcnt(0)")
    def lwait(self, idx):
        if self.ldone < idx: self._emit(f"s_waitcnt lgkmcnt({min(self.lg - idx, 15)})")
    def _emit(self, ln):
        ins = Ins(ln)
        if ins.cls in ('valu', 'mfma', 'lds', 'vmem'): self._autowait(ins)
        self.A(ln)
        op = ins.op
        if op == 's_waitcnt': self._note_wait(ln)
        if ins.cls == 'lds':
            self.lg += 1
            for r in ins.wr: self.lpend[r] = self.lg
        if ins.cls == 'vmem':
            for r in ins.wr:
                if r != self.dummy: self.vpend[r] = self.vm + 1
        if op.startswith('v_mfma'):
            st = max(self.t, self.tm); self.t = st + 8; self.tm = st + (32 if '32x32' in op else 16)
        elif ins.cls == 'vmem':
            self.vm += 1
            self.t = max(self.t, self.nv) + 8; self.nv = self.t + (self.cfg.gapB if self.pfx == 'B_' else self.cfg.gap)
        elif ins.cls == 'lds': self.t += 10
        else: self.t += 4
    def __call__(self, t):
        for ln in t.strip().split('\n'):
            ln = ln.strip()
            if ln: self._emit(ln)
        self.pump()
    def _next(self):
        while not self.cur and self.q: self.cur = list(self.q.pop(0))
        return self.cur.pop(0) if self.cur else None
    def _has(self): return bool(self.cur) or any(self.q)
    def _one(self):
        it = self._next()
        self.inbg = True
        self.item(it)
        while self.cur and isinstance(self.cur[0], tuple) and self.cur[0][0] == 'TAG': self.item(self.cur.pop(0))
        self.inbg = False
    def pump(self):
        if self.inbg or not self.bg_on: return
        while self._has() and self.t >= self.nv: self._one()
    def bg(self, group): self.q.append(list(group))
    def flush(self, tag=None):
        while self._has() and (tag is None or tag not in self.tags): self._one()
    def tag(self, name): self.tags[name] = self.vm
    def wait_tag(self, name):
        if name not in self.tags: self.flush(name)
        if self.tags[name] <= self.vdone: return
        self._emit(f"s_waitcnt vmcnt({min(self.vm - self.tags[name], 63)})")
    def bar(self, name):
        if self.cfg.fine and name.startswith({1: 'c', 2: 'zz', 3: 'p3_', 4: 'p4_'}[self.cfg.fine]): self.stamp('@' + name)
        self.bars.append(name); self._emit("s_barrier"); self.nv = self.t
        if self.cfg.fine == 3 and name.startswith('p3_') and self.pfx == 'A_': self.stamp('>' + name)
    def asyncA(self):
        self.bsync('svcA')
    def bsync(self, name):
        off = CNT + {'wo': 0, 'red4': 4, 'red4a': 8}[name]
        self.bg_on = False
        self(f"""
        v_mov_b32 v2, {off}
        v_mov_b32 v3, 1
        s_mov_b64 exec, 1
        ds_add_u32 v2, v3
        s_mov_b64 exec, -1
        s_mov_b32 {s(sCNT)}, 0
        """)
        self.A.label("BS_" + name)
        self.A(f"""
        ds_read_b32 v3, v2
        s_add_u32 {s(sCNT)}, {s(sCNT)}, 1
        s_waitcnt lgkmcnt(0)
        v_readfirstlane_b32 {s(sT5)}, v3
        s_cmp_ge_u32 {s(sCNT)}, 0x100000
        s_cbranch_scc1 BS_{name}_D
        s_cmp_lt_u32 {s(sT5)}, 4
        s_cbranch_scc1 BS_{name}
        """)
        self.A.label(f"BS_{name}_D")
        self.ldone = self.lg
        self.bg_on = True
    def items(self, lst):
        for it in lst: self.item(it)
    def stamp(self, name=''):
        if self.cfg.probe == self.pfx + name:
            self(f"s_memrealtime s[36:37]\ns_waitcnt lgkmcnt(0)"); self.probed = True
        if not self.cfg.stamps: return
        i = self.nstamp; self.nstamp += 1; self.names.append(name)
        on = self.bg_on; self.bg_on = False
        self(f"""
        {'s_memtime' if self.cfg.stamps == 2 else 's_memrealtime'} {s(sTS,2)}
        s_waitcnt lgkmcnt(0)
        v_writelane_b32 v{self.vS}, {s(sTS)}, {i}
        """)
        self.bg_on = on
        if name == 'end':
            self(f"""
            v_lshlrev_b32 v2, 3, v0
            v_mov_b32 v4, v{self.vS}
            v_mov_b32 v5, 0
            v_cmp_gt_u32 vcc, 32, v0
            s_and_b64 exec, exec, vcc
            buffer_store_dwordx2 v[4:5], v2, {s(sST,4)}, 0 offen
            s_mov_b64 exec, -1
            """)
    def item(self, it):
        if isinstance(it, tuple):
            if it[0] == 'WAIT': self.wait_tag(it[1])
            elif it[0] == 'TAG': self.tag(it[1])
            elif it[0] == 'BG': self.bg(it[1])
            elif it[0] == 'BAR': self.lwait_all(); self.bar(it[1])
            elif it[0] == 'BSYNC': self.bsync(it[1])
        else: self(it)
    def spread(self, main, fill):
        n, m = len(main), len(fill); fi = 0
        for i, x in enumerate(main):
            self(x)
            while fi < m and fi * n < (i + 1) * m:
                self.item(fill[fi]); fi += 1
        while fi < m: self.item(fill[fi]); fi += 1
    def front(self, main, fill, per=1):
        fi = 0
        for x in main:
            self(x)
            for _ in range(per):
                if fi < len(fill): self.item(fill[fi]); fi += 1
        while fi < len(fill): self.item(fill[fi]); fi += 1

XCH = 10240
WRING = 8 * XCH
WSLOT = 24576
S0, S1, S2 = WRING, WRING + WSLOT, WRING + 2 * WSLOT
STATS1 = WRING + 3 * WSLOT
STATS3 = STATS1 + 1024
CSX = STATS3 + 1024
WDT = 49152
HHS = 88 * 1024
RING4 = 49152
LDS_TOTAL = 163840
SG_OFF = L.FL_OFF + 2048
CNT = STATS1 + 1000
STG = STATS1 + 896
vL = 0

def srd(dst, src, size):
    return f"""
    s_mov_b32 {s(dst)}, {s(src)}
    s_and_b32 {s(dst+1)}, {s(src+1)}, 0xffff
    s_mov_b32 {s(dst+2)}, {size}
    s_mov_b32 {s(dst+3)}, 0x20000
    """
def common_srds(cfg):
    t = f"""
    s_mul_i32 {s(sT0)}, {s(sG)}, {L.GSTRIDE}
    s_add_u32 {s(SWS)}, s82, {s(sT0)}
    s_addc_u32 {s(SWS+1)}, s83, 0
    s_and_b32 {s(SWS+1)}, {s(SWS+1)}, 0xffff
    s_mov_b32 {s(SWS+2)}, {L.GSTRIDE}
    s_mov_b32 {s(SWS+3)}, 0x20000
    s_bitcmp1_b32 {s(sW)}, 0
    s_cselect_b32 {s(SMU)}, s74, s72
    s_cselect_b32 {s(SMU+1)}, s75, s73
    s_and_b32 {s(SMU+1)}, {s(SMU+1)}, 0xffff
    s_cmp_eq_u32 {s(sM)}, 15
    s_cselect_b32 {s(SMU+2)}, 0, {512*2752}
    s_mov_b32 {s(SMU+3)}, 0x20000
    """ + srd(SDBG, 80, 256)
    if cfg.stamps:
        t += f"""
        s_lshl_b32 {s(sT0)}, s2, 11
        s_lshl_b32 {s(sT1)}, {s(sW8)}, 8
        s_add_u32 {s(sT0)}, {s(sT0)}, {s(sT1)}
        s_add_u32 {s(sT0)}, {s(sT0)}, {L.STAMP_OFF}
        s_add_u32 {s(sST)}, s82, {s(sT0)}
        s_addc_u32 {s(sST+1)}, s83, 0
        s_and_b32 {s(sST+1)}, {s(sST+1)}, 0xffff
        s_mov_b32 {s(sST+2)}, 256
        s_mov_b32 {s(sST+3)}, 0x20000
        """
    return t

def stores(G, lst, label):
    A = G.A; label = G.pfx + label
    for x in lst: G._autowait(Ins(x))
    A(f"""
    s_cmp_lg_u32 {s(sMODE)}, 0
    s_cbranch_scc1 {label}_SLOW
    """)
    for x in lst: A(x)
    A(f"s_branch {label}_DONE")
    A.label(f"{label}_SLOW")
    for x in lst: A((x + " sc1") if x.startswith('buffer_store') else x)
    A.label(f"{label}_DONE")
    G.vm += sum(1 for x in lst if x.startswith('buffer_'))

def signal(G, phase, vFE):
    G.bg_on = False
    G(f"""
    v_add_u32 v2, {phase}, {v(vFE)}
    v_mov_b32 v3, {v(vFE+1)}
    s_lshl_b32 {s(sT0)}, {s(sM)}, 2
    s_add_u32 {s(sT0)}, {s(sT0)}, {s(sW)}
    s_lshl_b32 {s(sT0)}, {s(sT0)}, 3
    s_add_u32 {s(sT0)}, {s(sT0)}, {L.FL_OFF + phase*512}
    v_mov_b32 v4, {s(sT0)}
    s_waitcnt vmcnt(0)
    s_mov_b64 exec, 1
    """)
    stores(G, [f"buffer_store_dwordx2 v[2:3], v4, {s(SWS,4)}, 0 offen"], f"SIG{phase}")
    G.bg_on = True; G.nv = G.t
    G("s_mov_b64 exec, -1")

def poll(G, phase, vFE):
    A = G.A
    if phase == 0:
        A(f"""
        v_and_b32 v4, 31, v0
        s_and_b32 {s(sT0)}, {s(sM)}, 8
        s_lshl_b32 {s(sT0)}, {s(sT0)}, 2
        v_add_u32 v4, {s(sT0)}, v4
        v_lshlrev_b32 v4, 3, v4
        """)
    else:
        A("v_lshlrev_b32 v4, 3, v0")
    A(f"""
    v_add_u32 v2, {phase}, {v(vFE)}
    v_mov_b32 v3, {v(vFE+1)}
    s_mov_b32 {s(sCNT)}, 0
    s_mov_b32 {s(sT0)}, {L.FL_OFF + phase*512}
    """)
    A.label(f"POLL{phase}")
    A(f"""
    buffer_load_dwordx2 v[6:7], v4, {s(SWS,4)}, {s(sT0)} offen sc1
    s_add_u32 {s(sCNT)}, {s(sCNT)}, 1
    s_waitcnt vmcnt(0)
    v_cmp_ne_u64 vcc, v[6:7], v[2:3]
    s_cmp_ge_u32 {s(sCNT)}, 20000
    s_cbranch_scc1 POLL{phase}_DONE
    s_cbranch_vccnz POLL{phase}
    """)
    A.label(f"POLL{phase}_DONE")
    G.vdone = G.vm; G.nv = G.t

def regdecode(G, vFE, vaddr):
    A = G.A; p = G.pfx
    G._autowait(Ins(f"v_mov_b32 {v(vFE)}, {v(vFE+1)}"))
    G(f"s_mov_b32 {s(sCNT)}, 0")
    A.label(p + "REGPOLL")
    A(f"""
    v_readfirstlane_b32 {s(sT0)}, {v(vFE)}
    v_readfirstlane_b32 {s(sT1)}, {v(vFE+1)}
    s_and_b32 {s(sT2)}, {s(sT0)}, 31
    s_cmp_eq_u32 {s(sT2)}, 16
    s_cbranch_scc1 {p}REGOK
    s_add_u32 {s(sCNT)}, {s(sCNT)}, 1
    s_cmp_ge_u32 {s(sCNT)}, 20000
    s_cbranch_scc1 {p}REGOK
    buffer_load_dwordx2 {v(vFE,2)}, {v(vaddr)}, {s(SDBG,4)}, 0 offen offset:128 sc1
    s_waitcnt vmcnt(0)
    s_branch {p}REGPOLL
    """)
    A.label(p + "REGOK")
    G(f"""
    s_bfe_u32 {s(sT2)}, {s(sT0)}, {5 | (7 << 16)}
    s_bfe_u32 {s(sT3)}, {s(sT0)}, {12 | (10 << 16)}
    s_mul_i32 {s(sT2)}, {s(sT2)}, {s(sT2)}
    s_lshl_b32 {s(sT3)}, {s(sT3)}, 4
    s_cmp_lg_u32 {s(sT2)}, {s(sT3)}
    s_cselect_b32 {s(sMODE)}, 1, {1 if G.cfg.force_slow else 0}
    s_and_b32 {s(sT0)}, {s(sT0)}, 0xffc00000
    s_or_b32 {s(sT0)}, {s(sT0)}, 0x5a5a0
    v_mov_b32 {v(vFE)}, {s(sT0)}
    v_mov_b32 {v(vFE+1)}, {s(sT1)}
    """)

def lch(l): return ((l >> 1) & 1) * 4 + (l >> 2) * 2 + (l & 1)
def w3_setup(vP3, t0, t1, t2):
    out = f"""
    s_mul_i32 {s(sT0)}, {s(sM)}, 192
    s_mov_b32 {s(sT1)}, 0x15555556
    s_and_b32 {s(sT2)}, {s(sW)}, 1
    s_lshr_b32 {s(sT4)}, {s(sW)}, 1
    s_mul_i32 {s(sW3S)}, {s(sT2)}, 12288
    s_mul_i32 {s(sT5)}, {s(sT4)}, 6144
    s_add_u32 {s(sW3S)}, {s(sW3S)}, {s(sT5)}
    s_mul_i32 {s(sW3G)}, {s(sT4)}, {32*2752}
    s_and_b32 {s(sROT3)}, {s(sG)}, 1
    s_lshl_b32 {s(sROT3)}, {s(sROT3)}, 2
    s_lshl_b32 {s(sT2)}, {s(sT2)}, 1
    """
    for i in range(3):
        out += f"""
        v_add_u32 {v(t0)}, {64*i}, {v(vL)}
        v_mul_hi_u32 {v(t1)}, {v(t0)}, {s(sT1)}
        v_mul_u32_u24 {v(t2)}, 12, {v(t1)}
        v_sub_u32 {v(t2)}, {v(t0)}, {v(t2)}
        v_mul_u32_u24 {v(t1)}, 2752, {v(t1)}
        v_add_u32 {v(t1)}, {s(sT0)}, {v(t1)}
        v_subrev_u32 {v(t1)}, {1024*i}, {v(t1)}
        v_subrev_u32 {v(t2)}, {s(sT2)}, {v(t2)}
        v_add_u32 {v(t0)}, 12, {v(t2)}
        v_cmp_gt_i32 vcc, 0, {v(t2)}
        v_cndmask_b32 {v(t2)}, {v(t2)}, {v(t0)}, vcc
        v_lshl_add_u32 {v(vP3+i)}, {v(t2)}, 4, {v(t1)}
        """
    return out
def w3_dma(c, base, vP3):
    g = [f"""
    s_xor_b32 {s(sB0)}, {s(sROT3)}, {lch(c)}
    s_mul_i32 {s(sB0)}, {s(sB0)}, {64*2752}
    s_add_u32 {s(sB0)}, {s(sB0)}, {s(sW3G)}
    s_add_u32 m0, {s(sW3S)}, {base}
    s_add_u32 {s(sB1)}, {s(sB0)}, {16*2752}
    buffer_load_dwordx4 {v(vP3+0)}, {s(SMU,4)}, {s(sB0)} offen lds
    """]
    g.append(f"buffer_load_dwordx4 {v(vP3+1)}, {s(SMU,4)}, {s(sB0)} offen offset:1024 lds")
    g.append(f"buffer_load_dwordx4 {v(vP3+2)}, {s(SMU,4)}, {s(sB0)} offen offset:2048 lds")
    g.append(f"""
    s_add_u32 m0, {s(sW3S)}, {base + 3072}
    s_nop 0
    buffer_load_dwordx4 {v(vP3+0)}, {s(SMU,4)}, {s(sB1)} offen lds
    """)
    g.append(f"buffer_load_dwordx4 {v(vP3+1)}, {s(SMU,4)}, {s(sB1)} offen offset:1024 lds")
    g.append(f"buffer_load_dwordx4 {v(vP3+2)}, {s(SMU,4)}, {s(sB1)} offen offset:2048 lds")
    g.append(('TAG', f"w3_{c}"))
    return g
def p4_table():
    tb = [f"""
    s_mul_i32 {s(sT0)}, {s(sRBL)}, 11
    s_lshr_b32 {s(sT0)}, {s(sT0)}, 1
    s_lshl_b32 {s(sT0)}, {s(sT0)}, 12
    s_lshl_b32 {s(sT1)}, {s(sW)}, 10
    """]
    for j in range(22):
        tb.append(f"""
        s_add_u32 {s(sKO+j)}, {s(sT0)}, {s(sT1)}
        s_add_u32 {s(sT0)}, {s(sT0)}, 4096
        s_cmp_eq_u32 {s(sT0)}, {22*4096}
        s_cselect_b32 {s(sT0)}, 0, {s(sT0)}
        """)
    return tb
def ks_addr(a_base, tile_stride, vL16, d0, d1):
    return f"""
    s_and_b32 {s(sT1)}, {s(sRB)}, 1
    s_lshl_b32 {s(sT1)}, {s(sT1)}, 1
    s_lshr_b32 {s(sT0)}, {s(sW)}, 1
    s_add_u32 {s(sT2)}, {s(sT1)}, {s(sT0)}
    s_xor_b32 {s(sT1)}, {s(sT2)}, 1
    s_mul_i32 {s(sT1)}, {s(sT1)}, {tile_stride}
    s_mul_i32 {s(sT2)}, {s(sT2)}, {tile_stride}
    s_add_u32 {s(sT1)}, {s(sT1)}, {a_base}
    s_add_u32 {s(sT2)}, {s(sT2)}, {a_base}
    v_add_u32 {v(d0)}, {s(sT1)}, {v(vL16)}
    v_add_u32 {v(d1)}, {s(sT2)}, {v(vL16)}
    """
W3SLOT = {0: S2, 1: S0, 2: S1, 3: S2, 4: S0, 5: S1, 6: S2, 7: S0}
W3BAR = {3: 3, 4: 7, 5: 11, 6: 15, 7: 19}
NB4 = 11
PFORD = [2, 3, 4]

def prog_a(G):
    A = G.A; cfg = G.cfg
    t0, t1, t2, t3, t4 = 1, 2, 3, 4, 5
    vXa0, vXa1, vWa, vS1, vS2, vOA, vRA = 8, 9, 10, 11, 12, 13, 14
    FA, FB = 16, 48
    ACC = 80
    vL16, vFE, vW3o, vW3s, vA01, vA23, vP3 = 148, 150, 149, 152, 153, 154, 155
    BIAS = 160
    G.sv = (158, 146); G.vS = 159
    Qa = lambda T: ACC + 4 * T
    Ka = lambda T: ACC + 20 + 4 * T
    Va = lambda T: ACC + 40 + 4 * T
    if cfg.prioA: G(f"s_setprio {cfg.prioA}")
    G(f"""
    v_lshlrev_b32 {v(vL16)}, 4, v0
    s_mul_i32 {s(sT0)}, {s(sCB)}, 10
    s_mul_i32 {s(sT1)}, {s(sW)}, 3
    s_add_u32 {s(sT0)}, {s(sT0)}, {s(sT1)}
    s_lshl_b32 {s(sT5)}, {s(sRB)}, 6
    s_mov_b32 {s(SX+2)}, {2048*1024}
    s_mov_b32 {s(SX+3)}, 0x20000
    """)
    for k in range(3):
        G(f"""
        s_add_u32 {s(sT1)}, {s(sT0)}, {k}
        s_min_u32 {s(sT1)}, {s(sT1)}, 79
        s_and_b32 {s(sT2)}, {s(sT1)}, 15
        s_lshr_b32 {s(sT3)}, {s(sT1)}, 5
        s_lshl_b32 {s(sT3)}, {s(sT3)}, 5
        s_lshl_b32 {s(sT4)}, {s(sT2)}, 1
        s_add_u32 {s(sT3)}, {s(sT3)}, {s(sT4)}
        s_bfe_u32 {s(sT4)}, {s(sT1)}, {4 | (1 << 16)}
        s_add_u32 {s(sT3)}, {s(sT3)}, {s(sT4)}
        s_add_u32 {s(sT3)}, {s(sT3)}, {s(sT5)}
        s_add_u32 {s(sT2)}, {s(sT2)}, {s(sT5)}
        s_sub_i32 {s(sT2)}, {s(sT2)}, 16
        s_max_i32 {s(sT2)}, {s(sT2)}, 0
        s_cmp_ge_u32 {s(sT1)}, 64
        s_cselect_b32 {s(sT3)}, {s(sT2)}, {s(sT3)}
        s_lshl_b32 {s(sMX+k)}, {s(sT3)}, 10
        """)
    XS = 208
    G(f"""
    s_waitcnt lgkmcnt(0)
    s_mov_b32 {s(SX)}, s64
    s_and_b32 {s(SX+1)}, s65, 0xffff
    buffer_load_dwordx4 {v(XS,4)}, {v(vL16)}, {s(SX,4)}, {s(sMX)} offen
    buffer_load_dwordx4 {v(XS+4,4)}, {v(vL16)}, {s(SX,4)}, {s(sMX+1)} offen
    buffer_load_dwordx4 {v(XS+8,4)}, {v(vL16)}, {s(SX,4)}, {s(sMX+2)} offen
    v_lshrrev_b32 {v(t2)}, 4, {v(vL)}
    v_and_b32 {v(t0)}, 15, {v(vL)}
    v_lshrrev_b32 {v(t1)}, 1, {v(t0)}
    v_xor_b32 {v(t1)}, {v(t1)}, {v(t2)}
    v_lshlrev_b32 {v(t1)}, 4, {v(t1)}
    v_lshl_add_u32 {v(vXa0)}, {v(t0)}, 7, {v(t1)}
    v_xor_b32 {v(vXa1)}, 64, {v(vXa0)}
    v_mul_u32_u24 {v(vWa)}, 3072, {v(t2)}
    v_bfe_u32 {v(t1)}, {v(vL)}, 2, 2
    v_lshl_add_u32 {v(vWa)}, {v(t1)}, 7, {v(vWa)}
    v_lshrrev_b32 {v(t1)}, 1, {v(t1)}
    v_and_b32 {v(t3)}, 1, {v(t2)}
    v_lshl_or_b32 {v(t1)}, {v(t3)}, 1, {v(t1)}
    v_xor_b32 {v(t1)}, {s(sW)}, {v(t1)}
    v_lshl_add_u32 {v(vWa)}, {v(t1)}, 5, {v(vWa)}
    v_and_b32 {v(t1)}, 3, {v(vL)}
    v_lshl_add_u32 {v(vWa)}, {v(t1)}, 3, {v(vWa)}
    v_add_u32 {v(vWa)}, {WRING}, {v(vWa)}
    v_lshlrev_b32 {v(vS1)}, 2, {v(t0)}
    v_add_u32 {v(vS1)}, {STATS1}, {v(vS1)}
    v_lshlrev_b32 {v(vS2)}, 4, {v(t2)}
    v_add_u32 {v(vS2)}, {STATS1}, {v(vS2)}
    v_lshrrev_b32 {v(t1)}, 3, {v(vL)}
    v_mul_u32_u24 {v(t1)}, {XCH}, {v(t1)}
    v_and_b32 {v(t3)}, 7, {v(vL)}
    v_lshl_add_u32 {v(t1)}, {v(t3)}, 4, {v(t1)}
    v_mov_b32 {v(FA)}, {s(sONE)}
    v_mov_b32 {v(FA+1)}, {s(sONE)}
    v_mov_b32 {v(FA+2)}, {s(sONE)}
    v_mov_b32 {v(FA+3)}, {s(sONE)}
    ds_write_b128 {v(t1)}, {v(FA,4)} offset:8192
    """)
    NEG = "0xf149f2ca"
    G(f"""
    v_mov_b32 {v(t4)}, {NEG}
    v_lshlrev_b32 {v(t1)}, 2, {v(t2)}
    v_sub_u32 {v(t3)}, {v(t0)}, {v(t1)}
    """)
    for r in range(4):
        G(f"""
        v_subrev_u32 {v(t1)}, {r}, {v(t3)}
        v_cmp_ge_u32 vcc, 7, {v(t1)}
        v_cmp_ge_i32 {s(sT4,2)}, -9, {v(t1)}
        v_cndmask_b32 {v(BIAS+r)}, {v(t4)}, 0, vcc
        v_cndmask_b32 {v(BIAS+4+r)}, {v(t4)}, 0, {s(sT4,2)}
        """)
    G(f"""
    s_cmp_eq_u32 {s(sRB)}, 0
    s_cselect_b32 {s(sT0)}, 64, 2
    v_lshlrev_b32 {v(t1)}, 2, {v(t2)}
    v_lshlrev_b32 {v(t3)}, 1, {v(t0)}
    v_sub_u32 {v(t3)}, {v(t1)}, {v(t3)}
    v_subrev_u32 {v(t3)}, {s(sT0)}, {v(t3)}
    v_cmp_le_i32 vcc, 0, {v(t3)}
    v_cmp_le_i32 {s(sT4,2)}, -2, {v(t3)}
    v_mov_b32 {v(BIAS+9)}, {v(t4)}
    v_mov_b32 {v(BIAS+11)}, {v(t4)}
    v_mov_b32 {v(BIAS+12)}, {v(t4)}
    v_mov_b32 {v(BIAS+14)}, {v(t4)}
    v_cndmask_b32 {v(BIAS+8)}, {v(t4)}, 0, vcc
    v_cndmask_b32 {v(BIAS+10)}, {v(t4)}, 0, {s(sT4,2)}
    v_cndmask_b32 {v(BIAS+13)}, {v(t4)}, 0, vcc
    v_cndmask_b32 {v(BIAS+15)}, {v(t4)}, 0, {s(sT4,2)}
    s_waitcnt lgkmcnt(0)
    """)
    G(common_srds(cfg))
    G.stamp('start')
    G(f"""
    s_and_b32 {s(sO0)}, {s(sRB)}, 1
    s_lshl_b32 {s(sO0)}, {s(sO0)}, 16
    s_lshl_b32 {s(sT1)}, {s(sCB)}, 12
    s_add_u32 {s(sO0)}, {s(sO0)}, {s(sT1)}
    s_lshl_b32 {s(sT1)}, {s(sW)}, 10
    s_add_u32 {s(sO0)}, {s(sO0)}, {s(sT1)}
    s_add_u32 {s(sO0)}, {s(sO0)}, {L.O_OFF}
    s_add_u32 {s(sO1)}, {s(sO0)}, 32768
    v_and_b32 {v(vOA)}, 15, v0
    v_bfe_u32 v3, v0, 4, 1
    v_lshl_add_u32 {v(vOA)}, v3, 5, {v(vOA)}
    v_lshrrev_b32 v3, 5, v0
    v_lshl_add_u32 {v(vOA)}, v3, 4, {v(vOA)}
    v_lshlrev_b32 {v(vOA)}, 4, {v(vOA)}
    s_lshl_b32 {s(sT0)}, {s(sG)}, 3
    v_mov_b32 {v(vRA)}, {s(sT0)}
    """)
    SA = 224
    G0 = G; stat = []
    G = lambda t: stat.extend(x.strip() for x in t.strip().split('\n') if x.strip())
    for i in range(3): G(f"v_mov_b64 {v(SA+2*i,2)}, 0")
    for j in range(4):
        for k in range(3):
            G(f"v_dot2c_f32_bf16 {v(SA+2*k)}, {s(sONE)}, {v(XS+4*k+j)}\nv_dot2c_f32_bf16 {v(SA+2*k+1)}, {v(XS+4*k+j)}, {v(XS+4*k+j)}")
    for dpp in ("quad_perm:[1,0,3,2]", "quad_perm:[2,3,0,1]", "row_half_mirror", "row_mirror"):
        for i in range(6): G(f"v_add_f32_dpp {v(SA+i)}, {v(SA+i)}, {v(SA+i)} {dpp} row_mask:0xf bank_mask:0xf")
    for sw in ("v_permlane16_swap_b32", "v_permlane32_swap_b32"):
        for i in range(6): G(f"v_mov_b32 {v(SA+8+i)}, {v(SA+i)}")
        for i in range(6): G(f"{sw} {v(SA+i)}, {v(SA+8+i)}")
        for i in range(6): G(f"v_add_f32 {v(SA+i)}, {v(SA+i)}, {v(SA+8+i)}")
    for i in range(6): G(f"v_mul_f32 {v(SA+i)}, 0x3b000000, {v(SA+i)}")
    for k in range(3): G(f"v_fma_f32 {v(SA+2*k+1)}, -{v(SA+2*k)}, {v(SA+2*k)}, {v(SA+2*k+1)}")
    for k in range(3): G(f"v_max_f32 {v(SA+2*k+1)}, 0, {v(SA+2*k+1)}")
    for k in range(3): G(f"v_add_f32 {v(SA+2*k+1)}, 0x3727c5ac, {v(SA+2*k+1)}")
    for k in range(3): G(f"v_rsq_f32 {v(SA+2*k+1)}, {v(SA+2*k+1)}")
    G(f"""
    s_mul_i32 {s(sT0)}, {s(sW)}, 24
    s_add_u32 {s(sT0)}, {s(sT0)}, {STG}
    v_mov_b32 v2, {s(sT0)}
    """)
    for k in range(3): G(f"v_mul_f32 {v(SA+2*k)}, -{v(SA+2*k)}, {v(SA+2*k+1)}")
    for k in range(3): G(f"ds_write_b64 v2, {v(SA+2*k,2)} offset:{8*k}")
    G = G0
    K2 = [60, 61, 62, 63, 86, 58, 59, 101]
    G(f"""
    s_lshl_b32 {s(sR2)}, {s(sRBL)}, 13
    s_lshl_b32 {s(sW1K)}, {s(sW)}, 10
    s_and_b32 {s(sA3)}, {s(sRB)}, 1
    s_lshl_b32 {s(sA3)}, {s(sA3)}, 16
    s_add_u32 {s(sA3)}, {s(sA3)}, {L.O_OFF}
    """)
    for j in range(8):
        G(f"""
        s_add_u32 {s(K2[j])}, {s(sR2)}, {j*4096}
        s_and_b32 {s(K2[j])}, {s(K2[j])}, 32767
        s_add_u32 {s(K2[j])}, {s(K2[j])}, {s(sW1K)}
        """)
    G(f"v_mov_b32 v2, {CNT}\nv_mov_b64 v[4:5], 0\nds_write_b64 v2, v[4:5]\nds_write_b64 v2, v[4:5] offset:8")
    G.lwait_all()
    late = [x.strip() for x in w3_setup(vP3, t0, t1, t2).strip().split('\n') if x.strip()]
    late += [x.strip() for x in (f"""
    s_mov_b32 {s(sT4)}, {S0}
    s_lshl_b32 {s(sT0)}, {s(sW)}, 5
    s_lshr_b32 {s(sT1)}, {s(sW)}, 1
    s_lshl_b32 {s(sT1)}, {s(sT1)}, 5
    s_add_u32 {s(sT1)}, {s(sT1)}, 128
    v_lshrrev_b32 {v(t0)}, 5, {v(vL)}
    v_bfe_u32 {v(t1)}, {v(vL)}, 2, 2
    v_lshl_add_u32 {v(t0)}, {v(t0)}, 4, {v(t1)}
    v_mul_u32_u24 {v(t0)}, 192, {v(t0)}
    v_bfe_u32 {v(t1)}, {v(vL)}, 4, 1
    v_mul_u32_u24 {v(t2)}, 12288, {v(t1)}
    v_add3_u32 {v(t0)}, {v(t0)}, {v(t2)}, {s(sT4)}
    v_and_b32 {v(t2)}, 3, {v(vL)}
    v_lshlrev_b32 {v(t2)}, 3, {v(t2)}
    v_lshl_add_u32 {v(t2)}, {v(t1)}, 5, {v(t2)}
    v_add3_u32 {v(vW3o)}, {v(t0)}, {v(t2)}, {s(sT0)}
    v_add_u32 {v(t2)}, {s(sT1)}, {v(t2)}
    v_subrev_u32 {v(t3)}, 192, {v(t2)}
    v_cmp_le_u32 vcc, 192, {v(t2)}
    v_cndmask_b32 {v(t2)}, {v(t2)}, {v(t3)}, vcc
    v_add_u32 {v(vW3s)}, {v(t0)}, {v(t2)}
    s_and_b32 {s(sT0)}, {s(sW)}, 1
    s_lshl_b32 {s(sT0)}, {s(sT0)}, 13
    v_add_u32 {v(vA01)}, {s(sT0)}, {v(vL16)}
    v_xor_b32 {v(vA23)}, 0x2000, {v(vA01)}
    """).strip().split('\n') if x.strip()]
    late += p4_table()
    def reads(F, kh):
        xs = [f"ds_read_b128 {v(F+4*T,4)}, {v(vXa1 if kh else vXa0)} offset:{T*2048}" for T in range(5)]
        ws = [f"ds_read_b64_tr_b16 {v(F+20+4*sct+2*half,2)}, {v(vWa)} offset:{kh*12288+sct*1024+half*512}" for sct in range(3) for half in range(2)]
        return ws[:2] + xs[:1] + ws[2:4] + xs[1:2] + ws[4:] + xs[2:]
    def mfmas(F, first=False):
        out = []
        for T in range(5):
            x = v(F+4*T, 4)
            c = lambda r: "0" if first else v(r, 4)
            out.append(f"v_mfma_f32_16x16x32_bf16 {v(Qa(T),4)}, {v(F+20,4)}, {x}, {c(Qa(T))}")
            out.append(f"v_mfma_f32_16x16x32_bf16 {v(Ka(T),4)}, {v(F+24,4)}, {x}, {c(Ka(T))}")
            out.append(f"v_mfma_f32_16x16x32_bf16 {v(Va(T),4)}, {x}, {v(F+28,4)}, {c(Va(T))}")
        return out
    def adv(i):
        d = WSLOT if (i + 1) % 3 else (-2 * WSLOT) & 0xffffffff
        return [f"v_add_u32 {v(vWa)}, {d}, {v(vWa)}", f"v_add_u32 {v(vXa0)}, {XCH}, {v(vXa0)}", f"v_add_u32 {v(vXa1)}, {XCH}, {v(vXa1)}"]
    G.bar('c0')
    G.stamp('c0')
    for x in reads(FA, 0): G(x)
    for i in range(8):
        extra = [f"buffer_load_dwordx2 {v(vFE,2)}, {v(vRA)}, {s(SDBG,4)}, 0 offen offset:128 sc1"] if i == 6 else []
        G.front(mfmas(FA, i == 0), reads(FB, 1) + (adv(i) if i < 7 else []) + extra)
        if i < 3:
            k3 = (len(stat) + 2) // 3
            for x in stat[i*k3:(i+1)*k3]: G(x)
        elif i < 7:
            k4 = (len(late) + 3) // 4
            for x in late[(i-3)*k4:(i-2)*k4]: G(x)
        G.lwait_all()
        G.bar(f'c{i+1}' if i < 7 else 'stats')
        LA = 16; LBa = 28; LBb = 208
        if i < 7: G.front(mfmas(FB), reads(FA, 0))
        else:
            sr = [f"ds_read2_b32 {v(LA+2*T,2)}, {v(vS1)} offset0:{T*16} offset1:{T*16+128}" for T in range(5)]
            for T in range(5): sr += [f"ds_read_b128 {v(LBa+4*T,4)}, {v(vS2)} offset:{T*64}", f"ds_read_b128 {v(LBb+4*T,4)}, {v(vS2)} offset:{T*64+512}"]
            m = mfmas(FB)
            G.front(m[12:] + m[:12], sr)
    G.stamp('p1loop')
    G(f"""
    v_add_u32 v8, {s(sA3)}, {v(vL16)}
    v_add_u32 v9, 0x8000, v8
    """)
    CSQ, CSK, CSV = 228, 232, 236
    TMP = 140
    regdecode(G, vFE, vRA)
    for r in range(4):
        G(f"v_mov_b32_dpp {v(CSQ+r)}, {v(Qa(4)+r)} row_newbcast:0 row_mask:0xf bank_mask:0xf")
        G(f"v_mov_b32_dpp {v(CSK+r)}, {v(Ka(4)+r)} row_newbcast:0 row_mask:0xf bank_mask:0xf")
    G(f"""
    v_mov_b32 {v(CSV)}, {v(Va(4))}
    v_mov_b32 {v(CSV+1)}, {v(Va(4))}
    v_permlane16_swap_b32 {v(CSV)}, {v(CSV+1)}
    v_mov_b32 {v(CSV+1)}, {v(CSV)}
    v_permlane32_swap_b32 {v(CSV)}, {v(CSV+1)}
    v_mov_b32 {v(CSV+1)}, {v(CSV)}
    """)
    QP = 176; KP = 184; VP = 196
    vpos = {2: 0, 0: 2, 4: 4, 1: 6, 3: 8}
    def norm_qk(acc, cs, T, dst, tmp):
        ab = v(LA+2*T, 2)
        for hlf in range(2): G(f"v_pk_mul_f32 {v(tmp+2*hlf,2)}, {v(cs+2*hlf,2)}, {ab} op_sel:[0,1] op_sel_hi:[1,1]")
        for hlf in range(2): G(f"v_pk_fma_f32 {v(acc+2*hlf,2)}, {v(acc+2*hlf,2)}, {ab}, {v(tmp+2*hlf,2)} op_sel:[0,0,0] op_sel_hi:[1,0,1]")
        for hlf in range(2): G(f"v_cvt_pk_bf16_f32 {v(dst+hlf)}, {v(acc+2*hlf)}, {v(acc+2*hlf+1)}")
    for T in (4, 0, 1, 2, 3):
        norm_qk(Ka(T), CSK, T, KP+2*T, TMP)
        if T < 4: norm_qk(Qa(T), CSQ, T, QP+2*T, 240)
    for T in range(5):
        acc = Va(T); tmp = TMP if T & 1 else 240
        for hlf in range(2): G(f"v_pk_mul_f32 {v(tmp+2*hlf,2)}, {v(LBb+4*T+2*hlf,2)}, {v(CSV,2)}")
        for hlf in range(2): G(f"v_pk_fma_f32 {v(acc+2*hlf,2)}, {v(acc+2*hlf,2)}, {v(LBa+4*T+2*hlf,2)}, {v(tmp+2*hlf,2)}")
    SC = lambda T: ACC + 8*T
    ONE4 = 244
    vcv = [f"v_cvt_pk_bf16_f32 {v(VP+vpos[T]+hlf)}, {v(Va(T)+2*hlf)}, {v(Va(T)+2*hlf+1)}" for T in range(5) for hlf in range(2)]
    vcv += [f"v_mov_b32 {v(ONE4+i)}, {s(sONE)}" for i in range(4)] + [f"s_mov_b32 {s(sT0)}, 0x3eb8aa3b"]
    sm = []
    for T in range(4):
        prev = T - 2 if T >= 2 else 4
        bprev = BIAS + 4 if T >= 2 else BIAS + 8 + 4*T
        sm.append(f"v_mfma_f32_16x16x16_bf16 {v(SC(T),4)}, {v(KP+2*T,2)}, {v(QP+2*T,2)}, {v(BIAS,4)}")
        sm.append(f"v_mfma_f32_16x16x16_bf16 {v(SC(T)+4,4)}, {v(KP+2*prev,2)}, {v(QP+2*T,2)}, {v(bprev,4)}")
    G.spread(sm, vcv)
    MX = 16; M2 = 20
    PP = 32; OA = 48; LS = 208
    for T in range(4):
        b = SC(T)
        G(f"""
        v_max3_f32 {v(MX+T)}, {v(b)}, {v(b+1)}, {v(b+2)}
        v_max3_f32 {v(M2+T)}, {v(b+3)}, {v(b+4)}, {v(b+5)}
        """)
    for T in range(4): G(f"v_max3_f32 {v(MX+T)}, {v(MX+T)}, {v(SC(T)+6)}, {v(SC(T)+7)}")
    for T in range(4): G(f"v_max_f32 {v(MX+T)}, {v(MX+T)}, {v(M2+T)}")
    G(f"""
    v_permlane16_swap_b32 {v(MX)}, {v(MX+1)}
    v_permlane16_swap_b32 {v(MX+2)}, {v(MX+3)}
    v_max_f32 {v(MX)}, {v(MX)}, {v(MX+1)}
    v_max_f32 {v(MX+2)}, {v(MX+2)}, {v(MX+3)}
    v_permlane32_swap_b32 {v(MX)}, {v(MX+2)}
    v_max_f32 {v(MX)}, {v(MX)}, {v(MX+2)}
    v_mul_f32 {v(MX)}, {s(sT0)}, {v(MX)}
    v_mov_b32 {v(MX+2)}, {v(MX)}
    v_permlane32_swap_b32 {v(MX)}, {v(MX+2)}
    v_mov_b32 {v(MX+1)}, {v(MX)}
    v_mov_b32 {v(MX+3)}, {v(MX+2)}
    v_permlane16_swap_b32 {v(MX)}, {v(MX+1)}
    v_permlane16_swap_b32 {v(MX+2)}, {v(MX+3)}
    """)
    win = {2: 0, 0: 2, 1: 4, 3: 6}
    for T in range(4):
        b = SC(T)
        for i in range(8): G(f"v_fma_f32 {v(b+i)}, {v(b+i)}, {s(sT0)}, -{v(MX+T)}")
        for i in range(8): G(f"v_exp_f32 {v(b+i)}, {v(b+i)}")
        first, second = (b, b+4) if T in (0, 2) else (b+4, b)
        G(f"""
        v_cvt_pk_bf16_f32 {v(PP+4*T)}, {v(first)}, {v(first+1)}
        v_cvt_pk_bf16_f32 {v(PP+4*T+1)}, {v(first+2)}, {v(first+3)}
        v_cvt_pk_bf16_f32 {v(PP+4*T+2)}, {v(second)}, {v(second+1)}
        v_cvt_pk_bf16_f32 {v(PP+4*T+3)}, {v(second+2)}, {v(second+3)}
        """)
        if T >= 1:
            U = T - 1
            G(f"v_rcp_f32 {v(LS+4*U)}, {v(LS+4*U)}")
        G(f"""
        v_mfma_f32_16x16x32_bf16 {v(LS+4*T,4)}, {v(ONE4,4)}, {v(PP+4*T,4)}, 0
        v_mfma_f32_16x16x32_bf16 {v(OA+4*T,4)}, {v(VP+win[T],4)}, {v(PP+4*T,4)}, 0
        """)
    OP = 64
    def fin(T):
        q, p = T >> 1, T & 1
        for h in range(2): G(f"v_pk_mul_f32 {v(OA+4*T+2*h,2)}, {v(OA+4*T+2*h,2)}, {v(LS+4*T,2)} op_sel:[0,0] op_sel_hi:[1,0]")
        G(f"""
        v_cvt_pk_bf16_f32 {v(OP+4*q+2*p)}, {v(OA+4*T)}, {v(OA+4*T+1)}
        v_cvt_pk_bf16_f32 {v(OP+4*q+2*p+1)}, {v(OA+4*T+2)}, {v(OA+4*T+3)}
        """)
    fin(0); fin(1); fin(2)
    G(f"""
    v_permlane32_swap_b32 {v(OP)}, {v(OP+2)}
    v_permlane32_swap_b32 {v(OP+1)}, {v(OP+3)}
    v_rcp_f32 {v(LS+12)}, {v(LS+12)}
    """)
    fin(3)
    G(f"""
    v_permlane32_swap_b32 {v(OP+4)}, {v(OP+6)}
    v_permlane32_swap_b32 {v(OP+5)}, {v(OP+7)}
    """)
    stores(G, [f"buffer_store_dwordx4 {v(OP+4*q,4)}, {v(vOA)}, {s(SWS,4)}, {s(sO0+q)} offen" for q in range(2)], "ST1")
    G.stamp('p1epi')
    signal(G, 0, vFE)
    G.stamp('sig0')
    G.bar('w3a')
    ACC = 16; CSA = 112; SEL = 120; AB = 124; W3R = 160
    G.sv = (15, 6)
    def w3_reads(l):
        out = []; blk = l % 3; base = W3SLOT[l]
        for s4 in range(4):
            for k, va in enumerate((vW3o, vW3s)):
                for half in range(2):
                    o = (base - S0) + (32*(s4 >> 1) + 8*(s4 & 1) + 4*half) * 192
                    out.append(f"ds_read_b64_tr_b16 {v(W3R + 32*blk + 8*s4 + 4*k + 2*half, 2)}, {v(va)} offset:{o}")
        return out
    def w3_colsum(l):
        blk = l % 3
        return [f"v_mfma_f32_16x16x32_bf16 {v(CSA+4*k,4)}, {v(W3R+32*blk+8*s4+4*k,4)}, {v(SEL,4)}, {v(CSA+4*k,4)}" for s4 in range(4) for k in range(2)]
    for x in w3_reads(0): G(x)
    G(f"""
    v_lshrrev_b32 v2, 4, v0
    v_xor_b32 v2, v2, v0
    v_and_b32 v2, 1, v2
    v_cmp_eq_u32 vcc, 0, v2
    v_mov_b32 v3, {s(sONE)}
    v_cndmask_b32 {v(SEL)}, 0, v3, vcc
    v_cndmask_b32 {v(SEL+1)}, 0, v3, vcc
    v_cndmask_b32 {v(SEL+2)}, 0, v3, vcc
    v_cndmask_b32 {v(SEL+3)}, 0, v3, vcc
    """)
    for i in range(4): G(f"v_mov_b64 {v(CSA+2*i,2)}, 0")
    G.front(w3_colsum(0), w3_reads(1), 2)
    for x in w3_colsum(1): G(x)
    G.lwait_all()
    G.stamp('svc')
    poll(G, 0, vFE)
    G.stamp('poll0')
    def obatch(b):
        for j in (2*b, 2*b + 1):
            for tau in range(2):
                G(f"""
                s_add_u32 m0, {s(sW1K)}, {(tau*32 + 4*j) * 1024}
                buffer_load_dwordx4 {v(8+tau)}, {s(SWS,4)}, {s(K2[j])} offen sc1 lds
                """)
        G.tag(f"o_{b}")
    obatch(0); obatch(1)
    for b in range(4):
        G.wait_tag(f"o_{b}")
        G.bar(f"o_{b}")
        if b + 2 < 4: obatch(b + 2)
    for l in PFORD[:cfg.npf]: G.items(w3_dma(l, W3SLOT[l], vP3))
    G.stamp('pf')
    G.wait_tag('w3_2')
    G.bar('a3_0')
    G.stamp('a3_0')
    NAB = 6
    def aread(n):
        st, sg = n >> 2, n & 3
        c, s4 = st >> 2, st & 3
        r = (c % 3) * 16384 + s4 * 1024
        return f"ds_read_b128 {v(AB+4*(n % NAB),4)}, {v(vA01 if sg < 2 else vA23)} offset:{r + (sg & 1)*4096}"
    A(f"""
    s_lshl_b32 {s(sT4)}, {s(sM)}, 2
    s_add_u32 {s(sT4)}, {s(sT4)}, {s(sW)}
    s_cmp_lt_u32 {s(sT4)}, 58
    s_cbranch_scc1 A_P3GO
    s_waitcnt vmcnt(0)
    """)
    for _ in range(7): A("s_barrier")
    A("s_branch A_ST3Z_DONE")
    A.label("A_P3GO")
    LEAD = 4
    nread = 0
    for n in range(LEAD): G(aread(n)); nread += 1
    fills = {st: [] for st in range(34)}; cs_at = {st: [] for st in range(34)}
    for l, b in list(W3BAR.items()) + [(2, -1)]:
        rd = w3_reads(l); cs = w3_colsum(l)
        fills[b+1] += rd[0:6]; fills[b+2] += rd[6:12]; fills[b+3] += rd[12:16]
        cs_at[b+2] += cs[0:2]; cs_at[b+3] += cs[2:6]; cs_at[b+4] += cs[6:8]
    for st in range(32):
        c, s4 = st >> 2, st & 3
        if s4 == 3 and st < 31:
            for l, b in W3BAR.items():
                if b == st and f"w3_{l}" in G.tags: G.wait_tag(f"w3_{l}")
            G.lwait_all()
            G.bar(f'p3_{st}')
        w = W3R + 32*(c % 3) + 8*s4
        fl = list(fills[st]); fi = 0
        for sg in range(4):
            n = 4*st + sg
            fr = v(AB+4*(n % NAB), 4)
            ms = [f"v_mfma_f32_32x32x16_bf16 {v(ACC+16*sg,16)}, {v(w,4)}, {fr}, {'0' if st == 0 else v(ACC+16*sg,16)}"]
            if sg < 2: ms.append(f"v_mfma_f32_32x32x16_bf16 {v(ACC+64+16*sg,16)}, {v(w+4,4)}, {fr}, {'0' if st == 0 else v(ACC+64+16*sg,16)}")
            for k, m in enumerate(ms):
                G(m)
                if k == 0 and nread < 128 and nread <= n + LEAD: G(aread(nread)); nread += 1
                if fi < len(fl): G(fl[fi]); fi += 1
        while fi < len(fl): G(fl[fi]); fi += 1
        for x in cs_at[st]: G(x)
    G.stamp('p3loop')
    G(f"""
    v_and_b32 v2, 1, v0
    v_lshrrev_b32 v3, 4, v0
    v_lshlrev_b32 v2, 6, v2
    v_lshl_add_u32 v2, v3, 4, v2
    s_lshl_b32 {s(sT5)}, {s(sW)}, 8
    s_add_u32 {s(sT5)}, {s(sT5)}, {CSX}
    v_add_u32 v2, {s(sT5)}, v2
    v_lshrrev_b32 v3, 5, v0
    v_lshlrev_b32 v3, 4, v3
    v_add_u32 v3, {s(sT5)}, v3
    ds_write_b128 v2, {v(CSA,4)}
    ds_write_b128 v2, {v(CSA+4,4)} offset:128
    s_and_b32 {s(sT0)}, {s(sW)}, 1
    s_lshl_b32 {s(sT0)}, {s(sT0)}, 9
    s_add_u32 {s(sT0)}, {s(sT0)}, {STATS3}
    v_and_b32 v13, 31, v0
    v_lshlrev_b32 v13, 3, v13
    v_add_u32 v13, {s(sT0)}, v13
    v_xor_b32 v14, 0x200, v13
    ds_read_b64 v[160:161], v13
    ds_read_b64 v[162:163], v13 offset:256
    ds_read_b64 v[164:165], v14
    ds_read_b64 v[166:167], v14 offset:256
    """)
    CS0, CS1 = 176, 192
    for tile, CSo in ((0, CS0), (1, CS1)):
        for i in range(4): G(f"ds_read_b128 {v(CSo+4*i,4)}, v3 offset:{tile*128 + (i>>1)*64 + (i&1)*32}")
    def unit_epi(U, stp, CSo):
        st = v(stp, 2)
        for h in range(8): G(f"v_pk_fma_f32 {v(U+2*h,2)}, {v(CSo+2*h,2)}, {st}, {v(U+2*h,2)} op_sel:[0,0,0] op_sel_hi:[1,0,1]")
        for i in range(8): G(f"v_max_f32 {v(U+i)}, 0, {v(U+i)}")
        for h in range(4): G(f"v_pk_mul_f32 {v(U+8+2*h,2)}, {v(U+8+2*h,2)}, {st} op_sel:[0,1] op_sel_hi:[1,1]")
        for h in range(4): G(f"v_pk_mul_f32 {v(U+2*h,2)}, {v(U+2*h,2)}, {v(U+8+2*h,2)}")
        for h in range(4): G(f"v_cvt_pk_bf16_f32 {v(U+h)}, {v(U+2*h)}, {v(U+2*h+1)}")
    G(f"""
    s_mul_i32 {s(sT0)}, {s(sM)}, 6144
    s_add_u32 {s(sT0)}, {s(sT0)}, {L.HH_OFF}
    s_and_b32 {s(sT1)}, {s(sW)}, 1
    s_mul_i32 {s(sT1)}, {s(sT1)}, {2*HHS}
    s_add_u32 {s(sT2)}, {s(sT0)}, {s(sT1)}
    s_sub_u32 {s(sT3)}, {s(sT0)}, {s(sT1)}
    s_add_u32 {s(sT3)}, {s(sT3)}, {2*HHS}
    s_lshl_b32 {s(sT0)}, {s(sW)}, 10
    v_add_u32 v8, {s(sT0)}, {v(vL16)}
    v_add_u32 v9, {HHS}, v8
    s_lshr_b32 {s(sT0)}, {s(sW)}, 1
    s_lshl_b32 {s(sT0)}, {s(sT0)}, 10
    s_add_u32 {s(sT0)}, {s(sT0)}, 4096
    v_add_u32 v10, {s(sT0)}, {v(vL16)}
    v_add_u32 v11, {HHS}, v10
    """)
    for sg in range(4): unit_epi(ACC + 16*sg, 160 + 2*sg, CS0)
    A(f"""
    s_lshl_b32 {s(sT4)}, {s(sM)}, 2
    s_add_u32 {s(sT4)}, {s(sT4)}, {s(sW)}
    s_cmp_ge_u32 {s(sT4)}, 58
    s_cbranch_scc1 A_ST3_DONE
    """)
    stores(G, [f"buffer_store_dwordx4 {v(ACC+16*sg,4)}, {v(8 + (sg & 1))}, {s(SWS,4)}, {s(sT2 if sg < 2 else sT3)} offen" for sg in range(4)], "ST3")
    for sg in range(2): unit_epi(ACC + 64 + 16*sg, 160 + 2*sg, CS1)
    A(f"""
    s_cmp_ge_u32 {s(sM)}, 14
    s_cbranch_scc1 A_ST3Z_DONE
    """)
    stores(G, [f"buffer_store_dwordx4 {v(ACC+64+16*sg,4)}, {v(10 + sg)}, {s(SWS,4)}, {s(sT2)} offen" for sg in range(2)], "ST3Z")
    A(f"""
    s_cmp_lg_u32 {s(sM)}, 15
    s_cbranch_scc1 A_ST3P_DONE
    v_mov_b64 {v(ACC,2)}, 0
    v_mov_b64 {v(ACC+2,2)}, 0
    s_mul_i32 {s(sT0)}, {s(sW)}, {HHS}
    s_add_u32 {s(sT0)}, {s(sT0)}, {L.HH_OFF + 86*1024}
    """)
    stores(G, [f"buffer_store_dwordx4 {v(ACC,4)}, {v(vL16)}, {s(SWS,4)}, {s(sT0)} offen offset:{1024*i}" for i in range(2)], "ST3P")
    G.stamp('p3epi')
    signal(G, 2, vFE)
    G.stamp('sig2')
    G(ks_addr(L.HH_OFF, HHS, vL16, 12, 13))
    G(f"""
    s_mul_i32 {s(sWB)}, {s(sW)}, 24576
    s_add_u32 {s(sWB)}, {s(sWB)}, {RING4}
    """)
    G.bar('p4start')
    poll(G, 2, vFE)
    G.stamp('poll2')
    def batch(b):
        for q in range(4*b, 4*b + 4):
            rs, j = q // 22, q % 22
            G(f"""
            s_add_u32 m0, {s(sWB)}, {(q % 24) * 1024}
            buffer_load_dwordx4 {v(12+rs)}, {s(SWS,4)}, {s(sKO+j)} offen sc1 lds
            """)
        G.tag(f"b4_{b}")
    nb = 0
    for b in range(cfg.nb0): batch(b); nb += 1
    for b in range(NB4):
        G.wait_tag(f"b4_{b}")
        G.bar(f"p4_{b}")
        k = 0
        while nb < NB4 and k < (2 if b < cfg.ramp else 1) and (nb < 6 or nb - 4 <= b): batch(nb); nb += 1; k += 1
    G.stamp('end')

def prog_b(G):
    A = G.A; cfg = G.cfg
    t0, t1, t2, t3, t4 = 1, 2, 3, 4, 5
    vXo0, vXo1, vXh, vWo, vTL, vSa, vSh, vRA = 8, 9, 10, 11, 12, 13, 14, 15
    SF = 16; SACC = 28
    vP3, vWD, vWT, vFE, vL16, vXA = 240, 243, 244, 246, 248, 249
    G.dummy = ('v', 250)
    G.sv = (251, 252); G.vS = 253
    if cfg.prioB: G(f"s_setprio {cfg.prioB}")
    G(f"""
    s_lshl_b32 {s(sT0)}, {s(sRB)}, 6
    s_lshr_b32 {s(sT1)}, {s(sW)}, 1
    s_lshl_b32 {s(sT1)}, {s(sT1)}, 5
    s_add_u32 {s(sT1)}, {s(sT1)}, {s(sT0)}
    s_and_b32 {s(sT2)}, {s(sW)}, 1
    s_add_u32 {s(sT1)}, {s(sT1)}, {s(sT2)}
    v_lshrrev_b32 {v(t0)}, 3, {v(vL)}
    v_and_b32 {v(t1)}, 7, {v(vL)}
    v_lshrrev_b32 {v(t2)}, 4, {v(vL)}
    v_xor_b32 {v(t3)}, {v(t1)}, {v(t2)}
    v_lshlrev_b32 {v(t4)}, 1, {v(t0)}
    v_add_u32 {v(t4)}, {s(sT1)}, {v(t4)}
    v_lshlrev_b32 {v(t4)}, 10, {v(t4)}
    v_lshl_add_u32 {v(vXo0)}, {v(t3)}, 4, {v(t4)}
    v_xor_b32 {v(t3)}, 4, {v(t3)}
    v_lshl_add_u32 {v(vXo1)}, {v(t3)}, 4, {v(t4)}
    v_add_u32 {v(vXo1)}, {0x4000 - 1024}, {v(vXo1)}
    s_lshl_b32 {s(sT2)}, {s(sW)}, 2
    v_add_u32 {v(t3)}, {s(sT2)}, {v(t0)}
    v_lshrrev_b32 {v(t4)}, 1, {v(t3)}
    v_and_b32 {v(t4)}, 7, {v(t4)}
    v_xor_b32 {v(t4)}, {v(t4)}, {v(t1)}
    s_sub_u32 {s(sT3)}, {s(sT0)}, 16
    v_add_u32 {v(t3)}, {s(sT3)}, {v(t3)}
    v_max_i32 {v(t3)}, 0, {v(t3)}
    v_lshlrev_b32 {v(t3)}, 10, {v(t3)}
    v_lshl_add_u32 {v(vXh)}, {v(t4)}, 4, {v(t3)}
    s_mov_b32 {s(sEXH)}, -1
    s_cmp_eq_u32 {s(sW)}, 0
    s_cselect_b32 {s(sEXH)}, 0xffffff00, {s(sEXH)}
    s_mov_b32 {s(sEXH+1)}, 0
    s_lshl_b32 {s(sT2)}, {s(sW)}, 3
    v_add_u32 {v(t3)}, {s(sT2)}, {v(t0)}
    v_mul_u32_u24 {v(t3)}, 3072, {v(t3)}
    v_and_b32 {v(t4)}, 1, {v(t2)}
    v_lshlrev_b32 {v(t4)}, 1, {v(t4)}
    s_and_b32 {s(sT2)}, {s(sW)}, 1
    s_lshl_b32 {s(sT2)}, {s(sT2)}, 2
    v_or_b32 {v(t4)}, {s(sT2)}, {v(t4)}
    v_xor_b32 {v(t4)}, {v(t4)}, {v(t1)}
    v_lshl_add_u32 {v(vWo)}, {v(t4)}, 4, {v(t3)}
    s_lshl_b32 {s(sT2)}, {s(sCB)}, 7
    v_add_u32 {v(vWo)}, {s(sT2)}, {v(vWo)}
    s_lshl_b32 {s(sT4)}, {s(sIDX)}, 2
    s_add_u32 {s(sT4)}, {s(sT4)}, {s(sW)}
    s_lshl_b32 {s(sTB)}, {s(sT4)}, 11
    s_mul_i32 {s(sTB1)}, {s(sT4)}, 1536
    v_lshrrev_b32 {v(vTL)}, 2, {v(vL)}
    v_lshlrev_b32 {v(vTL)}, 7, {v(vTL)}
    s_and_b32 {s(sSX)}, {s(sRBL)}, {cfg.rotm}
    s_lshl_b32 {s(sSX)}, {s(sSX)}, {cfg.rots}
    s_add_u32 {s(sSX)}, {s(sSX)}, {s(sCB)}
    s_lshl_b32 {s(sMX)}, {s(sW)}, 11
    s_lshl_b32 {s(sMH)}, {s(sW)}, 9
    s_add_u32 {s(sMH)}, {s(sMH)}, 8192
    s_mul_i32 {s(sMW)}, {s(sW)}, 3072
    s_add_u32 {s(sMW)}, {s(sMW)}, {WRING}
    s_mov_b32 {s(SX+2)}, {2048*1024}
    s_mov_b32 {s(SX+3)}, 0x20000
    s_mov_b32 {s(SW1+2)}, {512*3072}
    s_mov_b32 {s(SW1+3)}, 0x20000
    s_waitcnt lgkmcnt(0)
    s_mov_b32 {s(SX)}, s64
    s_and_b32 {s(SX+1)}, s65, 0xffff
    s_mov_b32 {s(SW1)}, s66
    s_and_b32 {s(SW1+1)}, s67, 0xffff
    """)
    def dma_chunk(c):
        sl = (c % 3) * WSLOT
        W = lambda o: f"buffer_load_dwordx4 {v(vWo)}, {s(SW1,4)}, {s(sB0)} offen offset:{o} lds"
        return [f"""
        s_add_u32 m0, {s(sMW)}, {sl}
        s_add_u32 {s(sB1)}, {s(sSX)}, {c}
        s_and_b32 {s(sB1)}, {s(sB1)}, 7
        s_mul_i32 {s(sB0)}, {s(sB1)}, 196608
        s_lshl_b32 {s(sB1)}, {s(sB1)}, 7
        {W(0)}
        """, W(1024), W(2048), f"""
        s_add_u32 m0, {s(sMX)}, {c*XCH}
        s_add_u32 {s(sB0)}, {s(sB0)}, {32*3072}
        buffer_load_dwordx4 {v(vXo0)}, {s(SX,4)}, {s(sB1)} offen lds
        """, f"buffer_load_dwordx4 {v(vXo1)}, {s(SX,4)}, {s(sB1)} offen offset:1024 lds", f"""
        s_add_u32 m0, {s(sMH)}, {c*XCH}
        s_mov_b64 exec, {s(sEXH,2)}
        buffer_load_dwordx4 {v(vXh)}, {s(SX,4)}, {s(sB1)} offen lds
        s_mov_b64 exec, -1
        """, f"""
        s_add_u32 m0, {s(sMW)}, {sl + 4*3072}
        s_nop 0
        {W(0)}
        """, W(1024), W(2048), ('TAG', f"c{c}")]
    def t1w(r):
        if not cfg.touch or r > 7: return []
        return [f"""
        s_add_u32 {s(sB0)}, {s(sTB1)}, {r*196608}
        buffer_load_dword v250, {v(vTL)}, {s(SW1,4)}, {s(sB0)} offen
        """]
    if cfg.touch:
        G(f"""
        s_lshl_b32 {s(sB0)}, {s(sXCD)}, 18
        s_add_u32 {s(sB0)}, {s(sB0)}, {s(sTB)}
        buffer_load_dword v250, {v(vTL)}, {s(SX,4)}, {s(sB0)} offen
        """)
    G.items(dma_chunk(0) + t1w(1) + t1w(2))
    G(common_srds(cfg) + srd(SWO, 68, 512*1024) + srd(SWD, 76, 1376*1024) + srd(SOUT, 78, 2048*1024))
    A(f"""
    s_cmp_lg_u32 {s(sW)}, 0
    s_cbranch_scc1 REG_DONE
    s_and_b32 {s(sXCC)}, {s(sXCC)}, 7
    s_mul_i32 {s(sT0)}, {s(sXCC)}, {s(sXCC)}
    s_lshl_b32 {s(sT0)}, {s(sT0)}, 12
    s_lshl_b32 {s(sT1)}, {s(sXCC)}, 5
    s_or_b32 {s(sT0)}, {s(sT0)}, {s(sT1)}
    s_or_b32 {s(sT0)}, {s(sT0)}, 1
    s_lshl_b64 {s(sT4,2)}, {s(sTS,2)}, 22
    s_or_b32 {s(sT0)}, {s(sT0)}, {s(sT4)}
    v_mov_b32 v2, {s(sT0)}
    v_mov_b32 v3, {s(sT5)}
    s_lshl_b32 {s(sT1)}, {s(sG)}, 3
    v_mov_b32 v4, {s(sT1)}
    s_mov_b64 exec, 1
    buffer_atomic_add_x2 v[2:3], v4, {s(SDBG,4)}, 0 offen offset:128 sc1
    s_mov_b64 exec, -1
    """)
    A.label("REG_DONE")
    G.stamp('start')
    G.items(dma_chunk(1) + t1w(3))
    G(f"""
    v_lshlrev_b32 {v(vL16)}, 4, v0
    s_lshl_b32 {s(sT0)}, {s(sW)}, 11
    s_lshl_b32 {s(sT1)}, {s(sW)}, 9
    s_add_u32 {s(sT1)}, {s(sT1)}, 8192
    v_add_u32 {v(vSh)}, {s(sT1)}, {v(vL16)}
    v_add_u32 {v(vSa)}, {s(sT0)}, {v(vL16)}
    v_mov_b64 {v(SACC,2)}, 0
    v_mov_b64 {v(SACC+2,2)}, 0
    v_mov_b64 {v(SACC+4,2)}, 0
    """)
    G.wait_tag('c0')
    G.bar('c0')
    G.stamp('c0')
    G.bg_on = False
    G.bg(dma_chunk(2) + t1w(4))
    setups = [w3_setup(vP3, t0, t1, t2), f"""
    v_lshrrev_b32 {v(t0)}, 3, {v(vL)}
    v_and_b32 {v(t1)}, 7, {v(vL)}
    v_bfe_u32 {v(t2)}, {v(vL)}, 4, 1
    v_lshlrev_b32 {v(t2)}, 2, {v(t2)}
    v_xor_b32 {v(t1)}, {v(t1)}, {v(t2)}
    v_lshlrev_b32 {v(t0)}, 10, {v(t0)}
    v_lshl_add_u32 {v(vWD)}, {v(t1)}, 4, {v(t0)}
    s_lshl_b32 {s(sT0)}, {s(sCB)}, 7
    v_add_u32 {v(vWD)}, {s(sT0)}, {v(vWD)}
    s_lshl_b32 {s(sT2)}, {s(sRBL)}, 1
    s_lshl_b32 {s(sWB)}, {s(sW)}, 11
    s_lshl_b32 {s(sR2)}, {s(sRBL)}, 13
    s_lshl_b32 {s(sW1K)}, {s(sW)}, 10
    """, f"""
    v_lshrrev_b32 {v(t0)}, 5, {v(vL)}
    v_bfe_u32 {v(t1)}, {v(vL)}, 2, 2
    v_lshl_add_u32 {v(t0)}, {v(t0)}, 2, {v(t1)}
    v_lshlrev_b32 {v(t0)}, 7, {v(t0)}
    v_and_b32 {v(t1)}, 1, {v(vL)}
    v_lshl_add_u32 {v(t0)}, {v(t1)}, 5, {v(t0)}
    v_bfe_u32 {v(t1)}, {v(vL)}, 4, 1
    v_lshl_add_u32 {v(t0)}, {v(t1)}, 4, {v(t0)}
    v_bfe_u32 {v(t1)}, {v(vL)}, 1, 1
    v_lshl_add_u32 {v(t0)}, {v(t1)}, 3, {v(t0)}
    v_bfe_u32 {v(t1)}, {v(vL)}, 3, 1
    s_and_b32 {s(sT0)}, {s(sW)}, 1
    v_xor_b32 {v(t1)}, {s(sT0)}, {v(t1)}
    v_lshl_add_u32 {v(vWT+1)}, {v(t1)}, 6, {v(t0)}
    v_add_u32 {v(vWT+1)}, {s(sWB)}, {v(vWT+1)}
    v_xor_b32 {v(vWT)}, 64, {v(vWT+1)}
    s_lshl_b32 {s(sA3)}, {s(sW)}, 15
    s_add_u32 {s(sA3)}, {s(sA3)}, {L.H_OFF}
    s_lshl_b32 {s(sT0)}, {s(sRB)}, 6
    s_lshr_b32 {s(sT2)}, {s(sW)}, 1
    s_lshl_b32 {s(sT2)}, {s(sT2)}, 5
    s_add_u32 {s(sT0)}, {s(sT0)}, {s(sT2)}
    s_lshl_b32 {s(sT0)}, {s(sT0)}, 10
    s_lshl_b32 {s(sT2)}, {s(sCB)}, 7
    s_add_u32 {s(sT0)}, {s(sT0)}, {s(sT2)}
    s_and_b32 {s(sT2)}, {s(sW)}, 1
    s_lshl_b32 {s(sT2)}, {s(sT2)}, 6
    s_add_u32 {s(sT0)}, {s(sT0)}, {s(sT2)}
    v_and_b32 v2, 15, v0
    v_lshlrev_b32 v2, 11, v2
    v_lshrrev_b32 v3, 4, v0
    v_lshl_add_u32 {v(vXA)}, v3, 4, v2
    v_add_u32 {v(vXA)}, {s(sT0)}, {v(vXA)}
    s_lshl_b32 {s(sT0)}, {s(sG)}, 3
    v_mov_b32 {v(vRA)}, {s(sT0)}
    s_and_b32 {s(sT0)}, {s(sRB)}, 1
    s_lshl_b32 {s(sT0)}, {s(sT0)}, 1
    s_lshr_b32 {s(sT1)}, {s(sW)}, 1
    s_add_u32 {s(sT0)}, {s(sT0)}, {s(sT1)}
    s_lshl_b32 {s(sO1)}, {s(sT0)}, 12
    s_lshl_b32 {s(sO0)}, {s(sT0)}, 15
    s_lshl_b32 {s(sT2)}, {s(sCB)}, 1
    s_and_b32 {s(sT3)}, {s(sW)}, 1
    s_add_u32 {s(sT2)}, {s(sT2)}, {s(sT3)}
    s_lshl_b32 {s(sT2)}, {s(sT2)}, 11
    s_add_u32 {s(sO0)}, {s(sO0)}, {s(sT2)}
    s_add_u32 {s(sO0)}, {s(sO0)}, {L.H_OFF}
    s_lshl_b32 {s(sT2)}, {s(sCB)}, 9
    s_add_u32 {s(sO1)}, {s(sO1)}, {s(sT2)}
    s_lshl_b32 {s(sT3)}, {s(sT3)}, 3
    s_add_u32 {s(sO1)}, {s(sO1)}, {s(sT3)}
    s_add_u32 {s(sO1)}, {s(sO1)}, {L.ST_OFF}
    """]
    def wt_dma(SWT, sko, ldsoff, tagname, vWD_):
        return [f"""
        s_lshl_b32 {s(sB0)}, {s(sko)}, 4
        s_add_u32 m0, {s(sWB)}, {ldsoff}
        s_add_u32 {s(sB1)}, {s(sB0)}, 7168
        buffer_load_dwordx4 {v(vWD_)}, {s(SWT,4)}, {s(sB0)} offen lds
        """, f"buffer_load_dwordx4 {v(vWD_)}, {s(SWT,4)}, {s(sB1)} offen offset:1024 lds", ('TAG', tagname)]
    def wt_reads(dst, ldsoff, vWT_):
        return [f"ds_read_b64_tr_b16 {v(dst + 4*k + 2*half, 2)}, {v(vWT_+k)} offset:{ldsoff + half*1024}" for k in range(2) for half in range(2)]
    def wo(j):
        g = wt_dma(SWO, sB0, j*8192, f"wo{j}", vWD)
        g[0] = f"""
        s_add_u32 {s(sB0)}, {s(sR2)}, {j*4096}
        s_and_b32 {s(sB0)}, {s(sB0)}, 32767
        s_add_u32 {s(sB0)}, {s(sB0)}, {s(sW1K)}
        """ + g[0]
        return g
    assert not cfg.touch
    XR = 224
    def one():
        if G._has(): G._one()
    G.bg_on = False
    for i in range(8):
        su = setups[i].strip().split('\n') if i < len(setups) else []
        nd = cfg.ndma if i < 7 else cfg.ndma7
        per = (len(su) + nd - 1) // max(nd, 1)
        for k in range(nd if i != 3 else 5):
            one()
            for ln in su[k*per:(k+1)*per]: G(ln)
        if i == 2:
            G(f"buffer_load_dwordx2 {v(vFE,2)}, {v(vRA)}, {s(SDBG,4)}, 0 offen offset:128 sc1")
        if i == 4:
            assert cfg.rotm == 1 and cfg.rots == 2
            G(f"""
            s_and_b32 {s(sT0)}, {s(sRBL)}, 1
            s_mul_i32 {s(sT0)}, {s(sT0)}, {4*XCH}
            s_lshr_b32 {s(sT1)}, {s(sW)}, 1
            s_lshl_b32 {s(sT1)}, {s(sT1)}, 12
            s_add_u32 {s(sT0)}, {s(sT0)}, {s(sT1)}
            v_and_b32 v2, 31, v0
            v_lshlrev_b32 v3, 7, v2
            v_add_u32 v3, {s(sT0)}, v3
            v_bfe_u32 v2, v0, 1, 3
            v_lshrrev_b32 v4, 5, v0
            v_lshlrev_b32 v4, 1, v4
            s_and_b32 {s(sT1)}, {s(sW)}, 1
            s_lshl_b32 {s(sT1)}, {s(sT1)}, 2
            v_or_b32 v4, {s(sT1)}, v4
            v_xor_b32 v4, v4, v2
            v_lshl_add_u32 v5, v4, 4, v3
            v_xor_b32 v4, 1, v4
            v_lshl_add_u32 v3, v4, 4, v3
            ds_read_b128 {v(XR,4)}, v5
            ds_read_b128 {v(XR+4,4)}, v3
            """)
            G.lwait_all()
        if i == 3:
            regdecode(G, vFE, vRA)
            G(f"""
            v_min_u32 v2, 2, v0
            s_mul_i32 {s(sT0)}, {s(sW)}, 24
            s_add_u32 {s(sT0)}, {s(sT0)}, {STG}
            v_lshlrev_b32 v3, 3, v2
            v_add_u32 v3, {s(sT0)}, v3
            ds_read_b64 v[16:17], v3
            s_mul_i32 {s(sT0)}, {s(sCB)}, 10
            s_mul_i32 {s(sT1)}, {s(sW)}, 3
            s_add_u32 {s(sT0)}, {s(sT0)}, {s(sT1)}
            v_add_u32 v2, {s(sT0)}, v2
            v_min_u32 v2, 79, v2
            v_lshlrev_b32 v2, 4, v2
            s_and_b32 {s(sT4)}, {s(sRB)}, 1
            s_mul_i32 {s(sT4)}, {s(sT4)}, 1280
            s_add_u32 {s(sT4)}, {s(sT4)}, {SG_OFF}
            v_mov_b32 v18, {v(vFE)}
            v_mov_b32 v19, {v(vFE+1)}
            v_min_u32 v20, 19, v0
            s_mul_i32 {s(sT0)}, {s(sW)}, 20
            v_add_u32 v20, {s(sT0)}, v20
            v_lshlrev_b32 v21, 2, v20
            v_add_u32 v21, {STATS1}, v21
            v_lshlrev_b32 v20, 4, v20
            s_mov_b32 {s(sMWL)}, {s(sT4)}
            """)
            stores(G, [f"buffer_store_dwordx4 v[16:19], v2, {s(SWS,4)}, {s(sT4)} offen"], "STG")
            for k in range(nd - 5): one()
        if i == 5:
            G(f"buffer_load_dwordx4 v[24:27], v20, {s(SWS,4)}, {s(sMWL)} offen sc1")
        if cfg.fine == 1: G.stamp(f'd{i}')
        if i == 7: break
        G.wait_tag(f"c{i+1}")
        G.bar(f"c{i+1}")
        if i + 3 < 8: G.bg(dma_chunk(i + 3) + t1w(i + 5))
        if i == 4:
            for j in range(6): G.bg(wo(j))
        if i == 5:
            G.bg(wo(6))
            G.bg(w3_dma(0, W3SLOT[0], vP3))
        if i == 6:
            G.bg(wo(7))
            G.bg(w3_dma(1, W3SLOT[1], vP3))
    G._autowait(Ins("v_mov_b32 v24, v27"))
    G(f"s_mov_b32 {s(sCNT)}, 0")
    A.label("SGPOLL")
    A(f"""
    v_cmp_ne_u64 vcc, v[26:27], {v(vFE,2)}
    s_add_u32 {s(sCNT)}, {s(sCNT)}, 1
    s_cbranch_vccz SGOK
    s_cmp_ge_u32 {s(sCNT)}, 20000
    s_cbranch_scc1 SGOK
    buffer_load_dwordx4 v[24:27], v20, {s(SWS,4)}, {s(sMWL)} offen sc1
    s_waitcnt vmcnt(0)
    s_branch SGPOLL
    """)
    A.label("SGOK")
    G(f"""
    ds_write_b32 v21, v25
    ds_write_b32 v21, v24 offset:512
    """)
    G.lwait_all()
    G.bar('stats')
    G.stamp('p1loop')
    G.bg_on = True
    G.flush()
    G.items(p4_table())
    G(f"""
    v_mov_b32 v11, {v(vL16)}
    v_and_b32 v14, 31, v0
    v_lshlrev_b32 v14, 4, v14
    v_lshrrev_b32 v3, 5, v0
    v_lshl_add_u32 v14, v3, 2, v14
    v_subrev_u32 v12, {s(sWB)}, {v(vWT+1)}
    s_lshr_b32 {s(sT0)}, {s(sW)}, 1
    s_lshl_b32 {s(sT0)}, {s(sT0)}, 15
    v_add_u32 v13, {s(sT0)}, {v(vL16)}
    """)
    G.wait_tag('wo7')
    G.bsync('wo')
    WO = 80
    for q in range(32):
        for half in range(2): G(f"ds_read_b64_tr_b16 {v(WO + 4*q + 2*half, 2)}, v12 offset:{q*2048 + half*1024}")
    XU = 32
    for i in range(8):
        G(f"""
        v_lshlrev_b32 {v(XU+2*i)}, 16, {v(XR+i)}
        v_and_b32 {v(XU+2*i+1)}, 0xffff0000, {v(XR+i)}
        """)
    G.wait_tag('w3_1')
    G.lwait_all()
    G.stamp('pre')
    G.bar('w3a')
    G.stamp('w3a')
    ACC2 = 16
    def red_write(u, reg):
        out = [f"""
        s_xor_b32 {s(sT5)}, {s(sW)}, {3-u}
        s_mul_i32 {s(sT5)}, {s(sT5)}, 12288
        v_add_u32 v10, {s(sT5)}, v11
        """]
        out += [f"ds_write_b128 v10, {v(reg+4*i,4)} offset:{u*4096+i*1024}" for i in range(4)]
        return out
    def red_read(RED, barname):
        out = [f"""
        s_mul_i32 {s(sT5)}, {s(sW)}, 12288
        v_add_u32 v10, {s(sT5)}, v11
        """, ('BSYNC', barname)]
        out += [f"ds_read_b128 {v(RED[i>>2]+4*(i&3),4)}, v10 offset:{i*1024}" for i in range(12)]
        return out
    def final(F, RED, XH, OUTR):
        for i in range(8): G(f"v_pk_add_f32 {v(RED[0]+2*i,2)}, {v(RED[0]+2*i,2)}, {v(RED[1]+2*i,2)}")
        for i in range(8):
            G(f"""
            v_lshlrev_b32 {v(RED[1]+2*i)}, 16, {v(XH+i)}
            v_and_b32 {v(RED[1]+2*i+1)}, 0xffff0000, {v(XH+i)}
            """)
        for i in range(8): G(f"v_pk_add_f32 {v(RED[2]+2*i,2)}, {v(RED[2]+2*i,2)}, {v(RED[1]+2*i,2)}")
        for i in range(8): G(f"v_pk_add_f32 {v(RED[0]+2*i,2)}, {v(RED[0]+2*i,2)}, {v(RED[2]+2*i,2)}")
        for i in range(8): G(f"v_pk_add_f32 {v(F+2*i,2)}, {v(F+2*i,2)}, {v(RED[0]+2*i,2)}")
        for i in range(8): G(f"v_cvt_pk_bf16_f32 {v(OUTR+i)}, {v(F+2*i)}, {v(F+2*i+1)}")
    AB2 = 48; NA2 = 6
    nr2 = 0
    def rd2():
        nonlocal nr2
        if nr2 % 8 == 0: G.bar(f"o_{nr2 // 8}")
        G(f"ds_read_b128 {v(AB2 + 4*(nr2 % NA2), 4)}, v13 offset:{nr2*1024}"); nr2 += 1
    for _ in range(NA2 - 1): rd2()
    G.stamp('poll0')
    for q in range(32):
        G(f"v_mfma_f32_32x32x16_bf16 {v(XU,16)}, {v(WO+4*q,4)}, {v(AB2+4*(q % NA2),4)}, {v(XU,16)}")
        if nr2 < 32: rd2()
    OUTR = 232
    G(f"v_mov_b64 v[16:17], 0\nv_mov_b64 v[18:19], 0")
    for i in range(8): G(f"v_cvt_pk_bf16_f32 {v(OUTR+i)}, {v(XU+2*i)}, {v(XU+2*i+1)}")
    sm, sq = 16, 17
    if cfg.fine == 2: G.stamp('fin')
    stores(G, [f"buffer_store_dwordx4 {v(OUTR,4)}, {v(vL16)}, {s(SWS,4)}, {s(sO0)} offen",
               f"buffer_store_dwordx4 {v(OUTR+4,4)}, {v(vL16)}, {s(SWS,4)}, {s(sO0)} offen offset:1024"], "ST2")
    for i in range(8):
        G(f"v_dot2c_f32_bf16 {v(sm+2*(i&1))}, {s(sONE)}, {v(OUTR+i)}")
        G(f"v_dot2c_f32_bf16 {v(sq+2*(i&1))}, {v(OUTR+i)}, {v(OUTR+i)}")
    G(f"""
    v_add_f32 {v(sm)}, {v(sm)}, {v(sm+2)}
    v_add_f32 {v(sq)}, {v(sq)}, {v(sq+2)}
    v_permlane32_swap_b32 {v(sm)}, {v(sq)}
    v_add_f32 {v(sm)}, {v(sm)}, {v(sq)}
    """)
    stores(G, [f"buffer_store_dword {v(sm)}, v14, {s(SWS,4)}, {s(sO1)} offen"], "ST2B")
    G.stamp('p2')
    signal(G, 1, vFE)
    G.stamp('sig1')
    nP3, nWD, nWT, nXA = 20, 23, 24, 1
    G(f"""
    s_mul_i32 {s(sT0)}, {s(sW)}, {8192 - 2048}
    s_add_u32 {s(sT0)}, {s(sT0)}, {WDT}
    s_add_u32 {s(sWB)}, {s(sWB)}, {s(sT0)}
    v_add_u32 {v(nWT)}, {s(sT0)}, {v(vWT)}
    v_add_u32 {v(nWT+1)}, {s(sT0)}, {v(vWT+1)}
    v_mov_b32 {v(nP3)}, {v(vP3)}
    v_mov_b32 {v(nP3+1)}, {v(vP3+1)}
    v_mov_b32 {v(nP3+2)}, {v(vP3+2)}
    v_mov_b32 {v(nWD)}, {v(vWD)}
    v_mov_b32 {v(nXA)}, {v(vXA)}
    s_mov_b32 {s(SW1)}, {s(SWS)}
    s_mov_b32 {s(SW1+1)}, {s(SWS+1)}
    s_cmp_eq_u32 {s(sM)}, 15
    s_cselect_b32 {s(SW1+2)}, 0, {L.GSTRIDE}
    s_lshl_b32 {s(sT4)}, {s(sW)}, 12
    s_add_u32 {s(sT4)}, {s(sT4)}, {L.ST_OFF}
    """)
    G.sv = (26, 28)
    G('v_mov_b32 v15, v253'); G.vS = 15
    poll(G, 1, vFE)
    G.stamp('poll1')
    def a_dma(c):
        r = (c % 3) * 16384
        g = [f"""
        s_xor_b32 {s(sB0)}, {s(sROT3)}, {lch(c)}
        s_lshl_b32 {s(sB0)}, {s(sB0)}, 12
        s_add_u32 {s(sB0)}, {s(sB0)}, {s(sA3)}
        s_lshl_b32 {s(sB1)}, {s(sW)}, 12
        s_add_u32 m0, {s(sB1)}, {r}
        s_nop 0
        buffer_load_dwordx4 v11, {s(SW1,4)}, {s(sB0)} offen sc1 lds
        """]
        for i in range(1, 4): g.append(f"buffer_load_dwordx4 v11, {s(SW1,4)}, {s(sB0)} offen offset:{1024*i} sc1 lds")
        g.append(('TAG', f"a3_{c}"))
        return g
    a1 = a_dma(1)
    G.items(a_dma(0) + a1[:2])
    G.wait_tag('a3_0')
    G.bar('a3_0')
    G.stamp('a3_0')
    G.items(a1[2:] + a_dma(2))
    SL = 32
    for i in range(4): G(f"buffer_load_dwordx4 {v(SL+4*i,4)}, v11, {s(SWS,4)}, {s(sT4)} offen offset:{1024*i} sc1")
    for l in PFORD[cfg.npf:]: G.items(w3_dma(l, W3SLOT[l], nP3))
    NR = 4
    WD_SLOT = [80 + 8*j for j in range(22)]
    wd = lambda j: wt_dma(SWD, sKO + j, (j % NR) * 2048, f"wd_{j}", nWD)
    wd_issue_period = {}
    st3 = []
    for i in range(4): st3.append(f"v_add_f32 {v(SL+4*i)}, {v(SL+4*i)}, {v(SL+4*i+2)}\nv_add_f32 {v(SL+4*i+1)}, {v(SL+4*i+1)}, {v(SL+4*i+3)}")
    st3.append(f"""
    v_add_f32 {v(SL)}, {v(SL)}, {v(SL+4)}
    v_add_f32 {v(SL+1)}, {v(SL+1)}, {v(SL+5)}
    v_add_f32 {v(SL+8)}, {v(SL+8)}, {v(SL+12)}
    v_add_f32 {v(SL+9)}, {v(SL+9)}, {v(SL+13)}
    v_add_f32 {v(SL)}, {v(SL)}, {v(SL+8)}
    v_add_f32 {v(SL+1)}, {v(SL+1)}, {v(SL+9)}
    v_mov_b32 {v(SL+2)}, {v(SL)}
    v_mov_b32 {v(SL+3)}, {v(SL+1)}
    v_permlane32_swap_b32 {v(SL)}, {v(SL+2)}
    v_permlane32_swap_b32 {v(SL+1)}, {v(SL+3)}
    v_add_f32 {v(SL)}, {v(SL)}, {v(SL+2)}
    v_add_f32 {v(SL+1)}, {v(SL+1)}, {v(SL+3)}
    v_mul_f32 {v(SL)}, 0x3b000000, {v(SL)}
    v_mul_f32 {v(SL+1)}, 0x3b000000, {v(SL+1)}
    v_fma_f32 {v(SL+1)}, -{v(SL)}, {v(SL)}, {v(SL+1)}
    v_max_f32 {v(SL+1)}, 0, {v(SL+1)}
    v_add_f32 {v(SL+1)}, 0x3727c5ac, {v(SL+1)}
    v_rcp_f32 {v(SL+1)}, {v(SL+1)}
    v_sub_f32 {v(SL)}, 0, {v(SL)}
    s_lshl_b32 {s(sT5)}, {s(sW)}, 8
    s_add_u32 {s(sT5)}, {s(sT5)}, {STATS3}
    v_and_b32 v2, 31, v0
    v_lshlrev_b32 v2, 3, v2
    v_add_u32 v2, {s(sT5)}, v2
    ds_write_b64 v2, {v(SL,2)}
    """)
    G.items(st3)
    wd_next = 0; wd_iss = 0
    def wd_cycle(period, force=False):
        nonlocal wd_next, wd_iss
        did = []
        while wd_next < wd_iss:
            j = wd_next
            lead = 2 if j < NR else 1
            if not force and period - wd_issue_period[j] < lead: break
            G.wait_tag(f"wd_{j}")
            for x in wt_reads(WD_SLOT[j], (j % NR) * 2048, nWT): G(x)
            did.append(j); wd_next += 1
        if did:
            G.lwait_all()
            for j in did:
                if wd_iss < 22:
                    G.items(wd(wd_iss)); wd_issue_period[wd_iss] = period; wd_iss += 1
    for c in range(7):
        st = 4*c + 3
        G.wait_tag(f"a3_{c+1}")
        for l, b in W3BAR.items():
            if b == st and f"w3_{l}" in G.tags: G.wait_tag(f"w3_{l}")
        G.lwait_all()
        G.bar(f'p3_{st}')
        if c + 3 < 8: G.items(a_dma(c + 3))
        heavy = False
        for l in (5, 6, 7):
            if 4*(l-5) + 3 == st: G.items(w3_dma(l, W3SLOT[l], nP3)); heavy = True
        if c == cfg.wd0:
            for j in range(NR): G.items(wd(j)); wd_issue_period[j] = c + 1
            wd_iss = NR
        elif not (heavy and cfg.skipwd): wd_cycle(c + 1)
    G.stamp('p3ld')
    while wd_next < 22: wd_cycle(99, force=True)
    G.lwait_all()
    G.stamp('wd')
    G.sv = (15, 8)
    G(f"""
    s_mul_i32 {s(sT0)}, {s(sW)}, 24576
    s_add_u32 {s(sT0)}, {s(sT0)}, {RING4}
    v_add_u32 v12, {s(sT0)}, v11
    """)
    G.bar('p4start')
    U = [16, 32, 48, 16]
    AB = 64; NAB = 4
    n = 22; skew = cfg.skew
    ops = []
    for j in range(n): ops += [(0, 0, j, j, True), (1, 1, j, j, False)]
    for j in range(n - 3):
        ops.append((2, 0, j, 22 + j, True))
        if j >= skew: ops.append((3, 1, j, 22 + j, False))
        if skew <= j < 2*skew: ops.append((3, 1, j - skew, 22 + j - skew, True))
    for j in range(n - 3, n): ops.append((2, 0, j, 22 + j, True))
    for j in range(n - 3, n): ops.append((3, 1, j, 22 + j, 'keep'))
    rd_list = [(k, o[3]) for k, o in enumerate(ops) if o[4] is True]
    slot_of = {}
    for r, (k, q) in enumerate(rd_list): slot_of[k] = r % NAB
    for k, o in enumerate(ops):
        if o[4] is False: slot_of[k] = slot_of[k-1]
        if o[4] == 'keep': slot_of[k] = slot_of[k-3]
    barred = -1
    nr = 0
    def issue_read():
        nonlocal nr, barred
        k, q = rd_list[nr]
        while barred < q // 4:
            barred += 1
            G.lwait_all() if False else None
            G.bar(f"p4_{barred}")
        G(f"ds_read_b128 {v(AB + 4*(nr % NAB), 4)}, v12 offset:{(q % 24) * 1024}")
        nr += 1
    RED = [80, 96, 112]
    XH = 128; OUTR = 136
    assert skew <= 6
    extra = {}
    w0 = red_write(0, U[0])
    extra.setdefault(2*n, []).extend(w0[:2]); extra.setdefault(2*n + 1, []).append(w0[2]); extra.setdefault(2*n + 2, []).append(w0[3]); extra.setdefault(2*n + 3, []).append(w0[4])
    i = 2*n + skew + 2
    for it in red_write(1, U[1]): extra.setdefault(i, []).append(it); i += 2
    last2 = max(k for k, o in enumerate(ops) if o[0] == 2)
    w2 = red_write(2, U[2])
    extra.setdefault(last2 + 1, []).extend(w2[:3]); extra.setdefault(last2 + 2, []).extend(w2[3:])
    assert last2 + 3 == len(ops) - 1
    rr = red_read(RED, 'red4')
    extra.setdefault(last2 + 3, []).extend(rr[:2] + rr[10:])
    e0 = last2 - 13
    assert all(not (o[0] == 3 and o[2] < 8) for o in ops[e0-2:]), 'slots still live'
    extra.setdefault(e0 - 2, []).append(f"""
    buffer_load_dwordx4 {v(XH,4)}, v11, {s(SWS,4)}, {s(sO0)} offen sc1
    buffer_load_dwordx4 {v(XH+4,4)}, v11, {s(SWS,4)}, {s(sO0)} offen offset:1024 sc1
    """)
    extra.setdefault(e0, []).extend([rr[0], ('BSYNC', 'red4a')] + rr[2:10])
    pre = [f"v_add_f32 {v(RED[0]+i)}, {v(RED[0]+i)}, {v(RED[1]+i)}" for i in range(16)]
    for i in range(8): pre += [f"v_lshlrev_b32 {v(RED[1]+2*i)}, 16, {v(XH+i)}", f"v_and_b32 {v(RED[1]+2*i+1)}, 0xffff0000, {v(XH+i)}"]
    pre += [f"v_add_f32 {v(RED[0]+i)}, {v(RED[0]+i)}, {v(RED[1]+i)}" for i in range(16)]
    for i, x in enumerate(pre): extra.setdefault(e0 + 2 + i // 4, []).append(x)
    for _ in range(NAB - 1): issue_read()
    G.stamp('p4_0')
    rdone = 0
    for k, (u, cs, j, q, fresh) in enumerate(ops):
        if u == 3 and j == skew: G.lwait(G.w0idx)
        G(f"v_mfma_f32_32x32x16_bf16 {v(U[u],16)}, {v(WD_SLOT[j]+4*cs,4)}, {v(AB+4*slot_of[k],4)}, {'0' if j == (skew if u == 3 else 0) else v(U[u],16)}")
        if fresh is True: rdone += 1
        nxt_fresh = (k + 1 == len(ops)) or (ops[k+1][4] is not False)
        while nr < len(rd_list) and nr - NAB < rdone - (0 if nxt_fresh else 1): issue_read()
        G.items(extra.get(k, []))
        if k == 2*n + 3: G.w0idx = G.lg
    for i in range(8): G(f"v_pk_add_f32 {v(RED[0]+2*i,2)}, {v(RED[0]+2*i,2)}, {v(RED[2]+2*i,2)}")
    for i in range(8): G(f"v_pk_add_f32 {v(U[3]+2*i,2)}, {v(U[3]+2*i,2)}, {v(RED[0]+2*i,2)}")
    for i in range(8): G(f"v_cvt_pk_bf16_f32 {v(OUTR+i)}, {v(U[3]+2*i)}, {v(U[3]+2*i+1)}")
    for i in range(4): G(f"v_permlane16_swap_b32 {v(OUTR+i)}, {v(OUTR+4+i)}")
    G(f"""
    buffer_store_dwordx4 {v(OUTR,4)}, {v(nXA)}, {s(SOUT,4)}, 0 offen
    buffer_store_dwordx4 {v(OUTR+4,4)}, {v(nXA)}, {s(SOUT,4)}, 0 offen offset:1024
    """)
    G.stamp('end')

def main(path, cfg):
    A = Asm()
    A.raw(HDR.rstrip('\n'))
    A.raw(f"; @launch grid=(256,1,1) block=(512,1,1) lds={LDS_TOTAL}")
    A.raw('.amdgcn_target "amdgcn-amd-amdhsa--gfx950"\n.text')
    n = NAME + "_kernel"
    A.raw(f".globl {n}\n.p2align 8\n.type {n},@function\n{n}:")
    A(f"""
    s_cmp_ge_u32 s2, 256
    s_cbranch_scc1 K_END
    s_load_dwordx16 s[64:79], s[0:1], 0
    s_load_dwordx4 s[80:83], s[0:1], 64
    s_memrealtime {s(sTS,2)}
    s_getreg_b32 {s(sXCC)}, hwreg(HW_REG_XCC_ID, 0, 4)
    v_lshrrev_b32 v1, 6, v0
    v_and_b32 v0, 63, v0
    v_readfirstlane_b32 {s(sW8)}, v1
    s_and_b32 {s(sXCD)}, s2, 7
    s_lshr_b32 {s(sIDX)}, s2, 3
    s_lshr_b32 {s(sRBL)}, {s(sIDX)}, 3
    s_and_b32 {s(sCB)}, {s(sIDX)}, 7
    s_lshl_b32 {s(sRB)}, {s(sXCD)}, 2
    s_add_u32 {s(sRB)}, {s(sRB)}, {s(sRBL)}
    s_and_b32 {s(sM)}, {s(sIDX)}, 15
    s_lshr_b32 {s(sG)}, {s(sRB)}, 1
    s_mov_b32 {s(sONE)}, 0x3f803f80
    s_and_b32 {s(sW)}, {s(sW8)}, 3
    s_cmp_lt_u32 {s(sW8)}, 4
    s_cbranch_scc1 PROG_A
    """)
    def pad(G):
        if not G.probed: return
        A(f"s_add_u32 s36, s36, 4000")
        A.label(G.pfx + "PADL")
        A(f"""
        s_memrealtime s[50:51]
        s_waitcnt lgkmcnt(0)
        s_sub_u32 s50, s50, s36
        s_cmp_lt_i32 s50, 0
        s_cbranch_scc1 {G.pfx}PADL
        """)
    GB = Gen(cfg, A, "B_"); prog_b(GB); pad(GB)
    A("s_endpgm")
    A.label("PROG_A")
    GA = Gen(cfg, A, "A_"); prog_a(GA); pad(GA)
    A.label("K_END")
    A("s_endpgm")
    assert GA.bars == GB.bars, (GA.bars, GB.bars)
    A.raw('.section .rodata,"a"\n.p2align 6')
    A.raw(f""".amdhsa_kernel {n}
  .amdhsa_next_free_vgpr 256
  .amdhsa_next_free_sgpr 102
  .amdhsa_accum_offset 256
  .amdhsa_group_segment_fixed_size 0
  .amdhsa_kernarg_size 80
  .amdhsa_user_sgpr_count 2
  .amdhsa_user_sgpr_kernarg_segment_ptr 1
  .amdhsa_system_sgpr_workgroup_id_x 1
.end_amdhsa_kernel""")
    open(path, 'w').write(A.finalize())
    print("barriers:", len(GA.bars)); print("stampsA:", GA.names); print("stampsB:", GB.names)

if __name__ == '__main__':
    cfg = Cfg()
    for a_ in sys.argv[2:]:
        k, val = a_.split('=')
        setattr(cfg, k, val if k == 'probe' else int(val))
    main(sys.argv[1], cfg)
```

```python
import sys, re
from asmlib import *
import layout as L

NAME = "sequential_preLN__sliding_local_dilated__glu_gated_reglu__prompt"
HDR = open('cdna_kernels/' + NAME + '.s.ref').read().split('; Override launch')[0]

class Cfg:
    stamps = 0
    probe = ''
    force_slow = 0
    touch = 0
    skew = 6
    pre2 = 7
    gap = 64
    prioA = 0
    prioB = 0
    wd_early = 1
    fine = 0
    skipwd = 1
    nb0 = 2
    pretouch = 1
    ramp = 3
    wd0 = 3
    ndma = 9
    ndma7 = 4
    rotm = 1
    rots = 2
    abl = 0
    bflush = 5
    gapB = 32
    npf = 2
    l345 = 2

SX, SW1, SWO, SWD, SOUT, SWS, SDBG, SMU, sST = 4, 8, 12, 16, 20, 24, 28, 32, 36
sXCD, sIDX, sRBL, sCB, sW, sG, sRB, sM = 40, 41, 42, 43, 44, 45, 46, 47
sONE, sMODE = 48, 49
sT0, sT1, sT2, sT3, sT4, sT5 = 50, 51, 52, 53, 54, 55
sB0, sCNT = 56, 57
sEXH = 58
sMX, sMH, sMW, sSX = 60, 61, 62, 63
sKO = 64
sMWL, sB1 = 86, 87
sROT3, sW3S, sW3G, sA3, sWB, sO0, sO1 = 88, 89, 90, 91, 92, 93, 94
sXCC = 95
sTS = 96
sTB, sTB1, sW8, sSW = 98, 99, 100, 101
sMW0 = 3
sR2, sW1K = 98, 99

class Gen:
    def __init__(self, cfg, A, pfx):
        self.A = A; self.cfg = cfg; self.pfx = pfx
        self.vm = 0; self.tags = {}; self.nstamp = 0; self.names = []
        self.t = 0; self.tm = 0; self.nv = 0
        self.q = []; self.cur = []; self.inbg = False; self.bg_on = True
        self.lg = 0; self.ldone = 0; self.lpend = {}; self.vdone = 0; self.vpend = {}
        self.bars = []
        self.dummy = None
        self.probed = False
        self.sv = (253, 254)
    def _autowait(self, ins):
        regs = [r for r in list(ins.rd) + list(ins.wr) if r[0] in 'va']
        nl = max([self.lpend.get(r, 0) for r in regs] + [0])
        nvm = max([self.vpend.get(r, 0) for r in regs] + [0])
        parts = []
        if nvm > self.vdone:
            parts.append(f"vmcnt({min(self.vm - nvm, 63)})"); self.vdone = nvm
        if nl > self.ldone:
            parts.append(f"lgkmcnt({min(self.lg - nl, 15)})"); self.ldone = nl
        if parts:
            self.A("s_waitcnt " + " ".join(parts)); self.t += 4
    def _note_wait(self, ln):
        m = re.search(r'vmcnt\((\d+)\)', ln)
        if m: self.vdone = max(self.vdone, self.vm - int(m.group(1)))
        m = re.search(r'lgkmcnt\((\d+)\)', ln)
        if m: self.ldone = max(self.ldone, self.lg - int(m.group(1)))
    def lwait_all(self):
        if self.ldone < self.lg: self._emit("s_waitcnt lgkmcnt(0)")
    def lwait(self, idx):
        if self.ldone < idx: self._emit(f"s_waitcnt lgkmcnt({min(self.lg - idx, 15)})")
    def _emit(self, ln):
        ins = Ins(ln)
        if ins.cls in ('valu', 'mfma', 'lds', 'vmem'): self._autowait(ins)
        self.A(ln)
        op = ins.op
        if op == 's_waitcnt': self._note_wait(ln)
        if ins.cls == 'lds':
            self.lg += 1
            for r in ins.wr: self.lpend[r] = self.lg
        if ins.cls == 'vmem':
            for r in ins.wr:
                if r != self.dummy: self.vpend[r] = self.vm + 1
        if op.startswith('v_mfma'):
            st = max(self.t, self.tm); self.t = st + 8; self.tm = st + (32 if '32x32' in op else 16)
        elif ins.cls == 'vmem':
            self.vm += 1
            self.t = max(self.t, self.nv) + 8; self.nv = self.t + (self.cfg.gapB if self.pfx == 'B_' else self.cfg.gap)
        elif ins.cls == 'lds': self.t += 10
        else: self.t += 4
    def __call__(self, t):
        for ln in t.strip().split('\n'):
            ln = ln.strip()
            if ln: self._emit(ln)
        self.pump()
    def _next(self):
        while not self.cur and self.q: self.cur = list(self.q.pop(0))
        return self.cur.pop(0) if self.cur else None
    def _has(self): return bool(self.cur) or any(self.q)
    def _one(self):
        it = self._next()
        self.inbg = True
        self.item(it)
        while self.cur and isinstance(self.cur[0], tuple) and self.cur[0][0] == 'TAG': self.item(self.cur.pop(0))
        self.inbg = False
    def pump(self):
        if self.inbg or not self.bg_on: return
        while self._has() and self.t >= self.nv: self._one()
    def bg(self, group): self.q.append(list(group))
    def flush(self, tag=None):
        while self._has() and (tag is None or tag not in self.tags): self._one()
    def tag(self, name): self.tags[name] = self.vm
    def wait_tag(self, name):
        if name not in self.tags: self.flush(name)
        if self.tags[name] <= self.vdone: return
        self._emit(f"s_waitcnt vmcnt({min(self.vm - self.tags[name], 63)})")
    def bar(self, name):
        if self.cfg.fine and name.startswith({1: 'c', 2: 'zz', 3: 'p3_', 4: 'p4_'}[self.cfg.fine]): self.stamp('@' + name)
        self.bars.append(name); self._emit("s_barrier"); self.nv = self.t
        if self.cfg.fine == 3 and name.startswith('p3_') and self.pfx == 'A_': self.stamp('>' + name)
    def asyncA(self):
        self.bsync('svcA')
    def bsync(self, name):
        off = CNT + {'wo': 0, 'red4': 4, 'red4a': 8}[name]
        self.bg_on = False
        self(f"""
        v_mov_b32 v2, {off}
        v_mov_b32 v3, 1
        s_mov_b64 exec, 1
        ds_add_u32 v2, v3
        s_mov_b64 exec, -1
        s_mov_b32 {s(sCNT)}, 0
        """)
        self.A.label("BS_" + name)
        self.A(f"""
        ds_read_b32 v3, v2
        s_add_u32 {s(sCNT)}, {s(sCNT)}, 1
        s_waitcnt lgkmcnt(0)
        v_readfirstlane_b32 {s(sT5)}, v3
        s_cmp_ge_u32 {s(sCNT)}, 0x100000
        s_cbranch_scc1 BS_{name}_D
        s_cmp_lt_u32 {s(sT5)}, 4
        s_cbranch_scc1 BS_{name}
        """)
        self.A.label(f"BS_{name}_D")
        self.ldone = self.lg
        self.bg_on = True
    def items(self, lst):
        for it in lst: self.item(it)
    def stamp(self, name=''):
        if self.cfg.probe == self.pfx + name:
            self(f"s_memrealtime s[36:37]\ns_waitcnt lgkmcnt(0)"); self.probed = True
        if not self.cfg.stamps: return
        i = self.nstamp; self.nstamp += 1; self.names.append(name)
        on = self.bg_on; self.bg_on = False
        self(f"""
        {'s_memtime' if self.cfg.stamps == 2 else 's_memrealtime'} {s(sTS,2)}
        s_waitcnt lgkmcnt(0)
        v_writelane_b32 v{self.vS}, {s(sTS)}, {i}
        """)
        self.bg_on = on
        if name == 'end':
            self(f"""
            v_lshlrev_b32 v2, 3, v0
            v_mov_b32 v4, v{self.vS}
            v_mov_b32 v5, 0
            v_cmp_gt_u32 vcc, 32, v0
            s_and_b64 exec, exec, vcc
            buffer_store_dwordx2 v[4:5], v2, {s(sST,4)}, 0 offen
            s_mov_b64 exec, -1
            """)
    def item(self, it):
        if isinstance(it, tuple):
            if it[0] == 'WAIT': self.wait_tag(it[1])
            elif it[0] == 'TAG': self.tag(it[1])
            elif it[0] == 'BG': self.bg(it[1])
            elif it[0] == 'BAR': self.lwait_all(); self.bar(it[1])
            elif it[0] == 'BSYNC': self.bsync(it[1])
        else: self(it)
    def spread(self, main, fill):
        n, m = len(main), len(fill); fi = 0
        for i, x in enumerate(main):
            self(x)
            while fi < m and fi * n < (i + 1) * m:
                self.item(fill[fi]); fi += 1
        while fi < m: self.item(fill[fi]); fi += 1
    def front(self, main, fill, per=1):
        fi = 0
        for x in main:
            self(x)
            for _ in range(per):
                if fi < len(fill): self.item(fill[fi]); fi += 1
        while fi < len(fill): self.item(fill[fi]); fi += 1

XCH = 10240
WRING = 8 * XCH
WSLOT = 24576
S0, S1, S2 = WRING, WRING + WSLOT, WRING + 2 * WSLOT
STATS1 = WRING + 3 * WSLOT
STATS3 = STATS1 + 1024
CSX = STATS3 + 1024
WDT = 49152
HHS = 88 * 1024
RING4 = 49152
LDS_TOTAL = 163840
SG_OFF = L.FL_OFF + 2048
CNT = STATS1 + 1000
STG = STATS1 + 896
vL = 0

def srd(dst, src, size):
    return f"""
    s_mov_b32 {s(dst)}, {s(src)}
    s_and_b32 {s(dst+1)}, {s(src+1)}, 0xffff
    s_mov_b32 {s(dst+2)}, {size}
    s_mov_b32 {s(dst+3)}, 0x20000
    """
def common_srds(cfg):
    t = f"""
    s_mul_i32 {s(sT0)}, {s(sG)}, {L.GSTRIDE}
    s_add_u32 {s(SWS)}, s82, {s(sT0)}
    s_addc_u32 {s(SWS+1)}, s83, 0
    s_and_b32 {s(SWS+1)}, {s(SWS+1)}, 0xffff
    s_mov_b32 {s(SWS+2)}, {L.GSTRIDE}
    s_mov_b32 {s(SWS+3)}, 0x20000
    s_bitcmp1_b32 {s(sW)}, 0
    s_cselect_b32 {s(SMU)}, s74, s72
    s_cselect_b32 {s(SMU+1)}, s75, s73
    s_and_b32 {s(SMU+1)}, {s(SMU+1)}, 0xffff
    s_cmp_eq_u32 {s(sM)}, 15
    s_cselect_b32 {s(SMU+2)}, 0, {512*2752}
    s_mov_b32 {s(SMU+3)}, 0x20000
    """ + srd(SDBG, 80, 256)
    if cfg.stamps:
        t += f"""
        s_lshl_b32 {s(sT0)}, s2, 11
        s_lshl_b32 {s(sT1)}, {s(sW8)}, 8
        s_add_u32 {s(sT0)}, {s(sT0)}, {s(sT1)}
        s_add_u32 {s(sT0)}, {s(sT0)}, {L.STAMP_OFF}
        s_add_u32 {s(sST)}, s82, {s(sT0)}
        s_addc_u32 {s(sST+1)}, s83, 0
        s_and_b32 {s(sST+1)}, {s(sST+1)}, 0xffff
        s_mov_b32 {s(sST+2)}, 256
        s_mov_b32 {s(sST+3)}, 0x20000
        """
    return t

def stores(G, lst, label):
    A = G.A; label = G.pfx + label
    for x in lst: G._autowait(Ins(x))
    A(f"""
    s_cmp_lg_u32 {s(sMODE)}, 0
    s_cbranch_scc1 {label}_SLOW
    """)
    for x in lst: A(x)
    A(f"s_branch {label}_DONE")
    A.label(f"{label}_SLOW")
    for x in lst: A((x + " sc1") if x.startswith('buffer_store') else x)
    A.label(f"{label}_DONE")
    G.vm += sum(1 for x in lst if x.startswith('buffer_'))

def signal(G, phase, vFE):
    G.bg_on = False
    G(f"""
    v_add_u32 v2, {phase}, {v(vFE)}
    v_mov_b32 v3, {v(vFE+1)}
    s_lshl_b32 {s(sT0)}, {s(sM)}, 2
    s_add_u32 {s(sT0)}, {s(sT0)}, {s(sW)}
    s_lshl_b32 {s(sT0)}, {s(sT0)}, 3
    s_add_u32 {s(sT0)}, {s(sT0)}, {L.FL_OFF + phase*512}
    v_mov_b32 v4, {s(sT0)}
    s_waitcnt vmcnt(0)
    s_mov_b64 exec, 1
    """)
    stores(G, [f"buffer_store_dwordx2 v[2:3], v4, {s(SWS,4)}, 0 offen"], f"SIG{phase}")
    G.bg_on = True; G.nv = G.t
    G("s_mov_b64 exec, -1")

def poll(G, phase, vFE):
    A = G.A
    if phase == 0:
        A(f"""
        v_and_b32 v4, 31, v0
        s_and_b32 {s(sT0)}, {s(sM)}, 8
        s_lshl_b32 {s(sT0)}, {s(sT0)}, 2
        v_add_u32 v4, {s(sT0)}, v4
        v_lshlrev_b32 v4, 3, v4
        """)
    else:
        A("v_lshlrev_b32 v4, 3, v0")
    A(f"""
    v_add_u32 v2, {phase}, {v(vFE)}
    v_mov_b32 v3, {v(vFE+1)}
    s_mov_b32 {s(sCNT)}, 0
    s_mov_b32 {s(sT0)}, {L.FL_OFF + phase*512}
    """)
    A.label(f"POLL{phase}")
    A(f"""
    buffer_load_dwordx2 v[6:7], v4, {s(SWS,4)}, {s(sT0)} offen sc1
    s_add_u32 {s(sCNT)}, {s(sCNT)}, 1
    s_waitcnt vmcnt(0)
    v_cmp_ne_u64 vcc, v[6:7], v[2:3]
    s_cmp_ge_u32 {s(sCNT)}, 20000
    s_cbranch_scc1 POLL{phase}_DONE
    s_cbranch_vccnz POLL{phase}
    """)
    A.label(f"POLL{phase}_DONE")
    G.vdone = G.vm; G.nv = G.t

def regdecode(G, vFE, vaddr):
    A = G.A; p = G.pfx
    G._autowait(Ins(f"v_mov_b32 {v(vFE)}, {v(vFE+1)}"))
    G(f"s_mov_b32 {s(sCNT)}, 0")
    A.label(p + "REGPOLL")
    A(f"""
    v_readfirstlane_b32 {s(sT0)}, {v(vFE)}
    v_readfirstlane_b32 {s(sT1)}, {v(vFE+1)}
    s_and_b32 {s(sT2)}, {s(sT0)}, 31
    s_cmp_eq_u32 {s(sT2)}, 16
    s_cbranch_scc1 {p}REGOK
    s_add_u32 {s(sCNT)}, {s(sCNT)}, 1
    s_cmp_ge_u32 {s(sCNT)}, 20000
    s_cbranch_scc1 {p}REGOK
    buffer_load_dwordx2 {v(vFE,2)}, {v(vaddr)}, {s(SDBG,4)}, 0 offen offset:128 sc1
    s_waitcnt vmcnt(0)
    s_branch {p}REGPOLL
    """)
    A.label(p + "REGOK")
    G(f"""
    s_bfe_u32 {s(sT2)}, {s(sT0)}, {5 | (7 << 16)}
    s_bfe_u32 {s(sT3)}, {s(sT0)}, {12 | (10 << 16)}
    s_mul_i32 {s(sT2)}, {s(sT2)}, {s(sT2)}
    s_lshl_b32 {s(sT3)}, {s(sT3)}, 4
    s_cmp_lg_u32 {s(sT2)}, {s(sT3)}
    s_cselect_b32 {s(sMODE)}, 1, {1 if G.cfg.force_slow else 0}
    s_and_b32 {s(sT0)}, {s(sT0)}, 0xffc00000
    s_or_b32 {s(sT0)}, {s(sT0)}, 0x5a5a0
    v_mov_b32 {v(vFE)}, {s(sT0)}
    v_mov_b32 {v(vFE+1)}, {s(sT1)}
    """)

def lch(l): return ((l >> 1) & 1) * 4 + (l >> 2) * 2 + (l & 1)
def w3_setup(vP3, t0, t1, t2):
    out = f"""
    s_mul_i32 {s(sT0)}, {s(sM)}, 192
    s_mov_b32 {s(sT1)}, 0x15555556
    s_and_b32 {s(sT2)}, {s(sW)}, 1
    s_lshr_b32 {s(sT4)}, {s(sW)}, 1
    s_mul_i32 {s(sW3S)}, {s(sT2)}, 12288
    s_mul_i32 {s(sT5)}, {s(sT4)}, 6144
    s_add_u32 {s(sW3S)}, {s(sW3S)}, {s(sT5)}
    s_mul_i32 {s(sW3G)}, {s(sT4)}, {32*2752}
    s_and_b32 {s(sROT3)}, {s(sG)}, 1
    s_lshl_b32 {s(sROT3)}, {s(sROT3)}, 2
    s_lshl_b32 {s(sT2)}, {s(sT2)}, 1
    """
    for i in range(3):
        out += f"""
        v_add_u32 {v(t0)}, {64*i}, {v(vL)}
        v_mul_hi_u32 {v(t1)}, {v(t0)}, {s(sT1)}
        v_mul_u32_u24 {v(t2)}, 12, {v(t1)}
        v_sub_u32 {v(t2)}, {v(t0)}, {v(t2)}
        v_mul_u32_u24 {v(t1)}, 2752, {v(t1)}
        v_add_u32 {v(t1)}, {s(sT0)}, {v(t1)}
        v_subrev_u32 {v(t1)}, {1024*i}, {v(t1)}
        v_subrev_u32 {v(t2)}, {s(sT2)}, {v(t2)}
        v_add_u32 {v(t0)}, 12, {v(t2)}
        v_cmp_gt_i32 vcc, 0, {v(t2)}
        v_cndmask_b32 {v(t2)}, {v(t2)}, {v(t0)}, vcc
        v_lshl_add_u32 {v(vP3+i)}, {v(t2)}, 4, {v(t1)}
        """
    return out
def w3_dma(c, base, vP3):
    g = [f"""
    s_xor_b32 {s(sB0)}, {s(sROT3)}, {lch(c)}
    s_mul_i32 {s(sB0)}, {s(sB0)}, {64*2752}
    s_add_u32 {s(sB0)}, {s(sB0)}, {s(sW3G)}
    s_add_u32 m0, {s(sW3S)}, {base}
    s_add_u32 {s(sB1)}, {s(sB0)}, {16*2752}
    buffer_load_dwordx4 {v(vP3+0)}, {s(SMU,4)}, {s(sB0)} offen lds
    """]
    g.append(f"buffer_load_dwordx4 {v(vP3+1)}, {s(SMU,4)}, {s(sB0)} offen offset:1024 lds")
    g.append(f"buffer_load_dwordx4 {v(vP3+2)}, {s(SMU,4)}, {s(sB0)} offen offset:2048 lds")
    g.append(f"""
    s_add_u32 m0, {s(sW3S)}, {base + 3072}
    s_nop 0
    buffer_load_dwordx4 {v(vP3+0)}, {s(SMU,4)}, {s(sB1)} offen lds
    """)
    g.append(f"buffer_load_dwordx4 {v(vP3+1)}, {s(SMU,4)}, {s(sB1)} offen offset:1024 lds")
    g.append(f"buffer_load_dwordx4 {v(vP3+2)}, {s(SMU,4)}, {s(sB1)} offen offset:2048 lds")
    g.append(('TAG', f"w3_{c}"))
    return g
def p4_table():
    tb = [f"""
    s_mul_i32 {s(sT0)}, {s(sRBL)}, 11
    s_lshr_b32 {s(sT0)}, {s(sT0)}, 1
    s_lshl_b32 {s(sT0)}, {s(sT0)}, 12
    s_lshl_b32 {s(sT1)}, {s(sW)}, 10
    """]
    for j in range(22):
        tb.append(f"""
        s_add_u32 {s(sKO+j)}, {s(sT0)}, {s(sT1)}
        s_add_u32 {s(sT0)}, {s(sT0)}, 4096
        s_cmp_eq_u32 {s(sT0)}, {22*4096}
        s_cselect_b32 {s(sT0)}, 0, {s(sT0)}
        """)
    return tb
def ks_addr(a_base, tile_stride, vL16, d0, d1):
    return f"""
    s_and_b32 {s(sT1)}, {s(sRB)}, 1
    s_lshl_b32 {s(sT1)}, {s(sT1)}, 1
    s_lshr_b32 {s(sT0)}, {s(sW)}, 1
    s_add_u32 {s(sT2)}, {s(sT1)}, {s(sT0)}
    s_xor_b32 {s(sT1)}, {s(sT2)}, 1
    s_mul_i32 {s(sT1)}, {s(sT1)}, {tile_stride}
    s_mul_i32 {s(sT2)}, {s(sT2)}, {tile_stride}
    s_add_u32 {s(sT1)}, {s(sT1)}, {a_base}
    s_add_u32 {s(sT2)}, {s(sT2)}, {a_base}
    v_add_u32 {v(d0)}, {s(sT1)}, {v(vL16)}
    v_add_u32 {v(d1)}, {s(sT2)}, {v(vL16)}
    """
W3SLOT = {0: S2, 1: S0, 2: S1, 3: S2, 4: S0, 5: S1, 6: S2, 7: S0}
W3BAR = {3: 3, 4: 7, 5: 11, 6: 15, 7: 19}
NB4 = 11
PFORD = [2, 3, 4]

def prog_a(G):
    A = G.A; cfg = G.cfg
    t0, t1, t2, t3, t4 = 1, 2, 3, 4, 5
    vXa0, vXa1, vWa, vS1, vS2, vOA, vRA = 8, 9, 10, 11, 12, 13, 14
    FA, FB = 16, 48
    ACC = 80
    vL16, vFE, vW3o, vW3s, vA01, vA23, vP3 = 148, 150, 149, 152, 153, 154, 155
    BIAS = 160
    G.sv = (158, 146); G.vS = 159
    Qa = lambda T: ACC + 4 * T
    Ka = lambda T: ACC + 20 + 4 * T
    Va = lambda T: ACC + 40 + 4 * T
    if cfg.prioA: G(f"s_setprio {cfg.prioA}")
    G(f"""
    v_lshlrev_b32 {v(vL16)}, 4, v0
    s_mul_i32 {s(sT0)}, {s(sCB)}, 10
    s_mul_i32 {s(sT1)}, {s(sW)}, 3
    s_add_u32 {s(sT0)}, {s(sT0)}, {s(sT1)}
    s_lshl_b32 {s(sT5)}, {s(sRB)}, 6
    s_mov_b32 {s(SX+2)}, {2048*1024}
    s_mov_b32 {s(SX+3)}, 0x20000
    """)
    for k in range(3):
        G(f"""
        s_add_u32 {s(sT1)}, {s(sT0)}, {k}
        s_min_u32 {s(sT1)}, {s(sT1)}, 79
        s_and_b32 {s(sT2)}, {s(sT1)}, 15
        s_lshr_b32 {s(sT3)}, {s(sT1)}, 5
        s_lshl_b32 {s(sT3)}, {s(sT3)}, 5
        s_lshl_b32 {s(sT4)}, {s(sT2)}, 1
        s_add_u32 {s(sT3)}, {s(sT3)}, {s(sT4)}
        s_bfe_u32 {s(sT4)}, {s(sT1)}, {4 | (1 << 16)}
        s_add_u32 {s(sT3)}, {s(sT3)}, {s(sT4)}
        s_add_u32 {s(sT3)}, {s(sT3)}, {s(sT5)}
        s_add_u32 {s(sT2)}, {s(sT2)}, {s(sT5)}
        s_sub_i32 {s(sT2)}, {s(sT2)}, 16
        s_max_i32 {s(sT2)}, {s(sT2)}, 0
        s_cmp_ge_u32 {s(sT1)}, 64
        s_cselect_b32 {s(sT3)}, {s(sT2)}, {s(sT3)}
        s_lshl_b32 {s(sMX+k)}, {s(sT3)}, 10
        """)
    XS = 208
    G(f"""
    s_waitcnt lgkmcnt(0)
    s_mov_b32 {s(SX)}, s64
    s_and_b32 {s(SX+1)}, s65, 0xffff
    buffer_load_dwordx4 {v(XS,4)}, {v(vL16)}, {s(SX,4)}, {s(sMX)} offen
    buffer_load_dwordx4 {v(XS+4,4)}, {v(vL16)}, {s(SX,4)}, {s(sMX+1)} offen
    buffer_load_dwordx4 {v(XS+8,4)}, {v(vL16)}, {s(SX,4)}, {s(sMX+2)} offen
    v_lshrrev_b32 {v(t2)}, 4, {v(vL)}
    v_and_b32 {v(t0)}, 15, {v(vL)}
    v_lshrrev_b32 {v(t1)}, 1, {v(t0)}
    v_xor_b32 {v(t1)}, {v(t1)}, {v(t2)}
    v_lshlrev_b32 {v(t1)}, 4, {v(t1)}
    v_lshl_add_u32 {v(vXa0)}, {v(t0)}, 7, {v(t1)}
    v_xor_b32 {v(vXa1)}, 64, {v(vXa0)}
    v_mul_u32_u24 {v(vWa)}, 3072, {v(t2)}
    v_bfe_u32 {v(t1)}, {v(vL)}, 2, 2
    v_lshl_add_u32 {v(vWa)}, {v(t1)}, 7, {v(vWa)}
    v_lshrrev_b32 {v(t1)}, 1, {v(t1)}
    v_and_b32 {v(t3)}, 1, {v(t2)}
    v_lshl_or_b32 {v(t1)}, {v(t3)}, 1, {v(t1)}
    v_xor_b32 {v(t1)}, {s(sW)}, {v(t1)}
    v_lshl_add_u32 {v(vWa)}, {v(t1)}, 5, {v(vWa)}
    v_and_b32 {v(t1)}, 3, {v(vL)}
    v_lshl_add_u32 {v(vWa)}, {v(t1)}, 3, {v(vWa)}
    v_add_u32 {v(vWa)}, {WRING}, {v(vWa)}
    v_lshlrev_b32 {v(vS1)}, 2, {v(t0)}
    v_add_u32 {v(vS1)}, {STATS1}, {v(vS1)}
    v_lshlrev_b32 {v(vS2)}, 4, {v(t2)}
    v_add_u32 {v(vS2)}, {STATS1}, {v(vS2)}
    v_lshrrev_b32 {v(t1)}, 3, {v(vL)}
    v_mul_u32_u24 {v(t1)}, {XCH}, {v(t1)}
    v_and_b32 {v(t3)}, 7, {v(vL)}
    v_lshl_add_u32 {v(t1)}, {v(t3)}, 4, {v(t1)}
    v_mov_b32 {v(FA)}, {s(sONE)}
    v_mov_b32 {v(FA+1)}, {s(sONE)}
    v_mov_b32 {v(FA+2)}, {s(sONE)}
    v_mov_b32 {v(FA+3)}, {s(sONE)}
    ds_write_b128 {v(t1)}, {v(FA,4)} offset:8192
    """)
    NEG = "0xf149f2ca"
    G(f"""
    v_mov_b32 {v(t4)}, {NEG}
    v_lshlrev_b32 {v(t1)}, 2, {v(t2)}
    v_sub_u32 {v(t3)}, {v(t0)}, {v(t1)}
    """)
    for r in range(4):
        G(f"""
        v_subrev_u32 {v(t1)}, {r}, {v(t3)}
        v_cmp_ge_u32 vcc, 7, {v(t1)}
        v_cmp_ge_i32 {s(sT4,2)}, -9, {v(t1)}
        v_cndmask_b32 {v(BIAS+r)}, {v(t4)}, 0, vcc
        v_cndmask_b32 {v(BIAS+4+r)}, {v(t4)}, 0, {s(sT4,2)}
        """)
    G(f"""
    s_cmp_eq_u32 {s(sRB)}, 0
    s_cselect_b32 {s(sT0)}, 64, 2
    v_lshlrev_b32 {v(t1)}, 2, {v(t2)}
    v_lshlrev_b32 {v(t3)}, 1, {v(t0)}
    v_sub_u32 {v(t3)}, {v(t1)}, {v(t3)}
    v_subrev_u32 {v(t3)}, {s(sT0)}, {v(t3)}
    v_cmp_le_i32 vcc, 0, {v(t3)}
    v_cmp_le_i32 {s(sT4,2)}, -2, {v(t3)}
    v_mov_b32 {v(BIAS+9)}, {v(t4)}
    v_mov_b32 {v(BIAS+11)}, {v(t4)}
    v_mov_b32 {v(BIAS+12)}, {v(t4)}
    v_mov_b32 {v(BIAS+14)}, {v(t4)}
    v_cndmask_b32 {v(BIAS+8)}, {v(t4)}, 0, vcc
    v_cndmask_b32 {v(BIAS+10)}, {v(t4)}, 0, {s(sT4,2)}
    v_cndmask_b32 {v(BIAS+13)}, {v(t4)}, 0, vcc
    v_cndmask_b32 {v(BIAS+15)}, {v(t4)}, 0, {s(sT4,2)}
    s_waitcnt lgkmcnt(0)
    """)
    G(common_srds(cfg))
    G.stamp('start')
    G(f"""
    s_and_b32 {s(sO0)}, {s(sRB)}, 1
    s_lshl_b32 {s(sO0)}, {s(sO0)}, 16
    s_lshl_b32 {s(sT1)}, {s(sCB)}, 12
    s_add_u32 {s(sO0)}, {s(sO0)}, {s(sT1)}
    s_lshl_b32 {s(sT1)}, {s(sW)}, 10
    s_add_u32 {s(sO0)}, {s(sO0)}, {s(sT1)}
    s_add_u32 {s(sO0)}, {s(sO0)}, {L.O_OFF}
    s_add_u32 {s(sO1)}, {s(sO0)}, 32768
    v_and_b32 {v(vOA)}, 15, v0
    v_bfe_u32 v3, v0, 4, 1
    v_lshl_add_u32 {v(vOA)}, v3, 5, {v(vOA)}
    v_lshrrev_b32 v3, 5, v0
    v_lshl_add_u32 {v(vOA)}, v3, 4, {v(vOA)}
    v_lshlrev_b32 {v(vOA)}, 4, {v(vOA)}
    s_lshl_b32 {s(sT0)}, {s(sG)}, 3
    v_mov_b32 {v(vRA)}, {s(sT0)}
    """)
    SA = 224
    G0 = G; stat = []
    G = lambda t: stat.extend(x.strip() for x in t.strip().split('\n') if x.strip())
    for i in range(3): G(f"v_mov_b64 {v(SA+2*i,2)}, 0")
    for j in range(4):
        for k in range(3):
            G(f"v_dot2c_f32_bf16 {v(SA+2*k)}, {s(sONE)}, {v(XS+4*k+j)}\nv_dot2c_f32_bf16 {v(SA+2*k+1)}, {v(XS+4*k+j)}, {v(XS+4*k+j)}")
    for dpp in ("quad_perm:[1,0,3,2]", "quad_perm:[2,3,0,1]", "row_half_mirror", "row_mirror"):
        for i in range(6): G(f"v_add_f32_dpp {v(SA+i)}, {v(SA+i)}, {v(SA+i)} {dpp} row_mask:0xf bank_mask:0xf")
    for sw in ("v_permlane16_swap_b32", "v_permlane32_swap_b32"):
        for i in range(6): G(f"v_mov_b32 {v(SA+8+i)}, {v(SA+i)}")
        for i in range(6): G(f"{sw} {v(SA+i)}, {v(SA+8+i)}")
        for i in range(6): G(f"v_add_f32 {v(SA+i)}, {v(SA+i)}, {v(SA+8+i)}")
    for i in range(6): G(f"v_mul_f32 {v(SA+i)}, 0x3b000000, {v(SA+i)}")
    for k in range(3): G(f"v_fma_f32 {v(SA+2*k+1)}, -{v(SA+2*k)}, {v(SA+2*k)}, {v(SA+2*k+1)}")
    for k in range(3): G(f"v_max_f32 {v(SA+2*k+1)}, 0, {v(SA+2*k+1)}")
    for k in range(3): G(f"v_add_f32 {v(SA+2*k+1)}, 0x3727c5ac, {v(SA+2*k+1)}")
    for k in range(3): G(f"v_rsq_f32 {v(SA+2*k+1)}, {v(SA+2*k+1)}")
    G(f"""
    s_mul_i32 {s(sT0)}, {s(sW)}, 24
    s_add_u32 {s(sT0)}, {s(sT0)}, {STG}
    v_mov_b32 v2, {s(sT0)}
    """)
    for k in range(3): G(f"v_mul_f32 {v(SA+2*k)}, -{v(SA+2*k)}, {v(SA+2*k+1)}")
    for k in range(3): G(f"ds_write_b64 v2, {v(SA+2*k,2)} offset:{8*k}")
    G = G0
    K2 = [60, 61, 62, 63, 86, 58, 59, 101]
    G(f"""
    s_lshl_b32 {s(sR2)}, {s(sRBL)}, 13
    s_lshl_b32 {s(sW1K)}, {s(sW)}, 10
    s_and_b32 {s(sA3)}, {s(sRB)}, 1
    s_lshl_b32 {s(sA3)}, {s(sA3)}, 16
    s_add_u32 {s(sA3)}, {s(sA3)}, {L.O_OFF}
    """)
    for j in range(8):
        G(f"""
        s_add_u32 {s(K2[j])}, {s(sR2)}, {j*4096}
        s_and_b32 {s(K2[j])}, {s(K2[j])}, 32767
        s_add_u32 {s(K2[j])}, {s(K2[j])}, {s(sW1K)}
        """)
    if cfg.pretouch:
        G.dummy = ('v', 147)
        G(f"""
        v_lshrrev_b32 v2, 3, v0
        s_cmp_ge_u32 {s(sM)}, 14
        s_cselect_b32 {s(sT0)}, 1, 7
        v_min_u32 v2, {s(sT0)}, v2
        v_and_b32 v3, 7, v0
        v_lshlrev_b32 v3, 7, v3
        v_lshlrev_b32 v4, 15, v2
        v_add_u32 v4, {s(sO0)}, v4
        s_mul_i32 {s(sT0)}, {s(sM)}, 6144
        s_add_u32 {s(sT0)}, {s(sT0)}, {L.HH_OFF - 2*HHS}
        s_add_u32 {s(sT1)}, {s(sT0)}, {s(sW1K)}
        v_mul_u32_u24 v5, {HHS}, v2
        v_add_u32 v6, {s(sT1)}, v5
        v_cmp_gt_u32 vcc, 2, v2
        v_cndmask_b32 v4, v6, v4, vcc
        s_and_b32 {s(sT1)}, {s(sW)}, 1
        s_mul_i32 {s(sT1)}, {s(sT1)}, {2*HHS}
        s_add_u32 {s(sT0)}, {s(sT0)}, {s(sT1)}
        s_lshr_b32 {s(sT1)}, {s(sW)}, 1
        s_lshl_b32 {s(sT1)}, {s(sT1)}, 10
        s_add_u32 {s(sT0)}, {s(sT0)}, {s(sT1)}
        s_add_u32 {s(sT0)}, {s(sT0)}, {(4096 - 4*HHS) & 0xffffffff}
        v_add_u32 v6, {s(sT0)}, v5
        v_cmp_lt_u32 vcc, 5, v2
        v_cndmask_b32 v4, v4, v6, vcc
        v_add_u32 v4, v4, v3
        buffer_load_dword v147, v4, {s(SWS,4)}, 0 offen sc1
        """)
    G(f"v_mov_b32 v2, {CNT}\nv_mov_b64 v[4:5], 0\nds_write_b64 v2, v[4:5]\nds_write_b64 v2, v[4:5] offset:8")
    G.lwait_all()
    late = [x.strip() for x in w3_setup(vP3, t0, t1, t2).strip().split('\n') if x.strip()]
    late += [x.strip() for x in (f"""
    s_mov_b32 {s(sT4)}, {S0}
    s_lshl_b32 {s(sT0)}, {s(sW)}, 5
    s_lshr_b32 {s(sT1)}, {s(sW)}, 1
    s_lshl_b32 {s(sT1)}, {s(sT1)}, 5
    s_add_u32 {s(sT1)}, {s(sT1)}, 128
    v_lshrrev_b32 {v(t0)}, 5, {v(vL)}
    v_bfe_u32 {v(t1)}, {v(vL)}, 2, 2
    v_lshl_add_u32 {v(t0)}, {v(t0)}, 4, {v(t1)}
    v_mul_u32_u24 {v(t0)}, 192, {v(t0)}
    v_bfe_u32 {v(t1)}, {v(vL)}, 4, 1
    v_mul_u32_u24 {v(t2)}, 12288, {v(t1)}
    v_add3_u32 {v(t0)}, {v(t0)}, {v(t2)}, {s(sT4)}
    v_and_b32 {v(t2)}, 3, {v(vL)}
    v_lshlrev_b32 {v(t2)}, 3, {v(t2)}
    v_lshl_add_u32 {v(t2)}, {v(t1)}, 5, {v(t2)}
    v_add3_u32 {v(vW3o)}, {v(t0)}, {v(t2)}, {s(sT0)}
    v_add_u32 {v(t2)}, {s(sT1)}, {v(t2)}
    v_subrev_u32 {v(t3)}, 192, {v(t2)}
    v_cmp_le_u32 vcc, 192, {v(t2)}
    v_cndmask_b32 {v(t2)}, {v(t2)}, {v(t3)}, vcc
    v_add_u32 {v(vW3s)}, {v(t0)}, {v(t2)}
    s_and_b32 {s(sT0)}, {s(sW)}, 1
    s_lshl_b32 {s(sT0)}, {s(sT0)}, 13
    v_add_u32 {v(vA01)}, {s(sT0)}, {v(vL16)}
    v_xor_b32 {v(vA23)}, 0x2000, {v(vA01)}
    """).strip().split('\n') if x.strip()]
    late += p4_table()
    def reads(F, kh):
        xs = [f"ds_read_b128 {v(F+4*T,4)}, {v(vXa1 if kh else vXa0)} offset:{T*2048}" for T in range(5)]
        ws = [f"ds_read_b64_tr_b16 {v(F+20+4*sct+2*half,2)}, {v(vWa)} offset:{kh*12288+sct*1024+half*512}" for sct in range(3) for half in range(2)]
        return ws[:2] + xs[:1] + ws[2:4] + xs[1:2] + ws[4:] + xs[2:]
    def mfmas(F, first=False):
        out = []
        for T in range(5):
            x = v(F+4*T, 4)
            c = lambda r: "0" if first else v(r, 4)
            out.append(f"v_mfma_f32_16x16x32_bf16 {v(Qa(T),4)}, {v(F+20,4)}, {x}, {c(Qa(T))}")
            out.append(f"v_mfma_f32_16x16x32_bf16 {v(Ka(T),4)}, {v(F+24,4)}, {x}, {c(Ka(T))}")
            out.append(f"v_mfma_f32_16x16x32_bf16 {v(Va(T),4)}, {x}, {v(F+28,4)}, {c(Va(T))}")
        return out
    def adv(i):
        d = WSLOT if (i + 1) % 3 else (-2 * WSLOT) & 0xffffffff
        return [f"v_add_u32 {v(vWa)}, {d}, {v(vWa)}", f"v_add_u32 {v(vXa0)}, {XCH}, {v(vXa0)}", f"v_add_u32 {v(vXa1)}, {XCH}, {v(vXa1)}"]
    G.bar('c0')
    G.stamp('c0')
    for x in reads(FA, 0): G(x)
    for i in range(8):
        extra = [f"buffer_load_dwordx2 {v(vFE,2)}, {v(vRA)}, {s(SDBG,4)}, 0 offen offset:128 sc1"] if i == 6 else []
        G.front(mfmas(FA, i == 0), reads(FB, 1) + (adv(i) if i < 7 else []) + extra)
        if i < 3:
            k3 = (len(stat) + 2) // 3
            for x in stat[i*k3:(i+1)*k3]: G(x)
        elif i < 7:
            k4 = (len(late) + 3) // 4
            for x in late[(i-3)*k4:(i-2)*k4]: G(x)
        G.lwait_all()
        G.bar(f'c{i+1}' if i < 7 else 'stats')
        LA = 16; LBa = 28; LBb = 208
        if i < 7: G.front(mfmas(FB), reads(FA, 0))
        else:
            sr = [f"ds_read2_b32 {v(LA+2*T,2)}, {v(vS1)} offset0:{T*16} offset1:{T*16+128}" for T in range(5)]
            for T in range(5): sr += [f"ds_read_b128 {v(LBa+4*T,4)}, {v(vS2)} offset:{T*64}", f"ds_read_b128 {v(LBb+4*T,4)}, {v(vS2)} offset:{T*64+512}"]
            m = mfmas(FB)
            G.front(m[12:] + m[:12], sr)
    G.stamp('p1loop')
    G(f"""
    v_add_u32 v8, {s(sA3)}, {v(vL16)}
    v_add_u32 v9, 0x8000, v8
    """)
    CSQ, CSK, CSV = 228, 232, 236
    TMP = 140
    regdecode(G, vFE, vRA)
    for r in range(4):
        G(f"v_mov_b32_dpp {v(CSQ+r)}, {v(Qa(4)+r)} row_newbcast:0 row_mask:0xf bank_mask:0xf")
        G(f"v_mov_b32_dpp {v(CSK+r)}, {v(Ka(4)+r)} row_newbcast:0 row_mask:0xf bank_mask:0xf")
    G(f"""
    v_mov_b32 {v(CSV)}, {v(Va(4))}
    v_mov_b32 {v(CSV+1)}, {v(Va(4))}
    v_permlane16_swap_b32 {v(CSV)}, {v(CSV+1)}
    v_mov_b32 {v(CSV+1)}, {v(CSV)}
    v_permlane32_swap_b32 {v(CSV)}, {v(CSV+1)}
    v_mov_b32 {v(CSV+1)}, {v(CSV)}
    """)
    QP = 176; KP = 184; VP = 196
    vpos = {2: 0, 0: 2, 4: 4, 1: 6, 3: 8}
    def norm_qk(acc, cs, T, dst, tmp):
        ab = v(LA+2*T, 2)
        for hlf in range(2): G(f"v_pk_mul_f32 {v(tmp+2*hlf,2)}, {v(cs+2*hlf,2)}, {ab} op_sel:[0,1] op_sel_hi:[1,1]")
        for hlf in range(2): G(f"v_pk_fma_f32 {v(acc+2*hlf,2)}, {v(acc+2*hlf,2)}, {ab}, {v(tmp+2*hlf,2)} op_sel:[0,0,0] op_sel_hi:[1,0,1]")
        for hlf in range(2): G(f"v_cvt_pk_bf16_f32 {v(dst+hlf)}, {v(acc+2*hlf)}, {v(acc+2*hlf+1)}")
    for T in (4, 0, 1, 2, 3):
        norm_qk(Ka(T), CSK, T, KP+2*T, TMP)
        if T < 4: norm_qk(Qa(T), CSQ, T, QP+2*T, 240)
    for T in range(5):
        acc = Va(T); tmp = TMP if T & 1 else 240
        for hlf in range(2): G(f"v_pk_mul_f32 {v(tmp+2*hlf,2)}, {v(LBb+4*T+2*hlf,2)}, {v(CSV,2)}")
        for hlf in range(2): G(f"v_pk_fma_f32 {v(acc+2*hlf,2)}, {v(acc+2*hlf,2)}, {v(LBa+4*T+2*hlf,2)}, {v(tmp+2*hlf,2)}")
    SC = lambda T: ACC + 8*T
    ONE4 = 244
    vcv = [f"v_cvt_pk_bf16_f32 {v(VP+vpos[T]+hlf)}, {v(Va(T)+2*hlf)}, {v(Va(T)+2*hlf+1)}" for T in range(5) for hlf in range(2)]
    vcv += [f"v_mov_b32 {v(ONE4+i)}, {s(sONE)}" for i in range(4)] + [f"s_mov_b32 {s(sT0)}, 0x3eb8aa3b"]
    sm = []
    for T in range(4):
        prev = T - 2 if T >= 2 else 4
        bprev = BIAS + 4 if T >= 2 else BIAS + 8 + 4*T
        sm.append(f"v_mfma_f32_16x16x16_bf16 {v(SC(T),4)}, {v(KP+2*T,2)}, {v(QP+2*T,2)}, {v(BIAS,4)}")
        sm.append(f"v_mfma_f32_16x16x16_bf16 {v(SC(T)+4,4)}, {v(KP+2*prev,2)}, {v(QP+2*T,2)}, {v(bprev,4)}")
    G.spread(sm, vcv)
    MX = 16; M2 = 20
    PP = 32; OA = 48; LS = 208
    for T in range(4):
        b = SC(T)
        G(f"""
        v_max3_f32 {v(MX+T)}, {v(b)}, {v(b+1)}, {v(b+2)}
        v_max3_f32 {v(M2+T)}, {v(b+3)}, {v(b+4)}, {v(b+5)}
        """)
    for T in range(4): G(f"v_max3_f32 {v(MX+T)}, {v(MX+T)}, {v(SC(T)+6)}, {v(SC(T)+7)}")
    for T in range(4): G(f"v_max_f32 {v(MX+T)}, {v(MX+T)}, {v(M2+T)}")
    G(f"""
    v_permlane16_swap_b32 {v(MX)}, {v(MX+1)}
    v_permlane16_swap_b32 {v(MX+2)}, {v(MX+3)}
    v_max_f32 {v(MX)}, {v(MX)}, {v(MX+1)}
    v_max_f32 {v(MX+2)}, {v(MX+2)}, {v(MX+3)}
    v_permlane32_swap_b32 {v(MX)}, {v(MX+2)}
    v_max_f32 {v(MX)}, {v(MX)}, {v(MX+2)}
    v_mul_f32 {v(MX)}, {s(sT0)}, {v(MX)}
    v_mov_b32 {v(MX+2)}, {v(MX)}
    v_permlane32_swap_b32 {v(MX)}, {v(MX+2)}
    v_mov_b32 {v(MX+1)}, {v(MX)}
    v_mov_b32 {v(MX+3)}, {v(MX+2)}
    v_permlane16_swap_b32 {v(MX)}, {v(MX+1)}
    v_permlane16_swap_b32 {v(MX+2)}, {v(MX+3)}
    """)
    win = {2: 0, 0: 2, 1: 4, 3: 6}
    for T in range(4):
        b = SC(T)
        for i in range(8): G(f"v_fma_f32 {v(b+i)}, {v(b+i)}, {s(sT0)}, -{v(MX+T)}")
        for i in range(8): G(f"v_exp_f32 {v(b+i)}, {v(b+i)}")
        first, second = (b, b+4) if T in (0, 2) else (b+4, b)
        G(f"""
        v_cvt_pk_bf16_f32 {v(PP+4*T)}, {v(first)}, {v(first+1)}
        v_cvt_pk_bf16_f32 {v(PP+4*T+1)}, {v(first+2)}, {v(first+3)}
        v_cvt_pk_bf16_f32 {v(PP+4*T+2)}, {v(second)}, {v(second+1)}
        v_cvt_pk_bf16_f32 {v(PP+4*T+3)}, {v(second+2)}, {v(second+3)}
        """)
        if T >= 1:
            U = T - 1
            G(f"v_rcp_f32 {v(LS+4*U)}, {v(LS+4*U)}")
        G(f"""
        v_mfma_f32_16x16x32_bf16 {v(LS+4*T,4)}, {v(ONE4,4)}, {v(PP+4*T,4)}, 0
        v_mfma_f32_16x16x32_bf16 {v(OA+4*T,4)}, {v(VP+win[T],4)}, {v(PP+4*T,4)}, 0
        """)
    OP = 64
    def fin(T):
        q, p = T >> 1, T & 1
        for h in range(2): G(f"v_pk_mul_f32 {v(OA+4*T+2*h,2)}, {v(OA+4*T+2*h,2)}, {v(LS+4*T,2)} op_sel:[0,0] op_sel_hi:[1,0]")
        G(f"""
        v_cvt_pk_bf16_f32 {v(OP+4*q+2*p)}, {v(OA+4*T)}, {v(OA+4*T+1)}
        v_cvt_pk_bf16_f32 {v(OP+4*q+2*p+1)}, {v(OA+4*T+2)}, {v(OA+4*T+3)}
        """)
    fin(0); fin(1); fin(2)
    G(f"""
    v_permlane32_swap_b32 {v(OP)}, {v(OP+2)}
    v_permlane32_swap_b32 {v(OP+1)}, {v(OP+3)}
    v_rcp_f32 {v(LS+12)}, {v(LS+12)}
    """)
    fin(3)
    G(f"""
    v_permlane32_swap_b32 {v(OP+4)}, {v(OP+6)}
    v_permlane32_swap_b32 {v(OP+5)}, {v(OP+7)}
    """)
    stores(G, [f"buffer_store_dwordx4 {v(OP+4*q,4)}, {v(vOA)}, {s(SWS,4)}, {s(sO0+q)} offen" for q in range(2)], "ST1")
    G.stamp('p1epi')
    signal(G, 0, vFE)
    G.stamp('sig0')
    G.bar('w3a')
    ACC = 16; CSA = 112; SEL = 120; AB = 124; W3R = 160
    G.sv = (15, 6)
    def w3_reads(l):
        out = []; blk = l % 3; base = W3SLOT[l]
        for s4 in range(4):
            for k, va in enumerate((vW3o, vW3s)):
                for half in range(2):
                    o = (base - S0) + (32*(s4 >> 1) + 8*(s4 & 1) + 4*half) * 192
                    out.append(f"ds_read_b64_tr_b16 {v(W3R + 32*blk + 8*s4 + 4*k + 2*half, 2)}, {v(va)} offset:{o}")
        return out
    def w3_colsum(l):
        blk = l % 3
        return [f"v_mfma_f32_16x16x32_bf16 {v(CSA+4*k,4)}, {v(W3R+32*blk+8*s4+4*k,4)}, {v(SEL,4)}, {v(CSA+4*k,4)}" for s4 in range(4) for k in range(2)]
    for x in w3_reads(0): G(x)
    G(f"""
    v_lshrrev_b32 v2, 4, v0
    v_xor_b32 v2, v2, v0
    v_and_b32 v2, 1, v2
    v_cmp_eq_u32 vcc, 0, v2
    v_mov_b32 v3, {s(sONE)}
    v_cndmask_b32 {v(SEL)}, 0, v3, vcc
    v_cndmask_b32 {v(SEL+1)}, 0, v3, vcc
    v_cndmask_b32 {v(SEL+2)}, 0, v3, vcc
    v_cndmask_b32 {v(SEL+3)}, 0, v3, vcc
    """)
    for i in range(4): G(f"v_mov_b64 {v(CSA+2*i,2)}, 0")
    G.front(w3_colsum(0), w3_reads(1), 2)
    for x in w3_colsum(1): G(x)
    G.lwait_all()
    G.stamp('svc')
    poll(G, 0, vFE)
    G.stamp('poll0')
    def obatch(b):
        for j in (2*b, 2*b + 1):
            for tau in range(2):
                G(f"""
                s_add_u32 m0, {s(sW1K)}, {(tau*32 + 4*j) * 1024}
                buffer_load_dwordx4 {v(8+tau)}, {s(SWS,4)}, {s(K2[j])} offen sc1 lds
                """)
        G.tag(f"o_{b}")
    obatch(0); obatch(1)
    for b in range(4):
        G.wait_tag(f"o_{b}")
        G.bar(f"o_{b}")
        if b + 2 < 4: obatch(b + 2)
    for l in PFORD[:cfg.npf]: G.items(w3_dma(l, W3SLOT[l], vP3))
    G.stamp('pf')
    G.wait_tag('w3_2')
    G.bar('a3_0')
    G.stamp('a3_0')
    NAB = 6
    def aread(n):
        st, sg = n >> 2, n & 3
        c, s4 = st >> 2, st & 3
        r = (c % 3) * 16384 + s4 * 1024
        return f"ds_read_b128 {v(AB+4*(n % NAB),4)}, {v(vA01 if sg < 2 else vA23)} offset:{r + (sg & 1)*4096}"
    A(f"""
    s_lshl_b32 {s(sT4)}, {s(sM)}, 2
    s_add_u32 {s(sT4)}, {s(sT4)}, {s(sW)}
    s_cmp_lt_u32 {s(sT4)}, 58
    s_cbranch_scc1 A_P3GO
    s_waitcnt vmcnt(0)
    """)
    for _ in range(7): A("s_barrier")
    A("s_branch A_ST3Z_DONE")
    A.label("A_P3GO")
    LEAD = 4
    nread = 0
    for n in range(LEAD): G(aread(n)); nread += 1
    fills = {st: [] for st in range(34)}; cs_at = {st: [] for st in range(34)}
    for l, b in list(W3BAR.items()) + [(2, -1)]:
        rd = w3_reads(l); cs = w3_colsum(l)
        fills[b+1] += rd[0:6]; fills[b+2] += rd[6:12]; fills[b+3] += rd[12:16]
        cs_at[b+2] += cs[0:2]; cs_at[b+3] += cs[2:6]; cs_at[b+4] += cs[6:8]
    for st in range(32):
        c, s4 = st >> 2, st & 3
        if s4 == 3 and st < 31:
            for l, b in W3BAR.items():
                if b == st and f"w3_{l}" in G.tags: G.wait_tag(f"w3_{l}")
            G.lwait_all()
            G.bar(f'p3_{st}')
        w = W3R + 32*(c % 3) + 8*s4
        fl = list(fills[st]); fi = 0
        for sg in range(4):
            n = 4*st + sg
            fr = v(AB+4*(n % NAB), 4)
            ms = [f"v_mfma_f32_32x32x16_bf16 {v(ACC+16*sg,16)}, {v(w,4)}, {fr}, {'0' if st == 0 else v(ACC+16*sg,16)}"]
            if sg < 2: ms.append(f"v_mfma_f32_32x32x16_bf16 {v(ACC+64+16*sg,16)}, {v(w+4,4)}, {fr}, {'0' if st == 0 else v(ACC+64+16*sg,16)}")
            for k, m in enumerate(ms):
                G(m)
                if k == 0 and nread < 128 and nread <= n + LEAD: G(aread(nread)); nread += 1
                if fi < len(fl): G(fl[fi]); fi += 1
        while fi < len(fl): G(fl[fi]); fi += 1
        for x in cs_at[st]: G(x)
    G.stamp('p3loop')
    G(f"""
    v_and_b32 v2, 1, v0
    v_lshrrev_b32 v3, 4, v0
    v_lshlrev_b32 v2, 6, v2
    v_lshl_add_u32 v2, v3, 4, v2
    s_lshl_b32 {s(sT5)}, {s(sW)}, 8
    s_add_u32 {s(sT5)}, {s(sT5)}, {CSX}
    v_add_u32 v2, {s(sT5)}, v2
    v_lshrrev_b32 v3, 5, v0
    v_lshlrev_b32 v3, 4, v3
    v_add_u32 v3, {s(sT5)}, v3
    ds_write_b128 v2, {v(CSA,4)}
    ds_write_b128 v2, {v(CSA+4,4)} offset:128
    s_and_b32 {s(sT0)}, {s(sW)}, 1
    s_lshl_b32 {s(sT0)}, {s(sT0)}, 9
    s_add_u32 {s(sT0)}, {s(sT0)}, {STATS3}
    v_and_b32 v13, 31, v0
    v_lshlrev_b32 v13, 3, v13
    v_add_u32 v13, {s(sT0)}, v13
    v_xor_b32 v14, 0x200, v13
    ds_read_b64 v[160:161], v13
    ds_read_b64 v[162:163], v13 offset:256
    ds_read_b64 v[164:165], v14
    ds_read_b64 v[166:167], v14 offset:256
    """)
    CS0, CS1 = 176, 192
    for tile, CSo in ((0, CS0), (1, CS1)):
        for i in range(4): G(f"ds_read_b128 {v(CSo+4*i,4)}, v3 offset:{tile*128 + (i>>1)*64 + (i&1)*32}")
    def unit_epi(U, stp, CSo):
        st = v(stp, 2)
        for h in range(8): G(f"v_pk_fma_f32 {v(U+2*h,2)}, {v(CSo+2*h,2)}, {st}, {v(U+2*h,2)} op_sel:[0,0,0] op_sel_hi:[1,0,1]")
        for i in range(8): G(f"v_max_f32 {v(U+i)}, 0, {v(U+i)}")
        for h in range(4): G(f"v_pk_mul_f32 {v(U+8+2*h,2)}, {v(U+8+2*h,2)}, {st} op_sel:[0,1] op_sel_hi:[1,1]")
        for h in range(4): G(f"v_pk_mul_f32 {v(U+2*h,2)}, {v(U+2*h,2)}, {v(U+8+2*h,2)}")
        for h in range(4): G(f"v_cvt_pk_bf16_f32 {v(U+h)}, {v(U+2*h)}, {v(U+2*h+1)}")
    G(f"""
    s_mul_i32 {s(sT0)}, {s(sM)}, 6144
    s_add_u32 {s(sT0)}, {s(sT0)}, {L.HH_OFF}
    s_and_b32 {s(sT1)}, {s(sW)}, 1
    s_mul_i32 {s(sT1)}, {s(sT1)}, {2*HHS}
    s_add_u32 {s(sT2)}, {s(sT0)}, {s(sT1)}
    s_sub_u32 {s(sT3)}, {s(sT0)}, {s(sT1)}
    s_add_u32 {s(sT3)}, {s(sT3)}, {2*HHS}
    s_lshl_b32 {s(sT0)}, {s(sW)}, 10
    v_add_u32 v8, {s(sT0)}, {v(vL16)}
    v_add_u32 v9, {HHS}, v8
    s_lshr_b32 {s(sT0)}, {s(sW)}, 1
    s_lshl_b32 {s(sT0)}, {s(sT0)}, 10
    s_add_u32 {s(sT0)}, {s(sT0)}, 4096
    v_add_u32 v10, {s(sT0)}, {v(vL16)}
    v_add_u32 v11, {HHS}, v10
    """)
    for sg in range(4): unit_epi(ACC + 16*sg, 160 + 2*sg, CS0)
    A(f"""
    s_lshl_b32 {s(sT4)}, {s(sM)}, 2
    s_add_u32 {s(sT4)}, {s(sT4)}, {s(sW)}
    s_cmp_ge_u32 {s(sT4)}, 58
    s_cbranch_scc1 A_ST3_DONE
    """)
    stores(G, [f"buffer_store_dwordx4 {v(ACC+16*sg,4)}, {v(8 + (sg & 1))}, {s(SWS,4)}, {s(sT2 if sg < 2 else sT3)} offen" for sg in range(4)], "ST3")
    for sg in range(2): unit_epi(ACC + 64 + 16*sg, 160 + 2*sg, CS1)
    A(f"""
    s_cmp_ge_u32 {s(sM)}, 14
    s_cbranch_scc1 A_ST3Z_DONE
    """)
    stores(G, [f"buffer_store_dwordx4 {v(ACC+64+16*sg,4)}, {v(10 + sg)}, {s(SWS,4)}, {s(sT2)} offen" for sg in range(2)], "ST3Z")
    A(f"""
    s_cmp_lg_u32 {s(sM)}, 15
    s_cbranch_scc1 A_ST3P_DONE
    v_mov_b64 {v(ACC,2)}, 0
    v_mov_b64 {v(ACC+2,2)}, 0
    s_mul_i32 {s(sT0)}, {s(sW)}, {HHS}
    s_add_u32 {s(sT0)}, {s(sT0)}, {L.HH_OFF + 86*1024}
    """)
    stores(G, [f"buffer_store_dwordx4 {v(ACC,4)}, {v(vL16)}, {s(SWS,4)}, {s(sT0)} offen offset:{1024*i}" for i in range(2)], "ST3P")
    G.stamp('p3epi')
    signal(G, 2, vFE)
    G.stamp('sig2')
    G(ks_addr(L.HH_OFF, HHS, vL16, 12, 13))
    G(f"""
    s_mul_i32 {s(sWB)}, {s(sW)}, 24576
    s_add_u32 {s(sWB)}, {s(sWB)}, {RING4}
    """)
    G.bar('p4start')
    poll(G, 2, vFE)
    G.stamp('poll2')
    def batch(b):
        for q in range(4*b, 4*b + 4):
            rs, j = q // 22, q % 22
            G(f"""
            s_add_u32 m0, {s(sWB)}, {(q % 24) * 1024}
            buffer_load_dwordx4 {v(12+rs)}, {s(SWS,4)}, {s(sKO+j)} offen sc1 lds
            """)
        G.tag(f"b4_{b}")
    nb = 0
    for b in range(cfg.nb0): batch(b); nb += 1
    for b in range(NB4):
        G.wait_tag(f"b4_{b}")
        G.bar(f"p4_{b}")
        k = 0
        while nb < NB4 and k < (2 if b < cfg.ramp else 1) and (nb < 6 or nb - 4 <= b): batch(nb); nb += 1; k += 1
    G.stamp('end')

def prog_b(G):
    A = G.A; cfg = G.cfg
    t0, t1, t2, t3, t4 = 1, 2, 3, 4, 5
    vXo0, vXo1, vXh, vWo, vTL, vSa, vSh, vRA = 8, 9, 10, 11, 12, 13, 14, 15
    SF = 16; SACC = 28
    vP3, vWD, vWT, vFE, vL16, vXA = 240, 243, 244, 246, 248, 249
    G.dummy = ('v', 250)
    G.sv = (251, 252); G.vS = 253
    if cfg.prioB: G(f"s_setprio {cfg.prioB}")
    G(f"""
    s_lshl_b32 {s(sT0)}, {s(sRB)}, 6
    s_lshr_b32 {s(sT1)}, {s(sW)}, 1
    s_lshl_b32 {s(sT1)}, {s(sT1)}, 5
    s_add_u32 {s(sT1)}, {s(sT1)}, {s(sT0)}
    s_and_b32 {s(sT2)}, {s(sW)}, 1
    s_add_u32 {s(sT1)}, {s(sT1)}, {s(sT2)}
    v_lshrrev_b32 {v(t0)}, 3, {v(vL)}
    v_and_b32 {v(t1)}, 7, {v(vL)}
    v_lshrrev_b32 {v(t2)}, 4, {v(vL)}
    v_xor_b32 {v(t3)}, {v(t1)}, {v(t2)}
    v_lshlrev_b32 {v(t4)}, 1, {v(t0)}
    v_add_u32 {v(t4)}, {s(sT1)}, {v(t4)}
    v_lshlrev_b32 {v(t4)}, 10, {v(t4)}
    v_lshl_add_u32 {v(vXo0)}, {v(t3)}, 4, {v(t4)}
    v_xor_b32 {v(t3)}, 4, {v(t3)}
    v_lshl_add_u32 {v(vXo1)}, {v(t3)}, 4, {v(t4)}
    v_add_u32 {v(vXo1)}, {0x4000 - 1024}, {v(vXo1)}
    s_lshl_b32 {s(sT2)}, {s(sW)}, 2
    v_add_u32 {v(t3)}, {s(sT2)}, {v(t0)}
    v_lshrrev_b32 {v(t4)}, 1, {v(t3)}
    v_and_b32 {v(t4)}, 7, {v(t4)}
    v_xor_b32 {v(t4)}, {v(t4)}, {v(t1)}
    s_sub_u32 {s(sT3)}, {s(sT0)}, 16
    v_add_u32 {v(t3)}, {s(sT3)}, {v(t3)}
    v_max_i32 {v(t3)}, 0, {v(t3)}
    v_lshlrev_b32 {v(t3)}, 10, {v(t3)}
    v_lshl_add_u32 {v(vXh)}, {v(t4)}, 4, {v(t3)}
    s_mov_b32 {s(sEXH)}, -1
    s_cmp_eq_u32 {s(sW)}, 0
    s_cselect_b32 {s(sEXH)}, 0xffffff00, {s(sEXH)}
    s_mov_b32 {s(sEXH+1)}, 0
    s_lshl_b32 {s(sT2)}, {s(sW)}, 3
    v_add_u32 {v(t3)}, {s(sT2)}, {v(t0)}
    v_mul_u32_u24 {v(t3)}, 3072, {v(t3)}
    v_and_b32 {v(t4)}, 1, {v(t2)}
    v_lshlrev_b32 {v(t4)}, 1, {v(t4)}
    s_and_b32 {s(sT2)}, {s(sW)}, 1
    s_lshl_b32 {s(sT2)}, {s(sT2)}, 2
    v_or_b32 {v(t4)}, {s(sT2)}, {v(t4)}
    v_xor_b32 {v(t4)}, {v(t4)}, {v(t1)}
    v_lshl_add_u32 {v(vWo)}, {v(t4)}, 4, {v(t3)}
    s_lshl_b32 {s(sT2)}, {s(sCB)}, 7
    v_add_u32 {v(vWo)}, {s(sT2)}, {v(vWo)}
    s_lshl_b32 {s(sT4)}, {s(sIDX)}, 2
    s_add_u32 {s(sT4)}, {s(sT4)}, {s(sW)}
    s_lshl_b32 {s(sTB)}, {s(sT4)}, 11
    s_mul_i32 {s(sTB1)}, {s(sT4)}, 1536
    v_lshrrev_b32 {v(vTL)}, 2, {v(vL)}
    v_lshlrev_b32 {v(vTL)}, 7, {v(vTL)}
    s_and_b32 {s(sSX)}, {s(sRBL)}, {cfg.rotm}
    s_lshl_b32 {s(sSX)}, {s(sSX)}, {cfg.rots}
    s_add_u32 {s(sSX)}, {s(sSX)}, {s(sCB)}
    s_lshl_b32 {s(sMX)}, {s(sW)}, 11
    s_lshl_b32 {s(sMH)}, {s(sW)}, 9
    s_add_u32 {s(sMH)}, {s(sMH)}, 8192
    s_mul_i32 {s(sMW)}, {s(sW)}, 3072
    s_add_u32 {s(sMW)}, {s(sMW)}, {WRING}
    s_mov_b32 {s(SX+2)}, {2048*1024}
    s_mov_b32 {s(SX+3)}, 0x20000
    s_mov_b32 {s(SW1+2)}, {512*3072}
    s_mov_b32 {s(SW1+3)}, 0x20000
    s_waitcnt lgkmcnt(0)
    s_mov_b32 {s(SX)}, s64
    s_and_b32 {s(SX+1)}, s65, 0xffff
    s_mov_b32 {s(SW1)}, s66
    s_and_b32 {s(SW1+1)}, s67, 0xffff
    """)
    def dma_chunk(c):
        sl = (c % 3) * WSLOT
        W = lambda o: f"buffer_load_dwordx4 {v(vWo)}, {s(SW1,4)}, {s(sB0)} offen offset:{o} lds"
        return [f"""
        s_add_u32 m0, {s(sMW)}, {sl}
        s_add_u32 {s(sB1)}, {s(sSX)}, {c}
        s_and_b32 {s(sB1)}, {s(sB1)}, 7
        s_mul_i32 {s(sB0)}, {s(sB1)}, 196608
        s_lshl_b32 {s(sB1)}, {s(sB1)}, 7
        {W(0)}
        """, W(1024), W(2048), f"""
        s_add_u32 m0, {s(sMX)}, {c*XCH}
        s_add_u32 {s(sB0)}, {s(sB0)}, {32*3072}
        buffer_load_dwordx4 {v(vXo0)}, {s(SX,4)}, {s(sB1)} offen lds
        """, f"buffer_load_dwordx4 {v(vXo1)}, {s(SX,4)}, {s(sB1)} offen offset:1024 lds", f"""
        s_add_u32 m0, {s(sMH)}, {c*XCH}
        s_mov_b64 exec, {s(sEXH,2)}
        buffer_load_dwordx4 {v(vXh)}, {s(SX,4)}, {s(sB1)} offen lds
        s_mov_b64 exec, -1
        """, f"""
        s_add_u32 m0, {s(sMW)}, {sl + 4*3072}
        s_nop 0
        {W(0)}
        """, W(1024), W(2048), ('TAG', f"c{c}")]
    def t1w(r):
        if not cfg.touch or r > 7: return []
        return [f"""
        s_add_u32 {s(sB0)}, {s(sTB1)}, {r*196608}
        buffer_load_dword v250, {v(vTL)}, {s(SW1,4)}, {s(sB0)} offen
        """]
    if cfg.touch:
        G(f"""
        s_lshl_b32 {s(sB0)}, {s(sXCD)}, 18
        s_add_u32 {s(sB0)}, {s(sB0)}, {s(sTB)}
        buffer_load_dword v250, {v(vTL)}, {s(SX,4)}, {s(sB0)} offen
        """)
    G.items(dma_chunk(0) + t1w(1) + t1w(2))
    G(common_srds(cfg) + srd(SWO, 68, 512*1024) + srd(SWD, 76, 1376*1024) + srd(SOUT, 78, 2048*1024))
    A(f"""
    s_cmp_lg_u32 {s(sW)}, 0
    s_cbranch_scc1 REG_DONE
    s_and_b32 {s(sXCC)}, {s(sXCC)}, 7
    s_mul_i32 {s(sT0)}, {s(sXCC)}, {s(sXCC)}
    s_lshl_b32 {s(sT0)}, {s(sT0)}, 12
    s_lshl_b32 {s(sT1)}, {s(sXCC)}, 5
    s_or_b32 {s(sT0)}, {s(sT0)}, {s(sT1)}
    s_or_b32 {s(sT0)}, {s(sT0)}, 1
    s_lshl_b64 {s(sT4,2)}, {s(sTS,2)}, 22
    s_or_b32 {s(sT0)}, {s(sT0)}, {s(sT4)}
    v_mov_b32 v2, {s(sT0)}
    v_mov_b32 v3, {s(sT5)}
    s_lshl_b32 {s(sT1)}, {s(sG)}, 3
    v_mov_b32 v4, {s(sT1)}
    s_mov_b64 exec, 1
    buffer_atomic_add_x2 v[2:3], v4, {s(SDBG,4)}, 0 offen offset:128 sc1
    s_mov_b64 exec, -1
    """)
    A.label("REG_DONE")
    G.stamp('start')
    G.items(dma_chunk(1) + t1w(3))
    G(f"""
    v_lshlrev_b32 {v(vL16)}, 4, v0
    s_lshl_b32 {s(sT0)}, {s(sW)}, 11
    s_lshl_b32 {s(sT1)}, {s(sW)}, 9
    s_add_u32 {s(sT1)}, {s(sT1)}, 8192
    v_add_u32 {v(vSh)}, {s(sT1)}, {v(vL16)}
    v_add_u32 {v(vSa)}, {s(sT0)}, {v(vL16)}
    v_mov_b64 {v(SACC,2)}, 0
    v_mov_b64 {v(SACC+2,2)}, 0
    v_mov_b64 {v(SACC+4,2)}, 0
    """)
    G.wait_tag('c0')
    G.bar('c0')
    G.stamp('c0')
    G.bg_on = False
    G.bg(dma_chunk(2) + t1w(4))
    setups = [w3_setup(vP3, t0, t1, t2), f"""
    v_lshrrev_b32 {v(t0)}, 3, {v(vL)}
    v_and_b32 {v(t1)}, 7, {v(vL)}
    v_bfe_u32 {v(t2)}, {v(vL)}, 4, 1
    v_lshlrev_b32 {v(t2)}, 2, {v(t2)}
    v_xor_b32 {v(t1)}, {v(t1)}, {v(t2)}
    v_lshlrev_b32 {v(t0)}, 10, {v(t0)}
    v_lshl_add_u32 {v(vWD)}, {v(t1)}, 4, {v(t0)}
    s_lshl_b32 {s(sT0)}, {s(sCB)}, 7
    v_add_u32 {v(vWD)}, {s(sT0)}, {v(vWD)}
    s_lshl_b32 {s(sT2)}, {s(sRBL)}, 1
    s_lshl_b32 {s(sWB)}, {s(sW)}, 11
    s_lshl_b32 {s(sR2)}, {s(sRBL)}, 13
    s_lshl_b32 {s(sW1K)}, {s(sW)}, 10
    """, f"""
    v_lshrrev_b32 {v(t0)}, 5, {v(vL)}
    v_bfe_u32 {v(t1)}, {v(vL)}, 2, 2
    v_lshl_add_u32 {v(t0)}, {v(t0)}, 2, {v(t1)}
    v_lshlrev_b32 {v(t0)}, 7, {v(t0)}
    v_and_b32 {v(t1)}, 1, {v(vL)}
    v_lshl_add_u32 {v(t0)}, {v(t1)}, 5, {v(t0)}
    v_bfe_u32 {v(t1)}, {v(vL)}, 4, 1
    v_lshl_add_u32 {v(t0)}, {v(t1)}, 4, {v(t0)}
    v_bfe_u32 {v(t1)}, {v(vL)}, 1, 1
    v_lshl_add_u32 {v(t0)}, {v(t1)}, 3, {v(t0)}
    v_bfe_u32 {v(t1)}, {v(vL)}, 3, 1
    s_and_b32 {s(sT0)}, {s(sW)}, 1
    v_xor_b32 {v(t1)}, {s(sT0)}, {v(t1)}
    v_lshl_add_u32 {v(vWT+1)}, {v(t1)}, 6, {v(t0)}
    v_add_u32 {v(vWT+1)}, {s(sWB)}, {v(vWT+1)}
    v_xor_b32 {v(vWT)}, 64, {v(vWT+1)}
    s_lshl_b32 {s(sA3)}, {s(sW)}, 15
    s_add_u32 {s(sA3)}, {s(sA3)}, {L.H_OFF}
    s_lshl_b32 {s(sT0)}, {s(sRB)}, 6
    s_lshr_b32 {s(sT2)}, {s(sW)}, 1
    s_lshl_b32 {s(sT2)}, {s(sT2)}, 5
    s_add_u32 {s(sT0)}, {s(sT0)}, {s(sT2)}
    s_lshl_b32 {s(sT0)}, {s(sT0)}, 10
    s_lshl_b32 {s(sT2)}, {s(sCB)}, 7
    s_add_u32 {s(sT0)}, {s(sT0)}, {s(sT2)}
    s_and_b32 {s(sT2)}, {s(sW)}, 1
    s_lshl_b32 {s(sT2)}, {s(sT2)}, 6
    s_add_u32 {s(sT0)}, {s(sT0)}, {s(sT2)}
    v_and_b32 v2, 15, v0
    v_lshlrev_b32 v2, 11, v2
    v_lshrrev_b32 v3, 4, v0
    v_lshl_add_u32 {v(vXA)}, v3, 4, v2
    v_add_u32 {v(vXA)}, {s(sT0)}, {v(vXA)}
    s_lshl_b32 {s(sT0)}, {s(sG)}, 3
    v_mov_b32 {v(vRA)}, {s(sT0)}
    s_and_b32 {s(sT0)}, {s(sRB)}, 1
    s_lshl_b32 {s(sT0)}, {s(sT0)}, 1
    s_lshr_b32 {s(sT1)}, {s(sW)}, 1
    s_add_u32 {s(sT0)}, {s(sT0)}, {s(sT1)}
    s_lshl_b32 {s(sO1)}, {s(sT0)}, 12
    s_lshl_b32 {s(sO0)}, {s(sT0)}, 15
    s_lshl_b32 {s(sT2)}, {s(sCB)}, 1
    s_and_b32 {s(sT3)}, {s(sW)}, 1
    s_add_u32 {s(sT2)}, {s(sT2)}, {s(sT3)}
    s_lshl_b32 {s(sT2)}, {s(sT2)}, 11
    s_add_u32 {s(sO0)}, {s(sO0)}, {s(sT2)}
    s_add_u32 {s(sO0)}, {s(sO0)}, {L.H_OFF}
    s_lshl_b32 {s(sT2)}, {s(sCB)}, 9
    s_add_u32 {s(sO1)}, {s(sO1)}, {s(sT2)}
    s_lshl_b32 {s(sT3)}, {s(sT3)}, 3
    s_add_u32 {s(sO1)}, {s(sO1)}, {s(sT3)}
    s_add_u32 {s(sO1)}, {s(sO1)}, {L.ST_OFF}
    """]
    def wt_dma(SWT, sko, ldsoff, tagname, vWD_):
        return [f"""
        s_lshl_b32 {s(sB0)}, {s(sko)}, 4
        s_add_u32 m0, {s(sWB)}, {ldsoff}
        s_add_u32 {s(sB1)}, {s(sB0)}, 7168
        buffer_load_dwordx4 {v(vWD_)}, {s(SWT,4)}, {s(sB0)} offen lds
        """, f"buffer_load_dwordx4 {v(vWD_)}, {s(SWT,4)}, {s(sB1)} offen offset:1024 lds", ('TAG', tagname)]
    def wt_reads(dst, ldsoff, vWT_):
        return [f"ds_read_b64_tr_b16 {v(dst + 4*k + 2*half, 2)}, {v(vWT_+k)} offset:{ldsoff + half*1024}" for k in range(2) for half in range(2)]
    def wo(j):
        g = wt_dma(SWO, sB0, j*8192, f"wo{j}", vWD)
        g[0] = f"""
        s_add_u32 {s(sB0)}, {s(sR2)}, {j*4096}
        s_and_b32 {s(sB0)}, {s(sB0)}, 32767
        s_add_u32 {s(sB0)}, {s(sB0)}, {s(sW1K)}
        """ + g[0]
        return g
    assert not cfg.touch
    XR = 224
    def one():
        if G._has(): G._one()
    G.bg_on = False
    for i in range(8):
        su = setups[i].strip().split('\n') if i < len(setups) else []
        nd = cfg.ndma if i < 7 else cfg.ndma7
        per = (len(su) + nd - 1) // max(nd, 1)
        for k in range(nd if i != 3 else 5):
            one()
            for ln in su[k*per:(k+1)*per]: G(ln)
        if i == 2:
            G(f"buffer_load_dwordx2 {v(vFE,2)}, {v(vRA)}, {s(SDBG,4)}, 0 offen offset:128 sc1")
        if i == 2 and cfg.pretouch:
            G(f"""
            v_and_b32 v2, 15, v0
            v_lshlrev_b32 v2, 7, v2
            buffer_load_dword v250, v2, {s(SWS,4)}, {s(sO0)} offen sc1
            """)
        if i == 4:
            assert cfg.rotm == 1 and cfg.rots == 2
            G(f"""
            s_and_b32 {s(sT0)}, {s(sRBL)}, 1
            s_mul_i32 {s(sT0)}, {s(sT0)}, {4*XCH}
            s_lshr_b32 {s(sT1)}, {s(sW)}, 1
            s_lshl_b32 {s(sT1)}, {s(sT1)}, 12
            s_add_u32 {s(sT0)}, {s(sT0)}, {s(sT1)}
            v_and_b32 v2, 31, v0
            v_lshlrev_b32 v3, 7, v2
            v_add_u32 v3, {s(sT0)}, v3
            v_bfe_u32 v2, v0, 1, 3
            v_lshrrev_b32 v4, 5, v0
            v_lshlrev_b32 v4, 1, v4
            s_and_b32 {s(sT1)}, {s(sW)}, 1
            s_lshl_b32 {s(sT1)}, {s(sT1)}, 2
            v_or_b32 v4, {s(sT1)}, v4
            v_xor_b32 v4, v4, v2
            v_lshl_add_u32 v5, v4, 4, v3
            v_xor_b32 v4, 1, v4
            v_lshl_add_u32 v3, v4, 4, v3
            ds_read_b128 {v(XR,4)}, v5
            ds_read_b128 {v(XR+4,4)}, v3
            """)
            G.lwait_all()
        if i == 3:
            regdecode(G, vFE, vRA)
            G(f"""
            v_min_u32 v2, 2, v0
            s_mul_i32 {s(sT0)}, {s(sW)}, 24
            s_add_u32 {s(sT0)}, {s(sT0)}, {STG}
            v_lshlrev_b32 v3, 3, v2
            v_add_u32 v3, {s(sT0)}, v3
            ds_read_b64 v[16:17], v3
            s_mul_i32 {s(sT0)}, {s(sCB)}, 10
            s_mul_i32 {s(sT1)}, {s(sW)}, 3
            s_add_u32 {s(sT0)}, {s(sT0)}, {s(sT1)}
            v_add_u32 v2, {s(sT0)}, v2
            v_min_u32 v2, 79, v2
            v_lshlrev_b32 v2, 4, v2
            s_and_b32 {s(sT4)}, {s(sRB)}, 1
            s_mul_i32 {s(sT4)}, {s(sT4)}, 1280
            s_add_u32 {s(sT4)}, {s(sT4)}, {SG_OFF}
            v_mov_b32 v18, {v(vFE)}
            v_mov_b32 v19, {v(vFE+1)}
            v_min_u32 v20, 19, v0
            s_mul_i32 {s(sT0)}, {s(sW)}, 20
            v_add_u32 v20, {s(sT0)}, v20
            v_lshlrev_b32 v21, 2, v20
            v_add_u32 v21, {STATS1}, v21
            v_lshlrev_b32 v20, 4, v20
            s_mov_b32 {s(sMWL)}, {s(sT4)}
            """)
            stores(G, [f"buffer_store_dwordx4 v[16:19], v2, {s(SWS,4)}, {s(sT4)} offen"], "STG")
            for k in range(nd - 5): one()
        if i == 5:
            G(f"buffer_load_dwordx4 v[24:27], v20, {s(SWS,4)}, {s(sMWL)} offen sc1")
        if cfg.fine == 1: G.stamp(f'd{i}')
        if i == 7: break
        G.wait_tag(f"c{i+1}")
        G.bar(f"c{i+1}")
        if i + 3 < 8: G.bg(dma_chunk(i + 3) + t1w(i + 5))
        if i == 4:
            for j in range(6): G.bg(wo(j))
        if i == 5:
            G.bg(wo(6))
            G.bg(w3_dma(0, W3SLOT[0], vP3))
        if i == 6:
            G.bg(wo(7))
            G.bg(w3_dma(1, W3SLOT[1], vP3))
    G._autowait(Ins("v_mov_b32 v24, v27"))
    G(f"s_mov_b32 {s(sCNT)}, 0")
    A.label("SGPOLL")
    A(f"""
    v_cmp_ne_u64 vcc, v[26:27], {v(vFE,2)}
    s_add_u32 {s(sCNT)}, {s(sCNT)}, 1
    s_cbranch_vccz SGOK
    s_cmp_ge_u32 {s(sCNT)}, 20000
    s_cbranch_scc1 SGOK
    buffer_load_dwordx4 v[24:27], v20, {s(SWS,4)}, {s(sMWL)} offen sc1
    s_waitcnt vmcnt(0)
    s_branch SGPOLL
    """)
    A.label("SGOK")
    G(f"""
    ds_write_b32 v21, v25
    ds_write_b32 v21, v24 offset:512
    """)
    G.lwait_all()
    G.bar('stats')
    G.stamp('p1loop')
    G.bg_on = True
    G.flush()
    G.items(p4_table())
    G(f"""
    v_mov_b32 v11, {v(vL16)}
    v_and_b32 v14, 31, v0
    v_lshlrev_b32 v14, 4, v14
    v_lshrrev_b32 v3, 5, v0
    v_lshl_add_u32 v14, v3, 2, v14
    v_subrev_u32 v12, {s(sWB)}, {v(vWT+1)}
    s_lshr_b32 {s(sT0)}, {s(sW)}, 1
    s_lshl_b32 {s(sT0)}, {s(sT0)}, 15
    v_add_u32 v13, {s(sT0)}, {v(vL16)}
    """)
    G.wait_tag('wo7')
    G.bsync('wo')
    WO = 80
    for q in range(32):
        for half in range(2): G(f"ds_read_b64_tr_b16 {v(WO + 4*q + 2*half, 2)}, v12 offset:{q*2048 + half*1024}")
    XU = 32
    for i in range(8):
        G(f"""
        v_lshlrev_b32 {v(XU+2*i)}, 16, {v(XR+i)}
        v_and_b32 {v(XU+2*i+1)}, 0xffff0000, {v(XR+i)}
        """)
    G.wait_tag('w3_1')
    G.lwait_all()
    G.stamp('pre')
    G.bar('w3a')
    G.stamp('w3a')
    ACC2 = 16
    def red_write(u, reg):
        out = [f"""
        s_xor_b32 {s(sT5)}, {s(sW)}, {3-u}
        s_mul_i32 {s(sT5)}, {s(sT5)}, 12288
        v_add_u32 v10, {s(sT5)}, v11
        """]
        out += [f"ds_write_b128 v10, {v(reg+4*i,4)} offset:{u*4096+i*1024}" for i in range(4)]
        return out
    def red_read(RED, barname):
        out = [f"""
        s_mul_i32 {s(sT5)}, {s(sW)}, 12288
        v_add_u32 v10, {s(sT5)}, v11
        """, ('BSYNC', barname)]
        out += [f"ds_read_b128 {v(RED[i>>2]+4*(i&3),4)}, v10 offset:{i*1024}" for i in range(12)]
        return out
    def final(F, RED, XH, OUTR):
        for i in range(8): G(f"v_pk_add_f32 {v(RED[0]+2*i,2)}, {v(RED[0]+2*i,2)}, {v(RED[1]+2*i,2)}")
        for i in range(8):
            G(f"""
            v_lshlrev_b32 {v(RED[1]+2*i)}, 16, {v(XH+i)}
            v_and_b32 {v(RED[1]+2*i+1)}, 0xffff0000, {v(XH+i)}
            """)
        for i in range(8): G(f"v_pk_add_f32 {v(RED[2]+2*i,2)}, {v(RED[2]+2*i,2)}, {v(RED[1]+2*i,2)}")
        for i in range(8): G(f"v_pk_add_f32 {v(RED[0]+2*i,2)}, {v(RED[0]+2*i,2)}, {v(RED[2]+2*i,2)}")
        for i in range(8): G(f"v_pk_add_f32 {v(F+2*i,2)}, {v(F+2*i,2)}, {v(RED[0]+2*i,2)}")
        for i in range(8): G(f"v_cvt_pk_bf16_f32 {v(OUTR+i)}, {v(F+2*i)}, {v(F+2*i+1)}")
    AB2 = 48; NA2 = 6
    nr2 = 0
    def rd2():
        nonlocal nr2
        if nr2 % 8 == 0: G.bar(f"o_{nr2 // 8}")
        G(f"ds_read_b128 {v(AB2 + 4*(nr2 % NA2), 4)}, v13 offset:{nr2*1024}"); nr2 += 1
    for _ in range(NA2 - 1): rd2()
    G.stamp('poll0')
    for q in range(32):
        G(f"v_mfma_f32_32x32x16_bf16 {v(XU,16)}, {v(WO+4*q,4)}, {v(AB2+4*(q % NA2),4)}, {v(XU,16)}")
        if nr2 < 32: rd2()
    OUTR = 232
    G(f"v_mov_b64 v[16:17], 0\nv_mov_b64 v[18:19], 0")
    for i in range(8): G(f"v_cvt_pk_bf16_f32 {v(OUTR+i)}, {v(XU+2*i)}, {v(XU+2*i+1)}")
    sm, sq = 16, 17
    if cfg.fine == 2: G.stamp('fin')
    stores(G, [f"buffer_store_dwordx4 {v(OUTR,4)}, {v(vL16)}, {s(SWS,4)}, {s(sO0)} offen",
               f"buffer_store_dwordx4 {v(OUTR+4,4)}, {v(vL16)}, {s(SWS,4)}, {s(sO0)} offen offset:1024"], "ST2")
    for i in range(8):
        G(f"v_dot2c_f32_bf16 {v(sm+2*(i&1))}, {s(sONE)}, {v(OUTR+i)}")
        G(f"v_dot2c_f32_bf16 {v(sq+2*(i&1))}, {v(OUTR+i)}, {v(OUTR+i)}")
    G(f"""
    v_add_f32 {v(sm)}, {v(sm)}, {v(sm+2)}
    v_add_f32 {v(sq)}, {v(sq)}, {v(sq+2)}
    v_permlane32_swap_b32 {v(sm)}, {v(sq)}
    v_add_f32 {v(sm)}, {v(sm)}, {v(sq)}
    """)
    stores(G, [f"buffer_store_dword {v(sm)}, v14, {s(SWS,4)}, {s(sO1)} offen"], "ST2B")
    G.stamp('p2')
    signal(G, 1, vFE)
    G.stamp('sig1')
    nP3, nWD, nWT, nXA = 20, 23, 24, 1
    G(f"""
    s_mul_i32 {s(sT0)}, {s(sW)}, {8192 - 2048}
    s_add_u32 {s(sT0)}, {s(sT0)}, {WDT}
    s_add_u32 {s(sWB)}, {s(sWB)}, {s(sT0)}
    v_add_u32 {v(nWT)}, {s(sT0)}, {v(vWT)}
    v_add_u32 {v(nWT+1)}, {s(sT0)}, {v(vWT+1)}
    v_mov_b32 {v(nP3)}, {v(vP3)}
    v_mov_b32 {v(nP3+1)}, {v(vP3+1)}
    v_mov_b32 {v(nP3+2)}, {v(vP3+2)}
    v_mov_b32 {v(nWD)}, {v(vWD)}
    v_mov_b32 {v(nXA)}, {v(vXA)}
    s_mov_b32 {s(SW1)}, {s(SWS)}
    s_mov_b32 {s(SW1+1)}, {s(SWS+1)}
    s_cmp_eq_u32 {s(sM)}, 15
    s_cselect_b32 {s(SW1+2)}, 0, {L.GSTRIDE}
    s_lshl_b32 {s(sT4)}, {s(sW)}, 12
    s_add_u32 {s(sT4)}, {s(sT4)}, {L.ST_OFF}
    """)
    G.sv = (26, 28)
    G('v_mov_b32 v15, v253'); G.vS = 15
    poll(G, 1, vFE)
    G.stamp('poll1')
    def a_dma(c):
        r = (c % 3) * 16384
        g = [f"""
        s_xor_b32 {s(sB0)}, {s(sROT3)}, {lch(c)}
        s_lshl_b32 {s(sB0)}, {s(sB0)}, 12
        s_add_u32 {s(sB0)}, {s(sB0)}, {s(sA3)}
        s_lshl_b32 {s(sB1)}, {s(sW)}, 12
        s_add_u32 m0, {s(sB1)}, {r}
        s_nop 0
        buffer_load_dwordx4 v11, {s(SW1,4)}, {s(sB0)} offen sc1 lds
        """]
        for i in range(1, 4): g.append(f"buffer_load_dwordx4 v11, {s(SW1,4)}, {s(sB0)} offen offset:{1024*i} sc1 lds")
        g.append(('TAG', f"a3_{c}"))
        return g
    a1 = a_dma(1)
    G.items(a_dma(0) + a1[:2])
    G.wait_tag('a3_0')
    G.bar('a3_0')
    G.stamp('a3_0')
    G.items(a1[2:] + a_dma(2))
    SL = 32
    for i in range(4): G(f"buffer_load_dwordx4 {v(SL+4*i,4)}, v11, {s(SWS,4)}, {s(sT4)} offen offset:{1024*i} sc1")
    for l in PFORD[cfg.npf:]: G.items(w3_dma(l, W3SLOT[l], nP3))
    NR = 4
    WD_SLOT = [80 + 8*j for j in range(22)]
    wd = lambda j: wt_dma(SWD, sKO + j, (j % NR) * 2048, f"wd_{j}", nWD)
    wd_issue_period = {}
    st3 = []
    for i in range(4): st3.append(f"v_add_f32 {v(SL+4*i)}, {v(SL+4*i)}, {v(SL+4*i+2)}\nv_add_f32 {v(SL+4*i+1)}, {v(SL+4*i+1)}, {v(SL+4*i+3)}")
    st3.append(f"""
    v_add_f32 {v(SL)}, {v(SL)}, {v(SL+4)}
    v_add_f32 {v(SL+1)}, {v(SL+1)}, {v(SL+5)}
    v_add_f32 {v(SL+8)}, {v(SL+8)}, {v(SL+12)}
    v_add_f32 {v(SL+9)}, {v(SL+9)}, {v(SL+13)}
    v_add_f32 {v(SL)}, {v(SL)}, {v(SL+8)}
    v_add_f32 {v(SL+1)}, {v(SL+1)}, {v(SL+9)}
    v_mov_b32 {v(SL+2)}, {v(SL)}
    v_mov_b32 {v(SL+3)}, {v(SL+1)}
    v_permlane32_swap_b32 {v(SL)}, {v(SL+2)}
    v_permlane32_swap_b32 {v(SL+1)}, {v(SL+3)}
    v_add_f32 {v(SL)}, {v(SL)}, {v(SL+2)}
    v_add_f32 {v(SL+1)}, {v(SL+1)}, {v(SL+3)}
    v_mul_f32 {v(SL)}, 0x3b000000, {v(SL)}
    v_mul_f32 {v(SL+1)}, 0x3b000000, {v(SL+1)}
    v_fma_f32 {v(SL+1)}, -{v(SL)}, {v(SL)}, {v(SL+1)}
    v_max_f32 {v(SL+1)}, 0, {v(SL+1)}
    v_add_f32 {v(SL+1)}, 0x3727c5ac, {v(SL+1)}
    v_rcp_f32 {v(SL+1)}, {v(SL+1)}
    v_sub_f32 {v(SL)}, 0, {v(SL)}
    s_lshl_b32 {s(sT5)}, {s(sW)}, 8
    s_add_u32 {s(sT5)}, {s(sT5)}, {STATS3}
    v_and_b32 v2, 31, v0
    v_lshlrev_b32 v2, 3, v2
    v_add_u32 v2, {s(sT5)}, v2
    ds_write_b64 v2, {v(SL,2)}
    """)
    G.items(st3)
    wd_next = 0; wd_iss = 0
    def wd_cycle(period, force=False):
        nonlocal wd_next, wd_iss
        did = []
        while wd_next < wd_iss:
            j = wd_next
            lead = 2 if j < NR else 1
            if not force and period - wd_issue_period[j] < lead: break
            G.wait_tag(f"wd_{j}")
            for x in wt_reads(WD_SLOT[j], (j % NR) * 2048, nWT): G(x)
            did.append(j); wd_next += 1
        if did:
            G.lwait_all()
            for j in did:
                if wd_iss < 22:
                    G.items(wd(wd_iss)); wd_issue_period[wd_iss] = period; wd_iss += 1
    for c in range(7):
        st = 4*c + 3
        G.wait_tag(f"a3_{c+1}")
        for l, b in W3BAR.items():
            if b == st and f"w3_{l}" in G.tags: G.wait_tag(f"w3_{l}")
        G.lwait_all()
        G.bar(f'p3_{st}')
        if c + 3 < 8: G.items(a_dma(c + 3))
        heavy = False
        for l in (5, 6, 7):
            if 4*(l-5) + 3 == st: G.items(w3_dma(l, W3SLOT[l], nP3)); heavy = True
        if c == cfg.wd0:
            for j in range(NR): G.items(wd(j)); wd_issue_period[j] = c + 1
            wd_iss = NR
        elif not (heavy and cfg.skipwd): wd_cycle(c + 1)
    G.stamp('p3ld')
    while wd_next < 22: wd_cycle(99, force=True)
    G.lwait_all()
    G.stamp('wd')
    G.sv = (15, 8)
    G(f"""
    s_mul_i32 {s(sT0)}, {s(sW)}, 24576
    s_add_u32 {s(sT0)}, {s(sT0)}, {RING4}
    v_add_u32 v12, {s(sT0)}, v11
    """)
    G.bar('p4start')
    U = [16, 32, 48, 16]
    AB = 64; NAB = 4
    n = 22; skew = cfg.skew
    ops = []
    for j in range(n): ops += [(0, 0, j, j, True), (1, 1, j, j, False)]
    for j in range(n - 3):
        ops.append((2, 0, j, 22 + j, True))
        if j >= skew: ops.append((3, 1, j, 22 + j, False))
        if skew <= j < 2*skew: ops.append((3, 1, j - skew, 22 + j - skew, True))
    for j in range(n - 3, n): ops.append((2, 0, j, 22 + j, True))
    for j in range(n - 3, n): ops.append((3, 1, j, 22 + j, 'keep'))
    rd_list = [(k, o[3]) for k, o in enumerate(ops) if o[4] is True]
    slot_of = {}
    for r, (k, q) in enumerate(rd_list): slot_of[k] = r % NAB
    for k, o in enumerate(ops):
        if o[4] is False: slot_of[k] = slot_of[k-1]
        if o[4] == 'keep': slot_of[k] = slot_of[k-3]
    barred = -1
    nr = 0
    def issue_read():
        nonlocal nr, barred
        k, q = rd_list[nr]
        while barred < q // 4:
            barred += 1
            G.lwait_all() if False else None
            G.bar(f"p4_{barred}")
        G(f"ds_read_b128 {v(AB + 4*(nr % NAB), 4)}, v12 offset:{(q % 24) * 1024}")
        nr += 1
    RED = [80, 96, 112]
    XH = 128; OUTR = 136
    assert skew <= 6
    extra = {}
    w0 = red_write(0, U[0])
    extra.setdefault(2*n, []).extend(w0[:2]); extra.setdefault(2*n + 1, []).append(w0[2]); extra.setdefault(2*n + 2, []).append(w0[3]); extra.setdefault(2*n + 3, []).append(w0[4])
    i = 2*n + skew + 2
    for it in red_write(1, U[1]): extra.setdefault(i, []).append(it); i += 2
    last2 = max(k for k, o in enumerate(ops) if o[0] == 2)
    w2 = red_write(2, U[2])
    extra.setdefault(last2 + 1, []).extend(w2[:3]); extra.setdefault(last2 + 2, []).extend(w2[3:])
    assert last2 + 3 == len(ops) - 1
    rr = red_read(RED, 'red4')
    extra.setdefault(last2 + 3, []).extend(rr[:2] + rr[10:])
    e0 = last2 - 13
    assert all(not (o[0] == 3 and o[2] < 8) for o in ops[e0-2:]), 'slots still live'
    extra.setdefault(e0 - 2, []).append(f"""
    buffer_load_dwordx4 {v(XH,4)}, v11, {s(SWS,4)}, {s(sO0)} offen sc1
    buffer_load_dwordx4 {v(XH+4,4)}, v11, {s(SWS,4)}, {s(sO0)} offen offset:1024 sc1
    """)
    extra.setdefault(e0, []).extend([rr[0], ('BSYNC', 'red4a')] + rr[2:10])
    pre = [f"v_add_f32 {v(RED[0]+i)}, {v(RED[0]+i)}, {v(RED[1]+i)}" for i in range(16)]
    for i in range(8): pre += [f"v_lshlrev_b32 {v(RED[1]+2*i)}, 16, {v(XH+i)}", f"v_and_b32 {v(RED[1]+2*i+1)}, 0xffff0000, {v(XH+i)}"]
    pre += [f"v_add_f32 {v(RED[0]+i)}, {v(RED[0]+i)}, {v(RED[1]+i)}" for i in range(16)]
    for i, x in enumerate(pre): extra.setdefault(e0 + 2 + i // 4, []).append(x)
    for _ in range(NAB - 1): issue_read()
    G.stamp('p4_0')
    rdone = 0
    for k, (u, cs, j, q, fresh) in enumerate(ops):
        if u == 3 and j == skew: G.lwait(G.w0idx)
        G(f"v_mfma_f32_32x32x16_bf16 {v(U[u],16)}, {v(WD_SLOT[j]+4*cs,4)}, {v(AB+4*slot_of[k],4)}, {'0' if j == (skew if u == 3 else 0) else v(U[u],16)}")
        if fresh is True: rdone += 1
        nxt_fresh = (k + 1 == len(ops)) or (ops[k+1][4] is not False)
        while nr < len(rd_list) and nr - NAB < rdone - (0 if nxt_fresh else 1): issue_read()
        G.items(extra.get(k, []))
        if k == 2*n + 3: G.w0idx = G.lg
    for i in range(8): G(f"v_pk_add_f32 {v(RED[0]+2*i,2)}, {v(RED[0]+2*i,2)}, {v(RED[2]+2*i,2)}")
    for i in range(8): G(f"v_pk_add_f32 {v(U[3]+2*i,2)}, {v(U[3]+2*i,2)}, {v(RED[0]+2*i,2)}")
    for i in range(8): G(f"v_cvt_pk_bf16_f32 {v(OUTR+i)}, {v(U[3]+2*i)}, {v(U[3]+2*i+1)}")
    for i in range(4): G(f"v_permlane16_swap_b32 {v(OUTR+i)}, {v(OUTR+4+i)}")
    G(f"""
    buffer_store_dwordx4 {v(OUTR,4)}, {v(nXA)}, {s(SOUT,4)}, 0 offen
    buffer_store_dwordx4 {v(OUTR+4,4)}, {v(nXA)}, {s(SOUT,4)}, 0 offen offset:1024
    """)
    G.stamp('end')

def main(path, cfg):
    A = Asm()
    A.raw(HDR.rstrip('\n'))
    A.raw(f"; @launch grid=(256,1,1) block=(512,1,1) lds={LDS_TOTAL}")
    A.raw('.amdgcn_target "amdgcn-amd-amdhsa--gfx950"\n.text')
    n = NAME + "_kernel"
    A.raw(f".globl {n}\n.p2align 8\n.type {n},@function\n{n}:")
    A(f"""
    s_cmp_ge_u32 s2, 256
    s_cbranch_scc1 K_END
    s_load_dwordx16 s[64:79], s[0:1], 0
    s_load_dwordx4 s[80:83], s[0:1], 64
    s_memrealtime {s(sTS,2)}
    s_getreg_b32 {s(sXCC)}, hwreg(HW_REG_XCC_ID, 0, 4)
    v_lshrrev_b32 v1, 6, v0
    v_and_b32 v0, 63, v0
    v_readfirstlane_b32 {s(sW8)}, v1
    s_and_b32 {s(sXCD)}, s2, 7
    s_lshr_b32 {s(sIDX)}, s2, 3
    s_lshr_b32 {s(sRBL)}, {s(sIDX)}, 3
    s_and_b32 {s(sCB)}, {s(sIDX)}, 7
    s_lshl_b32 {s(sRB)}, {s(sXCD)}, 2
    s_add_u32 {s(sRB)}, {s(sRB)}, {s(sRBL)}
    s_and_b32 {s(sM)}, {s(sIDX)}, 15
    s_lshr_b32 {s(sG)}, {s(sRB)}, 1
    s_mov_b32 {s(sONE)}, 0x3f803f80
    s_and_b32 {s(sW)}, {s(sW8)}, 3
    s_cmp_lt_u32 {s(sW8)}, 4
    s_cbranch_scc1 PROG_A
    """)
    def pad(G):
        if not G.probed: return
        A(f"s_add_u32 s36, s36, 4000")
        A.label(G.pfx + "PADL")
        A(f"""
        s_memrealtime s[50:51]
        s_waitcnt lgkmcnt(0)
        s_sub_u32 s50, s50, s36
        s_cmp_lt_i32 s50, 0
        s_cbranch_scc1 {G.pfx}PADL
        """)
    GB = Gen(cfg, A, "B_"); prog_b(GB); pad(GB)
    A("s_endpgm")
    A.label("PROG_A")
    GA = Gen(cfg, A, "A_"); prog_a(GA); pad(GA)
    A.label("K_END")
    A("s_endpgm")
    assert GA.bars == GB.bars, (GA.bars, GB.bars)
    A.raw('.section .rodata,"a"\n.p2align 6')
    A.raw(f""".amdhsa_kernel {n}
  .amdhsa_next_free_vgpr 256
  .amdhsa_next_free_sgpr 102
  .amdhsa_accum_offset 256
  .amdhsa_group_segment_fixed_size 0
  .amdhsa_kernarg_size 80
  .amdhsa_user_sgpr_count 2
  .amdhsa_user_sgpr_kernarg_segment_ptr 1
  .amdhsa_system_sgpr_workgroup_id_x 1
.end_amdhsa_kernel""")
    open(path, 'w').write(A.finalize())
    print("barriers:", len(GA.bars)); print("stampsA:", GA.names); print("stampsB:", GB.names)

if __name__ == '__main__':
    cfg = Cfg()
    for a_ in sys.argv[2:]:
        k, val = a_.split('=')
        setattr(cfg, k, val if k == 'probe' else int(val))
    main(sys.argv[1], cfg)
```

```python
import sys, re
from asmlib import *
import layout as L

NAME = "sequential_preLN__sliding_local_dilated__glu_gated_reglu__prompt"
HDR = open('cdna_kernels/' + NAME + '.s.ref').read().split('; Override launch')[0]

class Cfg:
    stamps = 0
    probe = ''
    force_slow = 0
    touch = 0
    skew = 6
    pre2 = 7
    gap = 64
    prioA = 0
    prioB = 0
    wd_early = 1
    fine = 0
    skipwd = 1
    nb0 = 2
    pretouch = 1
    tlb = 0
    ramp = 3
    wd0 = 3
    ndma = 9
    ndma7 = 4
    rotm = 1
    rots = 2
    abl = 0
    bflush = 5
    gapB = 32
    npf = 2
    l345 = 2

SX, SW1, SWO, SWD, SOUT, SWS, SDBG, SMU, sST = 4, 8, 12, 16, 20, 24, 28, 32, 36
sXCD, sIDX, sRBL, sCB, sW, sG, sRB, sM = 40, 41, 42, 43, 44, 45, 46, 47
sONE, sMODE = 48, 49
sT0, sT1, sT2, sT3, sT4, sT5 = 50, 51, 52, 53, 54, 55
sB0, sCNT = 56, 57
sEXH = 58
sMX, sMH, sMW, sSX = 60, 61, 62, 63
sKO = 64
sMWL, sB1 = 86, 87
sROT3, sW3S, sW3G, sA3, sWB, sO0, sO1 = 88, 89, 90, 91, 92, 93, 94
sXCC = 95
sTS = 96
sTB, sTB1, sW8, sSW = 98, 99, 100, 101
sMW0 = 3
sR2, sW1K = 98, 99

class Gen:
    def __init__(self, cfg, A, pfx):
        self.A = A; self.cfg = cfg; self.pfx = pfx
        self.vm = 0; self.tags = {}; self.nstamp = 0; self.names = []
        self.t = 0; self.tm = 0; self.nv = 0
        self.q = []; self.cur = []; self.inbg = False; self.bg_on = True
        self.lg = 0; self.ldone = 0; self.lpend = {}; self.vdone = 0; self.vpend = {}
        self.bars = []
        self.dummy = None
        self.probed = False
        self.sv = (253, 254)
    def _autowait(self, ins):
        regs = [r for r in list(ins.rd) + list(ins.wr) if r[0] in 'va']
        nl = max([self.lpend.get(r, 0) for r in regs] + [0])
        nvm = max([self.vpend.get(r, 0) for r in regs] + [0])
        parts = []
        if nvm > self.vdone:
            parts.append(f"vmcnt({min(self.vm - nvm, 63)})"); self.vdone = nvm
        if nl > self.ldone:
            parts.append(f"lgkmcnt({min(self.lg - nl, 15)})"); self.ldone = nl
        if parts:
            self.A("s_waitcnt " + " ".join(parts)); self.t += 4
    def _note_wait(self, ln):
        m = re.search(r'vmcnt\((\d+)\)', ln)
        if m: self.vdone = max(self.vdone, self.vm - int(m.group(1)))
        m = re.search(r'lgkmcnt\((\d+)\)', ln)
        if m: self.ldone = max(self.ldone, self.lg - int(m.group(1)))
    def lwait_all(self):
        if self.ldone < self.lg: self._emit("s_waitcnt lgkmcnt(0)")
    def lwait(self, idx):
        if self.ldone < idx: self._emit(f"s_waitcnt lgkmcnt({min(self.lg - idx, 15)})")
    def _emit(self, ln):
        ins = Ins(ln)
        if ins.cls in ('valu', 'mfma', 'lds', 'vmem'): self._autowait(ins)
        self.A(ln)
        op = ins.op
        if op == 's_waitcnt': self._note_wait(ln)
        if ins.cls == 'lds':
            self.lg += 1
            for r in ins.wr: self.lpend[r] = self.lg
        if ins.cls == 'vmem':
            for r in ins.wr:
                if r != self.dummy: self.vpend[r] = self.vm + 1
        if op.startswith('v_mfma'):
            st = max(self.t, self.tm); self.t = st + 8; self.tm = st + (32 if '32x32' in op else 16)
        elif ins.cls == 'vmem':
            self.vm += 1
            self.t = max(self.t, self.nv) + 8; self.nv = self.t + (self.cfg.gapB if self.pfx == 'B_' else self.cfg.gap)
        elif ins.cls == 'lds': self.t += 10
        else: self.t += 4
    def __call__(self, t):
        for ln in t.strip().split('\n'):
            ln = ln.strip()
            if ln: self._emit(ln)
        self.pump()
    def _next(self):
        while not self.cur and self.q: self.cur = list(self.q.pop(0))
        return self.cur.pop(0) if self.cur else None
    def _has(self): return bool(self.cur) or any(self.q)
    def _one(self):
        it = self._next()
        self.inbg = True
        self.item(it)
        while self.cur and isinstance(self.cur[0], tuple) and self.cur[0][0] == 'TAG': self.item(self.cur.pop(0))
        self.inbg = False
    def pump(self):
        if self.inbg or not self.bg_on: return
        while self._has() and self.t >= self.nv: self._one()
    def bg(self, group): self.q.append(list(group))
    def flush(self, tag=None):
        while self._has() and (tag is None or tag not in self.tags): self._one()
    def tag(self, name): self.tags[name] = self.vm
    def wait_tag(self, name):
        if name not in self.tags: self.flush(name)
        if self.tags[name] <= self.vdone: return
        self._emit(f"s_waitcnt vmcnt({min(self.vm - self.tags[name], 63)})")
    def bar(self, name):
        if self.cfg.fine and name.startswith({1: 'c', 2: 'zz', 3: 'p3_', 4: 'p4_'}[self.cfg.fine]): self.stamp('@' + name)
        self.bars.append(name); self._emit("s_barrier"); self.nv = self.t
        if self.cfg.fine == 3 and name.startswith('p3_') and self.pfx == 'A_': self.stamp('>' + name)
    def asyncA(self):
        self.bsync('svcA')
    def bsync(self, name):
        off = CNT + {'wo': 0, 'red4': 4, 'red4a': 8}[name]
        self.bg_on = False
        self(f"""
        v_mov_b32 v2, {off}
        v_mov_b32 v3, 1
        s_mov_b64 exec, 1
        ds_add_u32 v2, v3
        s_mov_b64 exec, -1
        s_mov_b32 {s(sCNT)}, 0
        """)
        self.A.label("BS_" + name)
        self.A(f"""
        ds_read_b32 v3, v2
        s_add_u32 {s(sCNT)}, {s(sCNT)}, 1
        s_waitcnt lgkmcnt(0)
        v_readfirstlane_b32 {s(sT5)}, v3
        s_cmp_ge_u32 {s(sCNT)}, 0x100000
        s_cbranch_scc1 BS_{name}_D
        s_cmp_lt_u32 {s(sT5)}, 4
        s_cbranch_scc1 BS_{name}
        """)
        self.A.label(f"BS_{name}_D")
        self.ldone = self.lg
        self.bg_on = True
    def items(self, lst):
        for it in lst: self.item(it)
    def stamp(self, name=''):
        if self.cfg.probe == self.pfx + name:
            self(f"s_memrealtime s[36:37]\ns_waitcnt lgkmcnt(0)"); self.probed = True
        if not self.cfg.stamps: return
        i = self.nstamp; self.nstamp += 1; self.names.append(name)
        on = self.bg_on; self.bg_on = False
        self(f"""
        {'s_memtime' if self.cfg.stamps == 2 else 's_memrealtime'} {s(sTS,2)}
        s_waitcnt lgkmcnt(0)
        v_writelane_b32 v{self.vS}, {s(sTS)}, {i}
        """)
        self.bg_on = on
        if name == 'end':
            self(f"""
            v_lshlrev_b32 v2, 3, v0
            v_mov_b32 v4, v{self.vS}
            v_mov_b32 v5, 0
            v_cmp_gt_u32 vcc, 32, v0
            s_and_b64 exec, exec, vcc
            buffer_store_dwordx2 v[4:5], v2, {s(sST,4)}, 0 offen
            s_mov_b64 exec, -1
            """)
    def item(self, it):
        if isinstance(it, tuple):
            if it[0] == 'WAIT': self.wait_tag(it[1])
            elif it[0] == 'TAG': self.tag(it[1])
            elif it[0] == 'BG': self.bg(it[1])
            elif it[0] == 'BAR': self.lwait_all(); self.bar(it[1])
            elif it[0] == 'BSYNC': self.bsync(it[1])
        else: self(it)
    def spread(self, main, fill):
        n, m = len(main), len(fill); fi = 0
        for i, x in enumerate(main):
            self(x)
            while fi < m and fi * n < (i + 1) * m:
                self.item(fill[fi]); fi += 1
        while fi < m: self.item(fill[fi]); fi += 1
    def front(self, main, fill, per=1):
        fi = 0
        for x in main:
            self(x)
            for _ in range(per):
                if fi < len(fill): self.item(fill[fi]); fi += 1
        while fi < len(fill): self.item(fill[fi]); fi += 1

XCH = 10240
WRING = 8 * XCH
WSLOT = 24576
S0, S1, S2 = WRING, WRING + WSLOT, WRING + 2 * WSLOT
STATS1 = WRING + 3 * WSLOT
STATS3 = STATS1 + 1024
CSX = STATS3 + 1024
WDT = 49152
HHS = 88 * 1024
RING4 = 49152
LDS_TOTAL = 163840
SG_OFF = L.FL_OFF + 2048
CNT = STATS1 + 1000
STG = STATS1 + 896
vL = 0

def srd(dst, src, size):
    return f"""
    s_mov_b32 {s(dst)}, {s(src)}
    s_and_b32 {s(dst+1)}, {s(src+1)}, 0xffff
    s_mov_b32 {s(dst+2)}, {size}
    s_mov_b32 {s(dst+3)}, 0x20000
    """
def common_srds(cfg):
    t = f"""
    s_mul_i32 {s(sT0)}, {s(sG)}, {L.GSTRIDE}
    s_add_u32 {s(SWS)}, s82, {s(sT0)}
    s_addc_u32 {s(SWS+1)}, s83, 0
    s_and_b32 {s(SWS+1)}, {s(SWS+1)}, 0xffff
    s_mov_b32 {s(SWS+2)}, {L.GSTRIDE}
    s_mov_b32 {s(SWS+3)}, 0x20000
    s_bitcmp1_b32 {s(sW)}, 0
    s_cselect_b32 {s(SMU)}, s74, s72
    s_cselect_b32 {s(SMU+1)}, s75, s73
    s_and_b32 {s(SMU+1)}, {s(SMU+1)}, 0xffff
    s_cmp_eq_u32 {s(sM)}, 15
    s_cselect_b32 {s(SMU+2)}, 0, {512*2752}
    s_mov_b32 {s(SMU+3)}, 0x20000
    """ + srd(SDBG, 80, 256)
    if cfg.stamps:
        t += f"""
        s_lshl_b32 {s(sT0)}, s2, 11
        s_lshl_b32 {s(sT1)}, {s(sW8)}, 8
        s_add_u32 {s(sT0)}, {s(sT0)}, {s(sT1)}
        s_add_u32 {s(sT0)}, {s(sT0)}, {L.STAMP_OFF}
        s_add_u32 {s(sST)}, s82, {s(sT0)}
        s_addc_u32 {s(sST+1)}, s83, 0
        s_and_b32 {s(sST+1)}, {s(sST+1)}, 0xffff
        s_mov_b32 {s(sST+2)}, 256
        s_mov_b32 {s(sST+3)}, 0x20000
        """
    return t

def stores(G, lst, label):
    A = G.A; label = G.pfx + label
    for x in lst: G._autowait(Ins(x))
    A(f"""
    s_cmp_lg_u32 {s(sMODE)}, 0
    s_cbranch_scc1 {label}_SLOW
    """)
    for x in lst: A(x)
    A(f"s_branch {label}_DONE")
    A.label(f"{label}_SLOW")
    for x in lst: A((x + " sc1") if x.startswith('buffer_store') else x)
    A.label(f"{label}_DONE")
    G.vm += sum(1 for x in lst if x.startswith('buffer_'))

def signal(G, phase, vFE):
    G.bg_on = False
    G(f"""
    v_add_u32 v2, {phase}, {v(vFE)}
    v_mov_b32 v3, {v(vFE+1)}
    s_lshl_b32 {s(sT0)}, {s(sM)}, 2
    s_add_u32 {s(sT0)}, {s(sT0)}, {s(sW)}
    s_lshl_b32 {s(sT0)}, {s(sT0)}, 3
    s_add_u32 {s(sT0)}, {s(sT0)}, {L.FL_OFF + phase*512}
    v_mov_b32 v4, {s(sT0)}
    s_waitcnt vmcnt(0)
    s_mov_b64 exec, 1
    """)
    stores(G, [f"buffer_store_dwordx2 v[2:3], v4, {s(SWS,4)}, 0 offen"], f"SIG{phase}")
    G.bg_on = True; G.nv = G.t
    G("s_mov_b64 exec, -1")

def poll(G, phase, vFE):
    A = G.A
    if phase == 0:
        A(f"""
        v_and_b32 v4, 31, v0
        s_and_b32 {s(sT0)}, {s(sM)}, 8
        s_lshl_b32 {s(sT0)}, {s(sT0)}, 2
        v_add_u32 v4, {s(sT0)}, v4
        v_lshlrev_b32 v4, 3, v4
        """)
    else:
        A("v_lshlrev_b32 v4, 3, v0")
    A(f"""
    v_add_u32 v2, {phase}, {v(vFE)}
    v_mov_b32 v3, {v(vFE+1)}
    s_mov_b32 {s(sCNT)}, 0
    s_mov_b32 {s(sT0)}, {L.FL_OFF + phase*512}
    """)
    A.label(f"POLL{phase}")
    A(f"""
    buffer_load_dwordx2 v[6:7], v4, {s(SWS,4)}, {s(sT0)} offen sc1
    s_add_u32 {s(sCNT)}, {s(sCNT)}, 1
    s_waitcnt vmcnt(0)
    v_cmp_ne_u64 vcc, v[6:7], v[2:3]
    s_cmp_ge_u32 {s(sCNT)}, 20000
    s_cbranch_scc1 POLL{phase}_DONE
    s_cbranch_vccnz POLL{phase}
    """)
    A.label(f"POLL{phase}_DONE")
    G.vdone = G.vm; G.nv = G.t

def regdecode(G, vFE, vaddr):
    A = G.A; p = G.pfx
    G._autowait(Ins(f"v_mov_b32 {v(vFE)}, {v(vFE+1)}"))
    G(f"s_mov_b32 {s(sCNT)}, 0")
    A.label(p + "REGPOLL")
    A(f"""
    v_readfirstlane_b32 {s(sT0)}, {v(vFE)}
    v_readfirstlane_b32 {s(sT1)}, {v(vFE+1)}
    s_and_b32 {s(sT2)}, {s(sT0)}, 31
    s_cmp_eq_u32 {s(sT2)}, 16
    s_cbranch_scc1 {p}REGOK
    s_add_u32 {s(sCNT)}, {s(sCNT)}, 1
    s_cmp_ge_u32 {s(sCNT)}, 20000
    s_cbranch_scc1 {p}REGOK
    buffer_load_dwordx2 {v(vFE,2)}, {v(vaddr)}, {s(SDBG,4)}, 0 offen offset:128 sc1
    s_waitcnt vmcnt(0)
    s_branch {p}REGPOLL
    """)
    A.label(p + "REGOK")
    G(f"""
    s_bfe_u32 {s(sT2)}, {s(sT0)}, {5 | (7 << 16)}
    s_bfe_u32 {s(sT3)}, {s(sT0)}, {12 | (10 << 16)}
    s_mul_i32 {s(sT2)}, {s(sT2)}, {s(sT2)}
    s_lshl_b32 {s(sT3)}, {s(sT3)}, 4
    s_cmp_lg_u32 {s(sT2)}, {s(sT3)}
    s_cselect_b32 {s(sMODE)}, 1, {1 if G.cfg.force_slow else 0}
    s_and_b32 {s(sT0)}, {s(sT0)}, 0xffc00000
    s_or_b32 {s(sT0)}, {s(sT0)}, 0x5a5a0
    v_mov_b32 {v(vFE)}, {s(sT0)}
    v_mov_b32 {v(vFE+1)}, {s(sT1)}
    """)

def lch(l): return ((l >> 1) & 1) * 4 + (l >> 2) * 2 + (l & 1)
def w3_setup(vP3, t0, t1, t2):
    out = f"""
    s_mul_i32 {s(sT0)}, {s(sM)}, 192
    s_mov_b32 {s(sT1)}, 0x15555556
    s_and_b32 {s(sT2)}, {s(sW)}, 1
    s_lshr_b32 {s(sT4)}, {s(sW)}, 1
    s_mul_i32 {s(sW3S)}, {s(sT2)}, 12288
    s_mul_i32 {s(sT5)}, {s(sT4)}, 6144
    s_add_u32 {s(sW3S)}, {s(sW3S)}, {s(sT5)}
    s_mul_i32 {s(sW3G)}, {s(sT4)}, {32*2752}
    s_and_b32 {s(sROT3)}, {s(sG)}, 1
    s_lshl_b32 {s(sROT3)}, {s(sROT3)}, 2
    s_lshl_b32 {s(sT2)}, {s(sT2)}, 1
    """
    for i in range(3):
        out += f"""
        v_add_u32 {v(t0)}, {64*i}, {v(vL)}
        v_mul_hi_u32 {v(t1)}, {v(t0)}, {s(sT1)}
        v_mul_u32_u24 {v(t2)}, 12, {v(t1)}
        v_sub_u32 {v(t2)}, {v(t0)}, {v(t2)}
        v_mul_u32_u24 {v(t1)}, 2752, {v(t1)}
        v_add_u32 {v(t1)}, {s(sT0)}, {v(t1)}
        v_subrev_u32 {v(t1)}, {1024*i}, {v(t1)}
        v_subrev_u32 {v(t2)}, {s(sT2)}, {v(t2)}
        v_add_u32 {v(t0)}, 12, {v(t2)}
        v_cmp_gt_i32 vcc, 0, {v(t2)}
        v_cndmask_b32 {v(t2)}, {v(t2)}, {v(t0)}, vcc
        v_lshl_add_u32 {v(vP3+i)}, {v(t2)}, 4, {v(t1)}
        """
    return out
def w3_dma(c, base, vP3):
    g = [f"""
    s_xor_b32 {s(sB0)}, {s(sROT3)}, {lch(c)}
    s_mul_i32 {s(sB0)}, {s(sB0)}, {64*2752}
    s_add_u32 {s(sB0)}, {s(sB0)}, {s(sW3G)}
    s_add_u32 m0, {s(sW3S)}, {base}
    s_add_u32 {s(sB1)}, {s(sB0)}, {16*2752}
    buffer_load_dwordx4 {v(vP3+0)}, {s(SMU,4)}, {s(sB0)} offen lds
    """]
    g.append(f"buffer_load_dwordx4 {v(vP3+1)}, {s(SMU,4)}, {s(sB0)} offen offset:1024 lds")
    g.append(f"buffer_load_dwordx4 {v(vP3+2)}, {s(SMU,4)}, {s(sB0)} offen offset:2048 lds")
    g.append(f"""
    s_add_u32 m0, {s(sW3S)}, {base + 3072}
    s_nop 0
    buffer_load_dwordx4 {v(vP3+0)}, {s(SMU,4)}, {s(sB1)} offen lds
    """)
    g.append(f"buffer_load_dwordx4 {v(vP3+1)}, {s(SMU,4)}, {s(sB1)} offen offset:1024 lds")
    g.append(f"buffer_load_dwordx4 {v(vP3+2)}, {s(SMU,4)}, {s(sB1)} offen offset:2048 lds")
    g.append(('TAG', f"w3_{c}"))
    return g
def p4_table():
    tb = [f"""
    s_mul_i32 {s(sT0)}, {s(sRBL)}, 11
    s_lshr_b32 {s(sT0)}, {s(sT0)}, 1
    s_lshl_b32 {s(sT0)}, {s(sT0)}, 12
    s_lshl_b32 {s(sT1)}, {s(sW)}, 10
    """]
    for j in range(22):
        tb.append(f"""
        s_add_u32 {s(sKO+j)}, {s(sT0)}, {s(sT1)}
        s_add_u32 {s(sT0)}, {s(sT0)}, 4096
        s_cmp_eq_u32 {s(sT0)}, {22*4096}
        s_cselect_b32 {s(sT0)}, 0, {s(sT0)}
        """)
    return tb
def ks_addr(a_base, tile_stride, vL16, d0, d1):
    return f"""
    s_and_b32 {s(sT1)}, {s(sRB)}, 1
    s_lshl_b32 {s(sT1)}, {s(sT1)}, 1
    s_lshr_b32 {s(sT0)}, {s(sW)}, 1
    s_add_u32 {s(sT2)}, {s(sT1)}, {s(sT0)}
    s_xor_b32 {s(sT1)}, {s(sT2)}, 1
    s_mul_i32 {s(sT1)}, {s(sT1)}, {tile_stride}
    s_mul_i32 {s(sT2)}, {s(sT2)}, {tile_stride}
    s_add_u32 {s(sT1)}, {s(sT1)}, {a_base}
    s_add_u32 {s(sT2)}, {s(sT2)}, {a_base}
    v_add_u32 {v(d0)}, {s(sT1)}, {v(vL16)}
    v_add_u32 {v(d1)}, {s(sT2)}, {v(vL16)}
    """
W3SLOT = {0: S2, 1: S0, 2: S1, 3: S2, 4: S0, 5: S1, 6: S2, 7: S0}
W3BAR = {3: 3, 4: 7, 5: 11, 6: 15, 7: 19}
NB4 = 11
PFORD = [2, 3, 4]

def prog_a(G):
    A = G.A; cfg = G.cfg
    t0, t1, t2, t3, t4 = 1, 2, 3, 4, 5
    vXa0, vXa1, vWa, vS1, vS2, vOA, vRA = 8, 9, 10, 11, 12, 13, 14
    FA, FB = 16, 48
    ACC = 80
    vL16, vFE, vW3o, vW3s, vA01, vA23, vP3 = 148, 150, 149, 152, 153, 154, 155
    BIAS = 160
    G.sv = (158, 146); G.vS = 159
    Qa = lambda T: ACC + 4 * T
    Ka = lambda T: ACC + 20 + 4 * T
    Va = lambda T: ACC + 40 + 4 * T
    if cfg.prioA: G(f"s_setprio {cfg.prioA}")
    G(f"""
    v_lshlrev_b32 {v(vL16)}, 4, v0
    s_mul_i32 {s(sT0)}, {s(sCB)}, 10
    s_mul_i32 {s(sT1)}, {s(sW)}, 3
    s_add_u32 {s(sT0)}, {s(sT0)}, {s(sT1)}
    s_lshl_b32 {s(sT5)}, {s(sRB)}, 6
    s_mov_b32 {s(SX+2)}, {2048*1024}
    s_mov_b32 {s(SX+3)}, 0x20000
    """)
    for k in range(3):
        G(f"""
        s_add_u32 {s(sT1)}, {s(sT0)}, {k}
        s_min_u32 {s(sT1)}, {s(sT1)}, 79
        s_and_b32 {s(sT2)}, {s(sT1)}, 15
        s_lshr_b32 {s(sT3)}, {s(sT1)}, 5
        s_lshl_b32 {s(sT3)}, {s(sT3)}, 5
        s_lshl_b32 {s(sT4)}, {s(sT2)}, 1
        s_add_u32 {s(sT3)}, {s(sT3)}, {s(sT4)}
        s_bfe_u32 {s(sT4)}, {s(sT1)}, {4 | (1 << 16)}
        s_add_u32 {s(sT3)}, {s(sT3)}, {s(sT4)}
        s_add_u32 {s(sT3)}, {s(sT3)}, {s(sT5)}
        s_add_u32 {s(sT2)}, {s(sT2)}, {s(sT5)}
        s_sub_i32 {s(sT2)}, {s(sT2)}, 16
        s_max_i32 {s(sT2)}, {s(sT2)}, 0
        s_cmp_ge_u32 {s(sT1)}, 64
        s_cselect_b32 {s(sT3)}, {s(sT2)}, {s(sT3)}
        s_lshl_b32 {s(sMX+k)}, {s(sT3)}, 10
        """)
    XS = 208
    G(f"""
    s_waitcnt lgkmcnt(0)
    s_mov_b32 {s(SX)}, s64
    s_and_b32 {s(SX+1)}, s65, 0xffff
    buffer_load_dwordx4 {v(XS,4)}, {v(vL16)}, {s(SX,4)}, {s(sMX)} offen
    buffer_load_dwordx4 {v(XS+4,4)}, {v(vL16)}, {s(SX,4)}, {s(sMX+1)} offen
    buffer_load_dwordx4 {v(XS+8,4)}, {v(vL16)}, {s(SX,4)}, {s(sMX+2)} offen
    v_lshrrev_b32 {v(t2)}, 4, {v(vL)}
    v_and_b32 {v(t0)}, 15, {v(vL)}
    v_lshrrev_b32 {v(t1)}, 1, {v(t0)}
    v_xor_b32 {v(t1)}, {v(t1)}, {v(t2)}
    v_lshlrev_b32 {v(t1)}, 4, {v(t1)}
    v_lshl_add_u32 {v(vXa0)}, {v(t0)}, 7, {v(t1)}
    v_xor_b32 {v(vXa1)}, 64, {v(vXa0)}
    v_mul_u32_u24 {v(vWa)}, 3072, {v(t2)}
    v_bfe_u32 {v(t1)}, {v(vL)}, 2, 2
    v_lshl_add_u32 {v(vWa)}, {v(t1)}, 7, {v(vWa)}
    v_lshrrev_b32 {v(t1)}, 1, {v(t1)}
    v_and_b32 {v(t3)}, 1, {v(t2)}
    v_lshl_or_b32 {v(t1)}, {v(t3)}, 1, {v(t1)}
    v_xor_b32 {v(t1)}, {s(sW)}, {v(t1)}
    v_lshl_add_u32 {v(vWa)}, {v(t1)}, 5, {v(vWa)}
    v_and_b32 {v(t1)}, 3, {v(vL)}
    v_lshl_add_u32 {v(vWa)}, {v(t1)}, 3, {v(vWa)}
    v_add_u32 {v(vWa)}, {WRING}, {v(vWa)}
    v_lshlrev_b32 {v(vS1)}, 2, {v(t0)}
    v_add_u32 {v(vS1)}, {STATS1}, {v(vS1)}
    v_lshlrev_b32 {v(vS2)}, 4, {v(t2)}
    v_add_u32 {v(vS2)}, {STATS1}, {v(vS2)}
    v_lshrrev_b32 {v(t1)}, 3, {v(vL)}
    v_mul_u32_u24 {v(t1)}, {XCH}, {v(t1)}
    v_and_b32 {v(t3)}, 7, {v(vL)}
    v_lshl_add_u32 {v(t1)}, {v(t3)}, 4, {v(t1)}
    v_mov_b32 {v(FA)}, {s(sONE)}
    v_mov_b32 {v(FA+1)}, {s(sONE)}
    v_mov_b32 {v(FA+2)}, {s(sONE)}
    v_mov_b32 {v(FA+3)}, {s(sONE)}
    ds_write_b128 {v(t1)}, {v(FA,4)} offset:8192
    """)
    NEG = "0xf149f2ca"
    G(f"""
    v_mov_b32 {v(t4)}, {NEG}
    v_lshlrev_b32 {v(t1)}, 2, {v(t2)}
    v_sub_u32 {v(t3)}, {v(t0)}, {v(t1)}
    """)
    for r in range(4):
        G(f"""
        v_subrev_u32 {v(t1)}, {r}, {v(t3)}
        v_cmp_ge_u32 vcc, 7, {v(t1)}
        v_cmp_ge_i32 {s(sT4,2)}, -9, {v(t1)}
        v_cndmask_b32 {v(BIAS+r)}, {v(t4)}, 0, vcc
        v_cndmask_b32 {v(BIAS+4+r)}, {v(t4)}, 0, {s(sT4,2)}
        """)
    G(f"""
    s_cmp_eq_u32 {s(sRB)}, 0
    s_cselect_b32 {s(sT0)}, 64, 2
    v_lshlrev_b32 {v(t1)}, 2, {v(t2)}
    v_lshlrev_b32 {v(t3)}, 1, {v(t0)}
    v_sub_u32 {v(t3)}, {v(t1)}, {v(t3)}
    v_subrev_u32 {v(t3)}, {s(sT0)}, {v(t3)}
    v_cmp_le_i32 vcc, 0, {v(t3)}
    v_cmp_le_i32 {s(sT4,2)}, -2, {v(t3)}
    v_mov_b32 {v(BIAS+9)}, {v(t4)}
    v_mov_b32 {v(BIAS+11)}, {v(t4)}
    v_mov_b32 {v(BIAS+12)}, {v(t4)}
    v_mov_b32 {v(BIAS+14)}, {v(t4)}
    v_cndmask_b32 {v(BIAS+8)}, {v(t4)}, 0, vcc
    v_cndmask_b32 {v(BIAS+10)}, {v(t4)}, 0, {s(sT4,2)}
    v_cndmask_b32 {v(BIAS+13)}, {v(t4)}, 0, vcc
    v_cndmask_b32 {v(BIAS+15)}, {v(t4)}, 0, {s(sT4,2)}
    s_waitcnt lgkmcnt(0)
    """)
    G(common_srds(cfg))
    if cfg.tlb:
        G.dummy = ('v', 147)
        G(srd(SWO, 68, 512*1024) + srd(SWD, 76, 1376*1024) + srd(SOUT, 78, 2048*1024) + srd(SW1, 66, 512*3072))
        G(f"""
        v_lshlrev_b32 v2, {cfg.tlb}, v0
        s_lshl_b32 {s(sT0)}, {s(sRB)}, 16
        v_min_u32 v3, {L.GSTRIDE - 4}, v2
        v_and_b32 v3, {(~((1 << cfg.tlb) - 1)) & 0xffffffff}, v3
        buffer_load_dword v147, v2, {s(SMU,4)}, 0 offen
        buffer_load_dword v147, v2, {s(SWD,4)}, 0 offen
        buffer_load_dword v147, v2, {s(SWO,4)}, 0 offen
        buffer_load_dword v147, v2, {s(SW1,4)}, 0 offen
        v_mov_b32 v4, 0
        buffer_load_dword v147, v4, {s(SOUT,4)}, {s(sT0)} offen
        buffer_load_dword v147, v4, {s(SWS,4)}, 0 offen
        v_mov_b32 v4, {L.GSTRIDE - 4096}
        buffer_load_dword v147, v4, {s(SWS,4)}, 0 offen
        """)
    G.stamp('start')
    G(f"""
    s_and_b32 {s(sO0)}, {s(sRB)}, 1
    s_lshl_b32 {s(sO0)}, {s(sO0)}, 16
    s_lshl_b32 {s(sT1)}, {s(sCB)}, 12
    s_add_u32 {s(sO0)}, {s(sO0)}, {s(sT1)}
    s_lshl_b32 {s(sT1)}, {s(sW)}, 10
    s_add_u32 {s(sO0)}, {s(sO0)}, {s(sT1)}
    s_add_u32 {s(sO0)}, {s(sO0)}, {L.O_OFF}
    s_add_u32 {s(sO1)}, {s(sO0)}, 32768
    v_and_b32 {v(vOA)}, 15, v0
    v_bfe_u32 v3, v0, 4, 1
    v_lshl_add_u32 {v(vOA)}, v3, 5, {v(vOA)}
    v_lshrrev_b32 v3, 5, v0
    v_lshl_add_u32 {v(vOA)}, v3, 4, {v(vOA)}
    v_lshlrev_b32 {v(vOA)}, 4, {v(vOA)}
    s_lshl_b32 {s(sT0)}, {s(sG)}, 3
    v_mov_b32 {v(vRA)}, {s(sT0)}
    """)
    SA = 224
    G0 = G; stat = []
    G = lambda t: stat.extend(x.strip() for x in t.strip().split('\n') if x.strip())
    for i in range(3): G(f"v_mov_b64 {v(SA+2*i,2)}, 0")
    for j in range(4):
        for k in range(3):
            G(f"v_dot2c_f32_bf16 {v(SA+2*k)}, {s(sONE)}, {v(XS+4*k+j)}\nv_dot2c_f32_bf16 {v(SA+2*k+1)}, {v(XS+4*k+j)}, {v(XS+4*k+j)}")
    for dpp in ("quad_perm:[1,0,3,2]", "quad_perm:[2,3,0,1]", "row_half_mirror", "row_mirror"):
        for i in range(6): G(f"v_add_f32_dpp {v(SA+i)}, {v(SA+i)}, {v(SA+i)} {dpp} row_mask:0xf bank_mask:0xf")
    for sw in ("v_permlane16_swap_b32", "v_permlane32_swap_b32"):
        for i in range(6): G(f"v_mov_b32 {v(SA+8+i)}, {v(SA+i)}")
        for i in range(6): G(f"{sw} {v(SA+i)}, {v(SA+8+i)}")
        for i in range(6): G(f"v_add_f32 {v(SA+i)}, {v(SA+i)}, {v(SA+8+i)}")
    for i in range(6): G(f"v_mul_f32 {v(SA+i)}, 0x3b000000, {v(SA+i)}")
    for k in range(3): G(f"v_fma_f32 {v(SA+2*k+1)}, -{v(SA+2*k)}, {v(SA+2*k)}, {v(SA+2*k+1)}")
    for k in range(3): G(f"v_max_f32 {v(SA+2*k+1)}, 0, {v(SA+2*k+1)}")
    for k in range(3): G(f"v_add_f32 {v(SA+2*k+1)}, 0x3727c5ac, {v(SA+2*k+1)}")
    for k in range(3): G(f"v_rsq_f32 {v(SA+2*k+1)}, {v(SA+2*k+1)}")
    G(f"""
    s_mul_i32 {s(sT0)}, {s(sW)}, 24
    s_add_u32 {s(sT0)}, {s(sT0)}, {STG}
    v_mov_b32 v2, {s(sT0)}
    """)
    for k in range(3): G(f"v_mul_f32 {v(SA+2*k)}, -{v(SA+2*k)}, {v(SA+2*k+1)}")
    for k in range(3): G(f"ds_write_b64 v2, {v(SA+2*k,2)} offset:{8*k}")
    G = G0
    K2 = [60, 61, 62, 63, 86, 58, 59, 101]
    G(f"""
    s_lshl_b32 {s(sR2)}, {s(sRBL)}, 13
    s_lshl_b32 {s(sW1K)}, {s(sW)}, 10
    s_and_b32 {s(sA3)}, {s(sRB)}, 1
    s_lshl_b32 {s(sA3)}, {s(sA3)}, 16
    s_add_u32 {s(sA3)}, {s(sA3)}, {L.O_OFF}
    """)
    for j in range(8):
        G(f"""
        s_add_u32 {s(K2[j])}, {s(sR2)}, {j*4096}
        s_and_b32 {s(K2[j])}, {s(K2[j])}, 32767
        s_add_u32 {s(K2[j])}, {s(K2[j])}, {s(sW1K)}
        """)
    if cfg.pretouch:
        G.dummy = ('v', 147)
        G(f"""
        v_lshrrev_b32 v2, 3, v0
        s_cmp_ge_u32 {s(sM)}, 14
        s_cselect_b32 {s(sT0)}, 1, 7
        v_min_u32 v2, {s(sT0)}, v2
        v_and_b32 v3, 7, v0
        v_lshlrev_b32 v3, 7, v3
        v_lshlrev_b32 v4, 15, v2
        v_add_u32 v4, {s(sO0)}, v4
        s_mul_i32 {s(sT0)}, {s(sM)}, 6144
        s_add_u32 {s(sT0)}, {s(sT0)}, {L.HH_OFF - 2*HHS}
        s_add_u32 {s(sT1)}, {s(sT0)}, {s(sW1K)}
        v_mul_u32_u24 v5, {HHS}, v2
        v_add_u32 v6, {s(sT1)}, v5
        v_cmp_gt_u32 vcc, 2, v2
        v_cndmask_b32 v4, v6, v4, vcc
        s_and_b32 {s(sT1)}, {s(sW)}, 1
        s_mul_i32 {s(sT1)}, {s(sT1)}, {2*HHS}
        s_add_u32 {s(sT0)}, {s(sT0)}, {s(sT1)}
        s_lshr_b32 {s(sT1)}, {s(sW)}, 1
        s_lshl_b32 {s(sT1)}, {s(sT1)}, 10
        s_add_u32 {s(sT0)}, {s(sT0)}, {s(sT1)}
        s_add_u32 {s(sT0)}, {s(sT0)}, {(4096 - 4*HHS) & 0xffffffff}
        v_add_u32 v6, {s(sT0)}, v5
        v_cmp_lt_u32 vcc, 5, v2
        v_cndmask_b32 v4, v4, v6, vcc
        v_add_u32 v4, v4, v3
        buffer_load_dword v147, v4, {s(SWS,4)}, 0 offen sc1
        """)
    G(f"v_mov_b32 v2, {CNT}\nv_mov_b64 v[4:5], 0\nds_write_b64 v2, v[4:5]\nds_write_b64 v2, v[4:5] offset:8")
    G.lwait_all()
    late = [x.strip() for x in w3_setup(vP3, t0, t1, t2).strip().split('\n') if x.strip()]
    late += [x.strip() for x in (f"""
    s_mov_b32 {s(sT4)}, {S0}
    s_lshl_b32 {s(sT0)}, {s(sW)}, 5
    s_lshr_b32 {s(sT1)}, {s(sW)}, 1
    s_lshl_b32 {s(sT1)}, {s(sT1)}, 5
    s_add_u32 {s(sT1)}, {s(sT1)}, 128
    v_lshrrev_b32 {v(t0)}, 5, {v(vL)}
    v_bfe_u32 {v(t1)}, {v(vL)}, 2, 2
    v_lshl_add_u32 {v(t0)}, {v(t0)}, 4, {v(t1)}
    v_mul_u32_u24 {v(t0)}, 192, {v(t0)}
    v_bfe_u32 {v(t1)}, {v(vL)}, 4, 1
    v_mul_u32_u24 {v(t2)}, 12288, {v(t1)}
    v_add3_u32 {v(t0)}, {v(t0)}, {v(t2)}, {s(sT4)}
    v_and_b32 {v(t2)}, 3, {v(vL)}
    v_lshlrev_b32 {v(t2)}, 3, {v(t2)}
    v_lshl_add_u32 {v(t2)}, {v(t1)}, 5, {v(t2)}
    v_add3_u32 {v(vW3o)}, {v(t0)}, {v(t2)}, {s(sT0)}
    v_add_u32 {v(t2)}, {s(sT1)}, {v(t2)}
    v_subrev_u32 {v(t3)}, 192, {v(t2)}
    v_cmp_le_u32 vcc, 192, {v(t2)}
    v_cndmask_b32 {v(t2)}, {v(t2)}, {v(t3)}, vcc
    v_add_u32 {v(vW3s)}, {v(t0)}, {v(t2)}
    s_and_b32 {s(sT0)}, {s(sW)}, 1
    s_lshl_b32 {s(sT0)}, {s(sT0)}, 13
    v_add_u32 {v(vA01)}, {s(sT0)}, {v(vL16)}
    v_xor_b32 {v(vA23)}, 0x2000, {v(vA01)}
    """).strip().split('\n') if x.strip()]
    late += p4_table()
    def reads(F, kh):
        xs = [f"ds_read_b128 {v(F+4*T,4)}, {v(vXa1 if kh else vXa0)} offset:{T*2048}" for T in range(5)]
        ws = [f"ds_read_b64_tr_b16 {v(F+20+4*sct+2*half,2)}, {v(vWa)} offset:{kh*12288+sct*1024+half*512}" for sct in range(3) for half in range(2)]
        return ws[:2] + xs[:1] + ws[2:4] + xs[1:2] + ws[4:] + xs[2:]
    def mfmas(F, first=False):
        out = []
        for T in range(5):
            x = v(F+4*T, 4)
            c = lambda r: "0" if first else v(r, 4)
            out.append(f"v_mfma_f32_16x16x32_bf16 {v(Qa(T),4)}, {v(F+20,4)}, {x}, {c(Qa(T))}")
            out.append(f"v_mfma_f32_16x16x32_bf16 {v(Ka(T),4)}, {v(F+24,4)}, {x}, {c(Ka(T))}")
            out.append(f"v_mfma_f32_16x16x32_bf16 {v(Va(T),4)}, {x}, {v(F+28,4)}, {c(Va(T))}")
        return out
    def adv(i):
        d = WSLOT if (i + 1) % 3 else (-2 * WSLOT) & 0xffffffff
        return [f"v_add_u32 {v(vWa)}, {d}, {v(vWa)}", f"v_add_u32 {v(vXa0)}, {XCH}, {v(vXa0)}", f"v_add_u32 {v(vXa1)}, {XCH}, {v(vXa1)}"]
    G.bar('c0')
    G.stamp('c0')
    for x in reads(FA, 0): G(x)
    for i in range(8):
        extra = [f"buffer_load_dwordx2 {v(vFE,2)}, {v(vRA)}, {s(SDBG,4)}, 0 offen offset:128 sc1"] if i == 6 else []
        G.front(mfmas(FA, i == 0), reads(FB, 1) + (adv(i) if i < 7 else []) + extra)
        if i < 3:
            k3 = (len(stat) + 2) // 3
            for x in stat[i*k3:(i+1)*k3]: G(x)
        elif i < 7:
            k4 = (len(late) + 3) // 4
            for x in late[(i-3)*k4:(i-2)*k4]: G(x)
        G.lwait_all()
        G.bar(f'c{i+1}' if i < 7 else 'stats')
        LA = 16; LBa = 28; LBb = 208
        if i < 7: G.front(mfmas(FB), reads(FA, 0))
        else:
            sr = [f"ds_read2_b32 {v(LA+2*T,2)}, {v(vS1)} offset0:{T*16} offset1:{T*16+128}" for T in range(5)]
            for T in range(5): sr += [f"ds_read_b128 {v(LBa+4*T,4)}, {v(vS2)} offset:{T*64}", f"ds_read_b128 {v(LBb+4*T,4)}, {v(vS2)} offset:{T*64+512}"]
            m = mfmas(FB)
            G.front(m[12:] + m[:12], sr)
    G.stamp('p1loop')
    G(f"""
    v_add_u32 v8, {s(sA3)}, {v(vL16)}
    v_add_u32 v9, 0x8000, v8
    """)
    CSQ, CSK, CSV = 228, 232, 236
    TMP = 140
    regdecode(G, vFE, vRA)
    for r in range(4):
        G(f"v_mov_b32_dpp {v(CSQ+r)}, {v(Qa(4)+r)} row_newbcast:0 row_mask:0xf bank_mask:0xf")
        G(f"v_mov_b32_dpp {v(CSK+r)}, {v(Ka(4)+r)} row_newbcast:0 row_mask:0xf bank_mask:0xf")
    G(f"""
    v_mov_b32 {v(CSV)}, {v(Va(4))}
    v_mov_b32 {v(CSV+1)}, {v(Va(4))}
    v_permlane16_swap_b32 {v(CSV)}, {v(CSV+1)}
    v_mov_b32 {v(CSV+1)}, {v(CSV)}
    v_permlane32_swap_b32 {v(CSV)}, {v(CSV+1)}
    v_mov_b32 {v(CSV+1)}, {v(CSV)}
    """)
    QP = 176; KP = 184; VP = 196
    vpos = {2: 0, 0: 2, 4: 4, 1: 6, 3: 8}
    def norm_qk(acc, cs, T, dst, tmp):
        ab = v(LA+2*T, 2)
        for hlf in range(2): G(f"v_pk_mul_f32 {v(tmp+2*hlf,2)}, {v(cs+2*hlf,2)}, {ab} op_sel:[0,1] op_sel_hi:[1,1]")
        for hlf in range(2): G(f"v_pk_fma_f32 {v(acc+2*hlf,2)}, {v(acc+2*hlf,2)}, {ab}, {v(tmp+2*hlf,2)} op_sel:[0,0,0] op_sel_hi:[1,0,1]")
        for hlf in range(2): G(f"v_cvt_pk_bf16_f32 {v(dst+hlf)}, {v(acc+2*hlf)}, {v(acc+2*hlf+1)}")
    for T in (4, 0, 1, 2, 3):
        norm_qk(Ka(T), CSK, T, KP+2*T, TMP)
        if T < 4: norm_qk(Qa(T), CSQ, T, QP+2*T, 240)
    for T in range(5):
        acc = Va(T); tmp = TMP if T & 1 else 240
        for hlf in range(2): G(f"v_pk_mul_f32 {v(tmp+2*hlf,2)}, {v(LBb+4*T+2*hlf,2)}, {v(CSV,2)}")
        for hlf in range(2): G(f"v_pk_fma_f32 {v(acc+2*hlf,2)}, {v(acc+2*hlf,2)}, {v(LBa+4*T+2*hlf,2)}, {v(tmp+2*hlf,2)}")
    SC = lambda T: ACC + 8*T
    ONE4 = 244
    vcv = [f"v_cvt_pk_bf16_f32 {v(VP+vpos[T]+hlf)}, {v(Va(T)+2*hlf)}, {v(Va(T)+2*hlf+1)}" for T in range(5) for hlf in range(2)]
    vcv += [f"v_mov_b32 {v(ONE4+i)}, {s(sONE)}" for i in range(4)] + [f"s_mov_b32 {s(sT0)}, 0x3eb8aa3b"]
    sm = []
    for T in range(4):
        prev = T - 2 if T >= 2 else 4
        bprev = BIAS + 4 if T >= 2 else BIAS + 8 + 4*T
        sm.append(f"v_mfma_f32_16x16x16_bf16 {v(SC(T),4)}, {v(KP+2*T,2)}, {v(QP+2*T,2)}, {v(BIAS,4)}")
        sm.append(f"v_mfma_f32_16x16x16_bf16 {v(SC(T)+4,4)}, {v(KP+2*prev,2)}, {v(QP+2*T,2)}, {v(bprev,4)}")
    G.spread(sm, vcv)
    MX = 16; M2 = 20
    PP = 32; OA = 48; LS = 208
    for T in range(4):
        b = SC(T)
        G(f"""
        v_max3_f32 {v(MX+T)}, {v(b)}, {v(b+1)}, {v(b+2)}
        v_max3_f32 {v(M2+T)}, {v(b+3)}, {v(b+4)}, {v(b+5)}
        """)
    for T in range(4): G(f"v_max3_f32 {v(MX+T)}, {v(MX+T)}, {v(SC(T)+6)}, {v(SC(T)+7)}")
    for T in range(4): G(f"v_max_f32 {v(MX+T)}, {v(MX+T)}, {v(M2+T)}")
    G(f"""
    v_permlane16_swap_b32 {v(MX)}, {v(MX+1)}
    v_permlane16_swap_b32 {v(MX+2)}, {v(MX+3)}
    v_max_f32 {v(MX)}, {v(MX)}, {v(MX+1)}
    v_max_f32 {v(MX+2)}, {v(MX+2)}, {v(MX+3)}
    v_permlane32_swap_b32 {v(MX)}, {v(MX+2)}
    v_max_f32 {v(MX)}, {v(MX)}, {v(MX+2)}
    v_mul_f32 {v(MX)}, {s(sT0)}, {v(MX)}
    v_mov_b32 {v(MX+2)}, {v(MX)}
    v_permlane32_swap_b32 {v(MX)}, {v(MX+2)}
    v_mov_b32 {v(MX+1)}, {v(MX)}
    v_mov_b32 {v(MX+3)}, {v(MX+2)}
    v_permlane16_swap_b32 {v(MX)}, {v(MX+1)}
    v_permlane16_swap_b32 {v(MX+2)}, {v(MX+3)}
    """)
    win = {2: 0, 0: 2, 1: 4, 3: 6}
    for T in range(4):
        b = SC(T)
        for i in range(8): G(f"v_fma_f32 {v(b+i)}, {v(b+i)}, {s(sT0)}, -{v(MX+T)}")
        for i in range(8): G(f"v_exp_f32 {v(b+i)}, {v(b+i)}")
        first, second = (b, b+4) if T in (0, 2) else (b+4, b)
        G(f"""
        v_cvt_pk_bf16_f32 {v(PP+4*T)}, {v(first)}, {v(first+1)}
        v_cvt_pk_bf16_f32 {v(PP+4*T+1)}, {v(first+2)}, {v(first+3)}
        v_cvt_pk_bf16_f32 {v(PP+4*T+2)}, {v(second)}, {v(second+1)}
        v_cvt_pk_bf16_f32 {v(PP+4*T+3)}, {v(second+2)}, {v(second+3)}
        """)
        if T >= 1:
            U = T - 1
            G(f"v_rcp_f32 {v(LS+4*U)}, {v(LS+4*U)}")
        G(f"""
        v_mfma_f32_16x16x32_bf16 {v(LS+4*T,4)}, {v(ONE4,4)}, {v(PP+4*T,4)}, 0
        v_mfma_f32_16x16x32_bf16 {v(OA+4*T,4)}, {v(VP+win[T],4)}, {v(PP+4*T,4)}, 0
        """)
    OP = 64
    def fin(T):
        q, p = T >> 1, T & 1
        for h in range(2): G(f"v_pk_mul_f32 {v(OA+4*T+2*h,2)}, {v(OA+4*T+2*h,2)}, {v(LS+4*T,2)} op_sel:[0,0] op_sel_hi:[1,0]")
        G(f"""
        v_cvt_pk_bf16_f32 {v(OP+4*q+2*p)}, {v(OA+4*T)}, {v(OA+4*T+1)}
        v_cvt_pk_bf16_f32 {v(OP+4*q+2*p+1)}, {v(OA+4*T+2)}, {v(OA+4*T+3)}
        """)
    fin(0); fin(1); fin(2)
    G(f"""
    v_permlane32_swap_b32 {v(OP)}, {v(OP+2)}
    v_permlane32_swap_b32 {v(OP+1)}, {v(OP+3)}
    v_rcp_f32 {v(LS+12)}, {v(LS+12)}
    """)
    fin(3)
    G(f"""
    v_permlane32_swap_b32 {v(OP+4)}, {v(OP+6)}
    v_permlane32_swap_b32 {v(OP+5)}, {v(OP+7)}
    """)
    stores(G, [f"buffer_store_dwordx4 {v(OP+4*q,4)}, {v(vOA)}, {s(SWS,4)}, {s(sO0+q)} offen" for q in range(2)], "ST1")
    G.stamp('p1epi')
    signal(G, 0, vFE)
    G.stamp('sig0')
    G.bar('w3a')
    ACC = 16; CSA = 112; SEL = 120; AB = 124; W3R = 160
    G.sv = (15, 6)
    def w3_reads(l):
        out = []; blk = l % 3; base = W3SLOT[l]
        for s4 in range(4):
            for k, va in enumerate((vW3o, vW3s)):
                for half in range(2):
                    o = (base - S0) + (32*(s4 >> 1) + 8*(s4 & 1) + 4*half) * 192
                    out.append(f"ds_read_b64_tr_b16 {v(W3R + 32*blk + 8*s4 + 4*k + 2*half, 2)}, {v(va)} offset:{o}")
        return out
    def w3_colsum(l):
        blk = l % 3
        return [f"v_mfma_f32_16x16x32_bf16 {v(CSA+4*k,4)}, {v(W3R+32*blk+8*s4+4*k,4)}, {v(SEL,4)}, {v(CSA+4*k,4)}" for s4 in range(4) for k in range(2)]
    for x in w3_reads(0): G(x)
    G(f"""
    v_lshrrev_b32 v2, 4, v0
    v_xor_b32 v2, v2, v0
    v_and_b32 v2, 1, v2
    v_cmp_eq_u32 vcc, 0, v2
    v_mov_b32 v3, {s(sONE)}
    v_cndmask_b32 {v(SEL)}, 0, v3, vcc
    v_cndmask_b32 {v(SEL+1)}, 0, v3, vcc
    v_cndmask_b32 {v(SEL+2)}, 0, v3, vcc
    v_cndmask_b32 {v(SEL+3)}, 0, v3, vcc
    """)
    for i in range(4): G(f"v_mov_b64 {v(CSA+2*i,2)}, 0")
    G.front(w3_colsum(0), w3_reads(1), 2)
    for x in w3_colsum(1): G(x)
    G.lwait_all()
    G.stamp('svc')
    poll(G, 0, vFE)
    G.stamp('poll0')
    def obatch(b):
        for j in (2*b, 2*b + 1):
            for tau in range(2):
                G(f"""
                s_add_u32 m0, {s(sW1K)}, {(tau*32 + 4*j) * 1024}
                buffer_load_dwordx4 {v(8+tau)}, {s(SWS,4)}, {s(K2[j])} offen sc1 lds
                """)
        G.tag(f"o_{b}")
    obatch(0); obatch(1)
    for b in range(4):
        G.wait_tag(f"o_{b}")
        G.bar(f"o_{b}")
        if b + 2 < 4: obatch(b + 2)
    for l in PFORD[:cfg.npf]: G.items(w3_dma(l, W3SLOT[l], vP3))
    G.stamp('pf')
    G.wait_tag('w3_2')
    G.bar('a3_0')
    G.stamp('a3_0')
    NAB = 6
    def aread(n):
        st, sg = n >> 2, n & 3
        c, s4 = st >> 2, st & 3
        r = (c % 3) * 16384 + s4 * 1024
        return f"ds_read_b128 {v(AB+4*(n % NAB),4)}, {v(vA01 if sg < 2 else vA23)} offset:{r + (sg & 1)*4096}"
    A(f"""
    s_lshl_b32 {s(sT4)}, {s(sM)}, 2
    s_add_u32 {s(sT4)}, {s(sT4)}, {s(sW)}
    s_cmp_lt_u32 {s(sT4)}, 58
    s_cbranch_scc1 A_P3GO
    s_waitcnt vmcnt(0)
    """)
    for _ in range(7): A("s_barrier")
    A("s_branch A_ST3Z_DONE")
    A.label("A_P3GO")
    LEAD = 4
    nread = 0
    for n in range(LEAD): G(aread(n)); nread += 1
    fills = {st: [] for st in range(34)}; cs_at = {st: [] for st in range(34)}
    for l, b in list(W3BAR.items()) + [(2, -1)]:
        rd = w3_reads(l); cs = w3_colsum(l)
        fills[b+1] += rd[0:6]; fills[b+2] += rd[6:12]; fills[b+3] += rd[12:16]
        cs_at[b+2] += cs[0:2]; cs_at[b+3] += cs[2:6]; cs_at[b+4] += cs[6:8]
    for st in range(32):
        c, s4 = st >> 2, st & 3
        if s4 == 3 and st < 31:
            for l, b in W3BAR.items():
                if b == st and f"w3_{l}" in G.tags: G.wait_tag(f"w3_{l}")
            G.lwait_all()
            G.bar(f'p3_{st}')
        w = W3R + 32*(c % 3) + 8*s4
        fl = list(fills[st]); fi = 0
        for sg in range(4):
            n = 4*st + sg
            fr = v(AB+4*(n % NAB), 4)
            ms = [f"v_mfma_f32_32x32x16_bf16 {v(ACC+16*sg,16)}, {v(w,4)}, {fr}, {'0' if st == 0 else v(ACC+16*sg,16)}"]
            if sg < 2: ms.append(f"v_mfma_f32_32x32x16_bf16 {v(ACC+64+16*sg,16)}, {v(w+4,4)}, {fr}, {'0' if st == 0 else v(ACC+64+16*sg,16)}")
            for k, m in enumerate(ms):
                G(m)
                if k == 0 and nread < 128 and nread <= n + LEAD: G(aread(nread)); nread += 1
                if fi < len(fl): G(fl[fi]); fi += 1
        while fi < len(fl): G(fl[fi]); fi += 1
        for x in cs_at[st]: G(x)
    G.stamp('p3loop')
    G(f"""
    v_and_b32 v2, 1, v0
    v_lshrrev_b32 v3, 4, v0
    v_lshlrev_b32 v2, 6, v2
    v_lshl_add_u32 v2, v3, 4, v2
    s_lshl_b32 {s(sT5)}, {s(sW)}, 8
    s_add_u32 {s(sT5)}, {s(sT5)}, {CSX}
    v_add_u32 v2, {s(sT5)}, v2
    v_lshrrev_b32 v3, 5, v0
    v_lshlrev_b32 v3, 4, v3
    v_add_u32 v3, {s(sT5)}, v3
    ds_write_b128 v2, {v(CSA,4)}
    ds_write_b128 v2, {v(CSA+4,4)} offset:128
    s_and_b32 {s(sT0)}, {s(sW)}, 1
    s_lshl_b32 {s(sT0)}, {s(sT0)}, 9
    s_add_u32 {s(sT0)}, {s(sT0)}, {STATS3}
    v_and_b32 v13, 31, v0
    v_lshlrev_b32 v13, 3, v13
    v_add_u32 v13, {s(sT0)}, v13
    v_xor_b32 v14, 0x200, v13
    ds_read_b64 v[160:161], v13
    ds_read_b64 v[162:163], v13 offset:256
    ds_read_b64 v[164:165], v14
    ds_read_b64 v[166:167], v14 offset:256
    """)
    CS0, CS1 = 176, 192
    for tile, CSo in ((0, CS0), (1, CS1)):
        for i in range(4): G(f"ds_read_b128 {v(CSo+4*i,4)}, v3 offset:{tile*128 + (i>>1)*64 + (i&1)*32}")
    def unit_epi(U, stp, CSo):
        st = v(stp, 2)
        for h in range(8): G(f"v_pk_fma_f32 {v(U+2*h,2)}, {v(CSo+2*h,2)}, {st}, {v(U+2*h,2)} op_sel:[0,0,0] op_sel_hi:[1,0,1]")
        for i in range(8): G(f"v_max_f32 {v(U+i)}, 0, {v(U+i)}")
        for h in range(4): G(f"v_pk_mul_f32 {v(U+8+2*h,2)}, {v(U+8+2*h,2)}, {st} op_sel:[0,1] op_sel_hi:[1,1]")
        for h in range(4): G(f"v_pk_mul_f32 {v(U+2*h,2)}, {v(U+2*h,2)}, {v(U+8+2*h,2)}")
        for h in range(4): G(f"v_cvt_pk_bf16_f32 {v(U+h)}, {v(U+2*h)}, {v(U+2*h+1)}")
    G(f"""
    s_mul_i32 {s(sT0)}, {s(sM)}, 6144
    s_add_u32 {s(sT0)}, {s(sT0)}, {L.HH_OFF}
    s_and_b32 {s(sT1)}, {s(sW)}, 1
    s_mul_i32 {s(sT1)}, {s(sT1)}, {2*HHS}
    s_add_u32 {s(sT2)}, {s(sT0)}, {s(sT1)}
    s_sub_u32 {s(sT3)}, {s(sT0)}, {s(sT1)}
    s_add_u32 {s(sT3)}, {s(sT3)}, {2*HHS}
    s_lshl_b32 {s(sT0)}, {s(sW)}, 10
    v_add_u32 v8, {s(sT0)}, {v(vL16)}
    v_add_u32 v9, {HHS}, v8
    s_lshr_b32 {s(sT0)}, {s(sW)}, 1
    s_lshl_b32 {s(sT0)}, {s(sT0)}, 10
    s_add_u32 {s(sT0)}, {s(sT0)}, 4096
    v_add_u32 v10, {s(sT0)}, {v(vL16)}
    v_add_u32 v11, {HHS}, v10
    """)
    for sg in range(4): unit_epi(ACC + 16*sg, 160 + 2*sg, CS0)
    A(f"""
    s_lshl_b32 {s(sT4)}, {s(sM)}, 2
    s_add_u32 {s(sT4)}, {s(sT4)}, {s(sW)}
    s_cmp_ge_u32 {s(sT4)}, 58
    s_cbranch_scc1 A_ST3_DONE
    """)
    stores(G, [f"buffer_store_dwordx4 {v(ACC+16*sg,4)}, {v(8 + (sg & 1))}, {s(SWS,4)}, {s(sT2 if sg < 2 else sT3)} offen" for sg in range(4)], "ST3")
    for sg in range(2): unit_epi(ACC + 64 + 16*sg, 160 + 2*sg, CS1)
    A(f"""
    s_cmp_ge_u32 {s(sM)}, 14
    s_cbranch_scc1 A_ST3Z_DONE
    """)
    stores(G, [f"buffer_store_dwordx4 {v(ACC+64+16*sg,4)}, {v(10 + sg)}, {s(SWS,4)}, {s(sT2)} offen" for sg in range(2)], "ST3Z")
    A(f"""
    s_cmp_lg_u32 {s(sM)}, 15
    s_cbranch_scc1 A_ST3P_DONE
    v_mov_b64 {v(ACC,2)}, 0
    v_mov_b64 {v(ACC+2,2)}, 0
    s_mul_i32 {s(sT0)}, {s(sW)}, {HHS}
    s_add_u32 {s(sT0)}, {s(sT0)}, {L.HH_OFF + 86*1024}
    """)
    stores(G, [f"buffer_store_dwordx4 {v(ACC,4)}, {v(vL16)}, {s(SWS,4)}, {s(sT0)} offen offset:{1024*i}" for i in range(2)], "ST3P")
    G.stamp('p3epi')
    signal(G, 2, vFE)
    G.stamp('sig2')
    G(ks_addr(L.HH_OFF, HHS, vL16, 12, 13))
    G(f"""
    s_mul_i32 {s(sWB)}, {s(sW)}, 24576
    s_add_u32 {s(sWB)}, {s(sWB)}, {RING4}
    """)
    G.bar('p4start')
    poll(G, 2, vFE)
    G.stamp('poll2')
    def batch(b):
        for q in range(4*b, 4*b + 4):
            rs, j = q // 22, q % 22
            G(f"""
            s_add_u32 m0, {s(sWB)}, {(q % 24) * 1024}
            buffer_load_dwordx4 {v(12+rs)}, {s(SWS,4)}, {s(sKO+j)} offen sc1 lds
            """)
        G.tag(f"b4_{b}")
    nb = 0
    for b in range(cfg.nb0): batch(b); nb += 1
    for b in range(NB4):
        G.wait_tag(f"b4_{b}")
        G.bar(f"p4_{b}")
        k = 0
        while nb < NB4 and k < (2 if b < cfg.ramp else 1) and (nb < 6 or nb - 4 <= b): batch(nb); nb += 1; k += 1
    G.stamp('end')

def prog_b(G):
    A = G.A; cfg = G.cfg
    t0, t1, t2, t3, t4 = 1, 2, 3, 4, 5
    vXo0, vXo1, vXh, vWo, vTL, vSa, vSh, vRA = 8, 9, 10, 11, 12, 13, 14, 15
    SF = 16; SACC = 28
    vP3, vWD, vWT, vFE, vL16, vXA = 240, 243, 244, 246, 248, 249
    G.dummy = ('v', 250)
    G.sv = (251, 252); G.vS = 253
    if cfg.prioB: G(f"s_setprio {cfg.prioB}")
    G(f"""
    s_lshl_b32 {s(sT0)}, {s(sRB)}, 6
    s_lshr_b32 {s(sT1)}, {s(sW)}, 1
    s_lshl_b32 {s(sT1)}, {s(sT1)}, 5
    s_add_u32 {s(sT1)}, {s(sT1)}, {s(sT0)}
    s_and_b32 {s(sT2)}, {s(sW)}, 1
    s_add_u32 {s(sT1)}, {s(sT1)}, {s(sT2)}
    v_lshrrev_b32 {v(t0)}, 3, {v(vL)}
    v_and_b32 {v(t1)}, 7, {v(vL)}
    v_lshrrev_b32 {v(t2)}, 4, {v(vL)}
    v_xor_b32 {v(t3)}, {v(t1)}, {v(t2)}
    v_lshlrev_b32 {v(t4)}, 1, {v(t0)}
    v_add_u32 {v(t4)}, {s(sT1)}, {v(t4)}
    v_lshlrev_b32 {v(t4)}, 10, {v(t4)}
    v_lshl_add_u32 {v(vXo0)}, {v(t3)}, 4, {v(t4)}
    v_xor_b32 {v(t3)}, 4, {v(t3)}
    v_lshl_add_u32 {v(vXo1)}, {v(t3)}, 4, {v(t4)}
    v_add_u32 {v(vXo1)}, {0x4000 - 1024}, {v(vXo1)}
    s_lshl_b32 {s(sT2)}, {s(sW)}, 2
    v_add_u32 {v(t3)}, {s(sT2)}, {v(t0)}
    v_lshrrev_b32 {v(t4)}, 1, {v(t3)}
    v_and_b32 {v(t4)}, 7, {v(t4)}
    v_xor_b32 {v(t4)}, {v(t4)}, {v(t1)}
    s_sub_u32 {s(sT3)}, {s(sT0)}, 16
    v_add_u32 {v(t3)}, {s(sT3)}, {v(t3)}
    v_max_i32 {v(t3)}, 0, {v(t3)}
    v_lshlrev_b32 {v(t3)}, 10, {v(t3)}
    v_lshl_add_u32 {v(vXh)}, {v(t4)}, 4, {v(t3)}
    s_mov_b32 {s(sEXH)}, -1
    s_cmp_eq_u32 {s(sW)}, 0
    s_cselect_b32 {s(sEXH)}, 0xffffff00, {s(sEXH)}
    s_mov_b32 {s(sEXH+1)}, 0
    s_lshl_b32 {s(sT2)}, {s(sW)}, 3
    v_add_u32 {v(t3)}, {s(sT2)}, {v(t0)}
    v_mul_u32_u24 {v(t3)}, 3072, {v(t3)}
    v_and_b32 {v(t4)}, 1, {v(t2)}
    v_lshlrev_b32 {v(t4)}, 1, {v(t4)}
    s_and_b32 {s(sT2)}, {s(sW)}, 1
    s_lshl_b32 {s(sT2)}, {s(sT2)}, 2
    v_or_b32 {v(t4)}, {s(sT2)}, {v(t4)}
    v_xor_b32 {v(t4)}, {v(t4)}, {v(t1)}
    v_lshl_add_u32 {v(vWo)}, {v(t4)}, 4, {v(t3)}
    s_lshl_b32 {s(sT2)}, {s(sCB)}, 7
    v_add_u32 {v(vWo)}, {s(sT2)}, {v(vWo)}
    s_lshl_b32 {s(sT4)}, {s(sIDX)}, 2
    s_add_u32 {s(sT4)}, {s(sT4)}, {s(sW)}
    s_lshl_b32 {s(sTB)}, {s(sT4)}, 11
    s_mul_i32 {s(sTB1)}, {s(sT4)}, 1536
    v_lshrrev_b32 {v(vTL)}, 2, {v(vL)}
    v_lshlrev_b32 {v(vTL)}, 7, {v(vTL)}
    s_and_b32 {s(sSX)}, {s(sRBL)}, {cfg.rotm}
    s_lshl_b32 {s(sSX)}, {s(sSX)}, {cfg.rots}
    s_add_u32 {s(sSX)}, {s(sSX)}, {s(sCB)}
    s_lshl_b32 {s(sMX)}, {s(sW)}, 11
    s_lshl_b32 {s(sMH)}, {s(sW)}, 9
    s_add_u32 {s(sMH)}, {s(sMH)}, 8192
    s_mul_i32 {s(sMW)}, {s(sW)}, 3072
    s_add_u32 {s(sMW)}, {s(sMW)}, {WRING}
    s_mov_b32 {s(SX+2)}, {2048*1024}
    s_mov_b32 {s(SX+3)}, 0x20000
    s_mov_b32 {s(SW1+2)}, {512*3072}
    s_mov_b32 {s(SW1+3)}, 0x20000
    s_waitcnt lgkmcnt(0)
    s_mov_b32 {s(SX)}, s64
    s_and_b32 {s(SX+1)}, s65, 0xffff
    s_mov_b32 {s(SW1)}, s66
    s_and_b32 {s(SW1+1)}, s67, 0xffff
    """)
    def dma_chunk(c):
        sl = (c % 3) * WSLOT
        W = lambda o: f"buffer_load_dwordx4 {v(vWo)}, {s(SW1,4)}, {s(sB0)} offen offset:{o} lds"
        return [f"""
        s_add_u32 m0, {s(sMW)}, {sl}
        s_add_u32 {s(sB1)}, {s(sSX)}, {c}
        s_and_b32 {s(sB1)}, {s(sB1)}, 7
        s_mul_i32 {s(sB0)}, {s(sB1)}, 196608
        s_lshl_b32 {s(sB1)}, {s(sB1)}, 7
        {W(0)}
        """, W(1024), W(2048), f"""
        s_add_u32 m0, {s(sMX)}, {c*XCH}
        s_add_u32 {s(sB0)}, {s(sB0)}, {32*3072}
        buffer_load_dwordx4 {v(vXo0)}, {s(SX,4)}, {s(sB1)} offen lds
        """, f"buffer_load_dwordx4 {v(vXo1)}, {s(SX,4)}, {s(sB1)} offen offset:1024 lds", f"""
        s_add_u32 m0, {s(sMH)}, {c*XCH}
        s_mov_b64 exec, {s(sEXH,2)}
        buffer_load_dwordx4 {v(vXh)}, {s(SX,4)}, {s(sB1)} offen lds
        s_mov_b64 exec, -1
        """, f"""
        s_add_u32 m0, {s(sMW)}, {sl + 4*3072}
        s_nop 0
        {W(0)}
        """, W(1024), W(2048), ('TAG', f"c{c}")]
    def t1w(r):
        if not cfg.touch or r > 7: return []
        return [f"""
        s_add_u32 {s(sB0)}, {s(sTB1)}, {r*196608}
        buffer_load_dword v250, {v(vTL)}, {s(SW1,4)}, {s(sB0)} offen
        """]
    if cfg.touch:
        G(f"""
        s_lshl_b32 {s(sB0)}, {s(sXCD)}, 18
        s_add_u32 {s(sB0)}, {s(sB0)}, {s(sTB)}
        buffer_load_dword v250, {v(vTL)}, {s(SX,4)}, {s(sB0)} offen
        """)
    G.items(dma_chunk(0) + t1w(1) + t1w(2))
    G(common_srds(cfg) + srd(SWO, 68, 512*1024) + srd(SWD, 76, 1376*1024) + srd(SOUT, 78, 2048*1024))
    A(f"""
    s_cmp_lg_u32 {s(sW)}, 0
    s_cbranch_scc1 REG_DONE
    s_and_b32 {s(sXCC)}, {s(sXCC)}, 7
    s_mul_i32 {s(sT0)}, {s(sXCC)}, {s(sXCC)}
    s_lshl_b32 {s(sT0)}, {s(sT0)}, 12
    s_lshl_b32 {s(sT1)}, {s(sXCC)}, 5
    s_or_b32 {s(sT0)}, {s(sT0)}, {s(sT1)}
    s_or_b32 {s(sT0)}, {s(sT0)}, 1
    s_lshl_b64 {s(sT4,2)}, {s(sTS,2)}, 22
    s_or_b32 {s(sT0)}, {s(sT0)}, {s(sT4)}
    v_mov_b32 v2, {s(sT0)}
    v_mov_b32 v3, {s(sT5)}
    s_lshl_b32 {s(sT1)}, {s(sG)}, 3
    v_mov_b32 v4, {s(sT1)}
    s_mov_b64 exec, 1
    buffer_atomic_add_x2 v[2:3], v4, {s(SDBG,4)}, 0 offen offset:128 sc1
    s_mov_b64 exec, -1
    """)
    A.label("REG_DONE")
    G.stamp('start')
    G.items(dma_chunk(1) + t1w(3))
    G(f"""
    v_lshlrev_b32 {v(vL16)}, 4, v0
    s_lshl_b32 {s(sT0)}, {s(sW)}, 11
    s_lshl_b32 {s(sT1)}, {s(sW)}, 9
    s_add_u32 {s(sT1)}, {s(sT1)}, 8192
    v_add_u32 {v(vSh)}, {s(sT1)}, {v(vL16)}
    v_add_u32 {v(vSa)}, {s(sT0)}, {v(vL16)}
    v_mov_b64 {v(SACC,2)}, 0
    v_mov_b64 {v(SACC+2,2)}, 0
    v_mov_b64 {v(SACC+4,2)}, 0
    """)
    G.wait_tag('c0')
    G.bar('c0')
    G.stamp('c0')
    G.bg_on = False
    G.bg(dma_chunk(2) + t1w(4))
    setups = [w3_setup(vP3, t0, t1, t2), f"""
    v_lshrrev_b32 {v(t0)}, 3, {v(vL)}
    v_and_b32 {v(t1)}, 7, {v(vL)}
    v_bfe_u32 {v(t2)}, {v(vL)}, 4, 1
    v_lshlrev_b32 {v(t2)}, 2, {v(t2)}
    v_xor_b32 {v(t1)}, {v(t1)}, {v(t2)}
    v_lshlrev_b32 {v(t0)}, 10, {v(t0)}
    v_lshl_add_u32 {v(vWD)}, {v(t1)}, 4, {v(t0)}
    s_lshl_b32 {s(sT0)}, {s(sCB)}, 7
    v_add_u32 {v(vWD)}, {s(sT0)}, {v(vWD)}
    s_lshl_b32 {s(sT2)}, {s(sRBL)}, 1
    s_lshl_b32 {s(sWB)}, {s(sW)}, 11
    s_lshl_b32 {s(sR2)}, {s(sRBL)}, 13
    s_lshl_b32 {s(sW1K)}, {s(sW)}, 10
    """, f"""
    v_lshrrev_b32 {v(t0)}, 5, {v(vL)}
    v_bfe_u32 {v(t1)}, {v(vL)}, 2, 2
    v_lshl_add_u32 {v(t0)}, {v(t0)}, 2, {v(t1)}
    v_lshlrev_b32 {v(t0)}, 7, {v(t0)}
    v_and_b32 {v(t1)}, 1, {v(vL)}
    v_lshl_add_u32 {v(t0)}, {v(t1)}, 5, {v(t0)}
    v_bfe_u32 {v(t1)}, {v(vL)}, 4, 1
    v_lshl_add_u32 {v(t0)}, {v(t1)}, 4, {v(t0)}
    v_bfe_u32 {v(t1)}, {v(vL)}, 1, 1
    v_lshl_add_u32 {v(t0)}, {v(t1)}, 3, {v(t0)}
    v_bfe_u32 {v(t1)}, {v(vL)}, 3, 1
    s_and_b32 {s(sT0)}, {s(sW)}, 1
    v_xor_b32 {v(t1)}, {s(sT0)}, {v(t1)}
    v_lshl_add_u32 {v(vWT+1)}, {v(t1)}, 6, {v(t0)}
    v_add_u32 {v(vWT+1)}, {s(sWB)}, {v(vWT+1)}
    v_xor_b32 {v(vWT)}, 64, {v(vWT+1)}
    s_lshl_b32 {s(sA3)}, {s(sW)}, 15
    s_add_u32 {s(sA3)}, {s(sA3)}, {L.H_OFF}
    s_lshl_b32 {s(sT0)}, {s(sRB)}, 6
    s_lshr_b32 {s(sT2)}, {s(sW)}, 1
    s_lshl_b32 {s(sT2)}, {s(sT2)}, 5
    s_add_u32 {s(sT0)}, {s(sT0)}, {s(sT2)}
    s_lshl_b32 {s(sT0)}, {s(sT0)}, 10
    s_lshl_b32 {s(sT2)}, {s(sCB)}, 7
    s_add_u32 {s(sT0)}, {s(sT0)}, {s(sT2)}
    s_and_b32 {s(sT2)}, {s(sW)}, 1
    s_lshl_b32 {s(sT2)}, {s(sT2)}, 6
    s_add_u32 {s(sT0)}, {s(sT0)}, {s(sT2)}
    v_and_b32 v2, 15, v0
    v_lshlrev_b32 v2, 11, v2
    v_lshrrev_b32 v3, 4, v0
    v_lshl_add_u32 {v(vXA)}, v3, 4, v2
    v_add_u32 {v(vXA)}, {s(sT0)}, {v(vXA)}
    s_lshl_b32 {s(sT0)}, {s(sG)}, 3
    v_mov_b32 {v(vRA)}, {s(sT0)}
    s_and_b32 {s(sT0)}, {s(sRB)}, 1
    s_lshl_b32 {s(sT0)}, {s(sT0)}, 1
    s_lshr_b32 {s(sT1)}, {s(sW)}, 1
    s_add_u32 {s(sT0)}, {s(sT0)}, {s(sT1)}
    s_lshl_b32 {s(sO1)}, {s(sT0)}, 12
    s_lshl_b32 {s(sO0)}, {s(sT0)}, 15
    s_lshl_b32 {s(sT2)}, {s(sCB)}, 1
    s_and_b32 {s(sT3)}, {s(sW)}, 1
    s_add_u32 {s(sT2)}, {s(sT2)}, {s(sT3)}
    s_lshl_b32 {s(sT2)}, {s(sT2)}, 11
    s_add_u32 {s(sO0)}, {s(sO0)}, {s(sT2)}
    s_add_u32 {s(sO0)}, {s(sO0)}, {L.H_OFF}
    s_lshl_b32 {s(sT2)}, {s(sCB)}, 9
    s_add_u32 {s(sO1)}, {s(sO1)}, {s(sT2)}
    s_lshl_b32 {s(sT3)}, {s(sT3)}, 3
    s_add_u32 {s(sO1)}, {s(sO1)}, {s(sT3)}
    s_add_u32 {s(sO1)}, {s(sO1)}, {L.ST_OFF}
    """]
    def wt_dma(SWT, sko, ldsoff, tagname, vWD_):
        return [f"""
        s_lshl_b32 {s(sB0)}, {s(sko)}, 4
        s_add_u32 m0, {s(sWB)}, {ldsoff}
        s_add_u32 {s(sB1)}, {s(sB0)}, 7168
        buffer_load_dwordx4 {v(vWD_)}, {s(SWT,4)}, {s(sB0)} offen lds
        """, f"buffer_load_dwordx4 {v(vWD_)}, {s(SWT,4)}, {s(sB1)} offen offset:1024 lds", ('TAG', tagname)]
    def wt_reads(dst, ldsoff, vWT_):
        return [f"ds_read_b64_tr_b16 {v(dst + 4*k + 2*half, 2)}, {v(vWT_+k)} offset:{ldsoff + half*1024}" for k in range(2) for half in range(2)]
    def wo(j):
        g = wt_dma(SWO, sB0, j*8192, f"wo{j}", vWD)
        g[0] = f"""
        s_add_u32 {s(sB0)}, {s(sR2)}, {j*4096}
        s_and_b32 {s(sB0)}, {s(sB0)}, 32767
        s_add_u32 {s(sB0)}, {s(sB0)}, {s(sW1K)}
        """ + g[0]
        return g
    assert not cfg.touch
    XR = 224
    def one():
        if G._has(): G._one()
    G.bg_on = False
    for i in range(8):
        su = setups[i].strip().split('\n') if i < len(setups) else []
        nd = cfg.ndma if i < 7 else cfg.ndma7
        per = (len(su) + nd - 1) // max(nd, 1)
        for k in range(nd if i != 3 else 5):
            one()
            for ln in su[k*per:(k+1)*per]: G(ln)
        if i == 2:
            G(f"buffer_load_dwordx2 {v(vFE,2)}, {v(vRA)}, {s(SDBG,4)}, 0 offen offset:128 sc1")
        if i == 2 and cfg.pretouch:
            G(f"""
            v_and_b32 v2, 15, v0
            v_lshlrev_b32 v2, 7, v2
            buffer_load_dword v250, v2, {s(SWS,4)}, {s(sO0)} offen sc1
            """)
        if i == 4:
            assert cfg.rotm == 1 and cfg.rots == 2
            G(f"""
            s_and_b32 {s(sT0)}, {s(sRBL)}, 1
            s_mul_i32 {s(sT0)}, {s(sT0)}, {4*XCH}
            s_lshr_b32 {s(sT1)}, {s(sW)}, 1
            s_lshl_b32 {s(sT1)}, {s(sT1)}, 12
            s_add_u32 {s(sT0)}, {s(sT0)}, {s(sT1)}
            v_and_b32 v2, 31, v0
            v_lshlrev_b32 v3, 7, v2
            v_add_u32 v3, {s(sT0)}, v3
            v_bfe_u32 v2, v0, 1, 3
            v_lshrrev_b32 v4, 5, v0
            v_lshlrev_b32 v4, 1, v4
            s_and_b32 {s(sT1)}, {s(sW)}, 1
            s_lshl_b32 {s(sT1)}, {s(sT1)}, 2
            v_or_b32 v4, {s(sT1)}, v4
            v_xor_b32 v4, v4, v2
            v_lshl_add_u32 v5, v4, 4, v3
            v_xor_b32 v4, 1, v4
            v_lshl_add_u32 v3, v4, 4, v3
            ds_read_b128 {v(XR,4)}, v5
            ds_read_b128 {v(XR+4,4)}, v3
            """)
            G.lwait_all()
        if i == 3:
            regdecode(G, vFE, vRA)
            G(f"""
            v_min_u32 v2, 2, v0
            s_mul_i32 {s(sT0)}, {s(sW)}, 24
            s_add_u32 {s(sT0)}, {s(sT0)}, {STG}
            v_lshlrev_b32 v3, 3, v2
            v_add_u32 v3, {s(sT0)}, v3
            ds_read_b64 v[16:17], v3
            s_mul_i32 {s(sT0)}, {s(sCB)}, 10
            s_mul_i32 {s(sT1)}, {s(sW)}, 3
            s_add_u32 {s(sT0)}, {s(sT0)}, {s(sT1)}
            v_add_u32 v2, {s(sT0)}, v2
            v_min_u32 v2, 79, v2
            v_lshlrev_b32 v2, 4, v2
            s_and_b32 {s(sT4)}, {s(sRB)}, 1
            s_mul_i32 {s(sT4)}, {s(sT4)}, 1280
            s_add_u32 {s(sT4)}, {s(sT4)}, {SG_OFF}
            v_mov_b32 v18, {v(vFE)}
            v_mov_b32 v19, {v(vFE+1)}
            v_min_u32 v20, 19, v0
            s_mul_i32 {s(sT0)}, {s(sW)}, 20
            v_add_u32 v20, {s(sT0)}, v20
            v_lshlrev_b32 v21, 2, v20
            v_add_u32 v21, {STATS1}, v21
            v_lshlrev_b32 v20, 4, v20
            s_mov_b32 {s(sMWL)}, {s(sT4)}
            """)
            stores(G, [f"buffer_store_dwordx4 v[16:19], v2, {s(SWS,4)}, {s(sT4)} offen"], "STG")
            for k in range(nd - 5): one()
        if i == 5:
            G(f"buffer_load_dwordx4 v[24:27], v20, {s(SWS,4)}, {s(sMWL)} offen sc1")
        if cfg.fine == 1: G.stamp(f'd{i}')
        if i == 7: break
        G.wait_tag(f"c{i+1}")
        G.bar(f"c{i+1}")
        if i + 3 < 8: G.bg(dma_chunk(i + 3) + t1w(i + 5))
        if i == 4:
            for j in range(6): G.bg(wo(j))
        if i == 5:
            G.bg(wo(6))
            G.bg(w3_dma(0, W3SLOT[0], vP3))
        if i == 6:
            G.bg(wo(7))
            G.bg(w3_dma(1, W3SLOT[1], vP3))
    G._autowait(Ins("v_mov_b32 v24, v27"))
    G(f"s_mov_b32 {s(sCNT)}, 0")
    A.label("SGPOLL")
    A(f"""
    v_cmp_ne_u64 vcc, v[26:27], {v(vFE,2)}
    s_add_u32 {s(sCNT)}, {s(sCNT)}, 1
    s_cbranch_vccz SGOK
    s_cmp_ge_u32 {s(sCNT)}, 20000
    s_cbranch_scc1 SGOK
    buffer_load_dwordx4 v[24:27], v20, {s(SWS,4)}, {s(sMWL)} offen sc1
    s_waitcnt vmcnt(0)
    s_branch SGPOLL
    """)
    A.label("SGOK")
    G(f"""
    ds_write_b32 v21, v25
    ds_write_b32 v21, v24 offset:512
    """)
    G.lwait_all()
    G.bar('stats')
    G.stamp('p1loop')
    G.bg_on = True
    G.flush()
    G.items(p4_table())
    G(f"""
    v_mov_b32 v11, {v(vL16)}
    v_and_b32 v14, 31, v0
    v_lshlrev_b32 v14, 4, v14
    v_lshrrev_b32 v3, 5, v0
    v_lshl_add_u32 v14, v3, 2, v14
    v_subrev_u32 v12, {s(sWB)}, {v(vWT+1)}
    s_lshr_b32 {s(sT0)}, {s(sW)}, 1
    s_lshl_b32 {s(sT0)}, {s(sT0)}, 15
    v_add_u32 v13, {s(sT0)}, {v(vL16)}
    """)
    G.wait_tag('wo7')
    G.bsync('wo')
    WO = 80
    for q in range(32):
        for half in range(2): G(f"ds_read_b64_tr_b16 {v(WO + 4*q + 2*half, 2)}, v12 offset:{q*2048 + half*1024}")
    XU = 32
    for i in range(8):
        G(f"""
        v_lshlrev_b32 {v(XU+2*i)}, 16, {v(XR+i)}
        v_and_b32 {v(XU+2*i+1)}, 0xffff0000, {v(XR+i)}
        """)
    G.wait_tag('w3_1')
    G.lwait_all()
    G.stamp('pre')
    G.bar('w3a')
    G.stamp('w3a')
    ACC2 = 16
    def red_write(u, reg):
        out = [f"""
        s_xor_b32 {s(sT5)}, {s(sW)}, {3-u}
        s_mul_i32 {s(sT5)}, {s(sT5)}, 12288
        v_add_u32 v10, {s(sT5)}, v11
        """]
        out += [f"ds_write_b128 v10, {v(reg+4*i,4)} offset:{u*4096+i*1024}" for i in range(4)]
        return out
    def red_read(RED, barname):
        out = [f"""
        s_mul_i32 {s(sT5)}, {s(sW)}, 12288
        v_add_u32 v10, {s(sT5)}, v11
        """, ('BSYNC', barname)]
        out += [f"ds_read_b128 {v(RED[i>>2]+4*(i&3),4)}, v10 offset:{i*1024}" for i in range(12)]
        return out
    def final(F, RED, XH, OUTR):
        for i in range(8): G(f"v_pk_add_f32 {v(RED[0]+2*i,2)}, {v(RED[0]+2*i,2)}, {v(RED[1]+2*i,2)}")
        for i in range(8):
            G(f"""
            v_lshlrev_b32 {v(RED[1]+2*i)}, 16, {v(XH+i)}
            v_and_b32 {v(RED[1]+2*i+1)}, 0xffff0000, {v(XH+i)}
            """)
        for i in range(8): G(f"v_pk_add_f32 {v(RED[2]+2*i,2)}, {v(RED[2]+2*i,2)}, {v(RED[1]+2*i,2)}")
        for i in range(8): G(f"v_pk_add_f32 {v(RED[0]+2*i,2)}, {v(RED[0]+2*i,2)}, {v(RED[2]+2*i,2)}")
        for i in range(8): G(f"v_pk_add_f32 {v(F+2*i,2)}, {v(F+2*i,2)}, {v(RED[0]+2*i,2)}")
        for i in range(8): G(f"v_cvt_pk_bf16_f32 {v(OUTR+i)}, {v(F+2*i)}, {v(F+2*i+1)}")
    AB2 = 48; NA2 = 6
    nr2 = 0
    def rd2():
        nonlocal nr2
        if nr2 % 8 == 0: G.bar(f"o_{nr2 // 8}")
        G(f"ds_read_b128 {v(AB2 + 4*(nr2 % NA2), 4)}, v13 offset:{nr2*1024}"); nr2 += 1
    for _ in range(NA2 - 1): rd2()
    G.stamp('poll0')
    for q in range(32):
        G(f"v_mfma_f32_32x32x16_bf16 {v(XU,16)}, {v(WO+4*q,4)}, {v(AB2+4*(q % NA2),4)}, {v(XU,16)}")
        if nr2 < 32: rd2()
    OUTR = 232
    G(f"v_mov_b64 v[16:17], 0\nv_mov_b64 v[18:19], 0")
    for i in range(8): G(f"v_cvt_pk_bf16_f32 {v(OUTR+i)}, {v(XU+2*i)}, {v(XU+2*i+1)}")
    sm, sq = 16, 17
    if cfg.fine == 2: G.stamp('fin')
    stores(G, [f"buffer_store_dwordx4 {v(OUTR,4)}, {v(vL16)}, {s(SWS,4)}, {s(sO0)} offen",
               f"buffer_store_dwordx4 {v(OUTR+4,4)}, {v(vL16)}, {s(SWS,4)}, {s(sO0)} offen offset:1024"], "ST2")
    for i in range(8):
        G(f"v_dot2c_f32_bf16 {v(sm+2*(i&1))}, {s(sONE)}, {v(OUTR+i)}")
        G(f"v_dot2c_f32_bf16 {v(sq+2*(i&1))}, {v(OUTR+i)}, {v(OUTR+i)}")
    G(f"""
    v_add_f32 {v(sm)}, {v(sm)}, {v(sm+2)}
    v_add_f32 {v(sq)}, {v(sq)}, {v(sq+2)}
    v_permlane32_swap_b32 {v(sm)}, {v(sq)}
    v_add_f32 {v(sm)}, {v(sm)}, {v(sq)}
    """)
    stores(G, [f"buffer_store_dword {v(sm)}, v14, {s(SWS,4)}, {s(sO1)} offen"], "ST2B")
    G.stamp('p2')
    signal(G, 1, vFE)
    G.stamp('sig1')
    nP3, nWD, nWT, nXA = 20, 23, 24, 1
    G(f"""
    s_mul_i32 {s(sT0)}, {s(sW)}, {8192 - 2048}
    s_add_u32 {s(sT0)}, {s(sT0)}, {WDT}
    s_add_u32 {s(sWB)}, {s(sWB)}, {s(sT0)}
    v_add_u32 {v(nWT)}, {s(sT0)}, {v(vWT)}
    v_add_u32 {v(nWT+1)}, {s(sT0)}, {v(vWT+1)}
    v_mov_b32 {v(nP3)}, {v(vP3)}
    v_mov_b32 {v(nP3+1)}, {v(vP3+1)}
    v_mov_b32 {v(nP3+2)}, {v(vP3+2)}
    v_mov_b32 {v(nWD)}, {v(vWD)}
    v_mov_b32 {v(nXA)}, {v(vXA)}
    s_mov_b32 {s(SW1)}, {s(SWS)}
    s_mov_b32 {s(SW1+1)}, {s(SWS+1)}
    s_cmp_eq_u32 {s(sM)}, 15
    s_cselect_b32 {s(SW1+2)}, 0, {L.GSTRIDE}
    s_lshl_b32 {s(sT4)}, {s(sW)}, 12
    s_add_u32 {s(sT4)}, {s(sT4)}, {L.ST_OFF}
    """)
    G.sv = (26, 28)
    G('v_mov_b32 v15, v253'); G.vS = 15
    poll(G, 1, vFE)
    G.stamp('poll1')
    def a_dma(c):
        r = (c % 3) * 16384
        g = [f"""
        s_xor_b32 {s(sB0)}, {s(sROT3)}, {lch(c)}
        s_lshl_b32 {s(sB0)}, {s(sB0)}, 12
        s_add_u32 {s(sB0)}, {s(sB0)}, {s(sA3)}
        s_lshl_b32 {s(sB1)}, {s(sW)}, 12
        s_add_u32 m0, {s(sB1)}, {r}
        s_nop 0
        buffer_load_dwordx4 v11, {s(SW1,4)}, {s(sB0)} offen sc1 lds
        """]
        for i in range(1, 4): g.append(f"buffer_load_dwordx4 v11, {s(SW1,4)}, {s(sB0)} offen offset:{1024*i} sc1 lds")
        g.append(('TAG', f"a3_{c}"))
        return g
    a1 = a_dma(1)
    G.items(a_dma(0) + a1[:2])
    G.wait_tag('a3_0')
    G.bar('a3_0')
    G.stamp('a3_0')
    G.items(a1[2:] + a_dma(2))
    SL = 32
    for i in range(4): G(f"buffer_load_dwordx4 {v(SL+4*i,4)}, v11, {s(SWS,4)}, {s(sT4)} offen offset:{1024*i} sc1")
    for l in PFORD[cfg.npf:]: G.items(w3_dma(l, W3SLOT[l], nP3))
    NR = 4
    WD_SLOT = [80 + 8*j for j in range(22)]
    wd = lambda j: wt_dma(SWD, sKO + j, (j % NR) * 2048, f"wd_{j}", nWD)
    wd_issue_period = {}
    st3 = []
    for i in range(4): st3.append(f"v_add_f32 {v(SL+4*i)}, {v(SL+4*i)}, {v(SL+4*i+2)}\nv_add_f32 {v(SL+4*i+1)}, {v(SL+4*i+1)}, {v(SL+4*i+3)}")
    st3.append(f"""
    v_add_f32 {v(SL)}, {v(SL)}, {v(SL+4)}
    v_add_f32 {v(SL+1)}, {v(SL+1)}, {v(SL+5)}
    v_add_f32 {v(SL+8)}, {v(SL+8)}, {v(SL+12)}
    v_add_f32 {v(SL+9)}, {v(SL+9)}, {v(SL+13)}
    v_add_f32 {v(SL)}, {v(SL)}, {v(SL+8)}
    v_add_f32 {v(SL+1)}, {v(SL+1)}, {v(SL+9)}
    v_mov_b32 {v(SL+2)}, {v(SL)}
    v_mov_b32 {v(SL+3)}, {v(SL+1)}
    v_permlane32_swap_b32 {v(SL)}, {v(SL+2)}
    v_permlane32_swap_b32 {v(SL+1)}, {v(SL+3)}
    v_add_f32 {v(SL)}, {v(SL)}, {v(SL+2)}
    v_add_f32 {v(SL+1)}, {v(SL+1)}, {v(SL+3)}
    v_mul_f32 {v(SL)}, 0x3b000000, {v(SL)}
    v_mul_f32 {v(SL+1)}, 0x3b000000, {v(SL+1)}
    v_fma_f32 {v(SL+1)}, -{v(SL)}, {v(SL)}, {v(SL+1)}
    v_max_f32 {v(SL+1)}, 0, {v(SL+1)}
    v_add_f32 {v(SL+1)}, 0x3727c5ac, {v(SL+1)}
    v_rcp_f32 {v(SL+1)}, {v(SL+1)}
    v_sub_f32 {v(SL)}, 0, {v(SL)}
    s_lshl_b32 {s(sT5)}, {s(sW)}, 8
    s_add_u32 {s(sT5)}, {s(sT5)}, {STATS3}
    v_and_b32 v2, 31, v0
    v_lshlrev_b32 v2, 3, v2
    v_add_u32 v2, {s(sT5)}, v2
    ds_write_b64 v2, {v(SL,2)}
    """)
    G.items(st3)
    wd_next = 0; wd_iss = 0
    def wd_cycle(period, force=False):
        nonlocal wd_next, wd_iss
        did = []
        while wd_next < wd_iss:
            j = wd_next
            lead = 2 if j < NR else 1
            if not force and period - wd_issue_period[j] < lead: break
            G.wait_tag(f"wd_{j}")
            for x in wt_reads(WD_SLOT[j], (j % NR) * 2048, nWT): G(x)
            did.append(j); wd_next += 1
        if did:
            G.lwait_all()
            for j in did:
                if wd_iss < 22:
                    G.items(wd(wd_iss)); wd_issue_period[wd_iss] = period; wd_iss += 1
    for c in range(7):
        st = 4*c + 3
        G.wait_tag(f"a3_{c+1}")
        for l, b in W3BAR.items():
            if b == st and f"w3_{l}" in G.tags: G.wait_tag(f"w3_{l}")
        G.lwait_all()
        G.bar(f'p3_{st}')
        if c + 3 < 8: G.items(a_dma(c + 3))
        heavy = False
        for l in (5, 6, 7):
            if 4*(l-5) + 3 == st: G.items(w3_dma(l, W3SLOT[l], nP3)); heavy = True
        if c == cfg.wd0:
            for j in range(NR): G.items(wd(j)); wd_issue_period[j] = c + 1
            wd_iss = NR
        elif not (heavy and cfg.skipwd): wd_cycle(c + 1)
    G.stamp('p3ld')
    while wd_next < 22: wd_cycle(99, force=True)
    G.lwait_all()
    G.stamp('wd')
    G.sv = (15, 8)
    G(f"""
    s_mul_i32 {s(sT0)}, {s(sW)}, 24576
    s_add_u32 {s(sT0)}, {s(sT0)}, {RING4}
    v_add_u32 v12, {s(sT0)}, v11
    """)
    G.bar('p4start')
    U = [16, 32, 48, 16]
    AB = 64; NAB = 4
    n = 22; skew = cfg.skew
    ops = []
    for j in range(n): ops += [(0, 0, j, j, True), (1, 1, j, j, False)]
    for j in range(n - 3):
        ops.append((2, 0, j, 22 + j, True))
        if j >= skew: ops.append((3, 1, j, 22 + j, False))
        if skew <= j < 2*skew: ops.append((3, 1, j - skew, 22 + j - skew, True))
    for j in range(n - 3, n): ops.append((2, 0, j, 22 + j, True))
    for j in range(n - 3, n): ops.append((3, 1, j, 22 + j, 'keep'))
    rd_list = [(k, o[3]) for k, o in enumerate(ops) if o[4] is True]
    slot_of = {}
    for r, (k, q) in enumerate(rd_list): slot_of[k] = r % NAB
    for k, o in enumerate(ops):
        if o[4] is False: slot_of[k] = slot_of[k-1]
        if o[4] == 'keep': slot_of[k] = slot_of[k-3]
    barred = -1
    nr = 0
    def issue_read():
        nonlocal nr, barred
        k, q = rd_list[nr]
        while barred < q // 4:
            barred += 1
            G.lwait_all() if False else None
            G.bar(f"p4_{barred}")
        G(f"ds_read_b128 {v(AB + 4*(nr % NAB), 4)}, v12 offset:{(q % 24) * 1024}")
        nr += 1
    RED = [80, 96, 112]
    XH = 128; OUTR = 136
    assert skew <= 6
    extra = {}
    w0 = red_write(0, U[0])
    extra.setdefault(2*n, []).extend(w0[:2]); extra.setdefault(2*n + 1, []).append(w0[2]); extra.setdefault(2*n + 2, []).append(w0[3]); extra.setdefault(2*n + 3, []).append(w0[4])
    i = 2*n + skew + 2
    for it in red_write(1, U[1]): extra.setdefault(i, []).append(it); i += 2
    last2 = max(k for k, o in enumerate(ops) if o[0] == 2)
    w2 = red_write(2, U[2])
    extra.setdefault(last2 + 1, []).extend(w2[:3]); extra.setdefault(last2 + 2, []).extend(w2[3:])
    assert last2 + 3 == len(ops) - 1
    rr = red_read(RED, 'red4')
    extra.setdefault(last2 + 3, []).extend(rr[:2] + rr[10:])
    e0 = last2 - 13
    assert all(not (o[0] == 3 and o[2] < 8) for o in ops[e0-2:]), 'slots still live'
    extra.setdefault(e0 - 2, []).append(f"""
    buffer_load_dwordx4 {v(XH,4)}, v11, {s(SWS,4)}, {s(sO0)} offen sc1
    buffer_load_dwordx4 {v(XH+4,4)}, v11, {s(SWS,4)}, {s(sO0)} offen offset:1024 sc1
    """)
    extra.setdefault(e0, []).extend([rr[0], ('BSYNC', 'red4a')] + rr[2:10])
    pre = [f"v_add_f32 {v(RED[0]+i)}, {v(RED[0]+i)}, {v(RED[1]+i)}" for i in range(16)]
    for i in range(8): pre += [f"v_lshlrev_b32 {v(RED[1]+2*i)}, 16, {v(XH+i)}", f"v_and_b32 {v(RED[1]+2*i+1)}, 0xffff0000, {v(XH+i)}"]
    pre += [f"v_add_f32 {v(RED[0]+i)}, {v(RED[0]+i)}, {v(RED[1]+i)}" for i in range(16)]
    for i, x in enumerate(pre): extra.setdefault(e0 + 2 + i // 4, []).append(x)
    for _ in range(NAB - 1): issue_read()
    G.stamp('p4_0')
    rdone = 0
    for k, (u, cs, j, q, fresh) in enumerate(ops):
        if u == 3 and j == skew: G.lwait(G.w0idx)
        G(f"v_mfma_f32_32x32x16_bf16 {v(U[u],16)}, {v(WD_SLOT[j]+4*cs,4)}, {v(AB+4*slot_of[k],4)}, {'0' if j == (skew if u == 3 else 0) else v(U[u],16)}")
        if fresh is True: rdone += 1
        nxt_fresh = (k + 1 == len(ops)) or (ops[k+1][4] is not False)
        while nr < len(rd_list) and nr - NAB < rdone - (0 if nxt_fresh else 1): issue_read()
        G.items(extra.get(k, []))
        if k == 2*n + 3: G.w0idx = G.lg
    for i in range(8): G(f"v_pk_add_f32 {v(RED[0]+2*i,2)}, {v(RED[0]+2*i,2)}, {v(RED[2]+2*i,2)}")
    for i in range(8): G(f"v_pk_add_f32 {v(U[3]+2*i,2)}, {v(U[3]+2*i,2)}, {v(RED[0]+2*i,2)}")
    for i in range(8): G(f"v_cvt_pk_bf16_f32 {v(OUTR+i)}, {v(U[3]+2*i)}, {v(U[3]+2*i+1)}")
    for i in range(4): G(f"v_permlane16_swap_b32 {v(OUTR+i)}, {v(OUTR+4+i)}")
    G(f"""
    buffer_store_dwordx4 {v(OUTR,4)}, {v(nXA)}, {s(SOUT,4)}, 0 offen
    buffer_store_dwordx4 {v(OUTR+4,4)}, {v(nXA)}, {s(SOUT,4)}, 0 offen offset:1024
    """)
    G.stamp('end')

def main(path, cfg):
    A = Asm()
    A.raw(HDR.rstrip('\n'))
    A.raw(f"; @launch grid=(256,1,1) block=(512,1,1) lds={LDS_TOTAL}")
    A.raw('.amdgcn_target "amdgcn-amd-amdhsa--gfx950"\n.text')
    n = NAME + "_kernel"
    A.raw(f".globl {n}\n.p2align 8\n.type {n},@function\n{n}:")
    A(f"""
    s_cmp_ge_u32 s2, 256
    s_cbranch_scc1 K_END
    s_load_dwordx16 s[64:79], s[0:1], 0
    s_load_dwordx4 s[80:83], s[0:1], 64
    s_memrealtime {s(sTS,2)}
    s_getreg_b32 {s(sXCC)}, hwreg(HW_REG_XCC_ID, 0, 4)
    v_lshrrev_b32 v1, 6, v0
    v_and_b32 v0, 63, v0
    v_readfirstlane_b32 {s(sW8)}, v1
    s_and_b32 {s(sXCD)}, s2, 7
    s_lshr_b32 {s(sIDX)}, s2, 3
    s_lshr_b32 {s(sRBL)}, {s(sIDX)}, 3
    s_and_b32 {s(sCB)}, {s(sIDX)}, 7
    s_lshl_b32 {s(sRB)}, {s(sXCD)}, 2
    s_add_u32 {s(sRB)}, {s(sRB)}, {s(sRBL)}
    s_and_b32 {s(sM)}, {s(sIDX)}, 15
    s_lshr_b32 {s(sG)}, {s(sRB)}, 1
    s_mov_b32 {s(sONE)}, 0x3f803f80
    s_and_b32 {s(sW)}, {s(sW8)}, 3
    s_cmp_lt_u32 {s(sW8)}, 4
    s_cbranch_scc1 PROG_A
    """)
    def pad(G):
        if not G.probed: return
        A(f"s_add_u32 s36, s36, 4000")
        A.label(G.pfx + "PADL")
        A(f"""
        s_memrealtime s[50:51]
        s_waitcnt lgkmcnt(0)
        s_sub_u32 s50, s50, s36
        s_cmp_lt_i32 s50, 0
        s_cbranch_scc1 {G.pfx}PADL
        """)
    GB = Gen(cfg, A, "B_"); prog_b(GB); pad(GB)
    A("s_endpgm")
    A.label("PROG_A")
    GA = Gen(cfg, A, "A_"); prog_a(GA); pad(GA)
    A.label("K_END")
    A("s_endpgm")
    assert GA.bars == GB.bars, (GA.bars, GB.bars)
    A.raw('.section .rodata,"a"\n.p2align 6')
    A.raw(f""".amdhsa_kernel {n}
  .amdhsa_next_free_vgpr 256
  .amdhsa_next_free_sgpr 102
  .amdhsa_accum_offset 256
  .amdhsa_group_segment_fixed_size 0
  .amdhsa_kernarg_size 80
  .amdhsa_user_sgpr_count 2
  .amdhsa_user_sgpr_kernarg_segment_ptr 1
  .amdhsa_system_sgpr_workgroup_id_x 1
.end_amdhsa_kernel""")
    open(path, 'w').write(A.finalize())
    print("barriers:", len(GA.bars)); print("stampsA:", GA.names); print("stampsB:", GB.names)

if __name__ == '__main__':
    cfg = Cfg()
    for a_ in sys.argv[2:]:
        k, val = a_.split('=')
        setattr(cfg, k, val if k == 'probe' else int(val))
    main(sys.argv[1], cfg)
```

```python
import sys, re
from asmlib import *
import layout as L

NAME = "sequential_preLN__sliding_local_dilated__glu_gated_reglu__prompt"
HDR = open('cdna_kernels/' + NAME + '.s.ref').read().split('; Override launch')[0]

class Cfg:
    stamps = 0
    probe = ''
    force_slow = 0
    touch = 0
    skew = 6
    pre2 = 7
    gap = 64
    prioA = 0
    prioB = 0
    wd_early = 1
    fine = 0
    skipwd = 1
    nb0 = 2
    pretouch = 1
    hht = 16
    tlb = 0
    ramp = 3
    wd0 = 3
    ndma = 9
    ndma7 = 4
    rotm = 1
    rots = 2
    abl = 0
    bflush = 5
    gapB = 32
    npf = 2
    l345 = 2

SX, SW1, SWO, SWD, SOUT, SWS, SDBG, SMU, sST = 4, 8, 12, 16, 20, 24, 28, 32, 36
sXCD, sIDX, sRBL, sCB, sW, sG, sRB, sM = 40, 41, 42, 43, 44, 45, 46, 47
sONE, sMODE = 48, 49
sT0, sT1, sT2, sT3, sT4, sT5 = 50, 51, 52, 53, 54, 55
sB0, sCNT = 56, 57
sEXH = 58
sMX, sMH, sMW, sSX = 60, 61, 62, 63
sKO = 64
sMWL, sB1 = 86, 87
sROT3, sW3S, sW3G, sA3, sWB, sO0, sO1 = 88, 89, 90, 91, 92, 93, 94
sXCC = 95
sTS = 96
sTB, sTB1, sW8, sSW = 98, 99, 100, 101
sMW0 = 3
sR2, sW1K = 98, 99

class Gen:
    def __init__(self, cfg, A, pfx):
        self.A = A; self.cfg = cfg; self.pfx = pfx
        self.vm = 0; self.tags = {}; self.nstamp = 0; self.names = []
        self.t = 0; self.tm = 0; self.nv = 0
        self.q = []; self.cur = []; self.inbg = False; self.bg_on = True
        self.lg = 0; self.ldone = 0; self.lpend = {}; self.vdone = 0; self.vpend = {}
        self.bars = []
        self.dummy = None
        self.probed = False
        self.sv = (253, 254)
    def _autowait(self, ins):
        regs = [r for r in list(ins.rd) + list(ins.wr) if r[0] in 'va']
        nl = max([self.lpend.get(r, 0) for r in regs] + [0])
        nvm = max([self.vpend.get(r, 0) for r in regs] + [0])
        parts = []
        if nvm > self.vdone:
            parts.append(f"vmcnt({min(self.vm - nvm, 63)})"); self.vdone = nvm
        if nl > self.ldone:
            parts.append(f"lgkmcnt({min(self.lg - nl, 15)})"); self.ldone = nl
        if parts:
            self.A("s_waitcnt " + " ".join(parts)); self.t += 4
    def _note_wait(self, ln):
        m = re.search(r'vmcnt\((\d+)\)', ln)
        if m: self.vdone = max(self.vdone, self.vm - int(m.group(1)))
        m = re.search(r'lgkmcnt\((\d+)\)', ln)
        if m: self.ldone = max(self.ldone, self.lg - int(m.group(1)))
    def lwait_all(self):
        if self.ldone < self.lg: self._emit("s_waitcnt lgkmcnt(0)")
    def lwait(self, idx):
        if self.ldone < idx: self._emit(f"s_waitcnt lgkmcnt({min(self.lg - idx, 15)})")
    def _emit(self, ln):
        ins = Ins(ln)
        if ins.cls in ('valu', 'mfma', 'lds', 'vmem'): self._autowait(ins)
        self.A(ln)
        op = ins.op
        if op == 's_waitcnt': self._note_wait(ln)
        if ins.cls == 'lds':
            self.lg += 1
            for r in ins.wr: self.lpend[r] = self.lg
        if ins.cls == 'vmem':
            for r in ins.wr:
                if r != self.dummy: self.vpend[r] = self.vm + 1
        if op.startswith('v_mfma'):
            st = max(self.t, self.tm); self.t = st + 8; self.tm = st + (32 if '32x32' in op else 16)
        elif ins.cls == 'vmem':
            self.vm += 1
            self.t = max(self.t, self.nv) + 8; self.nv = self.t + (self.cfg.gapB if self.pfx == 'B_' else self.cfg.gap)
        elif ins.cls == 'lds': self.t += 10
        else: self.t += 4
    def __call__(self, t):
        for ln in t.strip().split('\n'):
            ln = ln.strip()
            if ln: self._emit(ln)
        self.pump()
    def _next(self):
        while not self.cur and self.q: self.cur = list(self.q.pop(0))
        return self.cur.pop(0) if self.cur else None
    def _has(self): return bool(self.cur) or any(self.q)
    def _one(self):
        it = self._next()
        self.inbg = True
        self.item(it)
        while self.cur and isinstance(self.cur[0], tuple) and self.cur[0][0] == 'TAG': self.item(self.cur.pop(0))
        self.inbg = False
    def pump(self):
        if self.inbg or not self.bg_on: return
        while self._has() and self.t >= self.nv: self._one()
    def bg(self, group): self.q.append(list(group))
    def flush(self, tag=None):
        while self._has() and (tag is None or tag not in self.tags): self._one()
    def tag(self, name): self.tags[name] = self.vm
    def wait_tag(self, name):
        if name not in self.tags: self.flush(name)
        if self.tags[name] <= self.vdone: return
        self._emit(f"s_waitcnt vmcnt({min(self.vm - self.tags[name], 63)})")
    def bar(self, name):
        if self.cfg.fine and name.startswith({1: 'c', 2: 'zz', 3: 'p3_', 4: 'p4_'}[self.cfg.fine]): self.stamp('@' + name)
        self.bars.append(name); self._emit("s_barrier"); self.nv = self.t
        if self.cfg.fine == 3 and name.startswith('p3_') and self.pfx == 'A_': self.stamp('>' + name)
    def asyncA(self):
        self.bsync('svcA')
    def bsync(self, name):
        off = CNT + {'wo': 0, 'red4': 4, 'red4a': 8}[name]
        self.bg_on = False
        self(f"""
        v_mov_b32 v2, {off}
        v_mov_b32 v3, 1
        s_mov_b64 exec, 1
        ds_add_u32 v2, v3
        s_mov_b64 exec, -1
        s_mov_b32 {s(sCNT)}, 0
        """)
        self.A.label("BS_" + name)
        self.A(f"""
        ds_read_b32 v3, v2
        s_add_u32 {s(sCNT)}, {s(sCNT)}, 1
        s_waitcnt lgkmcnt(0)
        v_readfirstlane_b32 {s(sT5)}, v3
        s_cmp_ge_u32 {s(sCNT)}, 0x100000
        s_cbranch_scc1 BS_{name}_D
        s_cmp_lt_u32 {s(sT5)}, 4
        s_cbranch_scc1 BS_{name}
        """)
        self.A.label(f"BS_{name}_D")
        self.ldone = self.lg
        self.bg_on = True
    def items(self, lst):
        for it in lst: self.item(it)
    def stamp(self, name=''):
        if self.cfg.probe == self.pfx + name:
            self(f"s_memrealtime s[36:37]\ns_waitcnt lgkmcnt(0)"); self.probed = True
        if not self.cfg.stamps: return
        i = self.nstamp; self.nstamp += 1; self.names.append(name)
        on = self.bg_on; self.bg_on = False
        self(f"""
        {'s_memtime' if self.cfg.stamps == 2 else 's_memrealtime'} {s(sTS,2)}
        s_waitcnt lgkmcnt(0)
        v_writelane_b32 v{self.vS}, {s(sTS)}, {i}
        """)
        self.bg_on = on
        if name == 'end':
            self(f"""
            v_lshlrev_b32 v2, 3, v0
            v_mov_b32 v4, v{self.vS}
            v_mov_b32 v5, 0
            v_cmp_gt_u32 vcc, 32, v0
            s_and_b64 exec, exec, vcc
            buffer_store_dwordx2 v[4:5], v2, {s(sST,4)}, 0 offen
            s_mov_b64 exec, -1
            """)
    def item(self, it):
        if isinstance(it, tuple):
            if it[0] == 'WAIT': self.wait_tag(it[1])
            elif it[0] == 'TAG': self.tag(it[1])
            elif it[0] == 'BG': self.bg(it[1])
            elif it[0] == 'BAR': self.lwait_all(); self.bar(it[1])
            elif it[0] == 'BSYNC': self.bsync(it[1])
        else: self(it)
    def spread(self, main, fill):
        n, m = len(main), len(fill); fi = 0
        for i, x in enumerate(main):
            self(x)
            while fi < m and fi * n < (i + 1) * m:
                self.item(fill[fi]); fi += 1
        while fi < m: self.item(fill[fi]); fi += 1
    def front(self, main, fill, per=1):
        fi = 0
        for x in main:
            self(x)
            for _ in range(per):
                if fi < len(fill): self.item(fill[fi]); fi += 1
        while fi < len(fill): self.item(fill[fi]); fi += 1

XCH = 10240
WRING = 8 * XCH
WSLOT = 24576
S0, S1, S2 = WRING, WRING + WSLOT, WRING + 2 * WSLOT
STATS1 = WRING + 3 * WSLOT
STATS3 = STATS1 + 1024
CSX = STATS3 + 1024
WDT = 49152
HHS = 88 * 1024
RING4 = 49152
LDS_TOTAL = 163840
SG_OFF = L.FL_OFF + 2048
CNT = STATS1 + 1000
STG = STATS1 + 896
vL = 0

def srd(dst, src, size):
    return f"""
    s_mov_b32 {s(dst)}, {s(src)}
    s_and_b32 {s(dst+1)}, {s(src+1)}, 0xffff
    s_mov_b32 {s(dst+2)}, {size}
    s_mov_b32 {s(dst+3)}, 0x20000
    """
def common_srds(cfg):
    t = f"""
    s_mul_i32 {s(sT0)}, {s(sG)}, {L.GSTRIDE}
    s_add_u32 {s(SWS)}, s82, {s(sT0)}
    s_addc_u32 {s(SWS+1)}, s83, 0
    s_and_b32 {s(SWS+1)}, {s(SWS+1)}, 0xffff
    s_mov_b32 {s(SWS+2)}, {L.GSTRIDE}
    s_mov_b32 {s(SWS+3)}, 0x20000
    s_bitcmp1_b32 {s(sW)}, 0
    s_cselect_b32 {s(SMU)}, s74, s72
    s_cselect_b32 {s(SMU+1)}, s75, s73
    s_and_b32 {s(SMU+1)}, {s(SMU+1)}, 0xffff
    s_cmp_eq_u32 {s(sM)}, 15
    s_cselect_b32 {s(SMU+2)}, 0, {512*2752}
    s_mov_b32 {s(SMU+3)}, 0x20000
    """ + srd(SDBG, 80, 256)
    if cfg.stamps:
        t += f"""
        s_lshl_b32 {s(sT0)}, s2, 11
        s_lshl_b32 {s(sT1)}, {s(sW8)}, 8
        s_add_u32 {s(sT0)}, {s(sT0)}, {s(sT1)}
        s_add_u32 {s(sT0)}, {s(sT0)}, {L.STAMP_OFF}
        s_add_u32 {s(sST)}, s82, {s(sT0)}
        s_addc_u32 {s(sST+1)}, s83, 0
        s_and_b32 {s(sST+1)}, {s(sST+1)}, 0xffff
        s_mov_b32 {s(sST+2)}, 256
        s_mov_b32 {s(sST+3)}, 0x20000
        """
    return t

def stores(G, lst, label):
    A = G.A; label = G.pfx + label
    for x in lst: G._autowait(Ins(x))
    A(f"""
    s_cmp_lg_u32 {s(sMODE)}, 0
    s_cbranch_scc1 {label}_SLOW
    """)
    for x in lst: A(x)
    A(f"s_branch {label}_DONE")
    A.label(f"{label}_SLOW")
    for x in lst: A((x + " sc1") if x.startswith('buffer_store') else x)
    A.label(f"{label}_DONE")
    G.vm += sum(1 for x in lst if x.startswith('buffer_'))

def signal(G, phase, vFE):
    G.bg_on = False
    G(f"""
    v_add_u32 v2, {phase}, {v(vFE)}
    v_mov_b32 v3, {v(vFE+1)}
    s_lshl_b32 {s(sT0)}, {s(sM)}, 2
    s_add_u32 {s(sT0)}, {s(sT0)}, {s(sW)}
    s_lshl_b32 {s(sT0)}, {s(sT0)}, 3
    s_add_u32 {s(sT0)}, {s(sT0)}, {L.FL_OFF + phase*512}
    v_mov_b32 v4, {s(sT0)}
    s_waitcnt vmcnt(0)
    s_mov_b64 exec, 1
    """)
    stores(G, [f"buffer_store_dwordx2 v[2:3], v4, {s(SWS,4)}, 0 offen"], f"SIG{phase}")
    G.bg_on = True; G.nv = G.t
    G("s_mov_b64 exec, -1")

def poll(G, phase, vFE):
    A = G.A
    if phase == 0:
        A(f"""
        v_and_b32 v4, 31, v0
        s_and_b32 {s(sT0)}, {s(sM)}, 8
        s_lshl_b32 {s(sT0)}, {s(sT0)}, 2
        v_add_u32 v4, {s(sT0)}, v4
        v_lshlrev_b32 v4, 3, v4
        """)
    else:
        A("v_lshlrev_b32 v4, 3, v0")
    A(f"""
    v_add_u32 v2, {phase}, {v(vFE)}
    v_mov_b32 v3, {v(vFE+1)}
    s_mov_b32 {s(sCNT)}, 0
    s_mov_b32 {s(sT0)}, {L.FL_OFF + phase*512}
    """)
    A.label(f"POLL{phase}")
    A(f"""
    buffer_load_dwordx2 v[6:7], v4, {s(SWS,4)}, {s(sT0)} offen sc1
    s_add_u32 {s(sCNT)}, {s(sCNT)}, 1
    s_waitcnt vmcnt(0)
    v_cmp_ne_u64 vcc, v[6:7], v[2:3]
    s_cmp_ge_u32 {s(sCNT)}, 20000
    s_cbranch_scc1 POLL{phase}_DONE
    s_cbranch_vccnz POLL{phase}
    """)
    A.label(f"POLL{phase}_DONE")
    G.vdone = G.vm; G.nv = G.t

def regdecode(G, vFE, vaddr):
    A = G.A; p = G.pfx
    G._autowait(Ins(f"v_mov_b32 {v(vFE)}, {v(vFE+1)}"))
    G(f"s_mov_b32 {s(sCNT)}, 0")
    A.label(p + "REGPOLL")
    A(f"""
    v_readfirstlane_b32 {s(sT0)}, {v(vFE)}
    v_readfirstlane_b32 {s(sT1)}, {v(vFE+1)}
    s_and_b32 {s(sT2)}, {s(sT0)}, 31
    s_cmp_eq_u32 {s(sT2)}, 16
    s_cbranch_scc1 {p}REGOK
    s_add_u32 {s(sCNT)}, {s(sCNT)}, 1
    s_cmp_ge_u32 {s(sCNT)}, 20000
    s_cbranch_scc1 {p}REGOK
    buffer_load_dwordx2 {v(vFE,2)}, {v(vaddr)}, {s(SDBG,4)}, 0 offen offset:128 sc1
    s_waitcnt vmcnt(0)
    s_branch {p}REGPOLL
    """)
    A.label(p + "REGOK")
    G(f"""
    s_bfe_u32 {s(sT2)}, {s(sT0)}, {5 | (7 << 16)}
    s_bfe_u32 {s(sT3)}, {s(sT0)}, {12 | (10 << 16)}
    s_mul_i32 {s(sT2)}, {s(sT2)}, {s(sT2)}
    s_lshl_b32 {s(sT3)}, {s(sT3)}, 4
    s_cmp_lg_u32 {s(sT2)}, {s(sT3)}
    s_cselect_b32 {s(sMODE)}, 1, {1 if G.cfg.force_slow else 0}
    s_and_b32 {s(sT0)}, {s(sT0)}, 0xffc00000
    s_or_b32 {s(sT0)}, {s(sT0)}, 0x5a5a0
    v_mov_b32 {v(vFE)}, {s(sT0)}
    v_mov_b32 {v(vFE+1)}, {s(sT1)}
    """)

def lch(l): return ((l >> 1) & 1) * 4 + (l >> 2) * 2 + (l & 1)
def w3_setup(vP3, t0, t1, t2):
    out = f"""
    s_mul_i32 {s(sT0)}, {s(sM)}, 192
    s_mov_b32 {s(sT1)}, 0x15555556
    s_and_b32 {s(sT2)}, {s(sW)}, 1
    s_lshr_b32 {s(sT4)}, {s(sW)}, 1
    s_mul_i32 {s(sW3S)}, {s(sT2)}, 12288
    s_mul_i32 {s(sT5)}, {s(sT4)}, 6144
    s_add_u32 {s(sW3S)}, {s(sW3S)}, {s(sT5)}
    s_mul_i32 {s(sW3G)}, {s(sT4)}, {32*2752}
    s_and_b32 {s(sROT3)}, {s(sG)}, 1
    s_lshl_b32 {s(sROT3)}, {s(sROT3)}, 2
    s_lshl_b32 {s(sT2)}, {s(sT2)}, 1
    """
    for i in range(3):
        out += f"""
        v_add_u32 {v(t0)}, {64*i}, {v(vL)}
        v_mul_hi_u32 {v(t1)}, {v(t0)}, {s(sT1)}
        v_mul_u32_u24 {v(t2)}, 12, {v(t1)}
        v_sub_u32 {v(t2)}, {v(t0)}, {v(t2)}
        v_mul_u32_u24 {v(t1)}, 2752, {v(t1)}
        v_add_u32 {v(t1)}, {s(sT0)}, {v(t1)}
        v_subrev_u32 {v(t1)}, {1024*i}, {v(t1)}
        v_subrev_u32 {v(t2)}, {s(sT2)}, {v(t2)}
        v_add_u32 {v(t0)}, 12, {v(t2)}
        v_cmp_gt_i32 vcc, 0, {v(t2)}
        v_cndmask_b32 {v(t2)}, {v(t2)}, {v(t0)}, vcc
        v_lshl_add_u32 {v(vP3+i)}, {v(t2)}, 4, {v(t1)}
        """
    return out
def w3_dma(c, base, vP3):
    g = [f"""
    s_xor_b32 {s(sB0)}, {s(sROT3)}, {lch(c)}
    s_mul_i32 {s(sB0)}, {s(sB0)}, {64*2752}
    s_add_u32 {s(sB0)}, {s(sB0)}, {s(sW3G)}
    s_add_u32 m0, {s(sW3S)}, {base}
    s_add_u32 {s(sB1)}, {s(sB0)}, {16*2752}
    buffer_load_dwordx4 {v(vP3+0)}, {s(SMU,4)}, {s(sB0)} offen lds
    """]
    g.append(f"buffer_load_dwordx4 {v(vP3+1)}, {s(SMU,4)}, {s(sB0)} offen offset:1024 lds")
    g.append(f"buffer_load_dwordx4 {v(vP3+2)}, {s(SMU,4)}, {s(sB0)} offen offset:2048 lds")
    g.append(f"""
    s_add_u32 m0, {s(sW3S)}, {base + 3072}
    s_nop 0
    buffer_load_dwordx4 {v(vP3+0)}, {s(SMU,4)}, {s(sB1)} offen lds
    """)
    g.append(f"buffer_load_dwordx4 {v(vP3+1)}, {s(SMU,4)}, {s(sB1)} offen offset:1024 lds")
    g.append(f"buffer_load_dwordx4 {v(vP3+2)}, {s(SMU,4)}, {s(sB1)} offen offset:2048 lds")
    g.append(('TAG', f"w3_{c}"))
    return g
def p4_table():
    tb = [f"""
    s_mul_i32 {s(sT0)}, {s(sRBL)}, 11
    s_lshr_b32 {s(sT0)}, {s(sT0)}, 1
    s_lshl_b32 {s(sT0)}, {s(sT0)}, 12
    s_lshl_b32 {s(sT1)}, {s(sW)}, 10
    """]
    for j in range(22):
        tb.append(f"""
        s_add_u32 {s(sKO+j)}, {s(sT0)}, {s(sT1)}
        s_add_u32 {s(sT0)}, {s(sT0)}, 4096
        s_cmp_eq_u32 {s(sT0)}, {22*4096}
        s_cselect_b32 {s(sT0)}, 0, {s(sT0)}
        """)
    return tb
def ks_addr(a_base, tile_stride, vL16, d0, d1):
    return f"""
    s_and_b32 {s(sT1)}, {s(sRB)}, 1
    s_lshl_b32 {s(sT1)}, {s(sT1)}, 1
    s_lshr_b32 {s(sT0)}, {s(sW)}, 1
    s_add_u32 {s(sT2)}, {s(sT1)}, {s(sT0)}
    s_xor_b32 {s(sT1)}, {s(sT2)}, 1
    s_mul_i32 {s(sT1)}, {s(sT1)}, {tile_stride}
    s_mul_i32 {s(sT2)}, {s(sT2)}, {tile_stride}
    s_add_u32 {s(sT1)}, {s(sT1)}, {a_base}
    s_add_u32 {s(sT2)}, {s(sT2)}, {a_base}
    v_add_u32 {v(d0)}, {s(sT1)}, {v(vL16)}
    v_add_u32 {v(d1)}, {s(sT2)}, {v(vL16)}
    """
W3SLOT = {0: S2, 1: S0, 2: S1, 3: S2, 4: S0, 5: S1, 6: S2, 7: S0}
W3BAR = {3: 3, 4: 7, 5: 11, 6: 15, 7: 19}
NB4 = 11
PFORD = [2, 3, 4]

def prog_a(G):
    A = G.A; cfg = G.cfg
    t0, t1, t2, t3, t4 = 1, 2, 3, 4, 5
    vXa0, vXa1, vWa, vS1, vS2, vOA, vRA = 8, 9, 10, 11, 12, 13, 14
    FA, FB = 16, 48
    ACC = 80
    vL16, vFE, vW3o, vW3s, vA01, vA23, vP3 = 148, 150, 149, 152, 153, 154, 155
    BIAS = 160
    G.sv = (158, 146); G.vS = 159
    Qa = lambda T: ACC + 4 * T
    Ka = lambda T: ACC + 20 + 4 * T
    Va = lambda T: ACC + 40 + 4 * T
    if cfg.prioA: G(f"s_setprio {cfg.prioA}")
    G(f"""
    v_lshlrev_b32 {v(vL16)}, 4, v0
    s_mul_i32 {s(sT0)}, {s(sCB)}, 10
    s_mul_i32 {s(sT1)}, {s(sW)}, 3
    s_add_u32 {s(sT0)}, {s(sT0)}, {s(sT1)}
    s_lshl_b32 {s(sT5)}, {s(sRB)}, 6
    s_mov_b32 {s(SX+2)}, {2048*1024}
    s_mov_b32 {s(SX+3)}, 0x20000
    """)
    for k in range(3):
        G(f"""
        s_add_u32 {s(sT1)}, {s(sT0)}, {k}
        s_min_u32 {s(sT1)}, {s(sT1)}, 79
        s_and_b32 {s(sT2)}, {s(sT1)}, 15
        s_lshr_b32 {s(sT3)}, {s(sT1)}, 5
        s_lshl_b32 {s(sT3)}, {s(sT3)}, 5
        s_lshl_b32 {s(sT4)}, {s(sT2)}, 1
        s_add_u32 {s(sT3)}, {s(sT3)}, {s(sT4)}
        s_bfe_u32 {s(sT4)}, {s(sT1)}, {4 | (1 << 16)}
        s_add_u32 {s(sT3)}, {s(sT3)}, {s(sT4)}
        s_add_u32 {s(sT3)}, {s(sT3)}, {s(sT5)}
        s_add_u32 {s(sT2)}, {s(sT2)}, {s(sT5)}
        s_sub_i32 {s(sT2)}, {s(sT2)}, 16
        s_max_i32 {s(sT2)}, {s(sT2)}, 0
        s_cmp_ge_u32 {s(sT1)}, 64
        s_cselect_b32 {s(sT3)}, {s(sT2)}, {s(sT3)}
        s_lshl_b32 {s(sMX+k)}, {s(sT3)}, 10
        """)
    XS = 208
    G(f"""
    s_waitcnt lgkmcnt(0)
    s_mov_b32 {s(SX)}, s64
    s_and_b32 {s(SX+1)}, s65, 0xffff
    buffer_load_dwordx4 {v(XS,4)}, {v(vL16)}, {s(SX,4)}, {s(sMX)} offen
    buffer_load_dwordx4 {v(XS+4,4)}, {v(vL16)}, {s(SX,4)}, {s(sMX+1)} offen
    buffer_load_dwordx4 {v(XS+8,4)}, {v(vL16)}, {s(SX,4)}, {s(sMX+2)} offen
    v_lshrrev_b32 {v(t2)}, 4, {v(vL)}
    v_and_b32 {v(t0)}, 15, {v(vL)}
    v_lshrrev_b32 {v(t1)}, 1, {v(t0)}
    v_xor_b32 {v(t1)}, {v(t1)}, {v(t2)}
    v_lshlrev_b32 {v(t1)}, 4, {v(t1)}
    v_lshl_add_u32 {v(vXa0)}, {v(t0)}, 7, {v(t1)}
    v_xor_b32 {v(vXa1)}, 64, {v(vXa0)}
    v_mul_u32_u24 {v(vWa)}, 3072, {v(t2)}
    v_bfe_u32 {v(t1)}, {v(vL)}, 2, 2
    v_lshl_add_u32 {v(vWa)}, {v(t1)}, 7, {v(vWa)}
    v_lshrrev_b32 {v(t1)}, 1, {v(t1)}
    v_and_b32 {v(t3)}, 1, {v(t2)}
    v_lshl_or_b32 {v(t1)}, {v(t3)}, 1, {v(t1)}
    v_xor_b32 {v(t1)}, {s(sW)}, {v(t1)}
    v_lshl_add_u32 {v(vWa)}, {v(t1)}, 5, {v(vWa)}
    v_and_b32 {v(t1)}, 3, {v(vL)}
    v_lshl_add_u32 {v(vWa)}, {v(t1)}, 3, {v(vWa)}
    v_add_u32 {v(vWa)}, {WRING}, {v(vWa)}
    v_lshlrev_b32 {v(vS1)}, 2, {v(t0)}
    v_add_u32 {v(vS1)}, {STATS1}, {v(vS1)}
    v_lshlrev_b32 {v(vS2)}, 4, {v(t2)}
    v_add_u32 {v(vS2)}, {STATS1}, {v(vS2)}
    v_lshrrev_b32 {v(t1)}, 3, {v(vL)}
    v_mul_u32_u24 {v(t1)}, {XCH}, {v(t1)}
    v_and_b32 {v(t3)}, 7, {v(vL)}
    v_lshl_add_u32 {v(t1)}, {v(t3)}, 4, {v(t1)}
    v_mov_b32 {v(FA)}, {s(sONE)}
    v_mov_b32 {v(FA+1)}, {s(sONE)}
    v_mov_b32 {v(FA+2)}, {s(sONE)}
    v_mov_b32 {v(FA+3)}, {s(sONE)}
    ds_write_b128 {v(t1)}, {v(FA,4)} offset:8192
    """)
    NEG = "0xf149f2ca"
    G(f"""
    v_mov_b32 {v(t4)}, {NEG}
    v_lshlrev_b32 {v(t1)}, 2, {v(t2)}
    v_sub_u32 {v(t3)}, {v(t0)}, {v(t1)}
    """)
    for r in range(4):
        G(f"""
        v_subrev_u32 {v(t1)}, {r}, {v(t3)}
        v_cmp_ge_u32 vcc, 7, {v(t1)}
        v_cmp_ge_i32 {s(sT4,2)}, -9, {v(t1)}
        v_cndmask_b32 {v(BIAS+r)}, {v(t4)}, 0, vcc
        v_cndmask_b32 {v(BIAS+4+r)}, {v(t4)}, 0, {s(sT4,2)}
        """)
    G(f"""
    s_cmp_eq_u32 {s(sRB)}, 0
    s_cselect_b32 {s(sT0)}, 64, 2
    v_lshlrev_b32 {v(t1)}, 2, {v(t2)}
    v_lshlrev_b32 {v(t3)}, 1, {v(t0)}
    v_sub_u32 {v(t3)}, {v(t1)}, {v(t3)}
    v_subrev_u32 {v(t3)}, {s(sT0)}, {v(t3)}
    v_cmp_le_i32 vcc, 0, {v(t3)}
    v_cmp_le_i32 {s(sT4,2)}, -2, {v(t3)}
    v_mov_b32 {v(BIAS+9)}, {v(t4)}
    v_mov_b32 {v(BIAS+11)}, {v(t4)}
    v_mov_b32 {v(BIAS+12)}, {v(t4)}
    v_mov_b32 {v(BIAS+14)}, {v(t4)}
    v_cndmask_b32 {v(BIAS+8)}, {v(t4)}, 0, vcc
    v_cndmask_b32 {v(BIAS+10)}, {v(t4)}, 0, {s(sT4,2)}
    v_cndmask_b32 {v(BIAS+13)}, {v(t4)}, 0, vcc
    v_cndmask_b32 {v(BIAS+15)}, {v(t4)}, 0, {s(sT4,2)}
    s_waitcnt lgkmcnt(0)
    """)
    G(common_srds(cfg))
    if cfg.tlb:
        G.dummy = ('v', 147)
        G(srd(SWO, 68, 512*1024) + srd(SWD, 76, 1376*1024) + srd(SOUT, 78, 2048*1024) + srd(SW1, 66, 512*3072))
        G(f"""
        v_lshlrev_b32 v2, {cfg.tlb}, v0
        s_lshl_b32 {s(sT0)}, {s(sRB)}, 16
        v_min_u32 v3, {L.GSTRIDE - 4}, v2
        v_and_b32 v3, {(~((1 << cfg.tlb) - 1)) & 0xffffffff}, v3
        buffer_load_dword v147, v2, {s(SMU,4)}, 0 offen
        buffer_load_dword v147, v2, {s(SWD,4)}, 0 offen
        buffer_load_dword v147, v2, {s(SWO,4)}, 0 offen
        buffer_load_dword v147, v2, {s(SW1,4)}, 0 offen
        v_mov_b32 v4, 0
        buffer_load_dword v147, v4, {s(SOUT,4)}, {s(sT0)} offen
        buffer_load_dword v147, v4, {s(SWS,4)}, 0 offen
        v_mov_b32 v4, {L.GSTRIDE - 4096}
        buffer_load_dword v147, v4, {s(SWS,4)}, 0 offen
        """)
    G.stamp('start')
    G(f"""
    s_and_b32 {s(sO0)}, {s(sRB)}, 1
    s_lshl_b32 {s(sO0)}, {s(sO0)}, 16
    s_lshl_b32 {s(sT1)}, {s(sCB)}, 12
    s_add_u32 {s(sO0)}, {s(sO0)}, {s(sT1)}
    s_lshl_b32 {s(sT1)}, {s(sW)}, 10
    s_add_u32 {s(sO0)}, {s(sO0)}, {s(sT1)}
    s_add_u32 {s(sO0)}, {s(sO0)}, {L.O_OFF}
    s_add_u32 {s(sO1)}, {s(sO0)}, 32768
    v_and_b32 {v(vOA)}, 15, v0
    v_bfe_u32 v3, v0, 4, 1
    v_lshl_add_u32 {v(vOA)}, v3, 5, {v(vOA)}
    v_lshrrev_b32 v3, 5, v0
    v_lshl_add_u32 {v(vOA)}, v3, 4, {v(vOA)}
    v_lshlrev_b32 {v(vOA)}, 4, {v(vOA)}
    s_lshl_b32 {s(sT0)}, {s(sG)}, 3
    v_mov_b32 {v(vRA)}, {s(sT0)}
    """)
    SA = 224
    G0 = G; stat = []
    G = lambda t: stat.extend(x.strip() for x in t.strip().split('\n') if x.strip())
    for i in range(3): G(f"v_mov_b64 {v(SA+2*i,2)}, 0")
    for j in range(4):
        for k in range(3):
            G(f"v_dot2c_f32_bf16 {v(SA+2*k)}, {s(sONE)}, {v(XS+4*k+j)}\nv_dot2c_f32_bf16 {v(SA+2*k+1)}, {v(XS+4*k+j)}, {v(XS+4*k+j)}")
    for dpp in ("quad_perm:[1,0,3,2]", "quad_perm:[2,3,0,1]", "row_half_mirror", "row_mirror"):
        for i in range(6): G(f"v_add_f32_dpp {v(SA+i)}, {v(SA+i)}, {v(SA+i)} {dpp} row_mask:0xf bank_mask:0xf")
    for sw in ("v_permlane16_swap_b32", "v_permlane32_swap_b32"):
        for i in range(6): G(f"v_mov_b32 {v(SA+8+i)}, {v(SA+i)}")
        for i in range(6): G(f"{sw} {v(SA+i)}, {v(SA+8+i)}")
        for i in range(6): G(f"v_add_f32 {v(SA+i)}, {v(SA+i)}, {v(SA+8+i)}")
    for i in range(6): G(f"v_mul_f32 {v(SA+i)}, 0x3b000000, {v(SA+i)}")
    for k in range(3): G(f"v_fma_f32 {v(SA+2*k+1)}, -{v(SA+2*k)}, {v(SA+2*k)}, {v(SA+2*k+1)}")
    for k in range(3): G(f"v_max_f32 {v(SA+2*k+1)}, 0, {v(SA+2*k+1)}")
    for k in range(3): G(f"v_add_f32 {v(SA+2*k+1)}, 0x3727c5ac, {v(SA+2*k+1)}")
    for k in range(3): G(f"v_rsq_f32 {v(SA+2*k+1)}, {v(SA+2*k+1)}")
    G(f"""
    s_mul_i32 {s(sT0)}, {s(sW)}, 24
    s_add_u32 {s(sT0)}, {s(sT0)}, {STG}
    v_mov_b32 v2, {s(sT0)}
    """)
    for k in range(3): G(f"v_mul_f32 {v(SA+2*k)}, -{v(SA+2*k)}, {v(SA+2*k+1)}")
    for k in range(3): G(f"ds_write_b64 v2, {v(SA+2*k,2)} offset:{8*k}")
    G = G0
    K2 = [60, 61, 62, 63, 86, 58, 59, 101]
    G(f"""
    s_lshl_b32 {s(sR2)}, {s(sRBL)}, 13
    s_lshl_b32 {s(sW1K)}, {s(sW)}, 10
    s_and_b32 {s(sA3)}, {s(sRB)}, 1
    s_lshl_b32 {s(sA3)}, {s(sA3)}, 16
    s_add_u32 {s(sA3)}, {s(sA3)}, {L.O_OFF}
    """)
    for j in range(8):
        G(f"""
        s_add_u32 {s(K2[j])}, {s(sR2)}, {j*4096}
        s_and_b32 {s(K2[j])}, {s(K2[j])}, 32767
        s_add_u32 {s(K2[j])}, {s(K2[j])}, {s(sW1K)}
        """)
    if cfg.pretouch:
        G.dummy = ('v', 147)
        G(f"""
        v_lshrrev_b32 v2, 3, v0
        s_cmp_ge_u32 {s(sM)}, 14
        s_cselect_b32 {s(sT0)}, 1, 7
        v_min_u32 v2, {s(sT0)}, v2
        v_and_b32 v3, 7, v0
        v_lshlrev_b32 v3, 7, v3
        v_lshlrev_b32 v4, 15, v2
        v_add_u32 v4, {s(sO0)}, v4
        s_mul_i32 {s(sT0)}, {s(sM)}, 6144
        s_add_u32 {s(sT0)}, {s(sT0)}, {L.HH_OFF - 2*HHS}
        s_add_u32 {s(sT1)}, {s(sT0)}, {s(sW1K)}
        v_mul_u32_u24 v5, {HHS}, v2
        v_add_u32 v6, {s(sT1)}, v5
        v_cmp_gt_u32 vcc, 2, v2
        v_cndmask_b32 v4, v6, v4, vcc
        s_and_b32 {s(sT1)}, {s(sW)}, 1
        s_mul_i32 {s(sT1)}, {s(sT1)}, {2*HHS}
        s_add_u32 {s(sT0)}, {s(sT0)}, {s(sT1)}
        s_lshr_b32 {s(sT1)}, {s(sW)}, 1
        s_lshl_b32 {s(sT1)}, {s(sT1)}, 10
        s_add_u32 {s(sT0)}, {s(sT0)}, {s(sT1)}
        s_add_u32 {s(sT0)}, {s(sT0)}, {(4096 - 4*HHS) & 0xffffffff}
        v_add_u32 v6, {s(sT0)}, v5
        v_cmp_lt_u32 vcc, 5, v2
        v_cndmask_b32 v4, v4, v6, vcc
        v_add_u32 v4, v4, v3
        """)
        if cfg.pretouch == 1: G(f"buffer_load_dword v147, v4, {s(SWS,4)}, 0 offen sc1")
        else:
            G(f"""
            v_mov_b32 v158, v4
            s_mov_b64 exec, 0xffff
            buffer_load_dword v147, v4, {s(SWS,4)}, 0 offen sc1
            s_mov_b64 exec, -1
            """)
    G(f"v_mov_b32 v2, {CNT}\nv_mov_b64 v[4:5], 0\nds_write_b64 v2, v[4:5]\nds_write_b64 v2, v[4:5] offset:8")
    G.lwait_all()
    late = [x.strip() for x in w3_setup(vP3, t0, t1, t2).strip().split('\n') if x.strip()]
    late += [x.strip() for x in (f"""
    s_mov_b32 {s(sT4)}, {S0}
    s_lshl_b32 {s(sT0)}, {s(sW)}, 5
    s_lshr_b32 {s(sT1)}, {s(sW)}, 1
    s_lshl_b32 {s(sT1)}, {s(sT1)}, 5
    s_add_u32 {s(sT1)}, {s(sT1)}, 128
    v_lshrrev_b32 {v(t0)}, 5, {v(vL)}
    v_bfe_u32 {v(t1)}, {v(vL)}, 2, 2
    v_lshl_add_u32 {v(t0)}, {v(t0)}, 4, {v(t1)}
    v_mul_u32_u24 {v(t0)}, 192, {v(t0)}
    v_bfe_u32 {v(t1)}, {v(vL)}, 4, 1
    v_mul_u32_u24 {v(t2)}, 12288, {v(t1)}
    v_add3_u32 {v(t0)}, {v(t0)}, {v(t2)}, {s(sT4)}
    v_and_b32 {v(t2)}, 3, {v(vL)}
    v_lshlrev_b32 {v(t2)}, 3, {v(t2)}
    v_lshl_add_u32 {v(t2)}, {v(t1)}, 5, {v(t2)}
    v_add3_u32 {v(vW3o)}, {v(t0)}, {v(t2)}, {s(sT0)}
    v_add_u32 {v(t2)}, {s(sT1)}, {v(t2)}
    v_subrev_u32 {v(t3)}, 192, {v(t2)}
    v_cmp_le_u32 vcc, 192, {v(t2)}
    v_cndmask_b32 {v(t2)}, {v(t2)}, {v(t3)}, vcc
    v_add_u32 {v(vW3s)}, {v(t0)}, {v(t2)}
    s_and_b32 {s(sT0)}, {s(sW)}, 1
    s_lshl_b32 {s(sT0)}, {s(sT0)}, 13
    v_add_u32 {v(vA01)}, {s(sT0)}, {v(vL16)}
    v_xor_b32 {v(vA23)}, 0x2000, {v(vA01)}
    """).strip().split('\n') if x.strip()]
    late += p4_table()
    def reads(F, kh):
        xs = [f"ds_read_b128 {v(F+4*T,4)}, {v(vXa1 if kh else vXa0)} offset:{T*2048}" for T in range(5)]
        ws = [f"ds_read_b64_tr_b16 {v(F+20+4*sct+2*half,2)}, {v(vWa)} offset:{kh*12288+sct*1024+half*512}" for sct in range(3) for half in range(2)]
        return ws[:2] + xs[:1] + ws[2:4] + xs[1:2] + ws[4:] + xs[2:]
    def mfmas(F, first=False):
        out = []
        for T in range(5):
            x = v(F+4*T, 4)
            c = lambda r: "0" if first else v(r, 4)
            out.append(f"v_mfma_f32_16x16x32_bf16 {v(Qa(T),4)}, {v(F+20,4)}, {x}, {c(Qa(T))}")
            out.append(f"v_mfma_f32_16x16x32_bf16 {v(Ka(T),4)}, {v(F+24,4)}, {x}, {c(Ka(T))}")
            out.append(f"v_mfma_f32_16x16x32_bf16 {v(Va(T),4)}, {x}, {v(F+28,4)}, {c(Va(T))}")
        return out
    def adv(i):
        d = WSLOT if (i + 1) % 3 else (-2 * WSLOT) & 0xffffffff
        return [f"v_add_u32 {v(vWa)}, {d}, {v(vWa)}", f"v_add_u32 {v(vXa0)}, {XCH}, {v(vXa0)}", f"v_add_u32 {v(vXa1)}, {XCH}, {v(vXa1)}"]
    G.bar('c0')
    G.stamp('c0')
    for x in reads(FA, 0): G(x)
    for i in range(8):
        extra = [f"buffer_load_dwordx2 {v(vFE,2)}, {v(vRA)}, {s(SDBG,4)}, 0 offen offset:128 sc1"] if i == 6 else []
        G.front(mfmas(FA, i == 0), reads(FB, 1) + (adv(i) if i < 7 else []) + extra)
        if i < 3:
            k3 = (len(stat) + 2) // 3
            for x in stat[i*k3:(i+1)*k3]: G(x)
        elif i < 7:
            k4 = (len(late) + 3) // 4
            for x in late[(i-3)*k4:(i-2)*k4]: G(x)
        G.lwait_all()
        G.bar(f'c{i+1}' if i < 7 else 'stats')
        LA = 16; LBa = 28; LBb = 208
        if i < 7: G.front(mfmas(FB), reads(FA, 0))
        else:
            sr = [f"ds_read2_b32 {v(LA+2*T,2)}, {v(vS1)} offset0:{T*16} offset1:{T*16+128}" for T in range(5)]
            for T in range(5): sr += [f"ds_read_b128 {v(LBa+4*T,4)}, {v(vS2)} offset:{T*64}", f"ds_read_b128 {v(LBb+4*T,4)}, {v(vS2)} offset:{T*64+512}"]
            m = mfmas(FB)
            G.front(m[12:] + m[:12], sr)
    G.stamp('p1loop')
    G(f"""
    v_add_u32 v8, {s(sA3)}, {v(vL16)}
    v_add_u32 v9, 0x8000, v8
    """)
    CSQ, CSK, CSV = 228, 232, 236
    TMP = 140
    regdecode(G, vFE, vRA)
    for r in range(4):
        G(f"v_mov_b32_dpp {v(CSQ+r)}, {v(Qa(4)+r)} row_newbcast:0 row_mask:0xf bank_mask:0xf")
        G(f"v_mov_b32_dpp {v(CSK+r)}, {v(Ka(4)+r)} row_newbcast:0 row_mask:0xf bank_mask:0xf")
    G(f"""
    v_mov_b32 {v(CSV)}, {v(Va(4))}
    v_mov_b32 {v(CSV+1)}, {v(Va(4))}
    v_permlane16_swap_b32 {v(CSV)}, {v(CSV+1)}
    v_mov_b32 {v(CSV+1)}, {v(CSV)}
    v_permlane32_swap_b32 {v(CSV)}, {v(CSV+1)}
    v_mov_b32 {v(CSV+1)}, {v(CSV)}
    """)
    QP = 176; KP = 184; VP = 196
    vpos = {2: 0, 0: 2, 4: 4, 1: 6, 3: 8}
    def norm_qk(acc, cs, T, dst, tmp):
        ab = v(LA+2*T, 2)
        for hlf in range(2): G(f"v_pk_mul_f32 {v(tmp+2*hlf,2)}, {v(cs+2*hlf,2)}, {ab} op_sel:[0,1] op_sel_hi:[1,1]")
        for hlf in range(2): G(f"v_pk_fma_f32 {v(acc+2*hlf,2)}, {v(acc+2*hlf,2)}, {ab}, {v(tmp+2*hlf,2)} op_sel:[0,0,0] op_sel_hi:[1,0,1]")
        for hlf in range(2): G(f"v_cvt_pk_bf16_f32 {v(dst+hlf)}, {v(acc+2*hlf)}, {v(acc+2*hlf+1)}")
    for T in (4, 0, 1, 2, 3):
        norm_qk(Ka(T), CSK, T, KP+2*T, TMP)
        if T < 4: norm_qk(Qa(T), CSQ, T, QP+2*T, 240)
    for T in range(5):
        acc = Va(T); tmp = TMP if T & 1 else 240
        for hlf in range(2): G(f"v_pk_mul_f32 {v(tmp+2*hlf,2)}, {v(LBb+4*T+2*hlf,2)}, {v(CSV,2)}")
        for hlf in range(2): G(f"v_pk_fma_f32 {v(acc+2*hlf,2)}, {v(acc+2*hlf,2)}, {v(LBa+4*T+2*hlf,2)}, {v(tmp+2*hlf,2)}")
    SC = lambda T: ACC + 8*T
    ONE4 = 244
    vcv = [f"v_cvt_pk_bf16_f32 {v(VP+vpos[T]+hlf)}, {v(Va(T)+2*hlf)}, {v(Va(T)+2*hlf+1)}" for T in range(5) for hlf in range(2)]
    vcv += [f"v_mov_b32 {v(ONE4+i)}, {s(sONE)}" for i in range(4)] + [f"s_mov_b32 {s(sT0)}, 0x3eb8aa3b"]
    sm = []
    for T in range(4):
        prev = T - 2 if T >= 2 else 4
        bprev = BIAS + 4 if T >= 2 else BIAS + 8 + 4*T
        sm.append(f"v_mfma_f32_16x16x16_bf16 {v(SC(T),4)}, {v(KP+2*T,2)}, {v(QP+2*T,2)}, {v(BIAS,4)}")
        sm.append(f"v_mfma_f32_16x16x16_bf16 {v(SC(T)+4,4)}, {v(KP+2*prev,2)}, {v(QP+2*T,2)}, {v(bprev,4)}")
    G.spread(sm, vcv)
    MX = 16; M2 = 20
    PP = 32; OA = 48; LS = 208
    for T in range(4):
        b = SC(T)
        G(f"""
        v_max3_f32 {v(MX+T)}, {v(b)}, {v(b+1)}, {v(b+2)}
        v_max3_f32 {v(M2+T)}, {v(b+3)}, {v(b+4)}, {v(b+5)}
        """)
    for T in range(4): G(f"v_max3_f32 {v(MX+T)}, {v(MX+T)}, {v(SC(T)+6)}, {v(SC(T)+7)}")
    for T in range(4): G(f"v_max_f32 {v(MX+T)}, {v(MX+T)}, {v(M2+T)}")
    G(f"""
    v_permlane16_swap_b32 {v(MX)}, {v(MX+1)}
    v_permlane16_swap_b32 {v(MX+2)}, {v(MX+3)}
    v_max_f32 {v(MX)}, {v(MX)}, {v(MX+1)}
    v_max_f32 {v(MX+2)}, {v(MX+2)}, {v(MX+3)}
    v_permlane32_swap_b32 {v(MX)}, {v(MX+2)}
    v_max_f32 {v(MX)}, {v(MX)}, {v(MX+2)}
    v_mul_f32 {v(MX)}, {s(sT0)}, {v(MX)}
    v_mov_b32 {v(MX+2)}, {v(MX)}
    v_permlane32_swap_b32 {v(MX)}, {v(MX+2)}
    v_mov_b32 {v(MX+1)}, {v(MX)}
    v_mov_b32 {v(MX+3)}, {v(MX+2)}
    v_permlane16_swap_b32 {v(MX)}, {v(MX+1)}
    v_permlane16_swap_b32 {v(MX+2)}, {v(MX+3)}
    """)
    win = {2: 0, 0: 2, 1: 4, 3: 6}
    for T in range(4):
        b = SC(T)
        for i in range(8): G(f"v_fma_f32 {v(b+i)}, {v(b+i)}, {s(sT0)}, -{v(MX+T)}")
        for i in range(8): G(f"v_exp_f32 {v(b+i)}, {v(b+i)}")
        first, second = (b, b+4) if T in (0, 2) else (b+4, b)
        G(f"""
        v_cvt_pk_bf16_f32 {v(PP+4*T)}, {v(first)}, {v(first+1)}
        v_cvt_pk_bf16_f32 {v(PP+4*T+1)}, {v(first+2)}, {v(first+3)}
        v_cvt_pk_bf16_f32 {v(PP+4*T+2)}, {v(second)}, {v(second+1)}
        v_cvt_pk_bf16_f32 {v(PP+4*T+3)}, {v(second+2)}, {v(second+3)}
        """)
        if T >= 1:
            U = T - 1
            G(f"v_rcp_f32 {v(LS+4*U)}, {v(LS+4*U)}")
        G(f"""
        v_mfma_f32_16x16x32_bf16 {v(LS+4*T,4)}, {v(ONE4,4)}, {v(PP+4*T,4)}, 0
        v_mfma_f32_16x16x32_bf16 {v(OA+4*T,4)}, {v(VP+win[T],4)}, {v(PP+4*T,4)}, 0
        """)
    OP = 64
    def fin(T):
        q, p = T >> 1, T & 1
        for h in range(2): G(f"v_pk_mul_f32 {v(OA+4*T+2*h,2)}, {v(OA+4*T+2*h,2)}, {v(LS+4*T,2)} op_sel:[0,0] op_sel_hi:[1,0]")
        G(f"""
        v_cvt_pk_bf16_f32 {v(OP+4*q+2*p)}, {v(OA+4*T)}, {v(OA+4*T+1)}
        v_cvt_pk_bf16_f32 {v(OP+4*q+2*p+1)}, {v(OA+4*T+2)}, {v(OA+4*T+3)}
        """)
    fin(0); fin(1); fin(2)
    G(f"""
    v_permlane32_swap_b32 {v(OP)}, {v(OP+2)}
    v_permlane32_swap_b32 {v(OP+1)}, {v(OP+3)}
    v_rcp_f32 {v(LS+12)}, {v(LS+12)}
    """)
    fin(3)
    G(f"""
    v_permlane32_swap_b32 {v(OP+4)}, {v(OP+6)}
    v_permlane32_swap_b32 {v(OP+5)}, {v(OP+7)}
    """)
    stores(G, [f"buffer_store_dwordx4 {v(OP+4*q,4)}, {v(vOA)}, {s(SWS,4)}, {s(sO0+q)} offen" for q in range(2)], "ST1")
    G.stamp('p1epi')
    signal(G, 0, vFE)
    G.stamp('sig0')
    G.bar('w3a')
    ACC = 16; CSA = 112; SEL = 120; AB = 124; W3R = 160
    G.sv = (15, 6)
    def w3_reads(l):
        out = []; blk = l % 3; base = W3SLOT[l]
        for s4 in range(4):
            for k, va in enumerate((vW3o, vW3s)):
                for half in range(2):
                    o = (base - S0) + (32*(s4 >> 1) + 8*(s4 & 1) + 4*half) * 192
                    out.append(f"ds_read_b64_tr_b16 {v(W3R + 32*blk + 8*s4 + 4*k + 2*half, 2)}, {v(va)} offset:{o}")
        return out
    def w3_colsum(l):
        blk = l % 3
        return [f"v_mfma_f32_16x16x32_bf16 {v(CSA+4*k,4)}, {v(W3R+32*blk+8*s4+4*k,4)}, {v(SEL,4)}, {v(CSA+4*k,4)}" for s4 in range(4) for k in range(2)]
    for x in w3_reads(0): G(x)
    G(f"""
    v_lshrrev_b32 v2, 4, v0
    v_xor_b32 v2, v2, v0
    v_and_b32 v2, 1, v2
    v_cmp_eq_u32 vcc, 0, v2
    v_mov_b32 v3, {s(sONE)}
    v_cndmask_b32 {v(SEL)}, 0, v3, vcc
    v_cndmask_b32 {v(SEL+1)}, 0, v3, vcc
    v_cndmask_b32 {v(SEL+2)}, 0, v3, vcc
    v_cndmask_b32 {v(SEL+3)}, 0, v3, vcc
    """)
    for i in range(4): G(f"v_mov_b64 {v(CSA+2*i,2)}, 0")
    G.front(w3_colsum(0), w3_reads(1), 2)
    for x in w3_colsum(1): G(x)
    G.lwait_all()
    G.stamp('svc')
    poll(G, 0, vFE)
    G.stamp('poll0')
    def obatch(b):
        for j in (2*b, 2*b + 1):
            for tau in range(2):
                G(f"""
                s_add_u32 m0, {s(sW1K)}, {(tau*32 + 4*j) * 1024}
                buffer_load_dwordx4 {v(8+tau)}, {s(SWS,4)}, {s(K2[j])} offen sc1 lds
                """)
        G.tag(f"o_{b}")
    obatch(0); obatch(1)
    for b in range(4):
        G.wait_tag(f"o_{b}")
        G.bar(f"o_{b}")
        if b + 2 < 4: obatch(b + 2)
    for l in PFORD[:cfg.npf]: G.items(w3_dma(l, W3SLOT[l], vP3))
    G.stamp('pf')
    G.wait_tag('w3_2')
    G.bar('a3_0')
    G.stamp('a3_0')
    NAB = 6
    def aread(n):
        st, sg = n >> 2, n & 3
        c, s4 = st >> 2, st & 3
        r = (c % 3) * 16384 + s4 * 1024
        return f"ds_read_b128 {v(AB+4*(n % NAB),4)}, {v(vA01 if sg < 2 else vA23)} offset:{r + (sg & 1)*4096}"
    A(f"""
    s_lshl_b32 {s(sT4)}, {s(sM)}, 2
    s_add_u32 {s(sT4)}, {s(sT4)}, {s(sW)}
    s_cmp_lt_u32 {s(sT4)}, 58
    s_cbranch_scc1 A_P3GO
    s_waitcnt vmcnt(0)
    """)
    for _ in range(7): A("s_barrier")
    A("s_branch A_ST3Z_DONE")
    A.label("A_P3GO")
    LEAD = 4
    nread = 0
    for n in range(LEAD): G(aread(n)); nread += 1
    fills = {st: [] for st in range(34)}; cs_at = {st: [] for st in range(34)}
    for l, b in list(W3BAR.items()) + [(2, -1)]:
        rd = w3_reads(l); cs = w3_colsum(l)
        fills[b+1] += rd[0:6]; fills[b+2] += rd[6:12]; fills[b+3] += rd[12:16]
        cs_at[b+2] += cs[0:2]; cs_at[b+3] += cs[2:6]; cs_at[b+4] += cs[6:8]
    for st in range(32):
        c, s4 = st >> 2, st & 3
        if s4 == 3 and st < 31:
            for l, b in W3BAR.items():
                if b == st and f"w3_{l}" in G.tags: G.wait_tag(f"w3_{l}")
            G.lwait_all()
            G.bar(f'p3_{st}')
        w = W3R + 32*(c % 3) + 8*s4
        fl = list(fills[st]); fi = 0
        if cfg.pretouch == 2 and st == cfg.hht:
            G.dummy = ('v', 1)
            fl.append(f"buffer_load_dword v1, v158, {s(SWS,4)}, 0 offen sc1")
        for sg in range(4):
            n = 4*st + sg
            fr = v(AB+4*(n % NAB), 4)
            ms = [f"v_mfma_f32_32x32x16_bf16 {v(ACC+16*sg,16)}, {v(w,4)}, {fr}, {'0' if st == 0 else v(ACC+16*sg,16)}"]
            if sg < 2: ms.append(f"v_mfma_f32_32x32x16_bf16 {v(ACC+64+16*sg,16)}, {v(w+4,4)}, {fr}, {'0' if st == 0 else v(ACC+64+16*sg,16)}")
            for k, m in enumerate(ms):
                G(m)
                if k == 0 and nread < 128 and nread <= n + LEAD: G(aread(nread)); nread += 1
                if fi < len(fl): G(fl[fi]); fi += 1
        while fi < len(fl): G(fl[fi]); fi += 1
        for x in cs_at[st]: G(x)
    G.stamp('p3loop')
    G(f"""
    v_and_b32 v2, 1, v0
    v_lshrrev_b32 v3, 4, v0
    v_lshlrev_b32 v2, 6, v2
    v_lshl_add_u32 v2, v3, 4, v2
    s_lshl_b32 {s(sT5)}, {s(sW)}, 8
    s_add_u32 {s(sT5)}, {s(sT5)}, {CSX}
    v_add_u32 v2, {s(sT5)}, v2
    v_lshrrev_b32 v3, 5, v0
    v_lshlrev_b32 v3, 4, v3
    v_add_u32 v3, {s(sT5)}, v3
    ds_write_b128 v2, {v(CSA,4)}
    ds_write_b128 v2, {v(CSA+4,4)} offset:128
    s_and_b32 {s(sT0)}, {s(sW)}, 1
    s_lshl_b32 {s(sT0)}, {s(sT0)}, 9
    s_add_u32 {s(sT0)}, {s(sT0)}, {STATS3}
    v_and_b32 v13, 31, v0
    v_lshlrev_b32 v13, 3, v13
    v_add_u32 v13, {s(sT0)}, v13
    v_xor_b32 v14, 0x200, v13
    ds_read_b64 v[160:161], v13
    ds_read_b64 v[162:163], v13 offset:256
    ds_read_b64 v[164:165], v14
    ds_read_b64 v[166:167], v14 offset:256
    """)
    CS0, CS1 = 176, 192
    for tile, CSo in ((0, CS0), (1, CS1)):
        for i in range(4): G(f"ds_read_b128 {v(CSo+4*i,4)}, v3 offset:{tile*128 + (i>>1)*64 + (i&1)*32}")
    def unit_epi(U, stp, CSo):
        st = v(stp, 2)
        for h in range(8): G(f"v_pk_fma_f32 {v(U+2*h,2)}, {v(CSo+2*h,2)}, {st}, {v(U+2*h,2)} op_sel:[0,0,0] op_sel_hi:[1,0,1]")
        for i in range(8): G(f"v_max_f32 {v(U+i)}, 0, {v(U+i)}")
        for h in range(4): G(f"v_pk_mul_f32 {v(U+8+2*h,2)}, {v(U+8+2*h,2)}, {st} op_sel:[0,1] op_sel_hi:[1,1]")
        for h in range(4): G(f"v_pk_mul_f32 {v(U+2*h,2)}, {v(U+2*h,2)}, {v(U+8+2*h,2)}")
        for h in range(4): G(f"v_cvt_pk_bf16_f32 {v(U+h)}, {v(U+2*h)}, {v(U+2*h+1)}")
    G(f"""
    s_mul_i32 {s(sT0)}, {s(sM)}, 6144
    s_add_u32 {s(sT0)}, {s(sT0)}, {L.HH_OFF}
    s_and_b32 {s(sT1)}, {s(sW)}, 1
    s_mul_i32 {s(sT1)}, {s(sT1)}, {2*HHS}
    s_add_u32 {s(sT2)}, {s(sT0)}, {s(sT1)}
    s_sub_u32 {s(sT3)}, {s(sT0)}, {s(sT1)}
    s_add_u32 {s(sT3)}, {s(sT3)}, {2*HHS}
    s_lshl_b32 {s(sT0)}, {s(sW)}, 10
    v_add_u32 v8, {s(sT0)}, {v(vL16)}
    v_add_u32 v9, {HHS}, v8
    s_lshr_b32 {s(sT0)}, {s(sW)}, 1
    s_lshl_b32 {s(sT0)}, {s(sT0)}, 10
    s_add_u32 {s(sT0)}, {s(sT0)}, 4096
    v_add_u32 v10, {s(sT0)}, {v(vL16)}
    v_add_u32 v11, {HHS}, v10
    """)
    for sg in range(4): unit_epi(ACC + 16*sg, 160 + 2*sg, CS0)
    A(f"""
    s_lshl_b32 {s(sT4)}, {s(sM)}, 2
    s_add_u32 {s(sT4)}, {s(sT4)}, {s(sW)}
    s_cmp_ge_u32 {s(sT4)}, 58
    s_cbranch_scc1 A_ST3_DONE
    """)
    stores(G, [f"buffer_store_dwordx4 {v(ACC+16*sg,4)}, {v(8 + (sg & 1))}, {s(SWS,4)}, {s(sT2 if sg < 2 else sT3)} offen" for sg in range(4)], "ST3")
    for sg in range(2): unit_epi(ACC + 64 + 16*sg, 160 + 2*sg, CS1)
    A(f"""
    s_cmp_ge_u32 {s(sM)}, 14
    s_cbranch_scc1 A_ST3Z_DONE
    """)
    stores(G, [f"buffer_store_dwordx4 {v(ACC+64+16*sg,4)}, {v(10 + sg)}, {s(SWS,4)}, {s(sT2)} offen" for sg in range(2)], "ST3Z")
    A(f"""
    s_cmp_lg_u32 {s(sM)}, 15
    s_cbranch_scc1 A_ST3P_DONE
    v_mov_b64 {v(ACC,2)}, 0
    v_mov_b64 {v(ACC+2,2)}, 0
    s_mul_i32 {s(sT0)}, {s(sW)}, {HHS}
    s_add_u32 {s(sT0)}, {s(sT0)}, {L.HH_OFF + 86*1024}
    """)
    stores(G, [f"buffer_store_dwordx4 {v(ACC,4)}, {v(vL16)}, {s(SWS,4)}, {s(sT0)} offen offset:{1024*i}" for i in range(2)], "ST3P")
    G.stamp('p3epi')
    signal(G, 2, vFE)
    G.stamp('sig2')
    G(ks_addr(L.HH_OFF, HHS, vL16, 12, 13))
    G(f"""
    s_mul_i32 {s(sWB)}, {s(sW)}, 24576
    s_add_u32 {s(sWB)}, {s(sWB)}, {RING4}
    """)
    G.bar('p4start')
    poll(G, 2, vFE)
    G.stamp('poll2')
    def batch(b):
        for q in range(4*b, 4*b + 4):
            rs, j = q // 22, q % 22
            G(f"""
            s_add_u32 m0, {s(sWB)}, {(q % 24) * 1024}
            buffer_load_dwordx4 {v(12+rs)}, {s(SWS,4)}, {s(sKO+j)} offen sc1 lds
            """)
        G.tag(f"b4_{b}")
    nb = 0
    for b in range(cfg.nb0): batch(b); nb += 1
    for b in range(NB4):
        G.wait_tag(f"b4_{b}")
        G.bar(f"p4_{b}")
        k = 0
        while nb < NB4 and k < (2 if b < cfg.ramp else 1) and (nb < 6 or nb - 4 <= b): batch(nb); nb += 1; k += 1
    G.stamp('end')

def prog_b(G):
    A = G.A; cfg = G.cfg
    t0, t1, t2, t3, t4 = 1, 2, 3, 4, 5
    vXo0, vXo1, vXh, vWo, vTL, vSa, vSh, vRA = 8, 9, 10, 11, 12, 13, 14, 15
    SF = 16; SACC = 28
    vP3, vWD, vWT, vFE, vL16, vXA = 240, 243, 244, 246, 248, 249
    G.dummy = ('v', 250)
    G.sv = (251, 252); G.vS = 253
    if cfg.prioB: G(f"s_setprio {cfg.prioB}")
    G(f"""
    s_lshl_b32 {s(sT0)}, {s(sRB)}, 6
    s_lshr_b32 {s(sT1)}, {s(sW)}, 1
    s_lshl_b32 {s(sT1)}, {s(sT1)}, 5
    s_add_u32 {s(sT1)}, {s(sT1)}, {s(sT0)}
    s_and_b32 {s(sT2)}, {s(sW)}, 1
    s_add_u32 {s(sT1)}, {s(sT1)}, {s(sT2)}
    v_lshrrev_b32 {v(t0)}, 3, {v(vL)}
    v_and_b32 {v(t1)}, 7, {v(vL)}
    v_lshrrev_b32 {v(t2)}, 4, {v(vL)}
    v_xor_b32 {v(t3)}, {v(t1)}, {v(t2)}
    v_lshlrev_b32 {v(t4)}, 1, {v(t0)}
    v_add_u32 {v(t4)}, {s(sT1)}, {v(t4)}
    v_lshlrev_b32 {v(t4)}, 10, {v(t4)}
    v_lshl_add_u32 {v(vXo0)}, {v(t3)}, 4, {v(t4)}
    v_xor_b32 {v(t3)}, 4, {v(t3)}
    v_lshl_add_u32 {v(vXo1)}, {v(t3)}, 4, {v(t4)}
    v_add_u32 {v(vXo1)}, {0x4000 - 1024}, {v(vXo1)}
    s_lshl_b32 {s(sT2)}, {s(sW)}, 2
    v_add_u32 {v(t3)}, {s(sT2)}, {v(t0)}
    v_lshrrev_b32 {v(t4)}, 1, {v(t3)}
    v_and_b32 {v(t4)}, 7, {v(t4)}
    v_xor_b32 {v(t4)}, {v(t4)}, {v(t1)}
    s_sub_u32 {s(sT3)}, {s(sT0)}, 16
    v_add_u32 {v(t3)}, {s(sT3)}, {v(t3)}
    v_max_i32 {v(t3)}, 0, {v(t3)}
    v_lshlrev_b32 {v(t3)}, 10, {v(t3)}
    v_lshl_add_u32 {v(vXh)}, {v(t4)}, 4, {v(t3)}
    s_mov_b32 {s(sEXH)}, -1
    s_cmp_eq_u32 {s(sW)}, 0
    s_cselect_b32 {s(sEXH)}, 0xffffff00, {s(sEXH)}
    s_mov_b32 {s(sEXH+1)}, 0
    s_lshl_b32 {s(sT2)}, {s(sW)}, 3
    v_add_u32 {v(t3)}, {s(sT2)}, {v(t0)}
    v_mul_u32_u24 {v(t3)}, 3072, {v(t3)}
    v_and_b32 {v(t4)}, 1, {v(t2)}
    v_lshlrev_b32 {v(t4)}, 1, {v(t4)}
    s_and_b32 {s(sT2)}, {s(sW)}, 1
    s_lshl_b32 {s(sT2)}, {s(sT2)}, 2
    v_or_b32 {v(t4)}, {s(sT2)}, {v(t4)}
    v_xor_b32 {v(t4)}, {v(t4)}, {v(t1)}
    v_lshl_add_u32 {v(vWo)}, {v(t4)}, 4, {v(t3)}
    s_lshl_b32 {s(sT2)}, {s(sCB)}, 7
    v_add_u32 {v(vWo)}, {s(sT2)}, {v(vWo)}
    s_lshl_b32 {s(sT4)}, {s(sIDX)}, 2
    s_add_u32 {s(sT4)}, {s(sT4)}, {s(sW)}
    s_lshl_b32 {s(sTB)}, {s(sT4)}, 11
    s_mul_i32 {s(sTB1)}, {s(sT4)}, 1536
    v_lshrrev_b32 {v(vTL)}, 2, {v(vL)}
    v_lshlrev_b32 {v(vTL)}, 7, {v(vTL)}
    s_and_b32 {s(sSX)}, {s(sRBL)}, {cfg.rotm}
    s_lshl_b32 {s(sSX)}, {s(sSX)}, {cfg.rots}
    s_add_u32 {s(sSX)}, {s(sSX)}, {s(sCB)}
    s_lshl_b32 {s(sMX)}, {s(sW)}, 11
    s_lshl_b32 {s(sMH)}, {s(sW)}, 9
    s_add_u32 {s(sMH)}, {s(sMH)}, 8192
    s_mul_i32 {s(sMW)}, {s(sW)}, 3072
    s_add_u32 {s(sMW)}, {s(sMW)}, {WRING}
    s_mov_b32 {s(SX+2)}, {2048*1024}
    s_mov_b32 {s(SX+3)}, 0x20000
    s_mov_b32 {s(SW1+2)}, {512*3072}
    s_mov_b32 {s(SW1+3)}, 0x20000
    s_waitcnt lgkmcnt(0)
    s_mov_b32 {s(SX)}, s64
    s_and_b32 {s(SX+1)}, s65, 0xffff
    s_mov_b32 {s(SW1)}, s66
    s_and_b32 {s(SW1+1)}, s67, 0xffff
    """)
    def dma_chunk(c):
        sl = (c % 3) * WSLOT
        W = lambda o: f"buffer_load_dwordx4 {v(vWo)}, {s(SW1,4)}, {s(sB0)} offen offset:{o} lds"
        return [f"""
        s_add_u32 m0, {s(sMW)}, {sl}
        s_add_u32 {s(sB1)}, {s(sSX)}, {c}
        s_and_b32 {s(sB1)}, {s(sB1)}, 7
        s_mul_i32 {s(sB0)}, {s(sB1)}, 196608
        s_lshl_b32 {s(sB1)}, {s(sB1)}, 7
        {W(0)}
        """, W(1024), W(2048), f"""
        s_add_u32 m0, {s(sMX)}, {c*XCH}
        s_add_u32 {s(sB0)}, {s(sB0)}, {32*3072}
        buffer_load_dwordx4 {v(vXo0)}, {s(SX,4)}, {s(sB1)} offen lds
        """, f"buffer_load_dwordx4 {v(vXo1)}, {s(SX,4)}, {s(sB1)} offen offset:1024 lds", f"""
        s_add_u32 m0, {s(sMH)}, {c*XCH}
        s_mov_b64 exec, {s(sEXH,2)}
        buffer_load_dwordx4 {v(vXh)}, {s(SX,4)}, {s(sB1)} offen lds
        s_mov_b64 exec, -1
        """, f"""
        s_add_u32 m0, {s(sMW)}, {sl + 4*3072}
        s_nop 0
        {W(0)}
        """, W(1024), W(2048), ('TAG', f"c{c}")]
    def t1w(r):
        if not cfg.touch or r > 7: return []
        return [f"""
        s_add_u32 {s(sB0)}, {s(sTB1)}, {r*196608}
        buffer_load_dword v250, {v(vTL)}, {s(SW1,4)}, {s(sB0)} offen
        """]
    if cfg.touch:
        G(f"""
        s_lshl_b32 {s(sB0)}, {s(sXCD)}, 18
        s_add_u32 {s(sB0)}, {s(sB0)}, {s(sTB)}
        buffer_load_dword v250, {v(vTL)}, {s(SX,4)}, {s(sB0)} offen
        """)
    G.items(dma_chunk(0) + t1w(1) + t1w(2))
    G(common_srds(cfg) + srd(SWO, 68, 512*1024) + srd(SWD, 76, 1376*1024) + srd(SOUT, 78, 2048*1024))
    A(f"""
    s_cmp_lg_u32 {s(sW)}, 0
    s_cbranch_scc1 REG_DONE
    s_and_b32 {s(sXCC)}, {s(sXCC)}, 7
    s_mul_i32 {s(sT0)}, {s(sXCC)}, {s(sXCC)}
    s_lshl_b32 {s(sT0)}, {s(sT0)}, 12
    s_lshl_b32 {s(sT1)}, {s(sXCC)}, 5
    s_or_b32 {s(sT0)}, {s(sT0)}, {s(sT1)}
    s_or_b32 {s(sT0)}, {s(sT0)}, 1
    s_lshl_b64 {s(sT4,2)}, {s(sTS,2)}, 22
    s_or_b32 {s(sT0)}, {s(sT0)}, {s(sT4)}
    v_mov_b32 v2, {s(sT0)}
    v_mov_b32 v3, {s(sT5)}
    s_lshl_b32 {s(sT1)}, {s(sG)}, 3
    v_mov_b32 v4, {s(sT1)}
    s_mov_b64 exec, 1
    buffer_atomic_add_x2 v[2:3], v4, {s(SDBG,4)}, 0 offen offset:128 sc1
    s_mov_b64 exec, -1
    """)
    A.label("REG_DONE")
    G.stamp('start')
    G.items(dma_chunk(1) + t1w(3))
    G(f"""
    v_lshlrev_b32 {v(vL16)}, 4, v0
    s_lshl_b32 {s(sT0)}, {s(sW)}, 11
    s_lshl_b32 {s(sT1)}, {s(sW)}, 9
    s_add_u32 {s(sT1)}, {s(sT1)}, 8192
    v_add_u32 {v(vSh)}, {s(sT1)}, {v(vL16)}
    v_add_u32 {v(vSa)}, {s(sT0)}, {v(vL16)}
    v_mov_b64 {v(SACC,2)}, 0
    v_mov_b64 {v(SACC+2,2)}, 0
    v_mov_b64 {v(SACC+4,2)}, 0
    """)
    G.wait_tag('c0')
    G.bar('c0')
    G.stamp('c0')
    G.bg_on = False
    G.bg(dma_chunk(2) + t1w(4))
    setups = [w3_setup(vP3, t0, t1, t2), f"""
    v_lshrrev_b32 {v(t0)}, 3, {v(vL)}
    v_and_b32 {v(t1)}, 7, {v(vL)}
    v_bfe_u32 {v(t2)}, {v(vL)}, 4, 1
    v_lshlrev_b32 {v(t2)}, 2, {v(t2)}
    v_xor_b32 {v(t1)}, {v(t1)}, {v(t2)}
    v_lshlrev_b32 {v(t0)}, 10, {v(t0)}
    v_lshl_add_u32 {v(vWD)}, {v(t1)}, 4, {v(t0)}
    s_lshl_b32 {s(sT0)}, {s(sCB)}, 7
    v_add_u32 {v(vWD)}, {s(sT0)}, {v(vWD)}
    s_lshl_b32 {s(sT2)}, {s(sRBL)}, 1
    s_lshl_b32 {s(sWB)}, {s(sW)}, 11
    s_lshl_b32 {s(sR2)}, {s(sRBL)}, 13
    s_lshl_b32 {s(sW1K)}, {s(sW)}, 10
    """, f"""
    v_lshrrev_b32 {v(t0)}, 5, {v(vL)}
    v_bfe_u32 {v(t1)}, {v(vL)}, 2, 2
    v_lshl_add_u32 {v(t0)}, {v(t0)}, 2, {v(t1)}
    v_lshlrev_b32 {v(t0)}, 7, {v(t0)}
    v_and_b32 {v(t1)}, 1, {v(vL)}
    v_lshl_add_u32 {v(t0)}, {v(t1)}, 5, {v(t0)}
    v_bfe_u32 {v(t1)}, {v(vL)}, 4, 1
    v_lshl_add_u32 {v(t0)}, {v(t1)}, 4, {v(t0)}
    v_bfe_u32 {v(t1)}, {v(vL)}, 1, 1
    v_lshl_add_u32 {v(t0)}, {v(t1)}, 3, {v(t0)}
    v_bfe_u32 {v(t1)}, {v(vL)}, 3, 1
    s_and_b32 {s(sT0)}, {s(sW)}, 1
    v_xor_b32 {v(t1)}, {s(sT0)}, {v(t1)}
    v_lshl_add_u32 {v(vWT+1)}, {v(t1)}, 6, {v(t0)}
    v_add_u32 {v(vWT+1)}, {s(sWB)}, {v(vWT+1)}
    v_xor_b32 {v(vWT)}, 64, {v(vWT+1)}
    s_lshl_b32 {s(sA3)}, {s(sW)}, 15
    s_add_u32 {s(sA3)}, {s(sA3)}, {L.H_OFF}
    s_lshl_b32 {s(sT0)}, {s(sRB)}, 6
    s_lshr_b32 {s(sT2)}, {s(sW)}, 1
    s_lshl_b32 {s(sT2)}, {s(sT2)}, 5
    s_add_u32 {s(sT0)}, {s(sT0)}, {s(sT2)}
    s_lshl_b32 {s(sT0)}, {s(sT0)}, 10
    s_lshl_b32 {s(sT2)}, {s(sCB)}, 7
    s_add_u32 {s(sT0)}, {s(sT0)}, {s(sT2)}
    s_and_b32 {s(sT2)}, {s(sW)}, 1
    s_lshl_b32 {s(sT2)}, {s(sT2)}, 6
    s_add_u32 {s(sT0)}, {s(sT0)}, {s(sT2)}
    v_and_b32 v2, 15, v0
    v_lshlrev_b32 v2, 11, v2
    v_lshrrev_b32 v3, 4, v0
    v_lshl_add_u32 {v(vXA)}, v3, 4, v2
    v_add_u32 {v(vXA)}, {s(sT0)}, {v(vXA)}
    s_lshl_b32 {s(sT0)}, {s(sG)}, 3
    v_mov_b32 {v(vRA)}, {s(sT0)}
    s_and_b32 {s(sT0)}, {s(sRB)}, 1
    s_lshl_b32 {s(sT0)}, {s(sT0)}, 1
    s_lshr_b32 {s(sT1)}, {s(sW)}, 1
    s_add_u32 {s(sT0)}, {s(sT0)}, {s(sT1)}
    s_lshl_b32 {s(sO1)}, {s(sT0)}, 12
    s_lshl_b32 {s(sO0)}, {s(sT0)}, 15
    s_lshl_b32 {s(sT2)}, {s(sCB)}, 1
    s_and_b32 {s(sT3)}, {s(sW)}, 1
    s_add_u32 {s(sT2)}, {s(sT2)}, {s(sT3)}
    s_lshl_b32 {s(sT2)}, {s(sT2)}, 11
    s_add_u32 {s(sO0)}, {s(sO0)}, {s(sT2)}
    s_add_u32 {s(sO0)}, {s(sO0)}, {L.H_OFF}
    s_lshl_b32 {s(sT2)}, {s(sCB)}, 9
    s_add_u32 {s(sO1)}, {s(sO1)}, {s(sT2)}
    s_lshl_b32 {s(sT3)}, {s(sT3)}, 3
    s_add_u32 {s(sO1)}, {s(sO1)}, {s(sT3)}
    s_add_u32 {s(sO1)}, {s(sO1)}, {L.ST_OFF}
    """]
    def wt_dma(SWT, sko, ldsoff, tagname, vWD_):
        return [f"""
        s_lshl_b32 {s(sB0)}, {s(sko)}, 4
        s_add_u32 m0, {s(sWB)}, {ldsoff}
        s_add_u32 {s(sB1)}, {s(sB0)}, 7168
        buffer_load_dwordx4 {v(vWD_)}, {s(SWT,4)}, {s(sB0)} offen lds
        """, f"buffer_load_dwordx4 {v(vWD_)}, {s(SWT,4)}, {s(sB1)} offen offset:1024 lds", ('TAG', tagname)]
    def wt_reads(dst, ldsoff, vWT_):
        return [f"ds_read_b64_tr_b16 {v(dst + 4*k + 2*half, 2)}, {v(vWT_+k)} offset:{ldsoff + half*1024}" for k in range(2) for half in range(2)]
    def wo(j):
        g = wt_dma(SWO, sB0, j*8192, f"wo{j}", vWD)
        g[0] = f"""
        s_add_u32 {s(sB0)}, {s(sR2)}, {j*4096}
        s_and_b32 {s(sB0)}, {s(sB0)}, 32767
        s_add_u32 {s(sB0)}, {s(sB0)}, {s(sW1K)}
        """ + g[0]
        return g
    assert not cfg.touch
    XR = 224
    def one():
        if G._has(): G._one()
    G.bg_on = False
    for i in range(8):
        su = setups[i].strip().split('\n') if i < len(setups) else []
        nd = cfg.ndma if i < 7 else cfg.ndma7
        per = (len(su) + nd - 1) // max(nd, 1)
        for k in range(nd if i != 3 else 5):
            one()
            for ln in su[k*per:(k+1)*per]: G(ln)
        if i == 2:
            G(f"buffer_load_dwordx2 {v(vFE,2)}, {v(vRA)}, {s(SDBG,4)}, 0 offen offset:128 sc1")
        if i == 2 and cfg.pretouch:
            G(f"""
            v_and_b32 v2, 15, v0
            v_lshlrev_b32 v2, 7, v2
            buffer_load_dword v250, v2, {s(SWS,4)}, {s(sO0)} offen sc1
            """)
        if i == 4:
            assert cfg.rotm == 1 and cfg.rots == 2
            G(f"""
            s_and_b32 {s(sT0)}, {s(sRBL)}, 1
            s_mul_i32 {s(sT0)}, {s(sT0)}, {4*XCH}
            s_lshr_b32 {s(sT1)}, {s(sW)}, 1
            s_lshl_b32 {s(sT1)}, {s(sT1)}, 12
            s_add_u32 {s(sT0)}, {s(sT0)}, {s(sT1)}
            v_and_b32 v2, 31, v0
            v_lshlrev_b32 v3, 7, v2
            v_add_u32 v3, {s(sT0)}, v3
            v_bfe_u32 v2, v0, 1, 3
            v_lshrrev_b32 v4, 5, v0
            v_lshlrev_b32 v4, 1, v4
            s_and_b32 {s(sT1)}, {s(sW)}, 1
            s_lshl_b32 {s(sT1)}, {s(sT1)}, 2
            v_or_b32 v4, {s(sT1)}, v4
            v_xor_b32 v4, v4, v2
            v_lshl_add_u32 v5, v4, 4, v3
            v_xor_b32 v4, 1, v4
            v_lshl_add_u32 v3, v4, 4, v3
            ds_read_b128 {v(XR,4)}, v5
            ds_read_b128 {v(XR+4,4)}, v3
            """)
            G.lwait_all()
        if i == 3:
            regdecode(G, vFE, vRA)
            G(f"""
            v_min_u32 v2, 2, v0
            s_mul_i32 {s(sT0)}, {s(sW)}, 24
            s_add_u32 {s(sT0)}, {s(sT0)}, {STG}
            v_lshlrev_b32 v3, 3, v2
            v_add_u32 v3, {s(sT0)}, v3
            ds_read_b64 v[16:17], v3
            s_mul_i32 {s(sT0)}, {s(sCB)}, 10
            s_mul_i32 {s(sT1)}, {s(sW)}, 3
            s_add_u32 {s(sT0)}, {s(sT0)}, {s(sT1)}
            v_add_u32 v2, {s(sT0)}, v2
            v_min_u32 v2, 79, v2
            v_lshlrev_b32 v2, 4, v2
            s_and_b32 {s(sT4)}, {s(sRB)}, 1
            s_mul_i32 {s(sT4)}, {s(sT4)}, 1280
            s_add_u32 {s(sT4)}, {s(sT4)}, {SG_OFF}
            v_mov_b32 v18, {v(vFE)}
            v_mov_b32 v19, {v(vFE+1)}
            v_min_u32 v20, 19, v0
            s_mul_i32 {s(sT0)}, {s(sW)}, 20
            v_add_u32 v20, {s(sT0)}, v20
            v_lshlrev_b32 v21, 2, v20
            v_add_u32 v21, {STATS1}, v21
            v_lshlrev_b32 v20, 4, v20
            s_mov_b32 {s(sMWL)}, {s(sT4)}
            """)
            stores(G, [f"buffer_store_dwordx4 v[16:19], v2, {s(SWS,4)}, {s(sT4)} offen"], "STG")
            for k in range(nd - 5): one()
        if i == 5:
            G(f"buffer_load_dwordx4 v[24:27], v20, {s(SWS,4)}, {s(sMWL)} offen sc1")
        if cfg.fine == 1: G.stamp(f'd{i}')
        if i == 7: break
        G.wait_tag(f"c{i+1}")
        G.bar(f"c{i+1}")
        if i + 3 < 8: G.bg(dma_chunk(i + 3) + t1w(i + 5))
        if i == 4:
            for j in range(6): G.bg(wo(j))
        if i == 5:
            G.bg(wo(6))
            G.bg(w3_dma(0, W3SLOT[0], vP3))
        if i == 6:
            G.bg(wo(7))
            G.bg(w3_dma(1, W3SLOT[1], vP3))
    G._autowait(Ins("v_mov_b32 v24, v27"))
    G(f"s_mov_b32 {s(sCNT)}, 0")
    A.label("SGPOLL")
    A(f"""
    v_cmp_ne_u64 vcc, v[26:27], {v(vFE,2)}
    s_add_u32 {s(sCNT)}, {s(sCNT)}, 1
    s_cbranch_vccz SGOK
    s_cmp_ge_u32 {s(sCNT)}, 20000
    s_cbranch_scc1 SGOK
    buffer_load_dwordx4 v[24:27], v20, {s(SWS,4)}, {s(sMWL)} offen sc1
    s_waitcnt vmcnt(0)
    s_branch SGPOLL
    """)
    A.label("SGOK")
    G(f"""
    ds_write_b32 v21, v25
    ds_write_b32 v21, v24 offset:512
    """)
    G.lwait_all()
    G.bar('stats')
    G.stamp('p1loop')
    G.bg_on = True
    G.flush()
    G.items(p4_table())
    G(f"""
    v_mov_b32 v11, {v(vL16)}
    v_and_b32 v14, 31, v0
    v_lshlrev_b32 v14, 4, v14
    v_lshrrev_b32 v3, 5, v0
    v_lshl_add_u32 v14, v3, 2, v14
    v_subrev_u32 v12, {s(sWB)}, {v(vWT+1)}
    s_lshr_b32 {s(sT0)}, {s(sW)}, 1
    s_lshl_b32 {s(sT0)}, {s(sT0)}, 15
    v_add_u32 v13, {s(sT0)}, {v(vL16)}
    """)
    G.wait_tag('wo7')
    G.bsync('wo')
    WO = 80
    for q in range(32):
        for half in range(2): G(f"ds_read_b64_tr_b16 {v(WO + 4*q + 2*half, 2)}, v12 offset:{q*2048 + half*1024}")
    XU = 32
    for i in range(8):
        G(f"""
        v_lshlrev_b32 {v(XU+2*i)}, 16, {v(XR+i)}
        v_and_b32 {v(XU+2*i+1)}, 0xffff0000, {v(XR+i)}
        """)
    G.wait_tag('w3_1')
    G.lwait_all()
    G.stamp('pre')
    G.bar('w3a')
    G.stamp('w3a')
    ACC2 = 16
    def red_write(u, reg):
        out = [f"""
        s_xor_b32 {s(sT5)}, {s(sW)}, {3-u}
        s_mul_i32 {s(sT5)}, {s(sT5)}, 12288
        v_add_u32 v10, {s(sT5)}, v11
        """]
        out += [f"ds_write_b128 v10, {v(reg+4*i,4)} offset:{u*4096+i*1024}" for i in range(4)]
        return out
    def red_read(RED, barname):
        out = [f"""
        s_mul_i32 {s(sT5)}, {s(sW)}, 12288
        v_add_u32 v10, {s(sT5)}, v11
        """, ('BSYNC', barname)]
        out += [f"ds_read_b128 {v(RED[i>>2]+4*(i&3),4)}, v10 offset:{i*1024}" for i in range(12)]
        return out
    def final(F, RED, XH, OUTR):
        for i in range(8): G(f"v_pk_add_f32 {v(RED[0]+2*i,2)}, {v(RED[0]+2*i,2)}, {v(RED[1]+2*i,2)}")
        for i in range(8):
            G(f"""
            v_lshlrev_b32 {v(RED[1]+2*i)}, 16, {v(XH+i)}
            v_and_b32 {v(RED[1]+2*i+1)}, 0xffff0000, {v(XH+i)}
            """)
        for i in range(8): G(f"v_pk_add_f32 {v(RED[2]+2*i,2)}, {v(RED[2]+2*i,2)}, {v(RED[1]+2*i,2)}")
        for i in range(8): G(f"v_pk_add_f32 {v(RED[0]+2*i,2)}, {v(RED[0]+2*i,2)}, {v(RED[2]+2*i,2)}")
        for i in range(8): G(f"v_pk_add_f32 {v(F+2*i,2)}, {v(F+2*i,2)}, {v(RED[0]+2*i,2)}")
        for i in range(8): G(f"v_cvt_pk_bf16_f32 {v(OUTR+i)}, {v(F+2*i)}, {v(F+2*i+1)}")
    AB2 = 48; NA2 = 6
    nr2 = 0
    def rd2():
        nonlocal nr2
        if nr2 % 8 == 0: G.bar(f"o_{nr2 // 8}")
        G(f"ds_read_b128 {v(AB2 + 4*(nr2 % NA2), 4)}, v13 offset:{nr2*1024}"); nr2 += 1
    for _ in range(NA2 - 1): rd2()
    G.stamp('poll0')
    for q in range(32):
        G(f"v_mfma_f32_32x32x16_bf16 {v(XU,16)}, {v(WO+4*q,4)}, {v(AB2+4*(q % NA2),4)}, {v(XU,16)}")
        if nr2 < 32: rd2()
    OUTR = 232
    G(f"v_mov_b64 v[16:17], 0\nv_mov_b64 v[18:19], 0")
    for i in range(8): G(f"v_cvt_pk_bf16_f32 {v(OUTR+i)}, {v(XU+2*i)}, {v(XU+2*i+1)}")
    sm, sq = 16, 17
    if cfg.fine == 2: G.stamp('fin')
    stores(G, [f"buffer_store_dwordx4 {v(OUTR,4)}, {v(vL16)}, {s(SWS,4)}, {s(sO0)} offen",
               f"buffer_store_dwordx4 {v(OUTR+4,4)}, {v(vL16)}, {s(SWS,4)}, {s(sO0)} offen offset:1024"], "ST2")
    for i in range(8):
        G(f"v_dot2c_f32_bf16 {v(sm+2*(i&1))}, {s(sONE)}, {v(OUTR+i)}")
        G(f"v_dot2c_f32_bf16 {v(sq+2*(i&1))}, {v(OUTR+i)}, {v(OUTR+i)}")
    G(f"""
    v_add_f32 {v(sm)}, {v(sm)}, {v(sm+2)}
    v_add_f32 {v(sq)}, {v(sq)}, {v(sq+2)}
    v_permlane32_swap_b32 {v(sm)}, {v(sq)}
    v_add_f32 {v(sm)}, {v(sm)}, {v(sq)}
    """)
    stores(G, [f"buffer_store_dword {v(sm)}, v14, {s(SWS,4)}, {s(sO1)} offen"], "ST2B")
    G.stamp('p2')
    signal(G, 1, vFE)
    G.stamp('sig1')
    nP3, nWD, nWT, nXA = 20, 23, 24, 1
    G(f"""
    s_mul_i32 {s(sT0)}, {s(sW)}, {8192 - 2048}
    s_add_u32 {s(sT0)}, {s(sT0)}, {WDT}
    s_add_u32 {s(sWB)}, {s(sWB)}, {s(sT0)}
    v_add_u32 {v(nWT)}, {s(sT0)}, {v(vWT)}
    v_add_u32 {v(nWT+1)}, {s(sT0)}, {v(vWT+1)}
    v_mov_b32 {v(nP3)}, {v(vP3)}
    v_mov_b32 {v(nP3+1)}, {v(vP3+1)}
    v_mov_b32 {v(nP3+2)}, {v(vP3+2)}
    v_mov_b32 {v(nWD)}, {v(vWD)}
    v_mov_b32 {v(nXA)}, {v(vXA)}
    s_mov_b32 {s(SW1)}, {s(SWS)}
    s_mov_b32 {s(SW1+1)}, {s(SWS+1)}
    s_cmp_eq_u32 {s(sM)}, 15
    s_cselect_b32 {s(SW1+2)}, 0, {L.GSTRIDE}
    s_lshl_b32 {s(sT4)}, {s(sW)}, 12
    s_add_u32 {s(sT4)}, {s(sT4)}, {L.ST_OFF}
    """)
    G.sv = (26, 28)
    G('v_mov_b32 v15, v253'); G.vS = 15
    poll(G, 1, vFE)
    G.stamp('poll1')
    def a_dma(c):
        r = (c % 3) * 16384
        g = [f"""
        s_xor_b32 {s(sB0)}, {s(sROT3)}, {lch(c)}
        s_lshl_b32 {s(sB0)}, {s(sB0)}, 12
        s_add_u32 {s(sB0)}, {s(sB0)}, {s(sA3)}
        s_lshl_b32 {s(sB1)}, {s(sW)}, 12
        s_add_u32 m0, {s(sB1)}, {r}
        s_nop 0
        buffer_load_dwordx4 v11, {s(SW1,4)}, {s(sB0)} offen sc1 lds
        """]
        for i in range(1, 4): g.append(f"buffer_load_dwordx4 v11, {s(SW1,4)}, {s(sB0)} offen offset:{1024*i} sc1 lds")
        g.append(('TAG', f"a3_{c}"))
        return g
    a1 = a_dma(1)
    G.items(a_dma(0) + a1[:2])
    G.wait_tag('a3_0')
    G.bar('a3_0')
    G.stamp('a3_0')
    G.items(a1[2:] + a_dma(2))
    SL = 32
    for i in range(4): G(f"buffer_load_dwordx4 {v(SL+4*i,4)}, v11, {s(SWS,4)}, {s(sT4)} offen offset:{1024*i} sc1")
    for l in PFORD[cfg.npf:]: G.items(w3_dma(l, W3SLOT[l], nP3))
    NR = 4
    WD_SLOT = [80 + 8*j for j in range(22)]
    wd = lambda j: wt_dma(SWD, sKO + j, (j % NR) * 2048, f"wd_{j}", nWD)
    wd_issue_period = {}
    st3 = []
    for i in range(4): st3.append(f"v_add_f32 {v(SL+4*i)}, {v(SL+4*i)}, {v(SL+4*i+2)}\nv_add_f32 {v(SL+4*i+1)}, {v(SL+4*i+1)}, {v(SL+4*i+3)}")
    st3.append(f"""
    v_add_f32 {v(SL)}, {v(SL)}, {v(SL+4)}
    v_add_f32 {v(SL+1)}, {v(SL+1)}, {v(SL+5)}
    v_add_f32 {v(SL+8)}, {v(SL+8)}, {v(SL+12)}
    v_add_f32 {v(SL+9)}, {v(SL+9)}, {v(SL+13)}
    v_add_f32 {v(SL)}, {v(SL)}, {v(SL+8)}
    v_add_f32 {v(SL+1)}, {v(SL+1)}, {v(SL+9)}
    v_mov_b32 {v(SL+2)}, {v(SL)}
    v_mov_b32 {v(SL+3)}, {v(SL+1)}
    v_permlane32_swap_b32 {v(SL)}, {v(SL+2)}
    v_permlane32_swap_b32 {v(SL+1)}, {v(SL+3)}
    v_add_f32 {v(SL)}, {v(SL)}, {v(SL+2)}
    v_add_f32 {v(SL+1)}, {v(SL+1)}, {v(SL+3)}
    v_mul_f32 {v(SL)}, 0x3b000000, {v(SL)}
    v_mul_f32 {v(SL+1)}, 0x3b000000, {v(SL+1)}
    v_fma_f32 {v(SL+1)}, -{v(SL)}, {v(SL)}, {v(SL+1)}
    v_max_f32 {v(SL+1)}, 0, {v(SL+1)}
    v_add_f32 {v(SL+1)}, 0x3727c5ac, {v(SL+1)}
    v_rcp_f32 {v(SL+1)}, {v(SL+1)}
    v_sub_f32 {v(SL)}, 0, {v(SL)}
    s_lshl_b32 {s(sT5)}, {s(sW)}, 8
    s_add_u32 {s(sT5)}, {s(sT5)}, {STATS3}
    v_and_b32 v2, 31, v0
    v_lshlrev_b32 v2, 3, v2
    v_add_u32 v2, {s(sT5)}, v2
    ds_write_b64 v2, {v(SL,2)}
    """)
    G.items(st3)
    wd_next = 0; wd_iss = 0
    def wd_cycle(period, force=False):
        nonlocal wd_next, wd_iss
        did = []
        while wd_next < wd_iss:
            j = wd_next
            lead = 2 if j < NR else 1
            if not force and period - wd_issue_period[j] < lead: break
            G.wait_tag(f"wd_{j}")
            for x in wt_reads(WD_SLOT[j], (j % NR) * 2048, nWT): G(x)
            did.append(j); wd_next += 1
        if did:
            G.lwait_all()
            for j in did:
                if wd_iss < 22:
                    G.items(wd(wd_iss)); wd_issue_period[wd_iss] = period; wd_iss += 1
    for c in range(7):
        st = 4*c + 3
        G.wait_tag(f"a3_{c+1}")
        for l, b in W3BAR.items():
            if b == st and f"w3_{l}" in G.tags: G.wait_tag(f"w3_{l}")
        G.lwait_all()
        G.bar(f'p3_{st}')
        if c + 3 < 8: G.items(a_dma(c + 3))
        heavy = False
        for l in (5, 6, 7):
            if 4*(l-5) + 3 == st: G.items(w3_dma(l, W3SLOT[l], nP3)); heavy = True
        if c == cfg.wd0:
            for j in range(NR): G.items(wd(j)); wd_issue_period[j] = c + 1
            wd_iss = NR
        elif not (heavy and cfg.skipwd): wd_cycle(c + 1)
    G.stamp('p3ld')
    while wd_next < 22: wd_cycle(99, force=True)
    G.lwait_all()
    G.stamp('wd')
    G.sv = (15, 8)
    G(f"""
    s_mul_i32 {s(sT0)}, {s(sW)}, 24576
    s_add_u32 {s(sT0)}, {s(sT0)}, {RING4}
    v_add_u32 v12, {s(sT0)}, v11
    """)
    G.bar('p4start')
    U = [16, 32, 48, 16]
    AB = 64; NAB = 4
    n = 22; skew = cfg.skew
    ops = []
    for j in range(n): ops += [(0, 0, j, j, True), (1, 1, j, j, False)]
    for j in range(n - 3):
        ops.append((2, 0, j, 22 + j, True))
        if j >= skew: ops.append((3, 1, j, 22 + j, False))
        if skew <= j < 2*skew: ops.append((3, 1, j - skew, 22 + j - skew, True))
    for j in range(n - 3, n): ops.append((2, 0, j, 22 + j, True))
    for j in range(n - 3, n): ops.append((3, 1, j, 22 + j, 'keep'))
    rd_list = [(k, o[3]) for k, o in enumerate(ops) if o[4] is True]
    slot_of = {}
    for r, (k, q) in enumerate(rd_list): slot_of[k] = r % NAB
    for k, o in enumerate(ops):
        if o[4] is False: slot_of[k] = slot_of[k-1]
        if o[4] == 'keep': slot_of[k] = slot_of[k-3]
    barred = -1
    nr = 0
    def issue_read():
        nonlocal nr, barred
        k, q = rd_list[nr]
        while barred < q // 4:
            barred += 1
            G.lwait_all() if False else None
            G.bar(f"p4_{barred}")
        G(f"ds_read_b128 {v(AB + 4*(nr % NAB), 4)}, v12 offset:{(q % 24) * 1024}")
        nr += 1
    RED = [80, 96, 112]
    XH = 128; OUTR = 136
    assert skew <= 6
    extra = {}
    w0 = red_write(0, U[0])
    extra.setdefault(2*n, []).extend(w0[:2]); extra.setdefault(2*n + 1, []).append(w0[2]); extra.setdefault(2*n + 2, []).append(w0[3]); extra.setdefault(2*n + 3, []).append(w0[4])
    i = 2*n + skew + 2
    for it in red_write(1, U[1]): extra.setdefault(i, []).append(it); i += 2
    last2 = max(k for k, o in enumerate(ops) if o[0] == 2)
    w2 = red_write(2, U[2])
    extra.setdefault(last2 + 1, []).extend(w2[:3]); extra.setdefault(last2 + 2, []).extend(w2[3:])
    assert last2 + 3 == len(ops) - 1
    rr = red_read(RED, 'red4')
    extra.setdefault(last2 + 3, []).extend(rr[:2] + rr[10:])
    e0 = last2 - 13
    assert all(not (o[0] == 3 and o[2] < 8) for o in ops[e0-2:]), 'slots still live'
    extra.setdefault(e0 - 2, []).append(f"""
    buffer_load_dwordx4 {v(XH,4)}, v11, {s(SWS,4)}, {s(sO0)} offen sc1
    buffer_load_dwordx4 {v(XH+4,4)}, v11, {s(SWS,4)}, {s(sO0)} offen offset:1024 sc1
    """)
    extra.setdefault(e0, []).extend([rr[0], ('BSYNC', 'red4a')] + rr[2:10])
    pre = [f"v_add_f32 {v(RED[0]+i)}, {v(RED[0]+i)}, {v(RED[1]+i)}" for i in range(16)]
    for i in range(8): pre += [f"v_lshlrev_b32 {v(RED[1]+2*i)}, 16, {v(XH+i)}", f"v_and_b32 {v(RED[1]+2*i+1)}, 0xffff0000, {v(XH+i)}"]
    pre += [f"v_add_f32 {v(RED[0]+i)}, {v(RED[0]+i)}, {v(RED[1]+i)}" for i in range(16)]
    for i, x in enumerate(pre): extra.setdefault(e0 + 2 + i // 4, []).append(x)
    for _ in range(NAB - 1): issue_read()
    G.stamp('p4_0')
    rdone = 0
    for k, (u, cs, j, q, fresh) in enumerate(ops):
        if u == 3 and j == skew: G.lwait(G.w0idx)
        G(f"v_mfma_f32_32x32x16_bf16 {v(U[u],16)}, {v(WD_SLOT[j]+4*cs,4)}, {v(AB+4*slot_of[k],4)}, {'0' if j == (skew if u == 3 else 0) else v(U[u],16)}")
        if fresh is True: rdone += 1
        nxt_fresh = (k + 1 == len(ops)) or (ops[k+1][4] is not False)
        while nr < len(rd_list) and nr - NAB < rdone - (0 if nxt_fresh else 1): issue_read()
        G.items(extra.get(k, []))
        if k == 2*n + 3: G.w0idx = G.lg
    for i in range(8): G(f"v_pk_add_f32 {v(RED[0]+2*i,2)}, {v(RED[0]+2*i,2)}, {v(RED[2]+2*i,2)}")
    for i in range(8): G(f"v_pk_add_f32 {v(U[3]+2*i,2)}, {v(U[3]+2*i,2)}, {v(RED[0]+2*i,2)}")
    for i in range(8): G(f"v_cvt_pk_bf16_f32 {v(OUTR+i)}, {v(U[3]+2*i)}, {v(U[3]+2*i+1)}")
    for i in range(4): G(f"v_permlane16_swap_b32 {v(OUTR+i)}, {v(OUTR+4+i)}")
    G(f"""
    buffer_store_dwordx4 {v(OUTR,4)}, {v(nXA)}, {s(SOUT,4)}, 0 offen
    buffer_store_dwordx4 {v(OUTR+4,4)}, {v(nXA)}, {s(SOUT,4)}, 0 offen offset:1024
    """)
    G.stamp('end')

def main(path, cfg):
    A = Asm()
    A.raw(HDR.rstrip('\n'))
    A.raw(f"; @launch grid=(256,1,1) block=(512,1,1) lds={LDS_TOTAL}")
    A.raw('.amdgcn_target "amdgcn-amd-amdhsa--gfx950"\n.text')
    n = NAME + "_kernel"
    A.raw(f".globl {n}\n.p2align 8\n.type {n},@function\n{n}:")
    A(f"""
    s_cmp_ge_u32 s2, 256
    s_cbranch_scc1 K_END
    s_load_dwordx16 s[64:79], s[0:1], 0
    s_load_dwordx4 s[80:83], s[0:1], 64
    s_memrealtime {s(sTS,2)}
    s_getreg_b32 {s(sXCC)}, hwreg(HW_REG_XCC_ID, 0, 4)
    v_lshrrev_b32 v1, 6, v0
    v_and_b32 v0, 63, v0
    v_readfirstlane_b32 {s(sW8)}, v1
    s_and_b32 {s(sXCD)}, s2, 7
    s_lshr_b32 {s(sIDX)}, s2, 3
    s_lshr_b32 {s(sRBL)}, {s(sIDX)}, 3
    s_and_b32 {s(sCB)}, {s(sIDX)}, 7
    s_lshl_b32 {s(sRB)}, {s(sXCD)}, 2
    s_add_u32 {s(sRB)}, {s(sRB)}, {s(sRBL)}
    s_and_b32 {s(sM)}, {s(sIDX)}, 15
    s_lshr_b32 {s(sG)}, {s(sRB)}, 1
    s_mov_b32 {s(sONE)}, 0x3f803f80
    s_and_b32 {s(sW)}, {s(sW8)}, 3
    s_cmp_lt_u32 {s(sW8)}, 4
    s_cbranch_scc1 PROG_A
    """)
    def pad(G):
        if not G.probed: return
        A(f"s_add_u32 s36, s36, 4000")
        A.label(G.pfx + "PADL")
        A(f"""
        s_memrealtime s[50:51]
        s_waitcnt lgkmcnt(0)
        s_sub_u32 s50, s50, s36
        s_cmp_lt_i32 s50, 0
        s_cbranch_scc1 {G.pfx}PADL
        """)
    GB = Gen(cfg, A, "B_"); prog_b(GB); pad(GB)
    A("s_endpgm")
    A.label("PROG_A")
    GA = Gen(cfg, A, "A_"); prog_a(GA); pad(GA)
    A.label("K_END")
    A("s_endpgm")
    assert GA.bars == GB.bars, (GA.bars, GB.bars)
    A.raw('.section .rodata,"a"\n.p2align 6')
    A.raw(f""".amdhsa_kernel {n}
  .amdhsa_next_free_vgpr 256
  .amdhsa_next_free_sgpr 102
  .amdhsa_accum_offset 256
  .amdhsa_group_segment_fixed_size 0
  .amdhsa_kernarg_size 80
  .amdhsa_user_sgpr_count 2
  .amdhsa_user_sgpr_kernarg_segment_ptr 1
  .amdhsa_system_sgpr_workgroup_id_x 1
.end_amdhsa_kernel""")
    open(path, 'w').write(A.finalize())
    print("barriers:", len(GA.bars)); print("stampsA:", GA.names); print("stampsB:", GB.names)

if __name__ == '__main__':
    cfg = Cfg()
    for a_ in sys.argv[2:]:
        k, val = a_.split('=')
        setattr(cfg, k, val if k == 'probe' else int(val))
    main(sys.argv[1], cfg)
```

```python
import sys, re
from asmlib import *
import layout as L

NAME = "sequential_preLN__sliding_local_dilated__glu_gated_reglu__prompt"
HDR = open('cdna_kernels/' + NAME + '.s.ref').read().split('; Override launch')[0]

class Cfg:
    stamps = 0
    probe = ''
    force_slow = 0
    touch = 0
    skew = 6
    pre2 = 7
    gap = 64
    prioA = 0
    prioB = 0
    wd_early = 1
    fine = 0
    skipwd = 1
    nb0 = 2
    pretouch = 0
    dsc1 = 0
    tH = 0
    tS = 0
    hti = 2
    hht = 16
    tlb = 0
    ramp = 3
    wd0 = 3
    ndma = 9
    ndma7 = 4
    rotm = 1
    rots = 2
    abl = 0
    bflush = 5
    gapB = 32
    npf = 2
    l345 = 2

SX, SW1, SWO, SWD, SOUT, SWS, SDBG, SMU, sST = 4, 8, 12, 16, 20, 24, 28, 32, 36
sXCD, sIDX, sRBL, sCB, sW, sG, sRB, sM = 40, 41, 42, 43, 44, 45, 46, 47
sONE, sMODE = 48, 49
sT0, sT1, sT2, sT3, sT4, sT5 = 50, 51, 52, 53, 54, 55
sB0, sCNT = 56, 57
sEXH = 58
sMX, sMH, sMW, sSX = 60, 61, 62, 63
sKO = 64
sMWL, sB1 = 86, 87
sROT3, sW3S, sW3G, sA3, sWB, sO0, sO1 = 88, 89, 90, 91, 92, 93, 94
sXCC = 95
sTS = 96
sTB, sTB1, sW8, sSW = 98, 99, 100, 101
sMW0 = 3
sR2, sW1K = 98, 99

class Gen:
    def __init__(self, cfg, A, pfx):
        self.A = A; self.cfg = cfg; self.pfx = pfx
        self.vm = 0; self.tags = {}; self.nstamp = 0; self.names = []
        self.t = 0; self.tm = 0; self.nv = 0
        self.q = []; self.cur = []; self.inbg = False; self.bg_on = True
        self.lg = 0; self.ldone = 0; self.lpend = {}; self.vdone = 0; self.vpend = {}
        self.bars = []
        self.dummy = None
        self.probed = False
        self.sv = (253, 254)
    def _autowait(self, ins):
        regs = [r for r in list(ins.rd) + list(ins.wr) if r[0] in 'va']
        nl = max([self.lpend.get(r, 0) for r in regs] + [0])
        nvm = max([self.vpend.get(r, 0) for r in regs] + [0])
        parts = []
        if nvm > self.vdone:
            parts.append(f"vmcnt({min(self.vm - nvm, 63)})"); self.vdone = nvm
        if nl > self.ldone:
            parts.append(f"lgkmcnt({min(self.lg - nl, 15)})"); self.ldone = nl
        if parts:
            self.A("s_waitcnt " + " ".join(parts)); self.t += 4
    def _note_wait(self, ln):
        m = re.search(r'vmcnt\((\d+)\)', ln)
        if m: self.vdone = max(self.vdone, self.vm - int(m.group(1)))
        m = re.search(r'lgkmcnt\((\d+)\)', ln)
        if m: self.ldone = max(self.ldone, self.lg - int(m.group(1)))
    def lwait_all(self):
        if self.ldone < self.lg: self._emit("s_waitcnt lgkmcnt(0)")
    def lwait(self, idx):
        if self.ldone < idx: self._emit(f"s_waitcnt lgkmcnt({min(self.lg - idx, 15)})")
    def _emit(self, ln):
        ins = Ins(ln)
        if ins.cls in ('valu', 'mfma', 'lds', 'vmem'): self._autowait(ins)
        self.A(ln)
        op = ins.op
        if op == 's_waitcnt': self._note_wait(ln)
        if ins.cls == 'lds':
            self.lg += 1
            for r in ins.wr: self.lpend[r] = self.lg
        if ins.cls == 'vmem':
            for r in ins.wr:
                if r != self.dummy: self.vpend[r] = self.vm + 1
        if op.startswith('v_mfma'):
            st = max(self.t, self.tm); self.t = st + 8; self.tm = st + (32 if '32x32' in op else 16)
        elif ins.cls == 'vmem':
            self.vm += 1
            self.t = max(self.t, self.nv) + 8; self.nv = self.t + (self.cfg.gapB if self.pfx == 'B_' else self.cfg.gap)
        elif ins.cls == 'lds': self.t += 10
        else: self.t += 4
    def __call__(self, t):
        for ln in t.strip().split('\n'):
            ln = ln.strip()
            if ln: self._emit(ln)
        self.pump()
    def _next(self):
        while not self.cur and self.q: self.cur = list(self.q.pop(0))
        return self.cur.pop(0) if self.cur else None
    def _has(self): return bool(self.cur) or any(self.q)
    def _one(self):
        it = self._next()
        self.inbg = True
        self.item(it)
        while self.cur and isinstance(self.cur[0], tuple) and self.cur[0][0] == 'TAG': self.item(self.cur.pop(0))
        self.inbg = False
    def pump(self):
        if self.inbg or not self.bg_on: return
        while self._has() and self.t >= self.nv: self._one()
    def bg(self, group): self.q.append(list(group))
    def flush(self, tag=None):
        while self._has() and (tag is None or tag not in self.tags): self._one()
    def tag(self, name): self.tags[name] = self.vm
    def wait_tag(self, name):
        if name not in self.tags: self.flush(name)
        if self.tags[name] <= self.vdone: return
        self._emit(f"s_waitcnt vmcnt({min(self.vm - self.tags[name], 63)})")
    def bar(self, name):
        if self.cfg.fine and name.startswith({1: 'c', 2: 'zz', 3: 'p3_', 4: 'p4_'}[self.cfg.fine]): self.stamp('@' + name)
        self.bars.append(name); self._emit("s_barrier"); self.nv = self.t
        if self.cfg.fine == 3 and name.startswith('p3_') and self.pfx == 'A_': self.stamp('>' + name)
    def asyncA(self):
        self.bsync('svcA')
    def bsync(self, name):
        off = CNT + {'wo': 0, 'red4': 4, 'red4a': 8}[name]
        self.bg_on = False
        self(f"""
        v_mov_b32 v2, {off}
        v_mov_b32 v3, 1
        s_mov_b64 exec, 1
        ds_add_u32 v2, v3
        s_mov_b64 exec, -1
        s_mov_b32 {s(sCNT)}, 0
        """)
        self.A.label("BS_" + name)
        self.A(f"""
        ds_read_b32 v3, v2
        s_add_u32 {s(sCNT)}, {s(sCNT)}, 1
        s_waitcnt lgkmcnt(0)
        v_readfirstlane_b32 {s(sT5)}, v3
        s_cmp_ge_u32 {s(sCNT)}, 0x100000
        s_cbranch_scc1 BS_{name}_D
        s_cmp_lt_u32 {s(sT5)}, 4
        s_cbranch_scc1 BS_{name}
        """)
        self.A.label(f"BS_{name}_D")
        self.ldone = self.lg
        self.bg_on = True
    def items(self, lst):
        for it in lst: self.item(it)
    def stamp(self, name=''):
        if self.cfg.probe == self.pfx + name:
            self(f"s_memrealtime s[36:37]\ns_waitcnt lgkmcnt(0)"); self.probed = True
        if not self.cfg.stamps: return
        i = self.nstamp; self.nstamp += 1; self.names.append(name)
        on = self.bg_on; self.bg_on = False
        self(f"""
        {'s_memtime' if self.cfg.stamps == 2 else 's_memrealtime'} {s(sTS,2)}
        s_waitcnt lgkmcnt(0)
        v_writelane_b32 v{self.vS}, {s(sTS)}, {i}
        """)
        self.bg_on = on
        if name == 'end':
            self(f"""
            v_lshlrev_b32 v2, 3, v0
            v_mov_b32 v4, v{self.vS}
            v_mov_b32 v5, 0
            v_cmp_gt_u32 vcc, 32, v0
            s_and_b64 exec, exec, vcc
            buffer_store_dwordx2 v[4:5], v2, {s(sST,4)}, 0 offen
            s_mov_b64 exec, -1
            """)
    def item(self, it):
        if isinstance(it, tuple):
            if it[0] == 'WAIT': self.wait_tag(it[1])
            elif it[0] == 'TAG': self.tag(it[1])
            elif it[0] == 'BG': self.bg(it[1])
            elif it[0] == 'BAR': self.lwait_all(); self.bar(it[1])
            elif it[0] == 'BSYNC': self.bsync(it[1])
        else: self(it)
    def spread(self, main, fill):
        n, m = len(main), len(fill); fi = 0
        for i, x in enumerate(main):
            self(x)
            while fi < m and fi * n < (i + 1) * m:
                self.item(fill[fi]); fi += 1
        while fi < m: self.item(fill[fi]); fi += 1
    def front(self, main, fill, per=1):
        fi = 0
        for x in main:
            self(x)
            for _ in range(per):
                if fi < len(fill): self.item(fill[fi]); fi += 1
        while fi < len(fill): self.item(fill[fi]); fi += 1

XCH = 10240
WRING = 8 * XCH
WSLOT = 24576
S0, S1, S2 = WRING, WRING + WSLOT, WRING + 2 * WSLOT
STATS1 = WRING + 3 * WSLOT
STATS3 = STATS1 + 1024
CSX = STATS3 + 1024
WDT = 49152
HHS = 88 * 1024
RING4 = 49152
LDS_TOTAL = 163840
SG_OFF = L.FL_OFF + 2048
CNT = STATS1 + 1000
STG = STATS1 + 896
vL = 0

def srd(dst, src, size):
    return f"""
    s_mov_b32 {s(dst)}, {s(src)}
    s_and_b32 {s(dst+1)}, {s(src+1)}, 0xffff
    s_mov_b32 {s(dst+2)}, {size}
    s_mov_b32 {s(dst+3)}, 0x20000
    """
def common_srds(cfg):
    t = f"""
    s_mul_i32 {s(sT0)}, {s(sG)}, {L.GSTRIDE}
    s_add_u32 {s(SWS)}, s82, {s(sT0)}
    s_addc_u32 {s(SWS+1)}, s83, 0
    s_and_b32 {s(SWS+1)}, {s(SWS+1)}, 0xffff
    s_mov_b32 {s(SWS+2)}, {L.GSTRIDE}
    s_mov_b32 {s(SWS+3)}, 0x20000
    s_bitcmp1_b32 {s(sW)}, 0
    s_cselect_b32 {s(SMU)}, s74, s72
    s_cselect_b32 {s(SMU+1)}, s75, s73
    s_and_b32 {s(SMU+1)}, {s(SMU+1)}, 0xffff
    s_cmp_eq_u32 {s(sM)}, 15
    s_cselect_b32 {s(SMU+2)}, 0, {512*2752}
    s_mov_b32 {s(SMU+3)}, 0x20000
    """ + srd(SDBG, 80, 256)
    if cfg.stamps:
        t += f"""
        s_lshl_b32 {s(sT0)}, s2, 11
        s_lshl_b32 {s(sT1)}, {s(sW8)}, 8
        s_add_u32 {s(sT0)}, {s(sT0)}, {s(sT1)}
        s_add_u32 {s(sT0)}, {s(sT0)}, {L.STAMP_OFF}
        s_add_u32 {s(sST)}, s82, {s(sT0)}
        s_addc_u32 {s(sST+1)}, s83, 0
        s_and_b32 {s(sST+1)}, {s(sST+1)}, 0xffff
        s_mov_b32 {s(sST+2)}, 256
        s_mov_b32 {s(sST+3)}, 0x20000
        """
    return t

def stores(G, lst, label):
    bit = {'ST1': 1, 'ST2': 2, 'ST2B': 8, 'ST3': 4, 'ST3Z': 4, 'ST3P': 4}.get(label, 0)
    if G.cfg.dsc1 & bit:
        for x in lst: G._emit(x + " sc1")
        G.A.label(G.pfx + label + "_DONE")
        return
    A = G.A; label = G.pfx + label
    for x in lst: G._autowait(Ins(x))
    A(f"""
    s_cmp_lg_u32 {s(sMODE)}, 0
    s_cbranch_scc1 {label}_SLOW
    """)
    for x in lst: A(x)
    A(f"s_branch {label}_DONE")
    A.label(f"{label}_SLOW")
    for x in lst: A((x + " sc1") if x.startswith('buffer_store') else x)
    A.label(f"{label}_DONE")
    G.vm += sum(1 for x in lst if x.startswith('buffer_'))

def signal(G, phase, vFE):
    G.bg_on = False
    G(f"""
    v_add_u32 v2, {phase}, {v(vFE)}
    v_mov_b32 v3, {v(vFE+1)}
    s_lshl_b32 {s(sT0)}, {s(sM)}, 2
    s_add_u32 {s(sT0)}, {s(sT0)}, {s(sW)}
    s_lshl_b32 {s(sT0)}, {s(sT0)}, 3
    s_add_u32 {s(sT0)}, {s(sT0)}, {L.FL_OFF + phase*512}
    v_mov_b32 v4, {s(sT0)}
    s_waitcnt vmcnt(0)
    s_mov_b64 exec, 1
    """)
    stores(G, [f"buffer_store_dwordx2 v[2:3], v4, {s(SWS,4)}, 0 offen"], f"SIG{phase}")
    G.bg_on = True; G.nv = G.t
    G("s_mov_b64 exec, -1")

def poll(G, phase, vFE):
    A = G.A
    if phase == 0:
        A(f"""
        v_and_b32 v4, 31, v0
        s_and_b32 {s(sT0)}, {s(sM)}, 8
        s_lshl_b32 {s(sT0)}, {s(sT0)}, 2
        v_add_u32 v4, {s(sT0)}, v4
        v_lshlrev_b32 v4, 3, v4
        """)
    else:
        A("v_lshlrev_b32 v4, 3, v0")
    A(f"""
    v_add_u32 v2, {phase}, {v(vFE)}
    v_mov_b32 v3, {v(vFE+1)}
    s_mov_b32 {s(sCNT)}, 0
    s_mov_b32 {s(sT0)}, {L.FL_OFF + phase*512}
    """)
    A.label(f"POLL{phase}")
    A(f"""
    buffer_load_dwordx2 v[6:7], v4, {s(SWS,4)}, {s(sT0)} offen sc1
    s_add_u32 {s(sCNT)}, {s(sCNT)}, 1
    s_waitcnt vmcnt(0)
    v_cmp_ne_u64 vcc, v[6:7], v[2:3]
    s_cmp_ge_u32 {s(sCNT)}, 20000
    s_cbranch_scc1 POLL{phase}_DONE
    s_cbranch_vccnz POLL{phase}
    """)
    A.label(f"POLL{phase}_DONE")
    G.vdone = G.vm; G.nv = G.t

def regdecode(G, vFE, vaddr):
    A = G.A; p = G.pfx
    G._autowait(Ins(f"v_mov_b32 {v(vFE)}, {v(vFE+1)}"))
    G(f"s_mov_b32 {s(sCNT)}, 0")
    A.label(p + "REGPOLL")
    A(f"""
    v_readfirstlane_b32 {s(sT0)}, {v(vFE)}
    v_readfirstlane_b32 {s(sT1)}, {v(vFE+1)}
    s_and_b32 {s(sT2)}, {s(sT0)}, 31
    s_cmp_eq_u32 {s(sT2)}, 16
    s_cbranch_scc1 {p}REGOK
    s_add_u32 {s(sCNT)}, {s(sCNT)}, 1
    s_cmp_ge_u32 {s(sCNT)}, 20000
    s_cbranch_scc1 {p}REGOK
    buffer_load_dwordx2 {v(vFE,2)}, {v(vaddr)}, {s(SDBG,4)}, 0 offen offset:128 sc1
    s_waitcnt vmcnt(0)
    s_branch {p}REGPOLL
    """)
    A.label(p + "REGOK")
    G(f"""
    s_bfe_u32 {s(sT2)}, {s(sT0)}, {5 | (7 << 16)}
    s_bfe_u32 {s(sT3)}, {s(sT0)}, {12 | (10 << 16)}
    s_mul_i32 {s(sT2)}, {s(sT2)}, {s(sT2)}
    s_lshl_b32 {s(sT3)}, {s(sT3)}, 4
    s_cmp_lg_u32 {s(sT2)}, {s(sT3)}
    s_cselect_b32 {s(sMODE)}, 1, {1 if G.cfg.force_slow else 0}
    s_and_b32 {s(sT0)}, {s(sT0)}, 0xffc00000
    s_or_b32 {s(sT0)}, {s(sT0)}, 0x5a5a0
    v_mov_b32 {v(vFE)}, {s(sT0)}
    v_mov_b32 {v(vFE+1)}, {s(sT1)}
    """)

def lch(l): return ((l >> 1) & 1) * 4 + (l >> 2) * 2 + (l & 1)
def w3_setup(vP3, t0, t1, t2):
    out = f"""
    s_mul_i32 {s(sT0)}, {s(sM)}, 192
    s_mov_b32 {s(sT1)}, 0x15555556
    s_and_b32 {s(sT2)}, {s(sW)}, 1
    s_lshr_b32 {s(sT4)}, {s(sW)}, 1
    s_mul_i32 {s(sW3S)}, {s(sT2)}, 12288
    s_mul_i32 {s(sT5)}, {s(sT4)}, 6144
    s_add_u32 {s(sW3S)}, {s(sW3S)}, {s(sT5)}
    s_mul_i32 {s(sW3G)}, {s(sT4)}, {32*2752}
    s_and_b32 {s(sROT3)}, {s(sG)}, 1
    s_lshl_b32 {s(sROT3)}, {s(sROT3)}, 2
    s_lshl_b32 {s(sT2)}, {s(sT2)}, 1
    """
    for i in range(3):
        out += f"""
        v_add_u32 {v(t0)}, {64*i}, {v(vL)}
        v_mul_hi_u32 {v(t1)}, {v(t0)}, {s(sT1)}
        v_mul_u32_u24 {v(t2)}, 12, {v(t1)}
        v_sub_u32 {v(t2)}, {v(t0)}, {v(t2)}
        v_mul_u32_u24 {v(t1)}, 2752, {v(t1)}
        v_add_u32 {v(t1)}, {s(sT0)}, {v(t1)}
        v_subrev_u32 {v(t1)}, {1024*i}, {v(t1)}
        v_subrev_u32 {v(t2)}, {s(sT2)}, {v(t2)}
        v_add_u32 {v(t0)}, 12, {v(t2)}
        v_cmp_gt_i32 vcc, 0, {v(t2)}
        v_cndmask_b32 {v(t2)}, {v(t2)}, {v(t0)}, vcc
        v_lshl_add_u32 {v(vP3+i)}, {v(t2)}, 4, {v(t1)}
        """
    return out
def w3_dma(c, base, vP3):
    g = [f"""
    s_xor_b32 {s(sB0)}, {s(sROT3)}, {lch(c)}
    s_mul_i32 {s(sB0)}, {s(sB0)}, {64*2752}
    s_add_u32 {s(sB0)}, {s(sB0)}, {s(sW3G)}
    s_add_u32 m0, {s(sW3S)}, {base}
    s_add_u32 {s(sB1)}, {s(sB0)}, {16*2752}
    buffer_load_dwordx4 {v(vP3+0)}, {s(SMU,4)}, {s(sB0)} offen lds
    """]
    g.append(f"buffer_load_dwordx4 {v(vP3+1)}, {s(SMU,4)}, {s(sB0)} offen offset:1024 lds")
    g.append(f"buffer_load_dwordx4 {v(vP3+2)}, {s(SMU,4)}, {s(sB0)} offen offset:2048 lds")
    g.append(f"""
    s_add_u32 m0, {s(sW3S)}, {base + 3072}
    s_nop 0
    buffer_load_dwordx4 {v(vP3+0)}, {s(SMU,4)}, {s(sB1)} offen lds
    """)
    g.append(f"buffer_load_dwordx4 {v(vP3+1)}, {s(SMU,4)}, {s(sB1)} offen offset:1024 lds")
    g.append(f"buffer_load_dwordx4 {v(vP3+2)}, {s(SMU,4)}, {s(sB1)} offen offset:2048 lds")
    g.append(('TAG', f"w3_{c}"))
    return g
def p4_table():
    tb = [f"""
    s_mul_i32 {s(sT0)}, {s(sRBL)}, 11
    s_lshr_b32 {s(sT0)}, {s(sT0)}, 1
    s_lshl_b32 {s(sT0)}, {s(sT0)}, 12
    s_lshl_b32 {s(sT1)}, {s(sW)}, 10
    """]
    for j in range(22):
        tb.append(f"""
        s_add_u32 {s(sKO+j)}, {s(sT0)}, {s(sT1)}
        s_add_u32 {s(sT0)}, {s(sT0)}, 4096
        s_cmp_eq_u32 {s(sT0)}, {22*4096}
        s_cselect_b32 {s(sT0)}, 0, {s(sT0)}
        """)
    return tb
def ks_addr(a_base, tile_stride, vL16, d0, d1):
    return f"""
    s_and_b32 {s(sT1)}, {s(sRB)}, 1
    s_lshl_b32 {s(sT1)}, {s(sT1)}, 1
    s_lshr_b32 {s(sT0)}, {s(sW)}, 1
    s_add_u32 {s(sT2)}, {s(sT1)}, {s(sT0)}
    s_xor_b32 {s(sT1)}, {s(sT2)}, 1
    s_mul_i32 {s(sT1)}, {s(sT1)}, {tile_stride}
    s_mul_i32 {s(sT2)}, {s(sT2)}, {tile_stride}
    s_add_u32 {s(sT1)}, {s(sT1)}, {a_base}
    s_add_u32 {s(sT2)}, {s(sT2)}, {a_base}
    v_add_u32 {v(d0)}, {s(sT1)}, {v(vL16)}
    v_add_u32 {v(d1)}, {s(sT2)}, {v(vL16)}
    """
W3SLOT = {0: S2, 1: S0, 2: S1, 3: S2, 4: S0, 5: S1, 6: S2, 7: S0}
W3BAR = {3: 3, 4: 7, 5: 11, 6: 15, 7: 19}
NB4 = 11
PFORD = [2, 3, 4]

def prog_a(G):
    A = G.A; cfg = G.cfg
    t0, t1, t2, t3, t4 = 1, 2, 3, 4, 5
    vXa0, vXa1, vWa, vS1, vS2, vOA, vRA = 8, 9, 10, 11, 12, 13, 14
    FA, FB = 16, 48
    ACC = 80
    vL16, vFE, vW3o, vW3s, vA01, vA23, vP3 = 148, 150, 149, 152, 153, 154, 155
    BIAS = 160
    G.sv = (158, 146); G.vS = 159
    Qa = lambda T: ACC + 4 * T
    Ka = lambda T: ACC + 20 + 4 * T
    Va = lambda T: ACC + 40 + 4 * T
    if cfg.prioA: G(f"s_setprio {cfg.prioA}")
    G(f"""
    v_lshlrev_b32 {v(vL16)}, 4, v0
    s_mul_i32 {s(sT0)}, {s(sCB)}, 10
    s_mul_i32 {s(sT1)}, {s(sW)}, 3
    s_add_u32 {s(sT0)}, {s(sT0)}, {s(sT1)}
    s_lshl_b32 {s(sT5)}, {s(sRB)}, 6
    s_mov_b32 {s(SX+2)}, {2048*1024}
    s_mov_b32 {s(SX+3)}, 0x20000
    """)
    for k in range(3):
        G(f"""
        s_add_u32 {s(sT1)}, {s(sT0)}, {k}
        s_min_u32 {s(sT1)}, {s(sT1)}, 79
        s_and_b32 {s(sT2)}, {s(sT1)}, 15
        s_lshr_b32 {s(sT3)}, {s(sT1)}, 5
        s_lshl_b32 {s(sT3)}, {s(sT3)}, 5
        s_lshl_b32 {s(sT4)}, {s(sT2)}, 1
        s_add_u32 {s(sT3)}, {s(sT3)}, {s(sT4)}
        s_bfe_u32 {s(sT4)}, {s(sT1)}, {4 | (1 << 16)}
        s_add_u32 {s(sT3)}, {s(sT3)}, {s(sT4)}
        s_add_u32 {s(sT3)}, {s(sT3)}, {s(sT5)}
        s_add_u32 {s(sT2)}, {s(sT2)}, {s(sT5)}
        s_sub_i32 {s(sT2)}, {s(sT2)}, 16
        s_max_i32 {s(sT2)}, {s(sT2)}, 0
        s_cmp_ge_u32 {s(sT1)}, 64
        s_cselect_b32 {s(sT3)}, {s(sT2)}, {s(sT3)}
        s_lshl_b32 {s(sMX+k)}, {s(sT3)}, 10
        """)
    XS = 208
    G(f"""
    s_waitcnt lgkmcnt(0)
    s_mov_b32 {s(SX)}, s64
    s_and_b32 {s(SX+1)}, s65, 0xffff
    buffer_load_dwordx4 {v(XS,4)}, {v(vL16)}, {s(SX,4)}, {s(sMX)} offen
    buffer_load_dwordx4 {v(XS+4,4)}, {v(vL16)}, {s(SX,4)}, {s(sMX+1)} offen
    buffer_load_dwordx4 {v(XS+8,4)}, {v(vL16)}, {s(SX,4)}, {s(sMX+2)} offen
    v_lshrrev_b32 {v(t2)}, 4, {v(vL)}
    v_and_b32 {v(t0)}, 15, {v(vL)}
    v_lshrrev_b32 {v(t1)}, 1, {v(t0)}
    v_xor_b32 {v(t1)}, {v(t1)}, {v(t2)}
    v_lshlrev_b32 {v(t1)}, 4, {v(t1)}
    v_lshl_add_u32 {v(vXa0)}, {v(t0)}, 7, {v(t1)}
    v_xor_b32 {v(vXa1)}, 64, {v(vXa0)}
    v_mul_u32_u24 {v(vWa)}, 3072, {v(t2)}
    v_bfe_u32 {v(t1)}, {v(vL)}, 2, 2
    v_lshl_add_u32 {v(vWa)}, {v(t1)}, 7, {v(vWa)}
    v_lshrrev_b32 {v(t1)}, 1, {v(t1)}
    v_and_b32 {v(t3)}, 1, {v(t2)}
    v_lshl_or_b32 {v(t1)}, {v(t3)}, 1, {v(t1)}
    v_xor_b32 {v(t1)}, {s(sW)}, {v(t1)}
    v_lshl_add_u32 {v(vWa)}, {v(t1)}, 5, {v(vWa)}
    v_and_b32 {v(t1)}, 3, {v(vL)}
    v_lshl_add_u32 {v(vWa)}, {v(t1)}, 3, {v(vWa)}
    v_add_u32 {v(vWa)}, {WRING}, {v(vWa)}
    v_lshlrev_b32 {v(vS1)}, 2, {v(t0)}
    v_add_u32 {v(vS1)}, {STATS1}, {v(vS1)}
    v_lshlrev_b32 {v(vS2)}, 4, {v(t2)}
    v_add_u32 {v(vS2)}, {STATS1}, {v(vS2)}
    v_lshrrev_b32 {v(t1)}, 3, {v(vL)}
    v_mul_u32_u24 {v(t1)}, {XCH}, {v(t1)}
    v_and_b32 {v(t3)}, 7, {v(vL)}
    v_lshl_add_u32 {v(t1)}, {v(t3)}, 4, {v(t1)}
    v_mov_b32 {v(FA)}, {s(sONE)}
    v_mov_b32 {v(FA+1)}, {s(sONE)}
    v_mov_b32 {v(FA+2)}, {s(sONE)}
    v_mov_b32 {v(FA+3)}, {s(sONE)}
    ds_write_b128 {v(t1)}, {v(FA,4)} offset:8192
    """)
    NEG = "0xf149f2ca"
    G(f"""
    v_mov_b32 {v(t4)}, {NEG}
    v_lshlrev_b32 {v(t1)}, 2, {v(t2)}
    v_sub_u32 {v(t3)}, {v(t0)}, {v(t1)}
    """)
    for r in range(4):
        G(f"""
        v_subrev_u32 {v(t1)}, {r}, {v(t3)}
        v_cmp_ge_u32 vcc, 7, {v(t1)}
        v_cmp_ge_i32 {s(sT4,2)}, -9, {v(t1)}
        v_cndmask_b32 {v(BIAS+r)}, {v(t4)}, 0, vcc
        v_cndmask_b32 {v(BIAS+4+r)}, {v(t4)}, 0, {s(sT4,2)}
        """)
    G(f"""
    s_cmp_eq_u32 {s(sRB)}, 0
    s_cselect_b32 {s(sT0)}, 64, 2
    v_lshlrev_b32 {v(t1)}, 2, {v(t2)}
    v_lshlrev_b32 {v(t3)}, 1, {v(t0)}
    v_sub_u32 {v(t3)}, {v(t1)}, {v(t3)}
    v_subrev_u32 {v(t3)}, {s(sT0)}, {v(t3)}
    v_cmp_le_i32 vcc, 0, {v(t3)}
    v_cmp_le_i32 {s(sT4,2)}, -2, {v(t3)}
    v_mov_b32 {v(BIAS+9)}, {v(t4)}
    v_mov_b32 {v(BIAS+11)}, {v(t4)}
    v_mov_b32 {v(BIAS+12)}, {v(t4)}
    v_mov_b32 {v(BIAS+14)}, {v(t4)}
    v_cndmask_b32 {v(BIAS+8)}, {v(t4)}, 0, vcc
    v_cndmask_b32 {v(BIAS+10)}, {v(t4)}, 0, {s(sT4,2)}
    v_cndmask_b32 {v(BIAS+13)}, {v(t4)}, 0, vcc
    v_cndmask_b32 {v(BIAS+15)}, {v(t4)}, 0, {s(sT4,2)}
    s_waitcnt lgkmcnt(0)
    """)
    G(common_srds(cfg))
    if cfg.tlb:
        G.dummy = ('v', 147)
        G(srd(SWO, 68, 512*1024) + srd(SWD, 76, 1376*1024) + srd(SOUT, 78, 2048*1024) + srd(SW1, 66, 512*3072))
        G(f"""
        v_lshlrev_b32 v2, {cfg.tlb}, v0
        s_lshl_b32 {s(sT0)}, {s(sRB)}, 16
        v_min_u32 v3, {L.GSTRIDE - 4}, v2
        v_and_b32 v3, {(~((1 << cfg.tlb) - 1)) & 0xffffffff}, v3
        buffer_load_dword v147, v2, {s(SMU,4)}, 0 offen
        buffer_load_dword v147, v2, {s(SWD,4)}, 0 offen
        buffer_load_dword v147, v2, {s(SWO,4)}, 0 offen
        buffer_load_dword v147, v2, {s(SW1,4)}, 0 offen
        v_mov_b32 v4, 0
        buffer_load_dword v147, v4, {s(SOUT,4)}, {s(sT0)} offen
        buffer_load_dword v147, v4, {s(SWS,4)}, 0 offen
        v_mov_b32 v4, {L.GSTRIDE - 4096}
        buffer_load_dword v147, v4, {s(SWS,4)}, 0 offen
        """)
    G.stamp('start')
    G(f"""
    s_and_b32 {s(sO0)}, {s(sRB)}, 1
    s_lshl_b32 {s(sO0)}, {s(sO0)}, 16
    s_lshl_b32 {s(sT1)}, {s(sCB)}, 12
    s_add_u32 {s(sO0)}, {s(sO0)}, {s(sT1)}
    s_lshl_b32 {s(sT1)}, {s(sW)}, 10
    s_add_u32 {s(sO0)}, {s(sO0)}, {s(sT1)}
    s_add_u32 {s(sO0)}, {s(sO0)}, {L.O_OFF}
    s_add_u32 {s(sO1)}, {s(sO0)}, 32768
    v_and_b32 {v(vOA)}, 15, v0
    v_bfe_u32 v3, v0, 4, 1
    v_lshl_add_u32 {v(vOA)}, v3, 5, {v(vOA)}
    v_lshrrev_b32 v3, 5, v0
    v_lshl_add_u32 {v(vOA)}, v3, 4, {v(vOA)}
    v_lshlrev_b32 {v(vOA)}, 4, {v(vOA)}
    s_lshl_b32 {s(sT0)}, {s(sG)}, 3
    v_mov_b32 {v(vRA)}, {s(sT0)}
    """)
    SA = 224
    G0 = G; stat = []
    G = lambda t: stat.extend(x.strip() for x in t.strip().split('\n') if x.strip())
    for i in range(3): G(f"v_mov_b64 {v(SA+2*i,2)}, 0")
    for j in range(4):
        for k in range(3):
            G(f"v_dot2c_f32_bf16 {v(SA+2*k)}, {s(sONE)}, {v(XS+4*k+j)}\nv_dot2c_f32_bf16 {v(SA+2*k+1)}, {v(XS+4*k+j)}, {v(XS+4*k+j)}")
    for dpp in ("quad_perm:[1,0,3,2]", "quad_perm:[2,3,0,1]", "row_half_mirror", "row_mirror"):
        for i in range(6): G(f"v_add_f32_dpp {v(SA+i)}, {v(SA+i)}, {v(SA+i)} {dpp} row_mask:0xf bank_mask:0xf")
    for sw in ("v_permlane16_swap_b32", "v_permlane32_swap_b32"):
        for i in range(6): G(f"v_mov_b32 {v(SA+8+i)}, {v(SA+i)}")
        for i in range(6): G(f"{sw} {v(SA+i)}, {v(SA+8+i)}")
        for i in range(6): G(f"v_add_f32 {v(SA+i)}, {v(SA+i)}, {v(SA+8+i)}")
    for i in range(6): G(f"v_mul_f32 {v(SA+i)}, 0x3b000000, {v(SA+i)}")
    for k in range(3): G(f"v_fma_f32 {v(SA+2*k+1)}, -{v(SA+2*k)}, {v(SA+2*k)}, {v(SA+2*k+1)}")
    for k in range(3): G(f"v_max_f32 {v(SA+2*k+1)}, 0, {v(SA+2*k+1)}")
    for k in range(3): G(f"v_add_f32 {v(SA+2*k+1)}, 0x3727c5ac, {v(SA+2*k+1)}")
    for k in range(3): G(f"v_rsq_f32 {v(SA+2*k+1)}, {v(SA+2*k+1)}")
    G(f"""
    s_mul_i32 {s(sT0)}, {s(sW)}, 24
    s_add_u32 {s(sT0)}, {s(sT0)}, {STG}
    v_mov_b32 v2, {s(sT0)}
    """)
    for k in range(3): G(f"v_mul_f32 {v(SA+2*k)}, -{v(SA+2*k)}, {v(SA+2*k+1)}")
    for k in range(3): G(f"ds_write_b64 v2, {v(SA+2*k,2)} offset:{8*k}")
    G = G0
    K2 = [60, 61, 62, 63, 86, 58, 59, 101]
    G(f"""
    s_lshl_b32 {s(sR2)}, {s(sRBL)}, 13
    s_lshl_b32 {s(sW1K)}, {s(sW)}, 10
    s_and_b32 {s(sA3)}, {s(sRB)}, 1
    s_lshl_b32 {s(sA3)}, {s(sA3)}, 16
    s_add_u32 {s(sA3)}, {s(sA3)}, {L.O_OFF}
    """)
    for j in range(8):
        G(f"""
        s_add_u32 {s(K2[j])}, {s(sR2)}, {j*4096}
        s_and_b32 {s(K2[j])}, {s(K2[j])}, 32767
        s_add_u32 {s(K2[j])}, {s(K2[j])}, {s(sW1K)}
        """)
    if cfg.pretouch:
        G.dummy = ('v', 147)
        G(f"""
        v_lshrrev_b32 v2, 3, v0
        s_cmp_ge_u32 {s(sM)}, 14
        s_cselect_b32 {s(sT0)}, 1, 7
        v_min_u32 v2, {s(sT0)}, v2
        v_and_b32 v3, 7, v0
        v_lshlrev_b32 v3, 7, v3
        v_lshlrev_b32 v4, 15, v2
        v_add_u32 v4, {s(sO0)}, v4
        s_mul_i32 {s(sT0)}, {s(sM)}, 6144
        s_add_u32 {s(sT0)}, {s(sT0)}, {L.HH_OFF - 2*HHS}
        s_add_u32 {s(sT1)}, {s(sT0)}, {s(sW1K)}
        v_mul_u32_u24 v5, {HHS}, v2
        v_add_u32 v6, {s(sT1)}, v5
        v_cmp_gt_u32 vcc, 2, v2
        v_cndmask_b32 v4, v6, v4, vcc
        s_and_b32 {s(sT1)}, {s(sW)}, 1
        s_mul_i32 {s(sT1)}, {s(sT1)}, {2*HHS}
        s_add_u32 {s(sT0)}, {s(sT0)}, {s(sT1)}
        s_lshr_b32 {s(sT1)}, {s(sW)}, 1
        s_lshl_b32 {s(sT1)}, {s(sT1)}, 10
        s_add_u32 {s(sT0)}, {s(sT0)}, {s(sT1)}
        s_add_u32 {s(sT0)}, {s(sT0)}, {(4096 - 4*HHS) & 0xffffffff}
        v_add_u32 v6, {s(sT0)}, v5
        v_cmp_lt_u32 vcc, 5, v2
        v_cndmask_b32 v4, v4, v6, vcc
        v_add_u32 v4, v4, v3
        """)
        if cfg.pretouch == 1: G(f"buffer_load_dword v147, v4, {s(SWS,4)}, 0 offen sc1")
        else:
            G(f"""
            v_mov_b32 v158, v4
            s_mov_b64 exec, 0xffff
            buffer_load_dword v147, v4, {s(SWS,4)}, 0 offen sc1
            s_mov_b64 exec, -1
            """)
    G(f"v_mov_b32 v2, {CNT}\nv_mov_b64 v[4:5], 0\nds_write_b64 v2, v[4:5]\nds_write_b64 v2, v[4:5] offset:8")
    G.lwait_all()
    late = [x.strip() for x in w3_setup(vP3, t0, t1, t2).strip().split('\n') if x.strip()]
    late += [x.strip() for x in (f"""
    s_mov_b32 {s(sT4)}, {S0}
    s_lshl_b32 {s(sT0)}, {s(sW)}, 5
    s_lshr_b32 {s(sT1)}, {s(sW)}, 1
    s_lshl_b32 {s(sT1)}, {s(sT1)}, 5
    s_add_u32 {s(sT1)}, {s(sT1)}, 128
    v_lshrrev_b32 {v(t0)}, 5, {v(vL)}
    v_bfe_u32 {v(t1)}, {v(vL)}, 2, 2
    v_lshl_add_u32 {v(t0)}, {v(t0)}, 4, {v(t1)}
    v_mul_u32_u24 {v(t0)}, 192, {v(t0)}
    v_bfe_u32 {v(t1)}, {v(vL)}, 4, 1
    v_mul_u32_u24 {v(t2)}, 12288, {v(t1)}
    v_add3_u32 {v(t0)}, {v(t0)}, {v(t2)}, {s(sT4)}
    v_and_b32 {v(t2)}, 3, {v(vL)}
    v_lshlrev_b32 {v(t2)}, 3, {v(t2)}
    v_lshl_add_u32 {v(t2)}, {v(t1)}, 5, {v(t2)}
    v_add3_u32 {v(vW3o)}, {v(t0)}, {v(t2)}, {s(sT0)}
    v_add_u32 {v(t2)}, {s(sT1)}, {v(t2)}
    v_subrev_u32 {v(t3)}, 192, {v(t2)}
    v_cmp_le_u32 vcc, 192, {v(t2)}
    v_cndmask_b32 {v(t2)}, {v(t2)}, {v(t3)}, vcc
    v_add_u32 {v(vW3s)}, {v(t0)}, {v(t2)}
    s_and_b32 {s(sT0)}, {s(sW)}, 1
    s_lshl_b32 {s(sT0)}, {s(sT0)}, 13
    v_add_u32 {v(vA01)}, {s(sT0)}, {v(vL16)}
    v_xor_b32 {v(vA23)}, 0x2000, {v(vA01)}
    """).strip().split('\n') if x.strip()]
    late += p4_table()
    def reads(F, kh):
        xs = [f"ds_read_b128 {v(F+4*T,4)}, {v(vXa1 if kh else vXa0)} offset:{T*2048}" for T in range(5)]
        ws = [f"ds_read_b64_tr_b16 {v(F+20+4*sct+2*half,2)}, {v(vWa)} offset:{kh*12288+sct*1024+half*512}" for sct in range(3) for half in range(2)]
        return ws[:2] + xs[:1] + ws[2:4] + xs[1:2] + ws[4:] + xs[2:]
    def mfmas(F, first=False):
        out = []
        for T in range(5):
            x = v(F+4*T, 4)
            c = lambda r: "0" if first else v(r, 4)
            out.append(f"v_mfma_f32_16x16x32_bf16 {v(Qa(T),4)}, {v(F+20,4)}, {x}, {c(Qa(T))}")
            out.append(f"v_mfma_f32_16x16x32_bf16 {v(Ka(T),4)}, {v(F+24,4)}, {x}, {c(Ka(T))}")
            out.append(f"v_mfma_f32_16x16x32_bf16 {v(Va(T),4)}, {x}, {v(F+28,4)}, {c(Va(T))}")
        return out
    def adv(i):
        d = WSLOT if (i + 1) % 3 else (-2 * WSLOT) & 0xffffffff
        return [f"v_add_u32 {v(vWa)}, {d}, {v(vWa)}", f"v_add_u32 {v(vXa0)}, {XCH}, {v(vXa0)}", f"v_add_u32 {v(vXa1)}, {XCH}, {v(vXa1)}"]
    G.bar('c0')
    G.stamp('c0')
    for x in reads(FA, 0): G(x)
    for i in range(8):
        extra = [f"buffer_load_dwordx2 {v(vFE,2)}, {v(vRA)}, {s(SDBG,4)}, 0 offen offset:128 sc1"] if i == 6 else []
        G.front(mfmas(FA, i == 0), reads(FB, 1) + (adv(i) if i < 7 else []) + extra)
        if i < 3:
            k3 = (len(stat) + 2) // 3
            for x in stat[i*k3:(i+1)*k3]: G(x)
        elif i < 7:
            k4 = (len(late) + 3) // 4
            for x in late[(i-3)*k4:(i-2)*k4]: G(x)
        G.lwait_all()
        G.bar(f'c{i+1}' if i < 7 else 'stats')
        LA = 16; LBa = 28; LBb = 208
        if i < 7: G.front(mfmas(FB), reads(FA, 0))
        else:
            sr = [f"ds_read2_b32 {v(LA+2*T,2)}, {v(vS1)} offset0:{T*16} offset1:{T*16+128}" for T in range(5)]
            for T in range(5): sr += [f"ds_read_b128 {v(LBa+4*T,4)}, {v(vS2)} offset:{T*64}", f"ds_read_b128 {v(LBb+4*T,4)}, {v(vS2)} offset:{T*64+512}"]
            m = mfmas(FB)
            G.front(m[12:] + m[:12], sr)
    G.stamp('p1loop')
    G(f"""
    v_add_u32 v8, {s(sA3)}, {v(vL16)}
    v_add_u32 v9, 0x8000, v8
    """)
    CSQ, CSK, CSV = 228, 232, 236
    TMP = 140
    regdecode(G, vFE, vRA)
    for r in range(4):
        G(f"v_mov_b32_dpp {v(CSQ+r)}, {v(Qa(4)+r)} row_newbcast:0 row_mask:0xf bank_mask:0xf")
        G(f"v_mov_b32_dpp {v(CSK+r)}, {v(Ka(4)+r)} row_newbcast:0 row_mask:0xf bank_mask:0xf")
    G(f"""
    v_mov_b32 {v(CSV)}, {v(Va(4))}
    v_mov_b32 {v(CSV+1)}, {v(Va(4))}
    v_permlane16_swap_b32 {v(CSV)}, {v(CSV+1)}
    v_mov_b32 {v(CSV+1)}, {v(CSV)}
    v_permlane32_swap_b32 {v(CSV)}, {v(CSV+1)}
    v_mov_b32 {v(CSV+1)}, {v(CSV)}
    """)
    QP = 176; KP = 184; VP = 196
    vpos = {2: 0, 0: 2, 4: 4, 1: 6, 3: 8}
    def norm_qk(acc, cs, T, dst, tmp):
        ab = v(LA+2*T, 2)
        for hlf in range(2): G(f"v_pk_mul_f32 {v(tmp+2*hlf,2)}, {v(cs+2*hlf,2)}, {ab} op_sel:[0,1] op_sel_hi:[1,1]")
        for hlf in range(2): G(f"v_pk_fma_f32 {v(acc+2*hlf,2)}, {v(acc+2*hlf,2)}, {ab}, {v(tmp+2*hlf,2)} op_sel:[0,0,0] op_sel_hi:[1,0,1]")
        for hlf in range(2): G(f"v_cvt_pk_bf16_f32 {v(dst+hlf)}, {v(acc+2*hlf)}, {v(acc+2*hlf+1)}")
    for T in (4, 0, 1, 2, 3):
        norm_qk(Ka(T), CSK, T, KP+2*T, TMP)
        if T < 4: norm_qk(Qa(T), CSQ, T, QP+2*T, 240)
    for T in range(5):
        acc = Va(T); tmp = TMP if T & 1 else 240
        for hlf in range(2): G(f"v_pk_mul_f32 {v(tmp+2*hlf,2)}, {v(LBb+4*T+2*hlf,2)}, {v(CSV,2)}")
        for hlf in range(2): G(f"v_pk_fma_f32 {v(acc+2*hlf,2)}, {v(acc+2*hlf,2)}, {v(LBa+4*T+2*hlf,2)}, {v(tmp+2*hlf,2)}")
    SC = lambda T: ACC + 8*T
    ONE4 = 244
    vcv = [f"v_cvt_pk_bf16_f32 {v(VP+vpos[T]+hlf)}, {v(Va(T)+2*hlf)}, {v(Va(T)+2*hlf+1)}" for T in range(5) for hlf in range(2)]
    vcv += [f"v_mov_b32 {v(ONE4+i)}, {s(sONE)}" for i in range(4)] + [f"s_mov_b32 {s(sT0)}, 0x3eb8aa3b"]
    sm = []
    for T in range(4):
        prev = T - 2 if T >= 2 else 4
        bprev = BIAS + 4 if T >= 2 else BIAS + 8 + 4*T
        sm.append(f"v_mfma_f32_16x16x16_bf16 {v(SC(T),4)}, {v(KP+2*T,2)}, {v(QP+2*T,2)}, {v(BIAS,4)}")
        sm.append(f"v_mfma_f32_16x16x16_bf16 {v(SC(T)+4,4)}, {v(KP+2*prev,2)}, {v(QP+2*T,2)}, {v(bprev,4)}")
    G.spread(sm, vcv)
    MX = 16; M2 = 20
    PP = 32; OA = 48; LS = 208
    for T in range(4):
        b = SC(T)
        G(f"""
        v_max3_f32 {v(MX+T)}, {v(b)}, {v(b+1)}, {v(b+2)}
        v_max3_f32 {v(M2+T)}, {v(b+3)}, {v(b+4)}, {v(b+5)}
        """)
    for T in range(4): G(f"v_max3_f32 {v(MX+T)}, {v(MX+T)}, {v(SC(T)+6)}, {v(SC(T)+7)}")
    for T in range(4): G(f"v_max_f32 {v(MX+T)}, {v(MX+T)}, {v(M2+T)}")
    G(f"""
    v_permlane16_swap_b32 {v(MX)}, {v(MX+1)}
    v_permlane16_swap_b32 {v(MX+2)}, {v(MX+3)}
    v_max_f32 {v(MX)}, {v(MX)}, {v(MX+1)}
    v_max_f32 {v(MX+2)}, {v(MX+2)}, {v(MX+3)}
    v_permlane32_swap_b32 {v(MX)}, {v(MX+2)}
    v_max_f32 {v(MX)}, {v(MX)}, {v(MX+2)}
    v_mul_f32 {v(MX)}, {s(sT0)}, {v(MX)}
    v_mov_b32 {v(MX+2)}, {v(MX)}
    v_permlane32_swap_b32 {v(MX)}, {v(MX+2)}
    v_mov_b32 {v(MX+1)}, {v(MX)}
    v_mov_b32 {v(MX+3)}, {v(MX+2)}
    v_permlane16_swap_b32 {v(MX)}, {v(MX+1)}
    v_permlane16_swap_b32 {v(MX+2)}, {v(MX+3)}
    """)
    win = {2: 0, 0: 2, 1: 4, 3: 6}
    for T in range(4):
        b = SC(T)
        for i in range(8): G(f"v_fma_f32 {v(b+i)}, {v(b+i)}, {s(sT0)}, -{v(MX+T)}")
        for i in range(8): G(f"v_exp_f32 {v(b+i)}, {v(b+i)}")
        first, second = (b, b+4) if T in (0, 2) else (b+4, b)
        G(f"""
        v_cvt_pk_bf16_f32 {v(PP+4*T)}, {v(first)}, {v(first+1)}
        v_cvt_pk_bf16_f32 {v(PP+4*T+1)}, {v(first+2)}, {v(first+3)}
        v_cvt_pk_bf16_f32 {v(PP+4*T+2)}, {v(second)}, {v(second+1)}
        v_cvt_pk_bf16_f32 {v(PP+4*T+3)}, {v(second+2)}, {v(second+3)}
        """)
        if T >= 1:
            U = T - 1
            G(f"v_rcp_f32 {v(LS+4*U)}, {v(LS+4*U)}")
        G(f"""
        v_mfma_f32_16x16x32_bf16 {v(LS+4*T,4)}, {v(ONE4,4)}, {v(PP+4*T,4)}, 0
        v_mfma_f32_16x16x32_bf16 {v(OA+4*T,4)}, {v(VP+win[T],4)}, {v(PP+4*T,4)}, 0
        """)
    OP = 64
    def fin(T):
        q, p = T >> 1, T & 1
        for h in range(2): G(f"v_pk_mul_f32 {v(OA+4*T+2*h,2)}, {v(OA+4*T+2*h,2)}, {v(LS+4*T,2)} op_sel:[0,0] op_sel_hi:[1,0]")
        G(f"""
        v_cvt_pk_bf16_f32 {v(OP+4*q+2*p)}, {v(OA+4*T)}, {v(OA+4*T+1)}
        v_cvt_pk_bf16_f32 {v(OP+4*q+2*p+1)}, {v(OA+4*T+2)}, {v(OA+4*T+3)}
        """)
    fin(0); fin(1); fin(2)
    G(f"""
    v_permlane32_swap_b32 {v(OP)}, {v(OP+2)}
    v_permlane32_swap_b32 {v(OP+1)}, {v(OP+3)}
    v_rcp_f32 {v(LS+12)}, {v(LS+12)}
    """)
    fin(3)
    G(f"""
    v_permlane32_swap_b32 {v(OP+4)}, {v(OP+6)}
    v_permlane32_swap_b32 {v(OP+5)}, {v(OP+7)}
    """)
    stores(G, [f"buffer_store_dwordx4 {v(OP+4*q,4)}, {v(vOA)}, {s(SWS,4)}, {s(sO0+q)} offen" for q in range(2)], "ST1")
    G.stamp('p1epi')
    signal(G, 0, vFE)
    G.stamp('sig0')
    G.bar('w3a')
    ACC = 16; CSA = 112; SEL = 120; AB = 124; W3R = 160
    G.sv = (15, 6)
    def w3_reads(l):
        out = []; blk = l % 3; base = W3SLOT[l]
        for s4 in range(4):
            for k, va in enumerate((vW3o, vW3s)):
                for half in range(2):
                    o = (base - S0) + (32*(s4 >> 1) + 8*(s4 & 1) + 4*half) * 192
                    out.append(f"ds_read_b64_tr_b16 {v(W3R + 32*blk + 8*s4 + 4*k + 2*half, 2)}, {v(va)} offset:{o}")
        return out
    def w3_colsum(l):
        blk = l % 3
        return [f"v_mfma_f32_16x16x32_bf16 {v(CSA+4*k,4)}, {v(W3R+32*blk+8*s4+4*k,4)}, {v(SEL,4)}, {v(CSA+4*k,4)}" for s4 in range(4) for k in range(2)]
    for x in w3_reads(0): G(x)
    G(f"""
    v_lshrrev_b32 v2, 4, v0
    v_xor_b32 v2, v2, v0
    v_and_b32 v2, 1, v2
    v_cmp_eq_u32 vcc, 0, v2
    v_mov_b32 v3, {s(sONE)}
    v_cndmask_b32 {v(SEL)}, 0, v3, vcc
    v_cndmask_b32 {v(SEL+1)}, 0, v3, vcc
    v_cndmask_b32 {v(SEL+2)}, 0, v3, vcc
    v_cndmask_b32 {v(SEL+3)}, 0, v3, vcc
    """)
    for i in range(4): G(f"v_mov_b64 {v(CSA+2*i,2)}, 0")
    G.front(w3_colsum(0), w3_reads(1), 2)
    for x in w3_colsum(1): G(x)
    G.lwait_all()
    G.stamp('svc')
    poll(G, 0, vFE)
    G.stamp('poll0')
    def obatch(b):
        for j in (2*b, 2*b + 1):
            for tau in range(2):
                G(f"""
                s_add_u32 m0, {s(sW1K)}, {(tau*32 + 4*j) * 1024}
                buffer_load_dwordx4 {v(8+tau)}, {s(SWS,4)}, {s(K2[j])} offen sc1 lds
                """)
        G.tag(f"o_{b}")
    obatch(0); obatch(1)
    for b in range(4):
        G.wait_tag(f"o_{b}")
        G.bar(f"o_{b}")
        if b + 2 < 4: obatch(b + 2)
    for l in PFORD[:cfg.npf]: G.items(w3_dma(l, W3SLOT[l], vP3))
    G.stamp('pf')
    G.wait_tag('w3_2')
    G.bar('a3_0')
    G.stamp('a3_0')
    NAB = 6
    def aread(n):
        st, sg = n >> 2, n & 3
        c, s4 = st >> 2, st & 3
        r = (c % 3) * 16384 + s4 * 1024
        return f"ds_read_b128 {v(AB+4*(n % NAB),4)}, {v(vA01 if sg < 2 else vA23)} offset:{r + (sg & 1)*4096}"
    A(f"""
    s_lshl_b32 {s(sT4)}, {s(sM)}, 2
    s_add_u32 {s(sT4)}, {s(sT4)}, {s(sW)}
    s_cmp_lt_u32 {s(sT4)}, 58
    s_cbranch_scc1 A_P3GO
    s_waitcnt vmcnt(0)
    """)
    for _ in range(7): A("s_barrier")
    A("s_branch A_ST3Z_DONE")
    A.label("A_P3GO")
    LEAD = 4
    nread = 0
    for n in range(LEAD): G(aread(n)); nread += 1
    fills = {st: [] for st in range(34)}; cs_at = {st: [] for st in range(34)}
    for l, b in list(W3BAR.items()) + [(2, -1)]:
        rd = w3_reads(l); cs = w3_colsum(l)
        fills[b+1] += rd[0:6]; fills[b+2] += rd[6:12]; fills[b+3] += rd[12:16]
        cs_at[b+2] += cs[0:2]; cs_at[b+3] += cs[2:6]; cs_at[b+4] += cs[6:8]
    for st in range(32):
        c, s4 = st >> 2, st & 3
        if s4 == 3 and st < 31:
            for l, b in W3BAR.items():
                if b == st and f"w3_{l}" in G.tags: G.wait_tag(f"w3_{l}")
            G.lwait_all()
            G.bar(f'p3_{st}')
        w = W3R + 32*(c % 3) + 8*s4
        fl = list(fills[st]); fi = 0
        if cfg.pretouch == 2 and st == cfg.hht:
            G.dummy = ('v', 1)
            fl.append(f"buffer_load_dword v1, v158, {s(SWS,4)}, 0 offen sc1")
        for sg in range(4):
            n = 4*st + sg
            fr = v(AB+4*(n % NAB), 4)
            ms = [f"v_mfma_f32_32x32x16_bf16 {v(ACC+16*sg,16)}, {v(w,4)}, {fr}, {'0' if st == 0 else v(ACC+16*sg,16)}"]
            if sg < 2: ms.append(f"v_mfma_f32_32x32x16_bf16 {v(ACC+64+16*sg,16)}, {v(w+4,4)}, {fr}, {'0' if st == 0 else v(ACC+64+16*sg,16)}")
            for k, m in enumerate(ms):
                G(m)
                if k == 0 and nread < 128 and nread <= n + LEAD: G(aread(nread)); nread += 1
                if fi < len(fl): G(fl[fi]); fi += 1
        while fi < len(fl): G(fl[fi]); fi += 1
        for x in cs_at[st]: G(x)
    G.stamp('p3loop')
    G(f"""
    v_and_b32 v2, 1, v0
    v_lshrrev_b32 v3, 4, v0
    v_lshlrev_b32 v2, 6, v2
    v_lshl_add_u32 v2, v3, 4, v2
    s_lshl_b32 {s(sT5)}, {s(sW)}, 8
    s_add_u32 {s(sT5)}, {s(sT5)}, {CSX}
    v_add_u32 v2, {s(sT5)}, v2
    v_lshrrev_b32 v3, 5, v0
    v_lshlrev_b32 v3, 4, v3
    v_add_u32 v3, {s(sT5)}, v3
    ds_write_b128 v2, {v(CSA,4)}
    ds_write_b128 v2, {v(CSA+4,4)} offset:128
    s_and_b32 {s(sT0)}, {s(sW)}, 1
    s_lshl_b32 {s(sT0)}, {s(sT0)}, 9
    s_add_u32 {s(sT0)}, {s(sT0)}, {STATS3}
    v_and_b32 v13, 31, v0
    v_lshlrev_b32 v13, 3, v13
    v_add_u32 v13, {s(sT0)}, v13
    v_xor_b32 v14, 0x200, v13
    ds_read_b64 v[160:161], v13
    ds_read_b64 v[162:163], v13 offset:256
    ds_read_b64 v[164:165], v14
    ds_read_b64 v[166:167], v14 offset:256
    """)
    CS0, CS1 = 176, 192
    for tile, CSo in ((0, CS0), (1, CS1)):
        for i in range(4): G(f"ds_read_b128 {v(CSo+4*i,4)}, v3 offset:{tile*128 + (i>>1)*64 + (i&1)*32}")
    def unit_epi(U, stp, CSo):
        st = v(stp, 2)
        for h in range(8): G(f"v_pk_fma_f32 {v(U+2*h,2)}, {v(CSo+2*h,2)}, {st}, {v(U+2*h,2)} op_sel:[0,0,0] op_sel_hi:[1,0,1]")
        for i in range(8): G(f"v_max_f32 {v(U+i)}, 0, {v(U+i)}")
        for h in range(4): G(f"v_pk_mul_f32 {v(U+8+2*h,2)}, {v(U+8+2*h,2)}, {st} op_sel:[0,1] op_sel_hi:[1,1]")
        for h in range(4): G(f"v_pk_mul_f32 {v(U+2*h,2)}, {v(U+2*h,2)}, {v(U+8+2*h,2)}")
        for h in range(4): G(f"v_cvt_pk_bf16_f32 {v(U+h)}, {v(U+2*h)}, {v(U+2*h+1)}")
    G(f"""
    s_mul_i32 {s(sT0)}, {s(sM)}, 6144
    s_add_u32 {s(sT0)}, {s(sT0)}, {L.HH_OFF}
    s_and_b32 {s(sT1)}, {s(sW)}, 1
    s_mul_i32 {s(sT1)}, {s(sT1)}, {2*HHS}
    s_add_u32 {s(sT2)}, {s(sT0)}, {s(sT1)}
    s_sub_u32 {s(sT3)}, {s(sT0)}, {s(sT1)}
    s_add_u32 {s(sT3)}, {s(sT3)}, {2*HHS}
    s_lshl_b32 {s(sT0)}, {s(sW)}, 10
    v_add_u32 v8, {s(sT0)}, {v(vL16)}
    v_add_u32 v9, {HHS}, v8
    s_lshr_b32 {s(sT0)}, {s(sW)}, 1
    s_lshl_b32 {s(sT0)}, {s(sT0)}, 10
    s_add_u32 {s(sT0)}, {s(sT0)}, 4096
    v_add_u32 v10, {s(sT0)}, {v(vL16)}
    v_add_u32 v11, {HHS}, v10
    """)
    for sg in range(4): unit_epi(ACC + 16*sg, 160 + 2*sg, CS0)
    A(f"""
    s_lshl_b32 {s(sT4)}, {s(sM)}, 2
    s_add_u32 {s(sT4)}, {s(sT4)}, {s(sW)}
    s_cmp_ge_u32 {s(sT4)}, 58
    s_cbranch_scc1 A_ST3_DONE
    """)
    stores(G, [f"buffer_store_dwordx4 {v(ACC+16*sg,4)}, {v(8 + (sg & 1))}, {s(SWS,4)}, {s(sT2 if sg < 2 else sT3)} offen" for sg in range(4)], "ST3")
    for sg in range(2): unit_epi(ACC + 64 + 16*sg, 160 + 2*sg, CS1)
    A(f"""
    s_cmp_ge_u32 {s(sM)}, 14
    s_cbranch_scc1 A_ST3Z_DONE
    """)
    stores(G, [f"buffer_store_dwordx4 {v(ACC+64+16*sg,4)}, {v(10 + sg)}, {s(SWS,4)}, {s(sT2)} offen" for sg in range(2)], "ST3Z")
    A(f"""
    s_cmp_lg_u32 {s(sM)}, 15
    s_cbranch_scc1 A_ST3P_DONE
    v_mov_b64 {v(ACC,2)}, 0
    v_mov_b64 {v(ACC+2,2)}, 0
    s_mul_i32 {s(sT0)}, {s(sW)}, {HHS}
    s_add_u32 {s(sT0)}, {s(sT0)}, {L.HH_OFF + 86*1024}
    """)
    stores(G, [f"buffer_store_dwordx4 {v(ACC,4)}, {v(vL16)}, {s(SWS,4)}, {s(sT0)} offen offset:{1024*i}" for i in range(2)], "ST3P")
    G.stamp('p3epi')
    signal(G, 2, vFE)
    G.stamp('sig2')
    G(ks_addr(L.HH_OFF, HHS, vL16, 12, 13))
    G(f"""
    s_mul_i32 {s(sWB)}, {s(sW)}, 24576
    s_add_u32 {s(sWB)}, {s(sWB)}, {RING4}
    """)
    G.bar('p4start')
    poll(G, 2, vFE)
    G.stamp('poll2')
    def batch(b):
        for q in range(4*b, 4*b + 4):
            rs, j = q // 22, q % 22
            G(f"""
            s_add_u32 m0, {s(sWB)}, {(q % 24) * 1024}
            buffer_load_dwordx4 {v(12+rs)}, {s(SWS,4)}, {s(sKO+j)} offen sc1 lds
            """)
        G.tag(f"b4_{b}")
    nb = 0
    for b in range(cfg.nb0): batch(b); nb += 1
    for b in range(NB4):
        G.wait_tag(f"b4_{b}")
        G.bar(f"p4_{b}")
        k = 0
        while nb < NB4 and k < (2 if b < cfg.ramp else 1) and (nb < 6 or nb - 4 <= b): batch(nb); nb += 1; k += 1
    G.stamp('end')

def prog_b(G):
    A = G.A; cfg = G.cfg
    t0, t1, t2, t3, t4 = 1, 2, 3, 4, 5
    vXo0, vXo1, vXh, vWo, vTL, vSa, vSh, vRA = 8, 9, 10, 11, 12, 13, 14, 15
    SF = 16; SACC = 28
    vP3, vWD, vWT, vFE, vL16, vXA = 240, 243, 244, 246, 248, 249
    G.dummy = ('v', 250)
    G.sv = (251, 252); G.vS = 253
    if cfg.prioB: G(f"s_setprio {cfg.prioB}")
    G(f"""
    s_lshl_b32 {s(sT0)}, {s(sRB)}, 6
    s_lshr_b32 {s(sT1)}, {s(sW)}, 1
    s_lshl_b32 {s(sT1)}, {s(sT1)}, 5
    s_add_u32 {s(sT1)}, {s(sT1)}, {s(sT0)}
    s_and_b32 {s(sT2)}, {s(sW)}, 1
    s_add_u32 {s(sT1)}, {s(sT1)}, {s(sT2)}
    v_lshrrev_b32 {v(t0)}, 3, {v(vL)}
    v_and_b32 {v(t1)}, 7, {v(vL)}
    v_lshrrev_b32 {v(t2)}, 4, {v(vL)}
    v_xor_b32 {v(t3)}, {v(t1)}, {v(t2)}
    v_lshlrev_b32 {v(t4)}, 1, {v(t0)}
    v_add_u32 {v(t4)}, {s(sT1)}, {v(t4)}
    v_lshlrev_b32 {v(t4)}, 10, {v(t4)}
    v_lshl_add_u32 {v(vXo0)}, {v(t3)}, 4, {v(t4)}
    v_xor_b32 {v(t3)}, 4, {v(t3)}
    v_lshl_add_u32 {v(vXo1)}, {v(t3)}, 4, {v(t4)}
    v_add_u32 {v(vXo1)}, {0x4000 - 1024}, {v(vXo1)}
    s_lshl_b32 {s(sT2)}, {s(sW)}, 2
    v_add_u32 {v(t3)}, {s(sT2)}, {v(t0)}
    v_lshrrev_b32 {v(t4)}, 1, {v(t3)}
    v_and_b32 {v(t4)}, 7, {v(t4)}
    v_xor_b32 {v(t4)}, {v(t4)}, {v(t1)}
    s_sub_u32 {s(sT3)}, {s(sT0)}, 16
    v_add_u32 {v(t3)}, {s(sT3)}, {v(t3)}
    v_max_i32 {v(t3)}, 0, {v(t3)}
    v_lshlrev_b32 {v(t3)}, 10, {v(t3)}
    v_lshl_add_u32 {v(vXh)}, {v(t4)}, 4, {v(t3)}
    s_mov_b32 {s(sEXH)}, -1
    s_cmp_eq_u32 {s(sW)}, 0
    s_cselect_b32 {s(sEXH)}, 0xffffff00, {s(sEXH)}
    s_mov_b32 {s(sEXH+1)}, 0
    s_lshl_b32 {s(sT2)}, {s(sW)}, 3
    v_add_u32 {v(t3)}, {s(sT2)}, {v(t0)}
    v_mul_u32_u24 {v(t3)}, 3072, {v(t3)}
    v_and_b32 {v(t4)}, 1, {v(t2)}
    v_lshlrev_b32 {v(t4)}, 1, {v(t4)}
    s_and_b32 {s(sT2)}, {s(sW)}, 1
    s_lshl_b32 {s(sT2)}, {s(sT2)}, 2
    v_or_b32 {v(t4)}, {s(sT2)}, {v(t4)}
    v_xor_b32 {v(t4)}, {v(t4)}, {v(t1)}
    v_lshl_add_u32 {v(vWo)}, {v(t4)}, 4, {v(t3)}
    s_lshl_b32 {s(sT2)}, {s(sCB)}, 7
    v_add_u32 {v(vWo)}, {s(sT2)}, {v(vWo)}
    s_lshl_b32 {s(sT4)}, {s(sIDX)}, 2
    s_add_u32 {s(sT4)}, {s(sT4)}, {s(sW)}
    s_lshl_b32 {s(sTB)}, {s(sT4)}, 11
    s_mul_i32 {s(sTB1)}, {s(sT4)}, 1536
    v_lshrrev_b32 {v(vTL)}, 2, {v(vL)}
    v_lshlrev_b32 {v(vTL)}, 7, {v(vTL)}
    s_and_b32 {s(sSX)}, {s(sRBL)}, {cfg.rotm}
    s_lshl_b32 {s(sSX)}, {s(sSX)}, {cfg.rots}
    s_add_u32 {s(sSX)}, {s(sSX)}, {s(sCB)}
    s_lshl_b32 {s(sMX)}, {s(sW)}, 11
    s_lshl_b32 {s(sMH)}, {s(sW)}, 9
    s_add_u32 {s(sMH)}, {s(sMH)}, 8192
    s_mul_i32 {s(sMW)}, {s(sW)}, 3072
    s_add_u32 {s(sMW)}, {s(sMW)}, {WRING}
    s_mov_b32 {s(SX+2)}, {2048*1024}
    s_mov_b32 {s(SX+3)}, 0x20000
    s_mov_b32 {s(SW1+2)}, {512*3072}
    s_mov_b32 {s(SW1+3)}, 0x20000
    s_waitcnt lgkmcnt(0)
    s_mov_b32 {s(SX)}, s64
    s_and_b32 {s(SX+1)}, s65, 0xffff
    s_mov_b32 {s(SW1)}, s66
    s_and_b32 {s(SW1+1)}, s67, 0xffff
    """)
    def dma_chunk(c):
        sl = (c % 3) * WSLOT
        W = lambda o: f"buffer_load_dwordx4 {v(vWo)}, {s(SW1,4)}, {s(sB0)} offen offset:{o} lds"
        return [f"""
        s_add_u32 m0, {s(sMW)}, {sl}
        s_add_u32 {s(sB1)}, {s(sSX)}, {c}
        s_and_b32 {s(sB1)}, {s(sB1)}, 7
        s_mul_i32 {s(sB0)}, {s(sB1)}, 196608
        s_lshl_b32 {s(sB1)}, {s(sB1)}, 7
        {W(0)}
        """, W(1024), W(2048), f"""
        s_add_u32 m0, {s(sMX)}, {c*XCH}
        s_add_u32 {s(sB0)}, {s(sB0)}, {32*3072}
        buffer_load_dwordx4 {v(vXo0)}, {s(SX,4)}, {s(sB1)} offen lds
        """, f"buffer_load_dwordx4 {v(vXo1)}, {s(SX,4)}, {s(sB1)} offen offset:1024 lds", f"""
        s_add_u32 m0, {s(sMH)}, {c*XCH}
        s_mov_b64 exec, {s(sEXH,2)}
        buffer_load_dwordx4 {v(vXh)}, {s(SX,4)}, {s(sB1)} offen lds
        s_mov_b64 exec, -1
        """, f"""
        s_add_u32 m0, {s(sMW)}, {sl + 4*3072}
        s_nop 0
        {W(0)}
        """, W(1024), W(2048), ('TAG', f"c{c}")]
    def t1w(r):
        if not cfg.touch or r > 7: return []
        return [f"""
        s_add_u32 {s(sB0)}, {s(sTB1)}, {r*196608}
        buffer_load_dword v250, {v(vTL)}, {s(SW1,4)}, {s(sB0)} offen
        """]
    if cfg.touch:
        G(f"""
        s_lshl_b32 {s(sB0)}, {s(sXCD)}, 18
        s_add_u32 {s(sB0)}, {s(sB0)}, {s(sTB)}
        buffer_load_dword v250, {v(vTL)}, {s(SX,4)}, {s(sB0)} offen
        """)
    G.items(dma_chunk(0) + t1w(1) + t1w(2))
    G(common_srds(cfg) + srd(SWO, 68, 512*1024) + srd(SWD, 76, 1376*1024) + srd(SOUT, 78, 2048*1024))
    A(f"""
    s_cmp_lg_u32 {s(sW)}, 0
    s_cbranch_scc1 REG_DONE
    s_and_b32 {s(sXCC)}, {s(sXCC)}, 7
    s_mul_i32 {s(sT0)}, {s(sXCC)}, {s(sXCC)}
    s_lshl_b32 {s(sT0)}, {s(sT0)}, 12
    s_lshl_b32 {s(sT1)}, {s(sXCC)}, 5
    s_or_b32 {s(sT0)}, {s(sT0)}, {s(sT1)}
    s_or_b32 {s(sT0)}, {s(sT0)}, 1
    s_lshl_b64 {s(sT4,2)}, {s(sTS,2)}, 22
    s_or_b32 {s(sT0)}, {s(sT0)}, {s(sT4)}
    v_mov_b32 v2, {s(sT0)}
    v_mov_b32 v3, {s(sT5)}
    s_lshl_b32 {s(sT1)}, {s(sG)}, 3
    v_mov_b32 v4, {s(sT1)}
    s_mov_b64 exec, 1
    buffer_atomic_add_x2 v[2:3], v4, {s(SDBG,4)}, 0 offen offset:128 sc1
    s_mov_b64 exec, -1
    """)
    A.label("REG_DONE")
    G.stamp('start')
    G.items(dma_chunk(1) + t1w(3))
    G(f"""
    v_lshlrev_b32 {v(vL16)}, 4, v0
    s_lshl_b32 {s(sT0)}, {s(sW)}, 11
    s_lshl_b32 {s(sT1)}, {s(sW)}, 9
    s_add_u32 {s(sT1)}, {s(sT1)}, 8192
    v_add_u32 {v(vSh)}, {s(sT1)}, {v(vL16)}
    v_add_u32 {v(vSa)}, {s(sT0)}, {v(vL16)}
    v_mov_b64 {v(SACC,2)}, 0
    v_mov_b64 {v(SACC+2,2)}, 0
    v_mov_b64 {v(SACC+4,2)}, 0
    """)
    G.wait_tag('c0')
    G.bar('c0')
    G.stamp('c0')
    G.bg_on = False
    G.bg(dma_chunk(2) + t1w(4))
    setups = [w3_setup(vP3, t0, t1, t2), f"""
    v_lshrrev_b32 {v(t0)}, 3, {v(vL)}
    v_and_b32 {v(t1)}, 7, {v(vL)}
    v_bfe_u32 {v(t2)}, {v(vL)}, 4, 1
    v_lshlrev_b32 {v(t2)}, 2, {v(t2)}
    v_xor_b32 {v(t1)}, {v(t1)}, {v(t2)}
    v_lshlrev_b32 {v(t0)}, 10, {v(t0)}
    v_lshl_add_u32 {v(vWD)}, {v(t1)}, 4, {v(t0)}
    s_lshl_b32 {s(sT0)}, {s(sCB)}, 7
    v_add_u32 {v(vWD)}, {s(sT0)}, {v(vWD)}
    s_lshl_b32 {s(sT2)}, {s(sRBL)}, 1
    s_lshl_b32 {s(sWB)}, {s(sW)}, 11
    s_lshl_b32 {s(sR2)}, {s(sRBL)}, 13
    s_lshl_b32 {s(sW1K)}, {s(sW)}, 10
    """, f"""
    v_lshrrev_b32 {v(t0)}, 5, {v(vL)}
    v_bfe_u32 {v(t1)}, {v(vL)}, 2, 2
    v_lshl_add_u32 {v(t0)}, {v(t0)}, 2, {v(t1)}
    v_lshlrev_b32 {v(t0)}, 7, {v(t0)}
    v_and_b32 {v(t1)}, 1, {v(vL)}
    v_lshl_add_u32 {v(t0)}, {v(t1)}, 5, {v(t0)}
    v_bfe_u32 {v(t1)}, {v(vL)}, 4, 1
    v_lshl_add_u32 {v(t0)}, {v(t1)}, 4, {v(t0)}
    v_bfe_u32 {v(t1)}, {v(vL)}, 1, 1
    v_lshl_add_u32 {v(t0)}, {v(t1)}, 3, {v(t0)}
    v_bfe_u32 {v(t1)}, {v(vL)}, 3, 1
    s_and_b32 {s(sT0)}, {s(sW)}, 1
    v_xor_b32 {v(t1)}, {s(sT0)}, {v(t1)}
    v_lshl_add_u32 {v(vWT+1)}, {v(t1)}, 6, {v(t0)}
    v_add_u32 {v(vWT+1)}, {s(sWB)}, {v(vWT+1)}
    v_xor_b32 {v(vWT)}, 64, {v(vWT+1)}
    s_lshl_b32 {s(sA3)}, {s(sW)}, 15
    s_add_u32 {s(sA3)}, {s(sA3)}, {L.H_OFF}
    s_lshl_b32 {s(sT0)}, {s(sRB)}, 6
    s_lshr_b32 {s(sT2)}, {s(sW)}, 1
    s_lshl_b32 {s(sT2)}, {s(sT2)}, 5
    s_add_u32 {s(sT0)}, {s(sT0)}, {s(sT2)}
    s_lshl_b32 {s(sT0)}, {s(sT0)}, 10
    s_lshl_b32 {s(sT2)}, {s(sCB)}, 7
    s_add_u32 {s(sT0)}, {s(sT0)}, {s(sT2)}
    s_and_b32 {s(sT2)}, {s(sW)}, 1
    s_lshl_b32 {s(sT2)}, {s(sT2)}, 6
    s_add_u32 {s(sT0)}, {s(sT0)}, {s(sT2)}
    v_and_b32 v2, 15, v0
    v_lshlrev_b32 v2, 11, v2
    v_lshrrev_b32 v3, 4, v0
    v_lshl_add_u32 {v(vXA)}, v3, 4, v2
    v_add_u32 {v(vXA)}, {s(sT0)}, {v(vXA)}
    s_lshl_b32 {s(sT0)}, {s(sG)}, 3
    v_mov_b32 {v(vRA)}, {s(sT0)}
    s_and_b32 {s(sT0)}, {s(sRB)}, 1
    s_lshl_b32 {s(sT0)}, {s(sT0)}, 1
    s_lshr_b32 {s(sT1)}, {s(sW)}, 1
    s_add_u32 {s(sT0)}, {s(sT0)}, {s(sT1)}
    s_lshl_b32 {s(sO1)}, {s(sT0)}, 12
    s_lshl_b32 {s(sO0)}, {s(sT0)}, 15
    s_lshl_b32 {s(sT2)}, {s(sCB)}, 1
    s_and_b32 {s(sT3)}, {s(sW)}, 1
    s_add_u32 {s(sT2)}, {s(sT2)}, {s(sT3)}
    s_lshl_b32 {s(sT2)}, {s(sT2)}, 11
    s_add_u32 {s(sO0)}, {s(sO0)}, {s(sT2)}
    s_add_u32 {s(sO0)}, {s(sO0)}, {L.H_OFF}
    s_lshl_b32 {s(sT2)}, {s(sCB)}, 9
    s_add_u32 {s(sO1)}, {s(sO1)}, {s(sT2)}
    s_lshl_b32 {s(sT3)}, {s(sT3)}, 3
    s_add_u32 {s(sO1)}, {s(sO1)}, {s(sT3)}
    s_add_u32 {s(sO1)}, {s(sO1)}, {L.ST_OFF}
    """]
    def wt_dma(SWT, sko, ldsoff, tagname, vWD_):
        return [f"""
        s_lshl_b32 {s(sB0)}, {s(sko)}, 4
        s_add_u32 m0, {s(sWB)}, {ldsoff}
        s_add_u32 {s(sB1)}, {s(sB0)}, 7168
        buffer_load_dwordx4 {v(vWD_)}, {s(SWT,4)}, {s(sB0)} offen lds
        """, f"buffer_load_dwordx4 {v(vWD_)}, {s(SWT,4)}, {s(sB1)} offen offset:1024 lds", ('TAG', tagname)]
    def wt_reads(dst, ldsoff, vWT_):
        return [f"ds_read_b64_tr_b16 {v(dst + 4*k + 2*half, 2)}, {v(vWT_+k)} offset:{ldsoff + half*1024}" for k in range(2) for half in range(2)]
    def wo(j):
        g = wt_dma(SWO, sB0, j*8192, f"wo{j}", vWD)
        g[0] = f"""
        s_add_u32 {s(sB0)}, {s(sR2)}, {j*4096}
        s_and_b32 {s(sB0)}, {s(sB0)}, 32767
        s_add_u32 {s(sB0)}, {s(sB0)}, {s(sW1K)}
        """ + g[0]
        return g
    assert not cfg.touch
    XR = 224
    def one():
        if G._has(): G._one()
    G.bg_on = False
    for i in range(8):
        su = setups[i].strip().split('\n') if i < len(setups) else []
        nd = cfg.ndma if i < 7 else cfg.ndma7
        per = (len(su) + nd - 1) // max(nd, 1)
        for k in range(nd if i != 3 else 5):
            one()
            for ln in su[k*per:(k+1)*per]: G(ln)
        if i == 2:
            G(f"buffer_load_dwordx2 {v(vFE,2)}, {v(vRA)}, {s(SDBG,4)}, 0 offen offset:128 sc1")
        if i == cfg.hti and cfg.tH:
            G(f"""
            v_and_b32 v2, 15, v0
            v_lshlrev_b32 v2, 7, v2
            buffer_load_dword v250, v2, {s(SWS,4)}, {s(sO0)} offen sc1
            """)
        if i == cfg.hti and cfg.tS:
            G(f"""
            v_and_b32 v2, 3, v0
            v_lshlrev_b32 v2, 7, v2
            v_add_u32 v2, {s(sO1)}, v2
            v_and_b32 v3, 15, v0
            v_lshlrev_b32 v3, 7, v3
            v_add_u32 v3, {L.FL_OFF}, v3
            v_cmp_gt_u32 vcc, 16, v0
            v_cndmask_b32 v2, v2, v3, vcc
            buffer_load_dword v250, v2, {s(SWS,4)}, 0 offen sc1
            """)
        if i == 4:
            assert cfg.rotm == 1 and cfg.rots == 2
            G(f"""
            s_and_b32 {s(sT0)}, {s(sRBL)}, 1
            s_mul_i32 {s(sT0)}, {s(sT0)}, {4*XCH}
            s_lshr_b32 {s(sT1)}, {s(sW)}, 1
            s_lshl_b32 {s(sT1)}, {s(sT1)}, 12
            s_add_u32 {s(sT0)}, {s(sT0)}, {s(sT1)}
            v_and_b32 v2, 31, v0
            v_lshlrev_b32 v3, 7, v2
            v_add_u32 v3, {s(sT0)}, v3
            v_bfe_u32 v2, v0, 1, 3
            v_lshrrev_b32 v4, 5, v0
            v_lshlrev_b32 v4, 1, v4
            s_and_b32 {s(sT1)}, {s(sW)}, 1
            s_lshl_b32 {s(sT1)}, {s(sT1)}, 2
            v_or_b32 v4, {s(sT1)}, v4
            v_xor_b32 v4, v4, v2
            v_lshl_add_u32 v5, v4, 4, v3
            v_xor_b32 v4, 1, v4
            v_lshl_add_u32 v3, v4, 4, v3
            ds_read_b128 {v(XR,4)}, v5
            ds_read_b128 {v(XR+4,4)}, v3
            """)
            G.lwait_all()
        if i == 3:
            regdecode(G, vFE, vRA)
            G(f"""
            v_min_u32 v2, 2, v0
            s_mul_i32 {s(sT0)}, {s(sW)}, 24
            s_add_u32 {s(sT0)}, {s(sT0)}, {STG}
            v_lshlrev_b32 v3, 3, v2
            v_add_u32 v3, {s(sT0)}, v3
            ds_read_b64 v[16:17], v3
            s_mul_i32 {s(sT0)}, {s(sCB)}, 10
            s_mul_i32 {s(sT1)}, {s(sW)}, 3
            s_add_u32 {s(sT0)}, {s(sT0)}, {s(sT1)}
            v_add_u32 v2, {s(sT0)}, v2
            v_min_u32 v2, 79, v2
            v_lshlrev_b32 v2, 4, v2
            s_and_b32 {s(sT4)}, {s(sRB)}, 1
            s_mul_i32 {s(sT4)}, {s(sT4)}, 1280
            s_add_u32 {s(sT4)}, {s(sT4)}, {SG_OFF}
            v_mov_b32 v18, {v(vFE)}
            v_mov_b32 v19, {v(vFE+1)}
            v_min_u32 v20, 19, v0
            s_mul_i32 {s(sT0)}, {s(sW)}, 20
            v_add_u32 v20, {s(sT0)}, v20
            v_lshlrev_b32 v21, 2, v20
            v_add_u32 v21, {STATS1}, v21
            v_lshlrev_b32 v20, 4, v20
            s_mov_b32 {s(sMWL)}, {s(sT4)}
            """)
            stores(G, [f"buffer_store_dwordx4 v[16:19], v2, {s(SWS,4)}, {s(sT4)} offen"], "STG")
            for k in range(nd - 5): one()
        if i == 5:
            G(f"buffer_load_dwordx4 v[24:27], v20, {s(SWS,4)}, {s(sMWL)} offen sc1")
        if cfg.fine == 1: G.stamp(f'd{i}')
        if i == 7: break
        G.wait_tag(f"c{i+1}")
        G.bar(f"c{i+1}")
        if i + 3 < 8: G.bg(dma_chunk(i + 3) + t1w(i + 5))
        if i == 4:
            for j in range(6): G.bg(wo(j))
        if i == 5:
            G.bg(wo(6))
            G.bg(w3_dma(0, W3SLOT[0], vP3))
        if i == 6:
            G.bg(wo(7))
            G.bg(w3_dma(1, W3SLOT[1], vP3))
    G._autowait(Ins("v_mov_b32 v24, v27"))
    G(f"s_mov_b32 {s(sCNT)}, 0")
    A.label("SGPOLL")
    A(f"""
    v_cmp_ne_u64 vcc, v[26:27], {v(vFE,2)}
    s_add_u32 {s(sCNT)}, {s(sCNT)}, 1
    s_cbranch_vccz SGOK
    s_cmp_ge_u32 {s(sCNT)}, 20000
    s_cbranch_scc1 SGOK
    buffer_load_dwordx4 v[24:27], v20, {s(SWS,4)}, {s(sMWL)} offen sc1
    s_waitcnt vmcnt(0)
    s_branch SGPOLL
    """)
    A.label("SGOK")
    G(f"""
    ds_write_b32 v21, v25
    ds_write_b32 v21, v24 offset:512
    """)
    G.lwait_all()
    G.bar('stats')
    G.stamp('p1loop')
    G.bg_on = True
    G.flush()
    G.items(p4_table())
    G(f"""
    v_mov_b32 v11, {v(vL16)}
    v_and_b32 v14, 31, v0
    v_lshlrev_b32 v14, 4, v14
    v_lshrrev_b32 v3, 5, v0
    v_lshl_add_u32 v14, v3, 2, v14
    v_subrev_u32 v12, {s(sWB)}, {v(vWT+1)}
    s_lshr_b32 {s(sT0)}, {s(sW)}, 1
    s_lshl_b32 {s(sT0)}, {s(sT0)}, 15
    v_add_u32 v13, {s(sT0)}, {v(vL16)}
    """)
    G.wait_tag('wo7')
    G.bsync('wo')
    WO = 80
    for q in range(32):
        for half in range(2): G(f"ds_read_b64_tr_b16 {v(WO + 4*q + 2*half, 2)}, v12 offset:{q*2048 + half*1024}")
    XU = 32
    for i in range(8):
        G(f"""
        v_lshlrev_b32 {v(XU+2*i)}, 16, {v(XR+i)}
        v_and_b32 {v(XU+2*i+1)}, 0xffff0000, {v(XR+i)}
        """)
    G.wait_tag('w3_1')
    G.lwait_all()
    G.stamp('pre')
    G.bar('w3a')
    G.stamp('w3a')
    ACC2 = 16
    def red_write(u, reg):
        out = [f"""
        s_xor_b32 {s(sT5)}, {s(sW)}, {3-u}
        s_mul_i32 {s(sT5)}, {s(sT5)}, 12288
        v_add_u32 v10, {s(sT5)}, v11
        """]
        out += [f"ds_write_b128 v10, {v(reg+4*i,4)} offset:{u*4096+i*1024}" for i in range(4)]
        return out
    def red_read(RED, barname):
        out = [f"""
        s_mul_i32 {s(sT5)}, {s(sW)}, 12288
        v_add_u32 v10, {s(sT5)}, v11
        """, ('BSYNC', barname)]
        out += [f"ds_read_b128 {v(RED[i>>2]+4*(i&3),4)}, v10 offset:{i*1024}" for i in range(12)]
        return out
    def final(F, RED, XH, OUTR):
        for i in range(8): G(f"v_pk_add_f32 {v(RED[0]+2*i,2)}, {v(RED[0]+2*i,2)}, {v(RED[1]+2*i,2)}")
        for i in range(8):
            G(f"""
            v_lshlrev_b32 {v(RED[1]+2*i)}, 16, {v(XH+i)}
            v_and_b32 {v(RED[1]+2*i+1)}, 0xffff0000, {v(XH+i)}
            """)
        for i in range(8): G(f"v_pk_add_f32 {v(RED[2]+2*i,2)}, {v(RED[2]+2*i,2)}, {v(RED[1]+2*i,2)}")
        for i in range(8): G(f"v_pk_add_f32 {v(RED[0]+2*i,2)}, {v(RED[0]+2*i,2)}, {v(RED[2]+2*i,2)}")
        for i in range(8): G(f"v_pk_add_f32 {v(F+2*i,2)}, {v(F+2*i,2)}, {v(RED[0]+2*i,2)}")
        for i in range(8): G(f"v_cvt_pk_bf16_f32 {v(OUTR+i)}, {v(F+2*i)}, {v(F+2*i+1)}")
    AB2 = 48; NA2 = 6
    nr2 = 0
    def rd2():
        nonlocal nr2
        if nr2 % 8 == 0: G.bar(f"o_{nr2 // 8}")
        G(f"ds_read_b128 {v(AB2 + 4*(nr2 % NA2), 4)}, v13 offset:{nr2*1024}"); nr2 += 1
    for _ in range(NA2 - 1): rd2()
    G.stamp('poll0')
    for q in range(32):
        G(f"v_mfma_f32_32x32x16_bf16 {v(XU,16)}, {v(WO+4*q,4)}, {v(AB2+4*(q % NA2),4)}, {v(XU,16)}")
        if nr2 < 32: rd2()
    OUTR = 232
    G(f"v_mov_b64 v[16:17], 0\nv_mov_b64 v[18:19], 0")
    for i in range(8): G(f"v_cvt_pk_bf16_f32 {v(OUTR+i)}, {v(XU+2*i)}, {v(XU+2*i+1)}")
    sm, sq = 16, 17
    if cfg.fine == 2: G.stamp('fin')
    stores(G, [f"buffer_store_dwordx4 {v(OUTR,4)}, {v(vL16)}, {s(SWS,4)}, {s(sO0)} offen",
               f"buffer_store_dwordx4 {v(OUTR+4,4)}, {v(vL16)}, {s(SWS,4)}, {s(sO0)} offen offset:1024"], "ST2")
    for i in range(8):
        G(f"v_dot2c_f32_bf16 {v(sm+2*(i&1))}, {s(sONE)}, {v(OUTR+i)}")
        G(f"v_dot2c_f32_bf16 {v(sq+2*(i&1))}, {v(OUTR+i)}, {v(OUTR+i)}")
    G(f"""
    v_add_f32 {v(sm)}, {v(sm)}, {v(sm+2)}
    v_add_f32 {v(sq)}, {v(sq)}, {v(sq+2)}
    v_permlane32_swap_b32 {v(sm)}, {v(sq)}
    v_add_f32 {v(sm)}, {v(sm)}, {v(sq)}
    """)
    stores(G, [f"buffer_store_dword {v(sm)}, v14, {s(SWS,4)}, {s(sO1)} offen"], "ST2B")
    G.stamp('p2')
    signal(G, 1, vFE)
    G.stamp('sig1')
    nP3, nWD, nWT, nXA = 20, 23, 24, 1
    G(f"""
    s_mul_i32 {s(sT0)}, {s(sW)}, {8192 - 2048}
    s_add_u32 {s(sT0)}, {s(sT0)}, {WDT}
    s_add_u32 {s(sWB)}, {s(sWB)}, {s(sT0)}
    v_add_u32 {v(nWT)}, {s(sT0)}, {v(vWT)}
    v_add_u32 {v(nWT+1)}, {s(sT0)}, {v(vWT+1)}
    v_mov_b32 {v(nP3)}, {v(vP3)}
    v_mov_b32 {v(nP3+1)}, {v(vP3+1)}
    v_mov_b32 {v(nP3+2)}, {v(vP3+2)}
    v_mov_b32 {v(nWD)}, {v(vWD)}
    v_mov_b32 {v(nXA)}, {v(vXA)}
    s_mov_b32 {s(SW1)}, {s(SWS)}
    s_mov_b32 {s(SW1+1)}, {s(SWS+1)}
    s_cmp_eq_u32 {s(sM)}, 15
    s_cselect_b32 {s(SW1+2)}, 0, {L.GSTRIDE}
    s_lshl_b32 {s(sT4)}, {s(sW)}, 12
    s_add_u32 {s(sT4)}, {s(sT4)}, {L.ST_OFF}
    """)
    G.sv = (26, 28)
    G('v_mov_b32 v15, v253'); G.vS = 15
    poll(G, 1, vFE)
    G.stamp('poll1')
    def a_dma(c):
        r = (c % 3) * 16384
        g = [f"""
        s_xor_b32 {s(sB0)}, {s(sROT3)}, {lch(c)}
        s_lshl_b32 {s(sB0)}, {s(sB0)}, 12
        s_add_u32 {s(sB0)}, {s(sB0)}, {s(sA3)}
        s_lshl_b32 {s(sB1)}, {s(sW)}, 12
        s_add_u32 m0, {s(sB1)}, {r}
        s_nop 0
        buffer_load_dwordx4 v11, {s(SW1,4)}, {s(sB0)} offen sc1 lds
        """]
        for i in range(1, 4): g.append(f"buffer_load_dwordx4 v11, {s(SW1,4)}, {s(sB0)} offen offset:{1024*i} sc1 lds")
        g.append(('TAG', f"a3_{c}"))
        return g
    a1 = a_dma(1)
    G.items(a_dma(0) + a1[:2])
    G.wait_tag('a3_0')
    G.bar('a3_0')
    G.stamp('a3_0')
    G.items(a1[2:] + a_dma(2))
    SL = 32
    for i in range(4): G(f"buffer_load_dwordx4 {v(SL+4*i,4)}, v11, {s(SWS,4)}, {s(sT4)} offen offset:{1024*i} sc1")
    for l in PFORD[cfg.npf:]: G.items(w3_dma(l, W3SLOT[l], nP3))
    NR = 4
    WD_SLOT = [80 + 8*j for j in range(22)]
    wd = lambda j: wt_dma(SWD, sKO + j, (j % NR) * 2048, f"wd_{j}", nWD)
    wd_issue_period = {}
    st3 = []
    for i in range(4): st3.append(f"v_add_f32 {v(SL+4*i)}, {v(SL+4*i)}, {v(SL+4*i+2)}\nv_add_f32 {v(SL+4*i+1)}, {v(SL+4*i+1)}, {v(SL+4*i+3)}")
    st3.append(f"""
    v_add_f32 {v(SL)}, {v(SL)}, {v(SL+4)}
    v_add_f32 {v(SL+1)}, {v(SL+1)}, {v(SL+5)}
    v_add_f32 {v(SL+8)}, {v(SL+8)}, {v(SL+12)}
    v_add_f32 {v(SL+9)}, {v(SL+9)}, {v(SL+13)}
    v_add_f32 {v(SL)}, {v(SL)}, {v(SL+8)}
    v_add_f32 {v(SL+1)}, {v(SL+1)}, {v(SL+9)}
    v_mov_b32 {v(SL+2)}, {v(SL)}
    v_mov_b32 {v(SL+3)}, {v(SL+1)}
    v_permlane32_swap_b32 {v(SL)}, {v(SL+2)}
    v_permlane32_swap_b32 {v(SL+1)}, {v(SL+3)}
    v_add_f32 {v(SL)}, {v(SL)}, {v(SL+2)}
    v_add_f32 {v(SL+1)}, {v(SL+1)}, {v(SL+3)}
    v_mul_f32 {v(SL)}, 0x3b000000, {v(SL)}
    v_mul_f32 {v(SL+1)}, 0x3b000000, {v(SL+1)}
    v_fma_f32 {v(SL+1)}, -{v(SL)}, {v(SL)}, {v(SL+1)}
    v_max_f32 {v(SL+1)}, 0, {v(SL+1)}
    v_add_f32 {v(SL+1)}, 0x3727c5ac, {v(SL+1)}
    v_rcp_f32 {v(SL+1)}, {v(SL+1)}
    v_sub_f32 {v(SL)}, 0, {v(SL)}
    s_lshl_b32 {s(sT5)}, {s(sW)}, 8
    s_add_u32 {s(sT5)}, {s(sT5)}, {STATS3}
    v_and_b32 v2, 31, v0
    v_lshlrev_b32 v2, 3, v2
    v_add_u32 v2, {s(sT5)}, v2
    ds_write_b64 v2, {v(SL,2)}
    """)
    G.items(st3)
    wd_next = 0; wd_iss = 0
    def wd_cycle(period, force=False):
        nonlocal wd_next, wd_iss
        did = []
        while wd_next < wd_iss:
            j = wd_next
            lead = 2 if j < NR else 1
            if not force and period - wd_issue_period[j] < lead: break
            G.wait_tag(f"wd_{j}")
            for x in wt_reads(WD_SLOT[j], (j % NR) * 2048, nWT): G(x)
            did.append(j); wd_next += 1
        if did:
            G.lwait_all()
            for j in did:
                if wd_iss < 22:
                    G.items(wd(wd_iss)); wd_issue_period[wd_iss] = period; wd_iss += 1
    for c in range(7):
        st = 4*c + 3
        G.wait_tag(f"a3_{c+1}")
        for l, b in W3BAR.items():
            if b == st and f"w3_{l}" in G.tags: G.wait_tag(f"w3_{l}")
        G.lwait_all()
        G.bar(f'p3_{st}')
        if c + 3 < 8: G.items(a_dma(c + 3))
        heavy = False
        for l in (5, 6, 7):
            if 4*(l-5) + 3 == st: G.items(w3_dma(l, W3SLOT[l], nP3)); heavy = True
        if c == cfg.wd0:
            for j in range(NR): G.items(wd(j)); wd_issue_period[j] = c + 1
            wd_iss = NR
        elif not (heavy and cfg.skipwd): wd_cycle(c + 1)
    G.stamp('p3ld')
    while wd_next < 22: wd_cycle(99, force=True)
    G.lwait_all()
    G.stamp('wd')
    G.sv = (15, 8)
    G(f"""
    s_mul_i32 {s(sT0)}, {s(sW)}, 24576
    s_add_u32 {s(sT0)}, {s(sT0)}, {RING4}
    v_add_u32 v12, {s(sT0)}, v11
    """)
    G.bar('p4start')
    U = [16, 32, 48, 16]
    AB = 64; NAB = 4
    n = 22; skew = cfg.skew
    ops = []
    for j in range(n): ops += [(0, 0, j, j, True), (1, 1, j, j, False)]
    for j in range(n - 3):
        ops.append((2, 0, j, 22 + j, True))
        if j >= skew: ops.append((3, 1, j, 22 + j, False))
        if skew <= j < 2*skew: ops.append((3, 1, j - skew, 22 + j - skew, True))
    for j in range(n - 3, n): ops.append((2, 0, j, 22 + j, True))
    for j in range(n - 3, n): ops.append((3, 1, j, 22 + j, 'keep'))
    rd_list = [(k, o[3]) for k, o in enumerate(ops) if o[4] is True]
    slot_of = {}
    for r, (k, q) in enumerate(rd_list): slot_of[k] = r % NAB
    for k, o in enumerate(ops):
        if o[4] is False: slot_of[k] = slot_of[k-1]
        if o[4] == 'keep': slot_of[k] = slot_of[k-3]
    barred = -1
    nr = 0
    def issue_read():
        nonlocal nr, barred
        k, q = rd_list[nr]
        while barred < q // 4:
            barred += 1
            G.lwait_all() if False else None
            G.bar(f"p4_{barred}")
        G(f"ds_read_b128 {v(AB + 4*(nr % NAB), 4)}, v12 offset:{(q % 24) * 1024}")
        nr += 1
    RED = [80, 96, 112]
    XH = 128; OUTR = 136
    assert skew <= 6
    extra = {}
    w0 = red_write(0, U[0])
    extra.setdefault(2*n, []).extend(w0[:2]); extra.setdefault(2*n + 1, []).append(w0[2]); extra.setdefault(2*n + 2, []).append(w0[3]); extra.setdefault(2*n + 3, []).append(w0[4])
    i = 2*n + skew + 2
    for it in red_write(1, U[1]): extra.setdefault(i, []).append(it); i += 2
    last2 = max(k for k, o in enumerate(ops) if o[0] == 2)
    w2 = red_write(2, U[2])
    extra.setdefault(last2 + 1, []).extend(w2[:3]); extra.setdefault(last2 + 2, []).extend(w2[3:])
    assert last2 + 3 == len(ops) - 1
    rr = red_read(RED, 'red4')
    extra.setdefault(last2 + 3, []).extend(rr[:2] + rr[10:])
    e0 = last2 - 13
    assert all(not (o[0] == 3 and o[2] < 8) for o in ops[e0-2:]), 'slots still live'
    extra.setdefault(e0 - 2, []).append(f"""
    buffer_load_dwordx4 {v(XH,4)}, v11, {s(SWS,4)}, {s(sO0)} offen sc1
    buffer_load_dwordx4 {v(XH+4,4)}, v11, {s(SWS,4)}, {s(sO0)} offen offset:1024 sc1
    """)
    extra.setdefault(e0, []).extend([rr[0], ('BSYNC', 'red4a')] + rr[2:10])
    pre = [f"v_add_f32 {v(RED[0]+i)}, {v(RED[0]+i)}, {v(RED[1]+i)}" for i in range(16)]
    for i in range(8): pre += [f"v_lshlrev_b32 {v(RED[1]+2*i)}, 16, {v(XH+i)}", f"v_and_b32 {v(RED[1]+2*i+1)}, 0xffff0000, {v(XH+i)}"]
    pre += [f"v_add_f32 {v(RED[0]+i)}, {v(RED[0]+i)}, {v(RED[1]+i)}" for i in range(16)]
    for i, x in enumerate(pre): extra.setdefault(e0 + 2 + i // 4, []).append(x)
    for _ in range(NAB - 1): issue_read()
    G.stamp('p4_0')
    rdone = 0
    for k, (u, cs, j, q, fresh) in enumerate(ops):
        if u == 3 and j == skew: G.lwait(G.w0idx)
        G(f"v_mfma_f32_32x32x16_bf16 {v(U[u],16)}, {v(WD_SLOT[j]+4*cs,4)}, {v(AB+4*slot_of[k],4)}, {'0' if j == (skew if u == 3 else 0) else v(U[u],16)}")
        if fresh is True: rdone += 1
        nxt_fresh = (k + 1 == len(ops)) or (ops[k+1][4] is not False)
        while nr < len(rd_list) and nr - NAB < rdone - (0 if nxt_fresh else 1): issue_read()
        G.items(extra.get(k, []))
        if k == 2*n + 3: G.w0idx = G.lg
    for i in range(8): G(f"v_pk_add_f32 {v(RED[0]+2*i,2)}, {v(RED[0]+2*i,2)}, {v(RED[2]+2*i,2)}")
    for i in range(8): G(f"v_pk_add_f32 {v(U[3]+2*i,2)}, {v(U[3]+2*i,2)}, {v(RED[0]+2*i,2)}")
    for i in range(8): G(f"v_cvt_pk_bf16_f32 {v(OUTR+i)}, {v(U[3]+2*i)}, {v(U[3]+2*i+1)}")
    for i in range(4): G(f"v_permlane16_swap_b32 {v(OUTR+i)}, {v(OUTR+4+i)}")
    G(f"""
    buffer_store_dwordx4 {v(OUTR,4)}, {v(nXA)}, {s(SOUT,4)}, 0 offen
    buffer_store_dwordx4 {v(OUTR+4,4)}, {v(nXA)}, {s(SOUT,4)}, 0 offen offset:1024
    """)
    G.stamp('end')

def main(path, cfg):
    A = Asm()
    A.raw(HDR.rstrip('\n'))
    A.raw(f"; @launch grid=(256,1,1) block=(512,1,1) lds={LDS_TOTAL}")
    A.raw('.amdgcn_target "amdgcn-amd-amdhsa--gfx950"\n.text')
    n = NAME + "_kernel"
    A.raw(f".globl {n}\n.p2align 8\n.type {n},@function\n{n}:")
    A(f"""
    s_cmp_ge_u32 s2, 256
    s_cbranch_scc1 K_END
    s_load_dwordx16 s[64:79], s[0:1], 0
    s_load_dwordx4 s[80:83], s[0:1], 64
    s_memrealtime {s(sTS,2)}
    s_getreg_b32 {s(sXCC)}, hwreg(HW_REG_XCC_ID, 0, 4)
    v_lshrrev_b32 v1, 6, v0
    v_and_b32 v0, 63, v0
    v_readfirstlane_b32 {s(sW8)}, v1
    s_and_b32 {s(sXCD)}, s2, 7
    s_lshr_b32 {s(sIDX)}, s2, 3
    s_lshr_b32 {s(sRBL)}, {s(sIDX)}, 3
    s_and_b32 {s(sCB)}, {s(sIDX)}, 7
    s_lshl_b32 {s(sRB)}, {s(sXCD)}, 2
    s_add_u32 {s(sRB)}, {s(sRB)}, {s(sRBL)}
    s_and_b32 {s(sM)}, {s(sIDX)}, 15
    s_lshr_b32 {s(sG)}, {s(sRB)}, 1
    s_mov_b32 {s(sONE)}, 0x3f803f80
    s_and_b32 {s(sW)}, {s(sW8)}, 3
    s_cmp_lt_u32 {s(sW8)}, 4
    s_cbranch_scc1 PROG_A
    """)
    def pad(G):
        if not G.probed: return
        A(f"s_add_u32 s36, s36, 4000")
        A.label(G.pfx + "PADL")
        A(f"""
        s_memrealtime s[50:51]
        s_waitcnt lgkmcnt(0)
        s_sub_u32 s50, s50, s36
        s_cmp_lt_i32 s50, 0
        s_cbranch_scc1 {G.pfx}PADL
        """)
    GB = Gen(cfg, A, "B_"); prog_b(GB); pad(GB)
    A("s_endpgm")
    A.label("PROG_A")
    GA = Gen(cfg, A, "A_"); prog_a(GA); pad(GA)
    A.label("K_END")
    A("s_endpgm")
    assert GA.bars == GB.bars, (GA.bars, GB.bars)
    A.raw('.section .rodata,"a"\n.p2align 6')
    A.raw(f""".amdhsa_kernel {n}
  .amdhsa_next_free_vgpr 256
  .amdhsa_next_free_sgpr 102
  .amdhsa_accum_offset 256
  .amdhsa_group_segment_fixed_size 0
  .amdhsa_kernarg_size 80
  .amdhsa_user_sgpr_count 2
  .amdhsa_user_sgpr_kernarg_segment_ptr 1
  .amdhsa_system_sgpr_workgroup_id_x 1
.end_amdhsa_kernel""")
    open(path, 'w').write(A.finalize())
    print("barriers:", len(GA.bars)); print("stampsA:", GA.names); print("stampsB:", GB.names)

if __name__ == '__main__':
    cfg = Cfg()
    for a_ in sys.argv[2:]:
        k, val = a_.split('=')
        setattr(cfg, k, val if k == 'probe' else int(val))
    main(sys.argv[1], cfg)
```

```python
import numpy as np
GSTRIDE = 640 * 1024
O_OFF = 4 * 1024
H_OFF = 132 * 1024
HH_OFF = 260 * 1024
ST_OFF = 612 * 1024
FL_OFF = 628 * 1024
STAMP_OFF = 16 * GSTRIDE
WS_USED = STAMP_OFF + 256 * 8 * 256

def bf2f(a16): return (a16.astype(np.uint32) << 16).view(np.float32)
def rows_of(G, T):
    j = np.arange(32)
    return 128 * G + 32 * T + 2 * (j & 15) + (j >> 4)
def std_cols(ks):
    h = np.arange(2)[:, None]; e = np.arange(8)[None, :]
    return 16 * ks + 8 * (e >> 2) + 4 * h + (e & 3)
def h_cols(ks):
    h = np.arange(2)[:, None]; e = np.arange(8)[None, :]
    return 32 * (ks >> 1) + 16 * h + 8 * (ks & 1) + e
def unpack(ws, off, nks, colf, ncol, stride=None):
    stride = stride or nks
    out = np.full((2048, ncol), np.nan, np.float32)
    for G in range(16):
        blk = ws[G * GSTRIDE + off: G * GSTRIDE + off + 4 * stride * 1024].view(np.uint16).reshape(4, stride, 2, 32, 8)
        f = bf2f(blk)
        for T in range(4):
            r = rows_of(G, T)
            for ks in range(nks):
                c = colf(ks)
                out[r[None, :, None], c[:, None, :]] = f[T, ks]
    return out
def unpack_o(ws): return unpack(ws, O_OFF, 32, std_cols, 512)
def unpack_h(ws): return unpack(ws, H_OFF, 32, h_cols, 512)
def unpack_hh(ws): return unpack(ws, HH_OFF, 86, std_cols, 1376, 88)
def unpack_st(ws):
    s = np.zeros(2048, np.float32); q = np.zeros(2048, np.float32)
    for G in range(16):
        blk = ws[G * GSTRIDE + ST_OFF: G * GSTRIDE + ST_OFF + 16384].view(np.float32).reshape(4, 8, 32, 2, 2)
        for T in range(4):
            r = rows_of(G, T)
            s[r] = blk[T, :, :, :, 0].sum((0, 2)); q[r] = blk[T, :, :, :, 1].sum((0, 2))
    return s, q
def print_stamps(ws, n):
    st = ws[STAMP_OFF: STAMP_OFF + 256 * 4 * 256].view(np.uint64).reshape(256, 4, 32)[:, :, :n].astype(np.int64)
    t0 = st[:, :, 0].min()
    rel = (st - t0) * 0.01
    print("mean    :", " ".join("%.2f" % x for x in rel.reshape(-1, n).mean(0)))
    print("all max :", " ".join("%.2f" % x for x in rel.reshape(-1, n).max(0)))
    print("all min :", " ".join("%.2f" % x for x in rel.reshape(-1, n).min(0)))
def print_cycles(ws, n):
    st = ws[STAMP_OFF: STAMP_OFF + 256 * 4 * 256].view(np.uint64).reshape(256, 4, 32)[:, :, :n].astype(np.int64)
    d = np.diff(st, axis=2)
    print("cycles mean per seg:", " ".join("%d" % x for x in d.reshape(-1, n-1).mean(0)))
    print("cycles min  per seg:", " ".join("%d" % x for x in d.reshape(-1, n-1).min(0)))
    print("cycles max  per seg:", " ".join("%d" % x for x in d.reshape(-1, n-1).max(0)))
    print("total mean", (st[:, :, -1] - st[:, :, 0]).mean())

def print_stamps8(ws, n):
    st = ws[STAMP_OFF: STAMP_OFF + 256 * 8 * 256].view(np.uint64).reshape(256, 8, 32).astype(np.int64)
    na, nb = n // 100, n % 100
    keep = ((np.arange(256) >> 3) & 15) < 14
    st = st[keep]
    t0 = st[:, :, 0].min()
    a = (st[:, :4, :na] - t0) * 0.01; b = (st[:, 4:, :nb] - t0) * 0.01
    print("A mean:", " ".join("%.2f" % x for x in a.reshape(-1, na).mean(0)))
    print("A max :", " ".join("%.2f" % x for x in a.reshape(-1, na).max(0)))
    print("B mean:", " ".join("%.2f" % x for x in b.reshape(-1, nb).mean(0)))
    print("B max :", " ".join("%.2f" % x for x in b.reshape(-1, nb).max(0)))

def print_cycles8(ws, n):
    st = ws[STAMP_OFF: STAMP_OFF + 256 * 8 * 256].view(np.uint64).reshape(256, 8, 32).astype(np.int64)
    na, nb = n // 100, n % 100
    a = np.diff(st[:, :4, :na], axis=2); b = np.diff(st[:, 4:, :nb], axis=2)
    print("A mean cyc:", " ".join("%d" % x for x in a.reshape(-1, na-1).mean(0)))
    print("B mean cyc:", " ".join("%d" % x for x in b.reshape(-1, nb-1).mean(0)))

def stamps8(buf, n):
    st = buf.view(np.uint64).reshape(256, 8, 32).astype(np.int64)
    na, nb = n // 100, n % 100
    keep = ((np.arange(256) >> 3) & 15) < 14
    st = st[keep]
    t0 = st[:, :, 0].min(axis=1)[:, None, None]
    a = (st[:, :4, :na] - t0) * 0.01; b = (st[:, 4:, :nb] - t0) * 0.01
    span = (st[:, 4:, nb-1].max() - st[:, :, 0].min()) * 0.01
    return a.reshape(-1, na).mean(0), b.reshape(-1, nb).mean(0), span, b[:, :, nb-1].mean()
```

```python
import sys, re
from asmlib import *
import layout as L

NAME = "sequential_preLN__sliding_local_dilated__glu_gated_reglu__prompt"
HDR = open('cdna_kernels/' + NAME + '.s.ref').read().split('; Override launch')[0]

class Cfg:
    stamps = 0
    probe = ''
    force_slow = 0
    touch = 0
    skew = 6
    pre2 = 7
    gap = 64
    prioA = 0
    prioB = 0
    wd_early = 1
    fine = 0
    skipwd = 1
    nb0 = 2
    pretouch = 0
    dsc1 = 7
    tH = 0
    tS = 1
    rotx = 2
    regi = 1
    gt = 3
    hti = 6
    hht = 16
    tlb = 0
    ramp = 3
    wd0 = 3
    ndma = 9
    ndma7 = 4
    rotm = 1
    rots = 2
    abl = 0
    bflush = 5
    gapB = 32
    npf = 2
    l345 = 2

SX, SW1, SWO, SWD, SOUT, SWS, SDBG, SMU, sST = 4, 8, 12, 16, 20, 24, 28, 32, 36
sXCD, sIDX, sRBL, sCB, sW, sG, sRB, sM = 40, 41, 42, 43, 44, 45, 46, 47
sONE, sMODE = 48, 49
sT0, sT1, sT2, sT3, sT4, sT5 = 50, 51, 52, 53, 54, 55
sB0, sCNT = 56, 57
sEXH = 58
sMX, sMH, sMW, sSX = 60, 61, 62, 63
sKO = 64
sMWL, sB1 = 86, 87
sROT3, sW3S, sW3G, sA3, sWB, sO0, sO1 = 88, 89, 90, 91, 92, 93, 94
sXCC = 95
sTS = 96
sTB, sTB1, sW8, sSW = 98, 99, 100, 101
sMW0 = 3
sLC = 3
sR2, sW1K = 98, 99

class Gen:
    def __init__(self, cfg, A, pfx):
        self.A = A; self.cfg = cfg; self.pfx = pfx
        self.vm = 0; self.tags = {}; self.nstamp = 0; self.names = []
        self.t = 0; self.tm = 0; self.nv = 0
        self.q = []; self.cur = []; self.inbg = False; self.bg_on = True
        self.lg = 0; self.ldone = 0; self.lpend = {}; self.vdone = 0; self.vpend = {}
        self.bars = []
        self.dummy = None
        self.probed = False
        self.sv = (253, 254)
    def _autowait(self, ins):
        regs = [r for r in list(ins.rd) + list(ins.wr) if r[0] in 'va']
        nl = max([self.lpend.get(r, 0) for r in regs] + [0])
        nvm = max([self.vpend.get(r, 0) for r in regs] + [0])
        parts = []
        if nvm > self.vdone:
            parts.append(f"vmcnt({min(self.vm - nvm, 63)})"); self.vdone = nvm
        if nl > self.ldone:
            parts.append(f"lgkmcnt({min(self.lg - nl, 15)})"); self.ldone = nl
        if parts:
            self.A("s_waitcnt " + " ".join(parts)); self.t += 4
    def _note_wait(self, ln):
        m = re.search(r'vmcnt\((\d+)\)', ln)
        if m: self.vdone = max(self.vdone, self.vm - int(m.group(1)))
        m = re.search(r'lgkmcnt\((\d+)\)', ln)
        if m: self.ldone = max(self.ldone, self.lg - int(m.group(1)))
    def lwait_all(self):
        if self.ldone < self.lg: self._emit("s_waitcnt lgkmcnt(0)")
    def lwait(self, idx):
        if self.ldone < idx: self._emit(f"s_waitcnt lgkmcnt({min(self.lg - idx, 15)})")
    def _emit(self, ln):
        ins = Ins(ln)
        if ins.cls in ('valu', 'mfma', 'lds', 'vmem'): self._autowait(ins)
        self.A(ln)
        op = ins.op
        if op == 's_waitcnt': self._note_wait(ln)
        if ins.cls == 'lds':
            self.lg += 1
            for r in ins.wr: self.lpend[r] = self.lg
        if ins.cls == 'vmem':
            for r in ins.wr:
                if r != self.dummy: self.vpend[r] = self.vm + 1
        if op.startswith('v_mfma'):
            st = max(self.t, self.tm); self.t = st + 8; self.tm = st + (32 if '32x32' in op else 16)
        elif ins.cls == 'vmem':
            self.vm += 1
            self.t = max(self.t, self.nv) + 8; self.nv = self.t + (self.cfg.gapB if self.pfx == 'B_' else self.cfg.gap)
        elif ins.cls == 'lds': self.t += 10
        else: self.t += 4
    def __call__(self, t):
        for ln in t.strip().split('\n'):
            ln = ln.strip()
            if ln: self._emit(ln)
        self.pump()
    def _next(self):
        while not self.cur and self.q: self.cur = list(self.q.pop(0))
        return self.cur.pop(0) if self.cur else None
    def _has(self): return bool(self.cur) or any(self.q)
    def _one(self):
        it = self._next()
        self.inbg = True
        self.item(it)
        while self.cur and isinstance(self.cur[0], tuple) and self.cur[0][0] == 'TAG': self.item(self.cur.pop(0))
        self.inbg = False
    def pump(self):
        if self.inbg or not self.bg_on: return
        while self._has() and self.t >= self.nv: self._one()
    def bg(self, group): self.q.append(list(group))
    def flush(self, tag=None):
        while self._has() and (tag is None or tag not in self.tags): self._one()
    def tag(self, name): self.tags[name] = self.vm
    def wait_tag(self, name):
        if name not in self.tags: self.flush(name)
        if self.tags[name] <= self.vdone: return
        self._emit(f"s_waitcnt vmcnt({min(self.vm - self.tags[name], 63)})")
    def bar(self, name):
        if self.cfg.fine and name.startswith({1: 'c', 2: 'zz', 3: 'p3_', 4: 'p4_'}[self.cfg.fine]): self.stamp('@' + name)
        self.bars.append(name); self._emit("s_barrier"); self.nv = self.t
        if self.cfg.fine == 3 and name.startswith('p3_') and self.pfx == 'A_': self.stamp('>' + name)
    def asyncA(self):
        self.bsync('svcA')
    def bsync(self, name):
        off = CNT + {'wo': 0, 'red4': 4, 'red4a': 8, 'svcA': 12}[name]
        self.bg_on = False
        self(f"""
        v_mov_b32 v2, {off}
        v_mov_b32 v3, 1
        s_mov_b64 exec, 1
        ds_add_u32 v2, v3
        s_mov_b64 exec, -1
        s_mov_b32 {s(sCNT)}, 0
        """)
        self.A.label("BS_" + name)
        self.A(f"""
        ds_read_b32 v3, v2
        s_add_u32 {s(sCNT)}, {s(sCNT)}, 1
        s_waitcnt lgkmcnt(0)
        v_readfirstlane_b32 {s(sT5)}, v3
        s_cmp_ge_u32 {s(sCNT)}, 0x100000
        s_cbranch_scc1 BS_{name}_D
        s_cmp_lt_u32 {s(sT5)}, 4
        s_cbranch_scc1 BS_{name}
        """)
        self.A.label(f"BS_{name}_D")
        self.ldone = self.lg
        self.bg_on = True
    def items(self, lst):
        for it in lst: self.item(it)
    def stamp(self, name=''):
        if self.cfg.probe == self.pfx + name:
            self(f"s_memrealtime s[36:37]\ns_waitcnt lgkmcnt(0)"); self.probed = True
        if not self.cfg.stamps: return
        i = self.nstamp; self.nstamp += 1; self.names.append(name)
        on = self.bg_on; self.bg_on = False
        self(f"""
        {'s_memtime' if self.cfg.stamps == 2 else 's_memrealtime'} {s(sTS,2)}
        s_waitcnt lgkmcnt(0)
        v_writelane_b32 v{self.vS}, {s(sTS)}, {i}
        """)
        self.bg_on = on
        if name == 'end':
            self(f"""
            v_lshlrev_b32 v2, 3, v0
            v_mov_b32 v4, v{self.vS}
            v_mov_b32 v5, 0
            v_cmp_gt_u32 vcc, 32, v0
            s_and_b64 exec, exec, vcc
            buffer_store_dwordx2 v[4:5], v2, {s(sST,4)}, 0 offen
            s_mov_b64 exec, -1
            """)
    def item(self, it):
        if isinstance(it, tuple):
            if it[0] == 'WAIT': self.wait_tag(it[1])
            elif it[0] == 'TAG': self.tag(it[1])
            elif it[0] == 'BG': self.bg(it[1])
            elif it[0] == 'BAR': self.lwait_all(); self.bar(it[1])
            elif it[0] == 'BSYNC': self.bsync(it[1])
        else: self(it)
    def spread(self, main, fill):
        n, m = len(main), len(fill); fi = 0
        for i, x in enumerate(main):
            self(x)
            while fi < m and fi * n < (i + 1) * m:
                self.item(fill[fi]); fi += 1
        while fi < m: self.item(fill[fi]); fi += 1
    def front(self, main, fill, per=1):
        fi = 0
        for x in main:
            self(x)
            for _ in range(per):
                if fi < len(fill): self.item(fill[fi]); fi += 1
        while fi < len(fill): self.item(fill[fi]); fi += 1

XCH = 10240
WRING = 8 * XCH
WSLOT = 24576
S0, S1, S2 = WRING, WRING + WSLOT, WRING + 2 * WSLOT
STATS1 = WRING + 3 * WSLOT
STATS3 = STATS1 + 1024
CSX = STATS3 + 1024
WDT = 49152
HHS = 88 * 1024
RING4 = 49152
LDS_TOTAL = 163840
SG_OFF = L.FL_OFF + 2048
CNT = STATS1 + 1000
STG = STATS1 + 896
vL = 0

def srd(dst, src, size):
    return f"""
    s_mov_b32 {s(dst)}, {s(src)}
    s_and_b32 {s(dst+1)}, {s(src+1)}, 0xffff
    s_mov_b32 {s(dst+2)}, {size}
    s_mov_b32 {s(dst+3)}, 0x20000
    """
def common_srds(cfg):
    t = f"""
    s_mul_i32 {s(sT0)}, {s(sG)}, {L.GSTRIDE}
    s_add_u32 {s(SWS)}, s82, {s(sT0)}
    s_addc_u32 {s(SWS+1)}, s83, 0
    s_and_b32 {s(SWS+1)}, {s(SWS+1)}, 0xffff
    s_mov_b32 {s(SWS+2)}, {L.GSTRIDE}
    s_mov_b32 {s(SWS+3)}, 0x20000
    s_bitcmp1_b32 {s(sW)}, 0
    s_cselect_b32 {s(SMU)}, s74, s72
    s_cselect_b32 {s(SMU+1)}, s75, s73
    s_and_b32 {s(SMU+1)}, {s(SMU+1)}, 0xffff
    s_cmp_eq_u32 {s(sM)}, 15
    s_cselect_b32 {s(SMU+2)}, 0, {512*2752}
    s_mov_b32 {s(SMU+3)}, 0x20000
    """ + srd(SDBG, 80, 256)
    if cfg.stamps:
        t += f"""
        s_lshl_b32 {s(sT0)}, s2, 11
        s_lshl_b32 {s(sT1)}, {s(sW8)}, 8
        s_add_u32 {s(sT0)}, {s(sT0)}, {s(sT1)}
        s_add_u32 {s(sT0)}, {s(sT0)}, {L.STAMP_OFF}
        s_add_u32 {s(sST)}, s82, {s(sT0)}
        s_addc_u32 {s(sST+1)}, s83, 0
        s_and_b32 {s(sST+1)}, {s(sST+1)}, 0xffff
        s_mov_b32 {s(sST+2)}, 256
        s_mov_b32 {s(sST+3)}, 0x20000
        """
    return t

def stores(G, lst, label):
    bit = {'ST1': 1, 'ST2': 2, 'ST2B': 8, 'ST3': 4, 'ST3Z': 4, 'ST3P': 4}.get(label, 0)
    if G.cfg.dsc1 & bit:
        for x in lst: G._emit(x + " sc1")
        G.A.label(G.pfx + label + "_DONE")
        return
    A = G.A; label = G.pfx + label
    for x in lst: G._autowait(Ins(x))
    A(f"""
    s_cmp_lg_u32 {s(sMODE)}, 0
    s_cbranch_scc1 {label}_SLOW
    """)
    for x in lst: A(x)
    A(f"s_branch {label}_DONE")
    A.label(f"{label}_SLOW")
    for x in lst: A((x + " sc1") if x.startswith('buffer_store') else x)
    A.label(f"{label}_DONE")
    G.vm += sum(1 for x in lst if x.startswith('buffer_'))

def signal(G, phase, vFE):
    G.bg_on = False
    G(f"""
    v_add_u32 v2, {phase}, {v(vFE)}
    v_mov_b32 v3, {v(vFE+1)}
    s_lshl_b32 {s(sT0)}, {s(sM)}, 2
    s_add_u32 {s(sT0)}, {s(sT0)}, {s(sW)}
    s_lshl_b32 {s(sT0)}, {s(sT0)}, 3
    s_add_u32 {s(sT0)}, {s(sT0)}, {L.FL_OFF + phase*512}
    v_mov_b32 v4, {s(sT0)}
    s_waitcnt vmcnt(0)
    s_mov_b64 exec, 1
    """)
    stores(G, [f"buffer_store_dwordx2 v[2:3], v4, {s(SWS,4)}, 0 offen"], f"SIG{phase}")
    G.bg_on = True; G.nv = G.t
    G("s_mov_b64 exec, -1")

def poll(G, phase, vFE):
    A = G.A
    if phase == 0:
        A(f"""
        v_and_b32 v4, 31, v0
        s_and_b32 {s(sT0)}, {s(sM)}, 8
        s_lshl_b32 {s(sT0)}, {s(sT0)}, 2
        v_add_u32 v4, {s(sT0)}, v4
        v_lshlrev_b32 v4, 3, v4
        """)
    else:
        A("v_lshlrev_b32 v4, 3, v0")
    A(f"""
    v_add_u32 v2, {phase}, {v(vFE)}
    v_mov_b32 v3, {v(vFE+1)}
    s_mov_b32 {s(sCNT)}, 0
    s_mov_b32 {s(sT0)}, {L.FL_OFF + phase*512}
    """)
    A.label(f"POLL{phase}")
    A(f"""
    buffer_load_dwordx2 v[6:7], v4, {s(SWS,4)}, {s(sT0)} offen sc1
    s_add_u32 {s(sCNT)}, {s(sCNT)}, 1
    s_waitcnt vmcnt(0)
    v_cmp_ne_u64 vcc, v[6:7], v[2:3]
    s_cmp_ge_u32 {s(sCNT)}, 20000
    s_cbranch_scc1 POLL{phase}_DONE
    s_cbranch_vccnz POLL{phase}
    """)
    A.label(f"POLL{phase}_DONE")
    G.vdone = G.vm; G.nv = G.t

def regdecode(G, vFE, vaddr):
    A = G.A; p = G.pfx
    G._autowait(Ins(f"v_mov_b32 {v(vFE)}, {v(vFE+1)}"))
    G(f"s_mov_b32 {s(sCNT)}, 0")
    A.label(p + "REGPOLL")
    A(f"""
    v_readfirstlane_b32 {s(sT0)}, {v(vFE)}
    v_readfirstlane_b32 {s(sT1)}, {v(vFE+1)}
    s_and_b32 {s(sT2)}, {s(sT0)}, 31
    s_cmp_eq_u32 {s(sT2)}, 16
    s_cbranch_scc1 {p}REGOK
    s_add_u32 {s(sCNT)}, {s(sCNT)}, 1
    s_cmp_ge_u32 {s(sCNT)}, 20000
    s_cbranch_scc1 {p}REGOK
    buffer_load_dwordx2 {v(vFE,2)}, {v(vaddr)}, {s(SDBG,4)}, 0 offen offset:128 sc1
    s_waitcnt vmcnt(0)
    s_branch {p}REGPOLL
    """)
    A.label(p + "REGOK")
    G(f"""
    s_bfe_u32 {s(sT2)}, {s(sT0)}, {5 | (7 << 16)}
    s_bfe_u32 {s(sT3)}, {s(sT0)}, {12 | (10 << 16)}
    s_mul_i32 {s(sT2)}, {s(sT2)}, {s(sT2)}
    s_lshl_b32 {s(sT3)}, {s(sT3)}, 4
    s_cmp_lg_u32 {s(sT2)}, {s(sT3)}
    s_cselect_b32 {s(sMODE)}, 1, {1 if G.cfg.force_slow else 0}
    s_and_b32 {s(sT0)}, {s(sT0)}, 0xffc00000
    s_or_b32 {s(sT0)}, {s(sT0)}, 0x5a5a0
    v_mov_b32 {v(vFE)}, {s(sT0)}
    v_mov_b32 {v(vFE+1)}, {s(sT1)}
    """)

def lch(l): return ((l >> 1) & 1) * 4 + (l >> 2) * 2 + (l & 1)
def w3_setup(vP3, t0, t1, t2):
    out = f"""
    s_mul_i32 {s(sT0)}, {s(sM)}, 192
    s_mov_b32 {s(sT1)}, 0x15555556
    s_and_b32 {s(sT2)}, {s(sW)}, 1
    s_lshr_b32 {s(sT4)}, {s(sW)}, 1
    s_mul_i32 {s(sW3S)}, {s(sT2)}, 12288
    s_mul_i32 {s(sT5)}, {s(sT4)}, 6144
    s_add_u32 {s(sW3S)}, {s(sW3S)}, {s(sT5)}
    s_mul_i32 {s(sW3G)}, {s(sT4)}, {32*2752}
    s_and_b32 {s(sROT3)}, {s(sG)}, 1
    s_lshl_b32 {s(sROT3)}, {s(sROT3)}, 2
    s_lshl_b32 {s(sT2)}, {s(sT2)}, 1
    """
    for i in range(3):
        out += f"""
        v_add_u32 {v(t0)}, {64*i}, {v(vL)}
        v_mul_hi_u32 {v(t1)}, {v(t0)}, {s(sT1)}
        v_mul_u32_u24 {v(t2)}, 12, {v(t1)}
        v_sub_u32 {v(t2)}, {v(t0)}, {v(t2)}
        v_mul_u32_u24 {v(t1)}, 2752, {v(t1)}
        v_add_u32 {v(t1)}, {s(sT0)}, {v(t1)}
        v_subrev_u32 {v(t1)}, {1024*i}, {v(t1)}
        v_subrev_u32 {v(t2)}, {s(sT2)}, {v(t2)}
        v_add_u32 {v(t0)}, 12, {v(t2)}
        v_cmp_gt_i32 vcc, 0, {v(t2)}
        v_cndmask_b32 {v(t2)}, {v(t2)}, {v(t0)}, vcc
        v_lshl_add_u32 {v(vP3+i)}, {v(t2)}, 4, {v(t1)}
        """
    return out
def w3_dma(c, base, vP3):
    g = [f"""
    s_xor_b32 {s(sB0)}, {s(sROT3)}, {lch(c)}
    s_mul_i32 {s(sB0)}, {s(sB0)}, {64*2752}
    s_add_u32 {s(sB0)}, {s(sB0)}, {s(sW3G)}
    s_add_u32 m0, {s(sW3S)}, {base}
    s_add_u32 {s(sB1)}, {s(sB0)}, {16*2752}
    buffer_load_dwordx4 {v(vP3+0)}, {s(SMU,4)}, {s(sB0)} offen lds
    """]
    g.append(f"buffer_load_dwordx4 {v(vP3+1)}, {s(SMU,4)}, {s(sB0)} offen offset:1024 lds")
    g.append(f"buffer_load_dwordx4 {v(vP3+2)}, {s(SMU,4)}, {s(sB0)} offen offset:2048 lds")
    g.append(f"""
    s_add_u32 m0, {s(sW3S)}, {base + 3072}
    s_nop 0
    buffer_load_dwordx4 {v(vP3+0)}, {s(SMU,4)}, {s(sB1)} offen lds
    """)
    g.append(f"buffer_load_dwordx4 {v(vP3+1)}, {s(SMU,4)}, {s(sB1)} offen offset:1024 lds")
    g.append(f"buffer_load_dwordx4 {v(vP3+2)}, {s(SMU,4)}, {s(sB1)} offen offset:2048 lds")
    g.append(('TAG', f"w3_{c}"))
    return g
def p4_table():
    tb = [f"""
    s_mul_i32 {s(sT0)}, {s(sRBL)}, 11
    s_lshr_b32 {s(sT0)}, {s(sT0)}, 1
    s_lshl_b32 {s(sT0)}, {s(sT0)}, 12
    s_lshl_b32 {s(sT1)}, {s(sW)}, 10
    """]
    for j in range(22):
        tb.append(f"""
        s_add_u32 {s(sKO+j)}, {s(sT0)}, {s(sT1)}
        s_add_u32 {s(sT0)}, {s(sT0)}, 4096
        s_cmp_eq_u32 {s(sT0)}, {22*4096}
        s_cselect_b32 {s(sT0)}, 0, {s(sT0)}
        """)
    return tb
def ks_addr(a_base, tile_stride, vL16, d0, d1):
    return f"""
    s_and_b32 {s(sT1)}, {s(sRB)}, 1
    s_lshl_b32 {s(sT1)}, {s(sT1)}, 1
    s_lshr_b32 {s(sT0)}, {s(sW)}, 1
    s_add_u32 {s(sT2)}, {s(sT1)}, {s(sT0)}
    s_xor_b32 {s(sT1)}, {s(sT2)}, 1
    s_mul_i32 {s(sT1)}, {s(sT1)}, {tile_stride}
    s_mul_i32 {s(sT2)}, {s(sT2)}, {tile_stride}
    s_add_u32 {s(sT1)}, {s(sT1)}, {a_base}
    s_add_u32 {s(sT2)}, {s(sT2)}, {a_base}
    v_add_u32 {v(d0)}, {s(sT1)}, {v(vL16)}
    v_add_u32 {v(d1)}, {s(sT2)}, {v(vL16)}
    """
W3SLOT = {0: S2, 1: S0, 2: S1, 3: S2, 4: S0, 5: S1, 6: S2, 7: S0}
W3BAR = {3: 3, 4: 7, 5: 11, 6: 15, 7: 19}
NB4 = 11
PFORD = [2, 3, 4]

def prog_a(G):
    A = G.A; cfg = G.cfg
    t0, t1, t2, t3, t4 = 1, 2, 3, 4, 5
    vXa0, vXa1, vWa, vS1, vS2, vOA, vRA = 8, 9, 10, 11, 12, 13, 14
    FA, FB = 16, 48
    ACC = 80
    vL16, vFE, vW3o, vW3s, vA01, vA23, vP3 = 148, 150, 149, 152, 153, 154, 155
    BIAS = 160
    G.sv = (158, 146); G.vS = 159
    Qa = lambda T: ACC + 4 * T
    Ka = lambda T: ACC + 20 + 4 * T
    Va = lambda T: ACC + 40 + 4 * T
    if cfg.prioA: G(f"s_setprio {cfg.prioA}")
    G(f"""
    v_lshlrev_b32 {v(vL16)}, 4, v0
    s_mul_i32 {s(sT0)}, {s(sCB)}, 10
    s_mul_i32 {s(sT1)}, {s(sW)}, 3
    s_add_u32 {s(sT0)}, {s(sT0)}, {s(sT1)}
    s_lshl_b32 {s(sT5)}, {s(sRB)}, 6
    s_mov_b32 {s(SX+2)}, {2048*1024}
    s_mov_b32 {s(SX+3)}, 0x20000
    """)
    for k in range(3):
        G(f"""
        s_add_u32 {s(sT1)}, {s(sT0)}, {k}
        s_min_u32 {s(sT1)}, {s(sT1)}, 79
        s_and_b32 {s(sT2)}, {s(sT1)}, 15
        s_lshr_b32 {s(sT3)}, {s(sT1)}, 5
        s_lshl_b32 {s(sT3)}, {s(sT3)}, 5
        s_lshl_b32 {s(sT4)}, {s(sT2)}, 1
        s_add_u32 {s(sT3)}, {s(sT3)}, {s(sT4)}
        s_bfe_u32 {s(sT4)}, {s(sT1)}, {4 | (1 << 16)}
        s_add_u32 {s(sT3)}, {s(sT3)}, {s(sT4)}
        s_add_u32 {s(sT3)}, {s(sT3)}, {s(sT5)}
        s_add_u32 {s(sT2)}, {s(sT2)}, {s(sT5)}
        s_sub_i32 {s(sT2)}, {s(sT2)}, 16
        s_max_i32 {s(sT2)}, {s(sT2)}, 0
        s_cmp_ge_u32 {s(sT1)}, 64
        s_cselect_b32 {s(sT3)}, {s(sT2)}, {s(sT3)}
        s_lshl_b32 {s(sMX+k)}, {s(sT3)}, 10
        """)
    XS = 208
    G(f"""
    s_waitcnt lgkmcnt(0)
    s_mov_b32 {s(SX)}, s64
    s_and_b32 {s(SX+1)}, s65, 0xffff
    buffer_load_dwordx4 {v(XS,4)}, {v(vL16)}, {s(SX,4)}, {s(sMX)} offen
    buffer_load_dwordx4 {v(XS+4,4)}, {v(vL16)}, {s(SX,4)}, {s(sMX+1)} offen
    buffer_load_dwordx4 {v(XS+8,4)}, {v(vL16)}, {s(SX,4)}, {s(sMX+2)} offen
    v_lshrrev_b32 {v(t2)}, 4, {v(vL)}
    v_and_b32 {v(t0)}, 15, {v(vL)}
    v_lshrrev_b32 {v(t1)}, 1, {v(t0)}
    v_xor_b32 {v(t1)}, {v(t1)}, {v(t2)}
    v_lshlrev_b32 {v(t1)}, 4, {v(t1)}
    v_lshl_add_u32 {v(vXa0)}, {v(t0)}, 7, {v(t1)}
    v_xor_b32 {v(vXa1)}, 64, {v(vXa0)}
    v_mul_u32_u24 {v(vWa)}, 3072, {v(t2)}
    v_bfe_u32 {v(t1)}, {v(vL)}, 2, 2
    v_lshl_add_u32 {v(vWa)}, {v(t1)}, 7, {v(vWa)}
    v_lshrrev_b32 {v(t1)}, 1, {v(t1)}
    v_and_b32 {v(t3)}, 1, {v(t2)}
    v_lshl_or_b32 {v(t1)}, {v(t3)}, 1, {v(t1)}
    v_xor_b32 {v(t1)}, {s(sW)}, {v(t1)}
    v_lshl_add_u32 {v(vWa)}, {v(t1)}, 5, {v(vWa)}
    v_and_b32 {v(t1)}, 3, {v(vL)}
    v_lshl_add_u32 {v(vWa)}, {v(t1)}, 3, {v(vWa)}
    v_add_u32 {v(vWa)}, {WRING}, {v(vWa)}
    v_lshlrev_b32 {v(vS1)}, 2, {v(t0)}
    v_add_u32 {v(vS1)}, {STATS1}, {v(vS1)}
    v_lshlrev_b32 {v(vS2)}, 4, {v(t2)}
    v_add_u32 {v(vS2)}, {STATS1}, {v(vS2)}
    v_lshrrev_b32 {v(t1)}, 3, {v(vL)}
    v_mul_u32_u24 {v(t1)}, {XCH}, {v(t1)}
    v_and_b32 {v(t3)}, 7, {v(vL)}
    v_lshl_add_u32 {v(t1)}, {v(t3)}, 4, {v(t1)}
    v_mov_b32 {v(FA)}, {s(sONE)}
    v_mov_b32 {v(FA+1)}, {s(sONE)}
    v_mov_b32 {v(FA+2)}, {s(sONE)}
    v_mov_b32 {v(FA+3)}, {s(sONE)}
    ds_write_b128 {v(t1)}, {v(FA,4)} offset:8192
    """)
    NEG = "0xf149f2ca"
    G(f"""
    v_mov_b32 {v(t4)}, {NEG}
    v_lshlrev_b32 {v(t1)}, 2, {v(t2)}
    v_sub_u32 {v(t3)}, {v(t0)}, {v(t1)}
    """)
    for r in range(4):
        G(f"""
        v_subrev_u32 {v(t1)}, {r}, {v(t3)}
        v_cmp_ge_u32 vcc, 7, {v(t1)}
        v_cmp_ge_i32 {s(sT4,2)}, -9, {v(t1)}
        v_cndmask_b32 {v(BIAS+r)}, {v(t4)}, 0, vcc
        v_cndmask_b32 {v(BIAS+4+r)}, {v(t4)}, 0, {s(sT4,2)}
        """)
    G(f"""
    s_cmp_eq_u32 {s(sRB)}, 0
    s_cselect_b32 {s(sT0)}, 64, 2
    v_lshlrev_b32 {v(t1)}, 2, {v(t2)}
    v_lshlrev_b32 {v(t3)}, 1, {v(t0)}
    v_sub_u32 {v(t3)}, {v(t1)}, {v(t3)}
    v_subrev_u32 {v(t3)}, {s(sT0)}, {v(t3)}
    v_cmp_le_i32 vcc, 0, {v(t3)}
    v_cmp_le_i32 {s(sT4,2)}, -2, {v(t3)}
    v_mov_b32 {v(BIAS+9)}, {v(t4)}
    v_mov_b32 {v(BIAS+11)}, {v(t4)}
    v_mov_b32 {v(BIAS+12)}, {v(t4)}
    v_mov_b32 {v(BIAS+14)}, {v(t4)}
    v_cndmask_b32 {v(BIAS+8)}, {v(t4)}, 0, vcc
    v_cndmask_b32 {v(BIAS+10)}, {v(t4)}, 0, {s(sT4,2)}
    v_cndmask_b32 {v(BIAS+13)}, {v(t4)}, 0, vcc
    v_cndmask_b32 {v(BIAS+15)}, {v(t4)}, 0, {s(sT4,2)}
    s_waitcnt lgkmcnt(0)
    """)
    G(common_srds(cfg))
    gtouch = []
    if cfg.gt:
        G.dummy = ('v', 147)
        G(srd(SWO, 68, 512*1024) + srd(SWD, 76, 1376*1024) + f"""
        s_mov_b32 {s(SW1)}, {s(SMU)}
        s_mov_b32 {s(SW1+1)}, {s(SMU+1)}
        s_mov_b32 {s(SW1+2)}, {512*2752}
        s_mov_b32 {s(SW1+3)}, 0x20000
        s_lshl_b32 {s(sT0)}, s2, 2
        s_add_u32 {s(sT0)}, {s(sT0)}, {s(sW)}
        s_lshr_b32 {s(sT1)}, {s(sT0)}, 1
        s_mul_i32 {s(sT1)}, {s(sT1)}, 22
        v_min_u32 v144, 21, v0
        v_add_u32 v144, {s(sT1)}, v144
        v_lshlrev_b32 v144, 7, v144
        s_mul_i32 {s(sT1)}, {s(sT0)}, 11
        v_min_u32 v145, 10, v0
        v_add_u32 v145, {s(sT1)}, v145
        v_lshlrev_b32 v145, 7, v145
        s_lshl_b32 {s(sT1)}, {s(sT0)}, 2
        v_min_u32 v146, 3, v0
        v_add_u32 v146, {s(sT1)}, v146
        v_lshlrev_b32 v146, 7, v146
        """)
        gtouch = [f"buffer_load_dword v147, v146, {s(SWO,4)}, 0 offen", f"buffer_load_dword v147, v144, {s(SW1,4)}, 0 offen", f"buffer_load_dword v147, v145, {s(SWD,4)}, 0 offen"]
        if cfg.gt == 1:
            for x in gtouch: G(x)
    if cfg.tlb:
        G.dummy = ('v', 147)
        G(srd(SWO, 68, 512*1024) + srd(SWD, 76, 1376*1024) + srd(SOUT, 78, 2048*1024) + srd(SW1, 66, 512*3072))
        G(f"""
        v_lshlrev_b32 v2, {cfg.tlb}, v0
        s_lshl_b32 {s(sT0)}, {s(sRB)}, 16
        v_min_u32 v3, {L.GSTRIDE - 4}, v2
        v_and_b32 v3, {(~((1 << cfg.tlb) - 1)) & 0xffffffff}, v3
        buffer_load_dword v147, v2, {s(SMU,4)}, 0 offen
        buffer_load_dword v147, v2, {s(SWD,4)}, 0 offen
        buffer_load_dword v147, v2, {s(SWO,4)}, 0 offen
        buffer_load_dword v147, v2, {s(SW1,4)}, 0 offen
        v_mov_b32 v4, 0
        buffer_load_dword v147, v4, {s(SOUT,4)}, {s(sT0)} offen
        buffer_load_dword v147, v4, {s(SWS,4)}, 0 offen
        v_mov_b32 v4, {L.GSTRIDE - 4096}
        buffer_load_dword v147, v4, {s(SWS,4)}, 0 offen
        """)
    G.stamp('start')
    G(f"""
    s_and_b32 {s(sO0)}, {s(sRB)}, 1
    s_lshl_b32 {s(sO0)}, {s(sO0)}, 16
    s_lshl_b32 {s(sT1)}, {s(sCB)}, 12
    s_add_u32 {s(sO0)}, {s(sO0)}, {s(sT1)}
    s_lshl_b32 {s(sT1)}, {s(sW)}, 10
    s_add_u32 {s(sO0)}, {s(sO0)}, {s(sT1)}
    s_add_u32 {s(sO0)}, {s(sO0)}, {L.O_OFF}
    s_add_u32 {s(sO1)}, {s(sO0)}, 32768
    v_and_b32 {v(vOA)}, 15, v0
    v_bfe_u32 v3, v0, 4, 1
    v_lshl_add_u32 {v(vOA)}, v3, 5, {v(vOA)}
    v_lshrrev_b32 v3, 5, v0
    v_lshl_add_u32 {v(vOA)}, v3, 4, {v(vOA)}
    v_lshlrev_b32 {v(vOA)}, 4, {v(vOA)}
    s_lshl_b32 {s(sT0)}, {s(sG)}, 3
    v_mov_b32 {v(vRA)}, {s(sT0)}
    """)
    SA = 224
    G0 = G; stat = []
    G = lambda t: stat.extend(x.strip() for x in t.strip().split('\n') if x.strip())
    for i in range(3): G(f"v_mov_b64 {v(SA+2*i,2)}, 0")
    for j in range(4):
        for k in range(3):
            G(f"v_dot2c_f32_bf16 {v(SA+2*k)}, {s(sONE)}, {v(XS+4*k+j)}\nv_dot2c_f32_bf16 {v(SA+2*k+1)}, {v(XS+4*k+j)}, {v(XS+4*k+j)}")
    for dpp in ("quad_perm:[1,0,3,2]", "quad_perm:[2,3,0,1]", "row_half_mirror", "row_mirror"):
        for i in range(6): G(f"v_add_f32_dpp {v(SA+i)}, {v(SA+i)}, {v(SA+i)} {dpp} row_mask:0xf bank_mask:0xf")
    for sw in ("v_permlane16_swap_b32", "v_permlane32_swap_b32"):
        for i in range(6): G(f"v_mov_b32 {v(SA+8+i)}, {v(SA+i)}")
        for i in range(6): G(f"{sw} {v(SA+i)}, {v(SA+8+i)}")
        for i in range(6): G(f"v_add_f32 {v(SA+i)}, {v(SA+i)}, {v(SA+8+i)}")
    for i in range(6): G(f"v_mul_f32 {v(SA+i)}, 0x3b000000, {v(SA+i)}")
    for k in range(3): G(f"v_fma_f32 {v(SA+2*k+1)}, -{v(SA+2*k)}, {v(SA+2*k)}, {v(SA+2*k+1)}")
    for k in range(3): G(f"v_max_f32 {v(SA+2*k+1)}, 0, {v(SA+2*k+1)}")
    for k in range(3): G(f"v_add_f32 {v(SA+2*k+1)}, 0x3727c5ac, {v(SA+2*k+1)}")
    for k in range(3): G(f"v_rsq_f32 {v(SA+2*k+1)}, {v(SA+2*k+1)}")
    G(f"""
    s_mul_i32 {s(sT0)}, {s(sW)}, 24
    s_add_u32 {s(sT0)}, {s(sT0)}, {STG}
    v_mov_b32 v2, {s(sT0)}
    """)
    for k in range(3): G(f"v_mul_f32 {v(SA+2*k)}, -{v(SA+2*k)}, {v(SA+2*k+1)}")
    for k in range(3): G(f"ds_write_b64 v2, {v(SA+2*k,2)} offset:{8*k}")
    G = G0
    K2 = [60, 61, 62, 63, 86, 58, 59, 101]
    G(f"""
    s_lshl_b32 {s(sR2)}, {s(sRBL)}, 13
    s_lshl_b32 {s(sW1K)}, {s(sW)}, 10
    s_and_b32 {s(sA3)}, {s(sRB)}, 1
    s_lshl_b32 {s(sA3)}, {s(sA3)}, 16
    s_add_u32 {s(sA3)}, {s(sA3)}, {L.O_OFF}
    """)
    for j in range(8):
        G(f"""
        s_add_u32 {s(K2[j])}, {s(sR2)}, {j*4096}
        s_and_b32 {s(K2[j])}, {s(K2[j])}, 32767
        s_add_u32 {s(K2[j])}, {s(K2[j])}, {s(sW1K)}
        """)
    if cfg.pretouch:
        G.dummy = ('v', 147)
        G(f"""
        v_lshrrev_b32 v2, 3, v0
        s_cmp_ge_u32 {s(sM)}, 14
        s_cselect_b32 {s(sT0)}, 1, 7
        v_min_u32 v2, {s(sT0)}, v2
        v_and_b32 v3, 7, v0
        v_lshlrev_b32 v3, 7, v3
        v_lshlrev_b32 v4, 15, v2
        v_add_u32 v4, {s(sO0)}, v4
        s_mul_i32 {s(sT0)}, {s(sM)}, 6144
        s_add_u32 {s(sT0)}, {s(sT0)}, {L.HH_OFF - 2*HHS}
        s_add_u32 {s(sT1)}, {s(sT0)}, {s(sW1K)}
        v_mul_u32_u24 v5, {HHS}, v2
        v_add_u32 v6, {s(sT1)}, v5
        v_cmp_gt_u32 vcc, 2, v2
        v_cndmask_b32 v4, v6, v4, vcc
        s_and_b32 {s(sT1)}, {s(sW)}, 1
        s_mul_i32 {s(sT1)}, {s(sT1)}, {2*HHS}
        s_add_u32 {s(sT0)}, {s(sT0)}, {s(sT1)}
        s_lshr_b32 {s(sT1)}, {s(sW)}, 1
        s_lshl_b32 {s(sT1)}, {s(sT1)}, 10
        s_add_u32 {s(sT0)}, {s(sT0)}, {s(sT1)}
        s_add_u32 {s(sT0)}, {s(sT0)}, {(4096 - 4*HHS) & 0xffffffff}
        v_add_u32 v6, {s(sT0)}, v5
        v_cmp_lt_u32 vcc, 5, v2
        v_cndmask_b32 v4, v4, v6, vcc
        v_add_u32 v4, v4, v3
        """)
        if cfg.pretouch == 1: G(f"buffer_load_dword v147, v4, {s(SWS,4)}, 0 offen sc1")
        else:
            G(f"""
            v_mov_b32 v158, v4
            s_mov_b64 exec, 0xffff
            buffer_load_dword v147, v4, {s(SWS,4)}, 0 offen sc1
            s_mov_b64 exec, -1
            """)
    G(f"v_mov_b32 v2, {CNT}\nv_mov_b64 v[4:5], 0\nds_write_b64 v2, v[4:5]\nds_write_b64 v2, v[4:5] offset:8")
    G.lwait_all()
    late = [x.strip() for x in w3_setup(vP3, t0, t1, t2).strip().split('\n') if x.strip()]
    late += [x.strip() for x in (f"""
    s_mov_b32 {s(sT4)}, {S0}
    s_lshl_b32 {s(sT0)}, {s(sW)}, 5
    s_lshr_b32 {s(sT1)}, {s(sW)}, 1
    s_lshl_b32 {s(sT1)}, {s(sT1)}, 5
    s_add_u32 {s(sT1)}, {s(sT1)}, 128
    v_lshrrev_b32 {v(t0)}, 5, {v(vL)}
    v_bfe_u32 {v(t1)}, {v(vL)}, 2, 2
    v_lshl_add_u32 {v(t0)}, {v(t0)}, 4, {v(t1)}
    v_mul_u32_u24 {v(t0)}, 192, {v(t0)}
    v_bfe_u32 {v(t1)}, {v(vL)}, 4, 1
    v_mul_u32_u24 {v(t2)}, 12288, {v(t1)}
    v_add3_u32 {v(t0)}, {v(t0)}, {v(t2)}, {s(sT4)}
    v_and_b32 {v(t2)}, 3, {v(vL)}
    v_lshlrev_b32 {v(t2)}, 3, {v(t2)}
    v_lshl_add_u32 {v(t2)}, {v(t1)}, 5, {v(t2)}
    v_add3_u32 {v(vW3o)}, {v(t0)}, {v(t2)}, {s(sT0)}
    v_add_u32 {v(t2)}, {s(sT1)}, {v(t2)}
    v_subrev_u32 {v(t3)}, 192, {v(t2)}
    v_cmp_le_u32 vcc, 192, {v(t2)}
    v_cndmask_b32 {v(t2)}, {v(t2)}, {v(t3)}, vcc
    v_add_u32 {v(vW3s)}, {v(t0)}, {v(t2)}
    s_and_b32 {s(sT0)}, {s(sW)}, 1
    s_lshl_b32 {s(sT0)}, {s(sT0)}, 13
    v_add_u32 {v(vA01)}, {s(sT0)}, {v(vL16)}
    v_xor_b32 {v(vA23)}, 0x2000, {v(vA01)}
    """).strip().split('\n') if x.strip()]
    def reads(F, kh):
        xs = [f"ds_read_b128 {v(F+4*T,4)}, {v(vXa1 if kh else vXa0)} offset:{T*2048}" for T in range(5)]
        ws = [f"ds_read_b64_tr_b16 {v(F+20+4*sct+2*half,2)}, {v(vWa)} offset:{kh*12288+sct*1024+half*512}" for sct in range(3) for half in range(2)]
        return ws[:2] + xs[:1] + ws[2:4] + xs[1:2] + ws[4:] + xs[2:]
    def mfmas(F, first=False):
        out = []
        for T in range(5):
            x = v(F+4*T, 4)
            c = lambda r: "0" if first else v(r, 4)
            out.append(f"v_mfma_f32_16x16x32_bf16 {v(Qa(T),4)}, {v(F+20,4)}, {x}, {c(Qa(T))}")
            out.append(f"v_mfma_f32_16x16x32_bf16 {v(Ka(T),4)}, {v(F+24,4)}, {x}, {c(Ka(T))}")
            out.append(f"v_mfma_f32_16x16x32_bf16 {v(Va(T),4)}, {x}, {v(F+28,4)}, {c(Va(T))}")
        return out
    def adv(i):
        d = WSLOT if (i + 1) % 3 else (-2 * WSLOT) & 0xffffffff
        return [f"v_add_u32 {v(vWa)}, {d}, {v(vWa)}", f"v_add_u32 {v(vXa0)}, {XCH}, {v(vXa0)}", f"v_add_u32 {v(vXa1)}, {XCH}, {v(vXa1)}"]
    G.bar('c0')
    G.stamp('c0')
    for x in reads(FA, 0): G(x)
    for i in range(8):
        extra = [f"buffer_load_dwordx2 {v(vFE,2)}, {v(vRA)}, {s(SDBG,4)}, 0 offen offset:128 sc1"] if i == 6 else []
        if cfg.gt >= 2 and i == cfg.gt - 2: extra = extra + gtouch
        G.front(mfmas(FA, i == 0), reads(FB, 1) + (adv(i) if i < 7 else []) + extra)
        if i < 3:
            k3 = (len(stat) + 2) // 3
            for x in stat[i*k3:(i+1)*k3]: G(x)
        elif i < 7:
            k4 = (len(late) + 3) // 4
            for x in late[(i-3)*k4:(i-2)*k4]: G(x)
        G.lwait_all()
        G.bar(f'c{i+1}' if i < 7 else 'stats')
        LA = 16; LBa = 28; LBb = 208
        if i < 7: G.front(mfmas(FB), reads(FA, 0))
        else:
            sr = [f"ds_read2_b32 {v(LA+2*T,2)}, {v(vS1)} offset0:{T*16} offset1:{T*16+128}" for T in range(5)]
            for T in range(5): sr += [f"ds_read_b128 {v(LBa+4*T,4)}, {v(vS2)} offset:{T*64}", f"ds_read_b128 {v(LBb+4*T,4)}, {v(vS2)} offset:{T*64+512}"]
            m = mfmas(FB)
            G.front(m[12:] + m[:12], sr)
    G.stamp('p1loop')
    G(f"""
    v_add_u32 v8, {s(sA3)}, {v(vL16)}
    v_add_u32 v9, 0x8000, v8
    """)
    CSQ, CSK, CSV = 228, 232, 236
    TMP = 140
    regdecode(G, vFE, vRA)
    for r in range(4):
        G(f"v_mov_b32_dpp {v(CSQ+r)}, {v(Qa(4)+r)} row_newbcast:0 row_mask:0xf bank_mask:0xf")
        G(f"v_mov_b32_dpp {v(CSK+r)}, {v(Ka(4)+r)} row_newbcast:0 row_mask:0xf bank_mask:0xf")
    G(f"""
    v_mov_b32 {v(CSV)}, {v(Va(4))}
    v_mov_b32 {v(CSV+1)}, {v(Va(4))}
    v_permlane16_swap_b32 {v(CSV)}, {v(CSV+1)}
    v_mov_b32 {v(CSV+1)}, {v(CSV)}
    v_permlane32_swap_b32 {v(CSV)}, {v(CSV+1)}
    v_mov_b32 {v(CSV+1)}, {v(CSV)}
    """)
    QP = 176; KP = 184; VP = 196
    vpos = {2: 0, 0: 2, 4: 4, 1: 6, 3: 8}
    def norm_qk(acc, cs, T, dst, tmp):
        ab = v(LA+2*T, 2)
        for hlf in range(2): G(f"v_pk_mul_f32 {v(tmp+2*hlf,2)}, {v(cs+2*hlf,2)}, {ab} op_sel:[0,1] op_sel_hi:[1,1]")
        for hlf in range(2): G(f"v_pk_fma_f32 {v(acc+2*hlf,2)}, {v(acc+2*hlf,2)}, {ab}, {v(tmp+2*hlf,2)} op_sel:[0,0,0] op_sel_hi:[1,0,1]")
        for hlf in range(2): G(f"v_cvt_pk_bf16_f32 {v(dst+hlf)}, {v(acc+2*hlf)}, {v(acc+2*hlf+1)}")
    for T in (4, 0, 1, 2, 3):
        norm_qk(Ka(T), CSK, T, KP+2*T, TMP)
        if T < 4: norm_qk(Qa(T), CSQ, T, QP+2*T, 240)
    for T in range(5):
        acc = Va(T); tmp = TMP if T & 1 else 240
        for hlf in range(2): G(f"v_pk_mul_f32 {v(tmp+2*hlf,2)}, {v(LBb+4*T+2*hlf,2)}, {v(CSV,2)}")
        for hlf in range(2): G(f"v_pk_fma_f32 {v(acc+2*hlf,2)}, {v(acc+2*hlf,2)}, {v(LBa+4*T+2*hlf,2)}, {v(tmp+2*hlf,2)}")
    SC = lambda T: ACC + 8*T
    ONE4 = 244
    vcv = [f"v_cvt_pk_bf16_f32 {v(VP+vpos[T]+hlf)}, {v(Va(T)+2*hlf)}, {v(Va(T)+2*hlf+1)}" for T in range(5) for hlf in range(2)]
    vcv += [f"v_mov_b32 {v(ONE4+i)}, {s(sONE)}" for i in range(4)] + [f"s_mov_b32 {s(sT0)}, 0x3eb8aa3b"]
    sm = []
    for T in range(4):
        prev = T - 2 if T >= 2 else 4
        bprev = BIAS + 4 if T >= 2 else BIAS + 8 + 4*T
        sm.append(f"v_mfma_f32_16x16x16_bf16 {v(SC(T),4)}, {v(KP+2*T,2)}, {v(QP+2*T,2)}, {v(BIAS,4)}")
        sm.append(f"v_mfma_f32_16x16x16_bf16 {v(SC(T)+4,4)}, {v(KP+2*prev,2)}, {v(QP+2*T,2)}, {v(bprev,4)}")
    G.spread(sm, vcv)
    MX = 16; M2 = 20
    PP = 32; OA = 48; LS = 208
    for T in range(4):
        b = SC(T)
        G(f"""
        v_max3_f32 {v(MX+T)}, {v(b)}, {v(b+1)}, {v(b+2)}
        v_max3_f32 {v(M2+T)}, {v(b+3)}, {v(b+4)}, {v(b+5)}
        """)
    for T in range(4): G(f"v_max3_f32 {v(MX+T)}, {v(MX+T)}, {v(SC(T)+6)}, {v(SC(T)+7)}")
    for T in range(4): G(f"v_max_f32 {v(MX+T)}, {v(MX+T)}, {v(M2+T)}")
    G(f"""
    v_permlane16_swap_b32 {v(MX)}, {v(MX+1)}
    v_permlane16_swap_b32 {v(MX+2)}, {v(MX+3)}
    v_max_f32 {v(MX)}, {v(MX)}, {v(MX+1)}
    v_max_f32 {v(MX+2)}, {v(MX+2)}, {v(MX+3)}
    v_permlane32_swap_b32 {v(MX)}, {v(MX+2)}
    v_max_f32 {v(MX)}, {v(MX)}, {v(MX+2)}
    v_mul_f32 {v(MX)}, {s(sT0)}, {v(MX)}
    v_mov_b32 {v(MX+2)}, {v(MX)}
    v_permlane32_swap_b32 {v(MX)}, {v(MX+2)}
    v_mov_b32 {v(MX+1)}, {v(MX)}
    v_mov_b32 {v(MX+3)}, {v(MX+2)}
    v_permlane16_swap_b32 {v(MX)}, {v(MX+1)}
    v_permlane16_swap_b32 {v(MX+2)}, {v(MX+3)}
    """)
    win = {2: 0, 0: 2, 1: 4, 3: 6}
    for T in range(4):
        b = SC(T)
        for i in range(8): G(f"v_fma_f32 {v(b+i)}, {v(b+i)}, {s(sT0)}, -{v(MX+T)}")
        for i in range(8): G(f"v_exp_f32 {v(b+i)}, {v(b+i)}")
        first, second = (b, b+4) if T in (0, 2) else (b+4, b)
        G(f"""
        v_cvt_pk_bf16_f32 {v(PP+4*T)}, {v(first)}, {v(first+1)}
        v_cvt_pk_bf16_f32 {v(PP+4*T+1)}, {v(first+2)}, {v(first+3)}
        v_cvt_pk_bf16_f32 {v(PP+4*T+2)}, {v(second)}, {v(second+1)}
        v_cvt_pk_bf16_f32 {v(PP+4*T+3)}, {v(second+2)}, {v(second+3)}
        """)
        if T >= 1:
            U = T - 1
            G(f"v_rcp_f32 {v(LS+4*U)}, {v(LS+4*U)}")
        G(f"""
        v_mfma_f32_16x16x32_bf16 {v(LS+4*T,4)}, {v(ONE4,4)}, {v(PP+4*T,4)}, 0
        v_mfma_f32_16x16x32_bf16 {v(OA+4*T,4)}, {v(VP+win[T],4)}, {v(PP+4*T,4)}, 0
        """)
    OP = 64
    def fin(T):
        q, p = T >> 1, T & 1
        for h in range(2): G(f"v_pk_mul_f32 {v(OA+4*T+2*h,2)}, {v(OA+4*T+2*h,2)}, {v(LS+4*T,2)} op_sel:[0,0] op_sel_hi:[1,0]")
        G(f"""
        v_cvt_pk_bf16_f32 {v(OP+4*q+2*p)}, {v(OA+4*T)}, {v(OA+4*T+1)}
        v_cvt_pk_bf16_f32 {v(OP+4*q+2*p+1)}, {v(OA+4*T+2)}, {v(OA+4*T+3)}
        """)
    fin(0); fin(1); fin(2)
    G(f"""
    v_permlane32_swap_b32 {v(OP)}, {v(OP+2)}
    v_permlane32_swap_b32 {v(OP+1)}, {v(OP+3)}
    v_rcp_f32 {v(LS+12)}, {v(LS+12)}
    """)
    fin(3)
    G(f"""
    v_permlane32_swap_b32 {v(OP+4)}, {v(OP+6)}
    v_permlane32_swap_b32 {v(OP+5)}, {v(OP+7)}
    """)
    stores(G, [f"buffer_store_dwordx4 {v(OP+4*q,4)}, {v(vOA)}, {s(SWS,4)}, {s(sO0+q)} offen" for q in range(2)], "ST1")
    G.stamp('p1epi')
    signal(G, 0, vFE)
    G.stamp('sig0')
    G.bar('w3a')
    ACC = 16; CSA = 112; SEL = 120; AB = 124; W3R = 160
    G.sv = (15, 6)
    def w3_reads(l):
        out = []; blk = l % 3; base = W3SLOT[l]
        for s4 in range(4):
            for k, va in enumerate((vW3o, vW3s)):
                for half in range(2):
                    o = (base - S0) + (32*(s4 >> 1) + 8*(s4 & 1) + 4*half) * 192
                    out.append(f"ds_read_b64_tr_b16 {v(W3R + 32*blk + 8*s4 + 4*k + 2*half, 2)}, {v(va)} offset:{o}")
        return out
    def w3_colsum(l):
        blk = l % 3
        return [f"v_mfma_f32_16x16x32_bf16 {v(CSA+4*k,4)}, {v(W3R+32*blk+8*s4+4*k,4)}, {v(SEL,4)}, {v(CSA+4*k,4)}" for s4 in range(4) for k in range(2)]
    poll(G, 0, vFE)
    G.stamp('poll0')
    def obatch(b):
        for j in (2*b, 2*b + 1):
            for tau in range(2):
                G(f"""
                s_add_u32 m0, {s(sW1K)}, {(tau*32 + 4*j) * 1024}
                buffer_load_dwordx4 {v(8+tau)}, {s(SWS,4)}, {s(K2[j])} offen sc1 lds
                """)
        G.tag(f"o_{b}")
    obatch(0); obatch(1)
    for b in range(4):
        G.wait_tag(f"o_{b}")
        G.bar(f"o_{b}")
        if b + 2 < 4: obatch(b + 2)
    G.items(w3_dma(2, W3SLOT[2], vP3))
    for x in w3_reads(0): G(x)
    G(f"""
    v_lshrrev_b32 v2, 4, v0
    v_xor_b32 v2, v2, v0
    v_and_b32 v2, 1, v2
    v_cmp_eq_u32 vcc, 0, v2
    v_mov_b32 v3, {s(sONE)}
    v_cndmask_b32 {v(SEL)}, 0, v3, vcc
    v_cndmask_b32 {v(SEL+1)}, 0, v3, vcc
    v_cndmask_b32 {v(SEL+2)}, 0, v3, vcc
    v_cndmask_b32 {v(SEL+3)}, 0, v3, vcc
    """)
    for i in range(4): G(f"v_mov_b64 {v(CSA+2*i,2)}, 0")
    G.front(w3_colsum(0), w3_reads(1), 2)
    for x in w3_colsum(1): G(x)
    G.lwait_all()
    G.stamp('svc')
    if cfg.npf > 1: G.bsync('svcA')
    for l in PFORD[1:cfg.npf]: G.items(w3_dma(l, W3SLOT[l], vP3))
    G.stamp('pf')
    G.items(p4_table())
    G.wait_tag('w3_2')
    G.bar('a3_0')
    G.stamp('a3_0')
    NAB = 6
    def aread(n):
        st, sg = n >> 2, n & 3
        c, s4 = st >> 2, st & 3
        r = (c % 3) * 16384 + s4 * 1024
        return f"ds_read_b128 {v(AB+4*(n % NAB),4)}, {v(vA01 if sg < 2 else vA23)} offset:{r + (sg & 1)*4096}"
    A(f"""
    s_lshl_b32 {s(sT4)}, {s(sM)}, 2
    s_add_u32 {s(sT4)}, {s(sT4)}, {s(sW)}
    s_cmp_lt_u32 {s(sT4)}, 58
    s_cbranch_scc1 A_P3GO
    s_waitcnt vmcnt(0)
    """)
    for _ in range(7): A("s_barrier")
    A("s_branch A_ST3Z_DONE")
    A.label("A_P3GO")
    LEAD = 4
    nread = 0
    for n in range(LEAD): G(aread(n)); nread += 1
    fills = {st: [] for st in range(34)}; cs_at = {st: [] for st in range(34)}
    for l, b in list(W3BAR.items()) + [(2, -1)]:
        rd = w3_reads(l); cs = w3_colsum(l)
        fills[b+1] += rd[0:6]; fills[b+2] += rd[6:12]; fills[b+3] += rd[12:16]
        cs_at[b+2] += cs[0:2]; cs_at[b+3] += cs[2:6]; cs_at[b+4] += cs[6:8]
    for st in range(32):
        c, s4 = st >> 2, st & 3
        if s4 == 3 and st < 31:
            for l, b in W3BAR.items():
                if b == st and f"w3_{l}" in G.tags: G.wait_tag(f"w3_{l}")
            G.lwait_all()
            G.bar(f'p3_{st}')
        w = W3R + 32*(c % 3) + 8*s4
        fl = list(fills[st]); fi = 0
        if cfg.pretouch == 2 and st == cfg.hht:
            G.dummy = ('v', 1)
            fl.append(f"buffer_load_dword v1, v158, {s(SWS,4)}, 0 offen sc1")
        for sg in range(4):
            n = 4*st + sg
            fr = v(AB+4*(n % NAB), 4)
            ms = [f"v_mfma_f32_32x32x16_bf16 {v(ACC+16*sg,16)}, {v(w,4)}, {fr}, {'0' if st == 0 else v(ACC+16*sg,16)}"]
            if sg < 2: ms.append(f"v_mfma_f32_32x32x16_bf16 {v(ACC+64+16*sg,16)}, {v(w+4,4)}, {fr}, {'0' if st == 0 else v(ACC+64+16*sg,16)}")
            for k, m in enumerate(ms):
                G(m)
                if k == 0 and nread < 128 and nread <= n + LEAD: G(aread(nread)); nread += 1
                if fi < len(fl): G(fl[fi]); fi += 1
        while fi < len(fl): G(fl[fi]); fi += 1
        for x in cs_at[st]: G(x)
    G.stamp('p3loop')
    G(f"""
    v_and_b32 v2, 1, v0
    v_lshrrev_b32 v3, 4, v0
    v_lshlrev_b32 v2, 6, v2
    v_lshl_add_u32 v2, v3, 4, v2
    s_lshl_b32 {s(sT5)}, {s(sW)}, 8
    s_add_u32 {s(sT5)}, {s(sT5)}, {CSX}
    v_add_u32 v2, {s(sT5)}, v2
    v_lshrrev_b32 v3, 5, v0
    v_lshlrev_b32 v3, 4, v3
    v_add_u32 v3, {s(sT5)}, v3
    ds_write_b128 v2, {v(CSA,4)}
    ds_write_b128 v2, {v(CSA+4,4)} offset:128
    s_and_b32 {s(sT0)}, {s(sW)}, 1
    s_lshl_b32 {s(sT0)}, {s(sT0)}, 9
    s_add_u32 {s(sT0)}, {s(sT0)}, {STATS3}
    v_and_b32 v13, 31, v0
    v_lshlrev_b32 v13, 3, v13
    v_add_u32 v13, {s(sT0)}, v13
    v_xor_b32 v14, 0x200, v13
    ds_read_b64 v[160:161], v13
    ds_read_b64 v[162:163], v13 offset:256
    ds_read_b64 v[164:165], v14
    ds_read_b64 v[166:167], v14 offset:256
    """)
    CS0, CS1 = 176, 192
    for tile, CSo in ((0, CS0), (1, CS1)):
        for i in range(4): G(f"ds_read_b128 {v(CSo+4*i,4)}, v3 offset:{tile*128 + (i>>1)*64 + (i&1)*32}")
    def unit_epi(U, stp, CSo):
        st = v(stp, 2)
        for h in range(8): G(f"v_pk_fma_f32 {v(U+2*h,2)}, {v(CSo+2*h,2)}, {st}, {v(U+2*h,2)} op_sel:[0,0,0] op_sel_hi:[1,0,1]")
        for i in range(8): G(f"v_max_f32 {v(U+i)}, 0, {v(U+i)}")
        for h in range(4): G(f"v_pk_mul_f32 {v(U+8+2*h,2)}, {v(U+8+2*h,2)}, {st} op_sel:[0,1] op_sel_hi:[1,1]")
        for h in range(4): G(f"v_pk_mul_f32 {v(U+2*h,2)}, {v(U+2*h,2)}, {v(U+8+2*h,2)}")
        for h in range(4): G(f"v_cvt_pk_bf16_f32 {v(U+h)}, {v(U+2*h)}, {v(U+2*h+1)}")
    G(f"""
    s_mul_i32 {s(sT0)}, {s(sM)}, 6144
    s_add_u32 {s(sT0)}, {s(sT0)}, {L.HH_OFF}
    s_and_b32 {s(sT1)}, {s(sW)}, 1
    s_mul_i32 {s(sT1)}, {s(sT1)}, {2*HHS}
    s_add_u32 {s(sT2)}, {s(sT0)}, {s(sT1)}
    s_sub_u32 {s(sT3)}, {s(sT0)}, {s(sT1)}
    s_add_u32 {s(sT3)}, {s(sT3)}, {2*HHS}
    s_lshl_b32 {s(sT0)}, {s(sW)}, 10
    v_add_u32 v8, {s(sT0)}, {v(vL16)}
    v_add_u32 v9, {HHS}, v8
    s_lshr_b32 {s(sT0)}, {s(sW)}, 1
    s_lshl_b32 {s(sT0)}, {s(sT0)}, 10
    s_add_u32 {s(sT0)}, {s(sT0)}, 4096
    v_add_u32 v10, {s(sT0)}, {v(vL16)}
    v_add_u32 v11, {HHS}, v10
    """)
    for sg in range(4): unit_epi(ACC + 16*sg, 160 + 2*sg, CS0)
    A(f"""
    s_lshl_b32 {s(sT4)}, {s(sM)}, 2
    s_add_u32 {s(sT4)}, {s(sT4)}, {s(sW)}
    s_cmp_ge_u32 {s(sT4)}, 58
    s_cbranch_scc1 A_ST3_DONE
    """)
    stores(G, [f"buffer_store_dwordx4 {v(ACC+16*sg,4)}, {v(8 + (sg & 1))}, {s(SWS,4)}, {s(sT2 if sg < 2 else sT3)} offen" for sg in range(4)], "ST3")
    for sg in range(2): unit_epi(ACC + 64 + 16*sg, 160 + 2*sg, CS1)
    A(f"""
    s_cmp_ge_u32 {s(sM)}, 14
    s_cbranch_scc1 A_ST3Z_DONE
    """)
    stores(G, [f"buffer_store_dwordx4 {v(ACC+64+16*sg,4)}, {v(10 + sg)}, {s(SWS,4)}, {s(sT2)} offen" for sg in range(2)], "ST3Z")
    A(f"""
    s_cmp_lg_u32 {s(sM)}, 15
    s_cbranch_scc1 A_ST3P_DONE
    v_mov_b64 {v(ACC,2)}, 0
    v_mov_b64 {v(ACC+2,2)}, 0
    s_mul_i32 {s(sT0)}, {s(sW)}, {HHS}
    s_add_u32 {s(sT0)}, {s(sT0)}, {L.HH_OFF + 86*1024}
    """)
    stores(G, [f"buffer_store_dwordx4 {v(ACC,4)}, {v(vL16)}, {s(SWS,4)}, {s(sT0)} offen offset:{1024*i}" for i in range(2)], "ST3P")
    G.stamp('p3epi')
    signal(G, 2, vFE)
    G.stamp('sig2')
    G(ks_addr(L.HH_OFF, HHS, vL16, 12, 13))
    G(f"""
    s_mul_i32 {s(sWB)}, {s(sW)}, 24576
    s_add_u32 {s(sWB)}, {s(sWB)}, {RING4}
    """)
    G.bar('p4start')
    poll(G, 2, vFE)
    G.stamp('poll2')
    def batch(b):
        for q in range(4*b, 4*b + 4):
            rs, j = q // 22, q % 22
            G(f"""
            s_add_u32 m0, {s(sWB)}, {(q % 24) * 1024}
            buffer_load_dwordx4 {v(12+rs)}, {s(SWS,4)}, {s(sKO+j)} offen sc1 lds
            """)
        G.tag(f"b4_{b}")
    nb = 0
    for b in range(cfg.nb0): batch(b); nb += 1
    for b in range(NB4):
        G.wait_tag(f"b4_{b}")
        G.bar(f"p4_{b}")
        k = 0
        while nb < NB4 and k < (2 if b < cfg.ramp else 1) and (nb < 6 or nb - 4 <= b): batch(nb); nb += 1; k += 1
    G.stamp('end')

def prog_b(G):
    A = G.A; cfg = G.cfg
    t0, t1, t2, t3, t4 = 1, 2, 3, 4, 5
    vXo0, vXo1, vXh, vWo, vTL, vSa, vSh, vRA = 8, 9, 10, 11, 12, 13, 14, 15
    SF = 16; SACC = 28
    vP3, vWD, vWT, vFE, vL16, vXA = 240, 243, 244, 246, 248, 249
    G.dummy = ('v', 250)
    G.sv = (251, 252); G.vS = 253
    if cfg.prioB: G(f"s_setprio {cfg.prioB}")
    G(f"""
    s_lshl_b32 {s(sT0)}, {s(sRB)}, 6
    s_lshr_b32 {s(sT1)}, {s(sW)}, 1
    s_lshl_b32 {s(sT1)}, {s(sT1)}, 5
    s_add_u32 {s(sT1)}, {s(sT1)}, {s(sT0)}
    s_and_b32 {s(sT2)}, {s(sW)}, 1
    s_add_u32 {s(sT1)}, {s(sT1)}, {s(sT2)}
    v_lshrrev_b32 {v(t0)}, 3, {v(vL)}
    v_and_b32 {v(t1)}, 7, {v(vL)}
    v_lshrrev_b32 {v(t2)}, 4, {v(vL)}
    v_xor_b32 {v(t3)}, {v(t1)}, {v(t2)}
    v_lshlrev_b32 {v(t4)}, 1, {v(t0)}
    v_add_u32 {v(t4)}, {s(sT1)}, {v(t4)}
    v_lshlrev_b32 {v(t4)}, 10, {v(t4)}
    v_lshl_add_u32 {v(vXo0)}, {v(t3)}, 4, {v(t4)}
    v_xor_b32 {v(t3)}, 4, {v(t3)}
    v_lshl_add_u32 {v(vXo1)}, {v(t3)}, 4, {v(t4)}
    v_add_u32 {v(vXo1)}, {0x4000 - 1024}, {v(vXo1)}
    s_lshl_b32 {s(sT2)}, {s(sW)}, 2
    v_add_u32 {v(t3)}, {s(sT2)}, {v(t0)}
    v_lshrrev_b32 {v(t4)}, 1, {v(t3)}
    v_and_b32 {v(t4)}, 7, {v(t4)}
    v_xor_b32 {v(t4)}, {v(t4)}, {v(t1)}
    s_sub_u32 {s(sT3)}, {s(sT0)}, 16
    v_add_u32 {v(t3)}, {s(sT3)}, {v(t3)}
    v_max_i32 {v(t3)}, 0, {v(t3)}
    v_lshlrev_b32 {v(t3)}, 10, {v(t3)}
    v_lshl_add_u32 {v(vXh)}, {v(t4)}, 4, {v(t3)}
    s_mov_b32 {s(sEXH)}, -1
    s_cmp_eq_u32 {s(sW)}, 0
    s_cselect_b32 {s(sEXH)}, 0xffffff00, {s(sEXH)}
    s_mov_b32 {s(sEXH+1)}, 0
    s_lshl_b32 {s(sT2)}, {s(sW)}, 3
    v_add_u32 {v(t3)}, {s(sT2)}, {v(t0)}
    v_mul_u32_u24 {v(t3)}, 3072, {v(t3)}
    v_and_b32 {v(t4)}, 1, {v(t2)}
    v_lshlrev_b32 {v(t4)}, 1, {v(t4)}
    s_and_b32 {s(sT2)}, {s(sW)}, 1
    s_lshl_b32 {s(sT2)}, {s(sT2)}, 2
    v_or_b32 {v(t4)}, {s(sT2)}, {v(t4)}
    v_xor_b32 {v(t4)}, {v(t4)}, {v(t1)}
    v_lshl_add_u32 {v(vWo)}, {v(t4)}, 4, {v(t3)}
    s_lshl_b32 {s(sT2)}, {s(sCB)}, 7
    v_add_u32 {v(vWo)}, {s(sT2)}, {v(vWo)}
    s_lshl_b32 {s(sT4)}, {s(sIDX)}, 2
    s_add_u32 {s(sT4)}, {s(sT4)}, {s(sW)}
    s_lshl_b32 {s(sTB)}, {s(sT4)}, 11
    s_mul_i32 {s(sTB1)}, {s(sT4)}, 1536
    v_lshrrev_b32 {v(vTL)}, 2, {v(vL)}
    v_lshlrev_b32 {v(vTL)}, 7, {v(vTL)}
    s_and_b32 {s(sSX)}, {s(sRBL)}, {cfg.rotm}
    s_lshl_b32 {s(sSX)}, {s(sSX)}, {cfg.rots}
    s_mul_i32 {s(sT3)}, {s(sXCD)}, {cfg.rotx}
    s_add_u32 {s(sSX)}, {s(sSX)}, {s(sT3)}
    s_sub_u32 {s(sLC)}, 0, {s(sSX)}
    s_and_b32 {s(sLC)}, {s(sLC)}, 7
    s_add_u32 {s(sSX)}, {s(sSX)}, {s(sCB)}
    s_lshl_b32 {s(sMX)}, {s(sW)}, 11
    s_lshl_b32 {s(sMH)}, {s(sW)}, 9
    s_add_u32 {s(sMH)}, {s(sMH)}, 8192
    s_mul_i32 {s(sMW)}, {s(sW)}, 3072
    s_add_u32 {s(sMW)}, {s(sMW)}, {WRING}
    s_mov_b32 {s(SX+2)}, {2048*1024}
    s_mov_b32 {s(SX+3)}, 0x20000
    s_mov_b32 {s(SW1+2)}, {512*3072}
    s_mov_b32 {s(SW1+3)}, 0x20000
    s_waitcnt lgkmcnt(0)
    s_mov_b32 {s(SX)}, s64
    s_and_b32 {s(SX+1)}, s65, 0xffff
    s_mov_b32 {s(SW1)}, s66
    s_and_b32 {s(SW1+1)}, s67, 0xffff
    """)
    def dma_chunk(c):
        sl = (c % 3) * WSLOT
        W = lambda o: f"buffer_load_dwordx4 {v(vWo)}, {s(SW1,4)}, {s(sB0)} offen offset:{o} lds"
        return [f"""
        s_add_u32 m0, {s(sMW)}, {sl}
        s_add_u32 {s(sB1)}, {s(sSX)}, {c}
        s_and_b32 {s(sB1)}, {s(sB1)}, 7
        s_mul_i32 {s(sB0)}, {s(sB1)}, 196608
        s_lshl_b32 {s(sB1)}, {s(sB1)}, 7
        {W(0)}
        """, W(1024), W(2048), f"""
        s_add_u32 m0, {s(sMX)}, {c*XCH}
        s_add_u32 {s(sB0)}, {s(sB0)}, {32*3072}
        buffer_load_dwordx4 {v(vXo0)}, {s(SX,4)}, {s(sB1)} offen lds
        """, f"buffer_load_dwordx4 {v(vXo1)}, {s(SX,4)}, {s(sB1)} offen offset:1024 lds", f"""
        s_add_u32 m0, {s(sMH)}, {c*XCH}
        s_mov_b64 exec, {s(sEXH,2)}
        buffer_load_dwordx4 {v(vXh)}, {s(SX,4)}, {s(sB1)} offen lds
        s_mov_b64 exec, -1
        """, f"""
        s_add_u32 m0, {s(sMW)}, {sl + 4*3072}
        s_nop 0
        {W(0)}
        """, W(1024), W(2048), ('TAG', f"c{c}")]
    def t1w(r):
        if not cfg.touch or r > 7: return []
        return [f"""
        s_add_u32 {s(sB0)}, {s(sTB1)}, {r*196608}
        buffer_load_dword v250, {v(vTL)}, {s(SW1,4)}, {s(sB0)} offen
        """]
    if cfg.touch:
        G(f"""
        s_lshl_b32 {s(sB0)}, {s(sXCD)}, 18
        s_add_u32 {s(sB0)}, {s(sB0)}, {s(sTB)}
        buffer_load_dword v250, {v(vTL)}, {s(SX,4)}, {s(sB0)} offen
        """)
    G.items(dma_chunk(0) + t1w(1) + t1w(2))
    G(common_srds(cfg) + srd(SWO, 68, 512*1024) + srd(SWD, 76, 1376*1024) + srd(SOUT, 78, 2048*1024))
    G(f"""
    s_lshl_b32 {s(sT1)}, {s(sG)}, 3
    v_mov_b32 {v(vRA)}, {s(sT1)}
    """)
    G.vm += 1
    A(f"""
    s_cmp_eq_u32 {s(sW)}, 0
    s_cbranch_scc1 REG_DO
    buffer_load_dword v250, {v(vRA)}, {s(SX,4)}, 0 offen
    s_branch REG_DONE
    """)
    A.label("REG_DO")
    A(f"""
    s_and_b32 {s(sXCC)}, {s(sXCC)}, 7
    s_mul_i32 {s(sT0)}, {s(sXCC)}, {s(sXCC)}
    s_lshl_b32 {s(sT0)}, {s(sT0)}, 12
    s_lshl_b32 {s(sT1)}, {s(sXCC)}, 5
    s_or_b32 {s(sT0)}, {s(sT0)}, {s(sT1)}
    s_or_b32 {s(sT0)}, {s(sT0)}, 1
    s_lshl_b64 {s(sT4,2)}, {s(sTS,2)}, 22
    s_or_b32 {s(sT0)}, {s(sT0)}, {s(sT4)}
    v_mov_b32 v2, {s(sT0)}
    v_mov_b32 v3, {s(sT5)}
    s_lshl_b32 {s(sT1)}, {s(sG)}, 3
    v_mov_b32 v4, {s(sT1)}
    s_mov_b64 exec, 1
    buffer_atomic_add_x2 v[2:3], v4, {s(SDBG,4)}, 0 offen offset:128 sc1
    s_mov_b64 exec, -1
    """)
    A.label("REG_DONE")
    G.stamp('start')
    G.items(dma_chunk(1) + t1w(3))
    G(f"""
    v_lshlrev_b32 {v(vL16)}, 4, v0
    s_lshl_b32 {s(sT0)}, {s(sW)}, 11
    s_lshl_b32 {s(sT1)}, {s(sW)}, 9
    s_add_u32 {s(sT1)}, {s(sT1)}, 8192
    v_add_u32 {v(vSh)}, {s(sT1)}, {v(vL16)}
    v_add_u32 {v(vSa)}, {s(sT0)}, {v(vL16)}
    v_mov_b64 {v(SACC,2)}, 0
    v_mov_b64 {v(SACC+2,2)}, 0
    v_mov_b64 {v(SACC+4,2)}, 0
    """)
    G.wait_tag('c0')
    G.bar('c0')
    G.stamp('c0')
    G.bg_on = False
    G.bg(dma_chunk(2) + t1w(4))
    setups = [w3_setup(vP3, t0, t1, t2), f"""
    v_lshrrev_b32 {v(t0)}, 3, {v(vL)}
    v_and_b32 {v(t1)}, 7, {v(vL)}
    v_bfe_u32 {v(t2)}, {v(vL)}, 4, 1
    v_lshlrev_b32 {v(t2)}, 2, {v(t2)}
    v_xor_b32 {v(t1)}, {v(t1)}, {v(t2)}
    v_lshlrev_b32 {v(t0)}, 10, {v(t0)}
    v_lshl_add_u32 {v(vWD)}, {v(t1)}, 4, {v(t0)}
    s_lshl_b32 {s(sT0)}, {s(sCB)}, 7
    v_add_u32 {v(vWD)}, {s(sT0)}, {v(vWD)}
    s_lshl_b32 {s(sT2)}, {s(sRBL)}, 1
    s_lshl_b32 {s(sWB)}, {s(sW)}, 11
    s_lshl_b32 {s(sR2)}, {s(sRBL)}, 13
    s_lshl_b32 {s(sW1K)}, {s(sW)}, 10
    """, f"""
    v_lshrrev_b32 {v(t0)}, 5, {v(vL)}
    v_bfe_u32 {v(t1)}, {v(vL)}, 2, 2
    v_lshl_add_u32 {v(t0)}, {v(t0)}, 2, {v(t1)}
    v_lshlrev_b32 {v(t0)}, 7, {v(t0)}
    v_and_b32 {v(t1)}, 1, {v(vL)}
    v_lshl_add_u32 {v(t0)}, {v(t1)}, 5, {v(t0)}
    v_bfe_u32 {v(t1)}, {v(vL)}, 4, 1
    v_lshl_add_u32 {v(t0)}, {v(t1)}, 4, {v(t0)}
    v_bfe_u32 {v(t1)}, {v(vL)}, 1, 1
    v_lshl_add_u32 {v(t0)}, {v(t1)}, 3, {v(t0)}
    v_bfe_u32 {v(t1)}, {v(vL)}, 3, 1
    s_and_b32 {s(sT0)}, {s(sW)}, 1
    v_xor_b32 {v(t1)}, {s(sT0)}, {v(t1)}
    v_lshl_add_u32 {v(vWT+1)}, {v(t1)}, 6, {v(t0)}
    v_add_u32 {v(vWT+1)}, {s(sWB)}, {v(vWT+1)}
    v_xor_b32 {v(vWT)}, 64, {v(vWT+1)}
    s_lshl_b32 {s(sA3)}, {s(sW)}, 15
    s_add_u32 {s(sA3)}, {s(sA3)}, {L.H_OFF}
    s_lshl_b32 {s(sT0)}, {s(sRB)}, 6
    s_lshr_b32 {s(sT2)}, {s(sW)}, 1
    s_lshl_b32 {s(sT2)}, {s(sT2)}, 5
    s_add_u32 {s(sT0)}, {s(sT0)}, {s(sT2)}
    s_lshl_b32 {s(sT0)}, {s(sT0)}, 10
    s_lshl_b32 {s(sT2)}, {s(sCB)}, 7
    s_add_u32 {s(sT0)}, {s(sT0)}, {s(sT2)}
    s_and_b32 {s(sT2)}, {s(sW)}, 1
    s_lshl_b32 {s(sT2)}, {s(sT2)}, 6
    s_add_u32 {s(sT0)}, {s(sT0)}, {s(sT2)}
    v_and_b32 v2, 15, v0
    v_lshlrev_b32 v2, 11, v2
    v_lshrrev_b32 v3, 4, v0
    v_lshl_add_u32 {v(vXA)}, v3, 4, v2
    v_add_u32 {v(vXA)}, {s(sT0)}, {v(vXA)}
    s_lshl_b32 {s(sT0)}, {s(sG)}, 3
    v_mov_b32 {v(vRA)}, {s(sT0)}
    s_and_b32 {s(sT0)}, {s(sRB)}, 1
    s_lshl_b32 {s(sT0)}, {s(sT0)}, 1
    s_lshr_b32 {s(sT1)}, {s(sW)}, 1
    s_add_u32 {s(sT0)}, {s(sT0)}, {s(sT1)}
    s_lshl_b32 {s(sO1)}, {s(sT0)}, 12
    s_lshl_b32 {s(sO0)}, {s(sT0)}, 15
    s_lshl_b32 {s(sT2)}, {s(sCB)}, 1
    s_and_b32 {s(sT3)}, {s(sW)}, 1
    s_add_u32 {s(sT2)}, {s(sT2)}, {s(sT3)}
    s_lshl_b32 {s(sT2)}, {s(sT2)}, 11
    s_add_u32 {s(sO0)}, {s(sO0)}, {s(sT2)}
    s_add_u32 {s(sO0)}, {s(sO0)}, {L.H_OFF}
    s_lshl_b32 {s(sT2)}, {s(sCB)}, 9
    s_add_u32 {s(sO1)}, {s(sO1)}, {s(sT2)}
    s_lshl_b32 {s(sT3)}, {s(sT3)}, 3
    s_add_u32 {s(sO1)}, {s(sO1)}, {s(sT3)}
    s_add_u32 {s(sO1)}, {s(sO1)}, {L.ST_OFF}
    """]
    def wt_dma(SWT, sko, ldsoff, tagname, vWD_):
        return [f"""
        s_lshl_b32 {s(sB0)}, {s(sko)}, 4
        s_add_u32 m0, {s(sWB)}, {ldsoff}
        s_add_u32 {s(sB1)}, {s(sB0)}, 7168
        buffer_load_dwordx4 {v(vWD_)}, {s(SWT,4)}, {s(sB0)} offen lds
        """, f"buffer_load_dwordx4 {v(vWD_)}, {s(SWT,4)}, {s(sB1)} offen offset:1024 lds", ('TAG', tagname)]
    def wt_reads(dst, ldsoff, vWT_):
        return [f"ds_read_b64_tr_b16 {v(dst + 4*k + 2*half, 2)}, {v(vWT_+k)} offset:{ldsoff + half*1024}" for k in range(2) for half in range(2)]
    def wo(j):
        g = wt_dma(SWO, sB0, j*8192, f"wo{j}", vWD)
        g[0] = f"""
        s_add_u32 {s(sB0)}, {s(sR2)}, {j*4096}
        s_and_b32 {s(sB0)}, {s(sB0)}, 32767
        s_add_u32 {s(sB0)}, {s(sB0)}, {s(sW1K)}
        """ + g[0]
        return g
    assert not cfg.touch
    XR = 224
    def one():
        if G._has(): G._one()
    G.bg_on = False
    for i in range(8):
        su = setups[i].strip().split('\n') if i < len(setups) else []
        nd = cfg.ndma if i < 7 else cfg.ndma7
        per = (len(su) + nd - 1) // max(nd, 1)
        for k in range(nd if i != 3 else 5):
            one()
            for ln in su[k*per:(k+1)*per]: G(ln)
        if i == cfg.regi:
            G(f"buffer_load_dwordx2 {v(vFE,2)}, {v(vRA)}, {s(SDBG,4)}, 0 offen offset:128 sc1")
        if i == cfg.hti and cfg.tH:
            G(f"""
            v_and_b32 v2, 15, v0
            v_lshlrev_b32 v2, 7, v2
            buffer_load_dword v250, v2, {s(SWS,4)}, {s(sO0)} offen sc1
            """)
        if i == cfg.hti and cfg.tS:
            G(f"""
            v_and_b32 v2, 3, v0
            v_lshlrev_b32 v2, 7, v2
            v_add_u32 v2, {s(sO1)}, v2
            v_and_b32 v3, 15, v0
            v_lshlrev_b32 v3, 7, v3
            v_add_u32 v3, {L.FL_OFF}, v3
            v_cmp_gt_u32 vcc, 16, v0
            v_cndmask_b32 v2, v2, v3, vcc
            buffer_load_dword v250, v2, {s(SWS,4)}, 0 offen sc1
            """)
        if i == 0:
            G(f"""
            s_mul_i32 {s(sT0)}, {s(sLC)}, {XCH}
            s_lshr_b32 {s(sT1)}, {s(sW)}, 1
            s_lshl_b32 {s(sT1)}, {s(sT1)}, 12
            s_add_u32 {s(sT0)}, {s(sT0)}, {s(sT1)}
            v_and_b32 v2, 31, v0
            v_lshlrev_b32 v3, 7, v2
            v_add_u32 v3, {s(sT0)}, v3
            v_bfe_u32 v2, v0, 1, 3
            v_lshrrev_b32 v4, 5, v0
            v_lshlrev_b32 v4, 1, v4
            s_and_b32 {s(sT1)}, {s(sW)}, 1
            s_lshl_b32 {s(sT1)}, {s(sT1)}, 2
            v_or_b32 v4, {s(sT1)}, v4
            v_xor_b32 v4, v4, v2
            v_lshl_add_u32 v13, v4, 4, v3
            v_xor_b32 v4, 1, v4
            v_lshl_add_u32 v14, v4, 4, v3
            """)
        G.lwait_all()
        A(f"""
        s_cmp_lg_u32 {s(sLC)}, {i}
        s_cbranch_scc1 B_NOXR{i}
        ds_read_b128 {v(XR,4)}, v13
        ds_read_b128 {v(XR+4,4)}, v14
        s_waitcnt lgkmcnt(0)
        """)
        A.label(f"B_NOXR{i}")
        if i == 3:
            regdecode(G, vFE, vRA)
            G(f"""
            v_min_u32 v2, 2, v0
            s_mul_i32 {s(sT0)}, {s(sW)}, 24
            s_add_u32 {s(sT0)}, {s(sT0)}, {STG}
            v_lshlrev_b32 v3, 3, v2
            v_add_u32 v3, {s(sT0)}, v3
            ds_read_b64 v[16:17], v3
            s_mul_i32 {s(sT0)}, {s(sCB)}, 10
            s_mul_i32 {s(sT1)}, {s(sW)}, 3
            s_add_u32 {s(sT0)}, {s(sT0)}, {s(sT1)}
            v_add_u32 v2, {s(sT0)}, v2
            v_min_u32 v2, 79, v2
            v_lshlrev_b32 v2, 4, v2
            s_and_b32 {s(sT4)}, {s(sRB)}, 1
            s_mul_i32 {s(sT4)}, {s(sT4)}, 1280
            s_add_u32 {s(sT4)}, {s(sT4)}, {SG_OFF}
            v_mov_b32 v18, {v(vFE)}
            v_mov_b32 v19, {v(vFE+1)}
            v_min_u32 v20, 19, v0
            s_mul_i32 {s(sT0)}, {s(sW)}, 20
            v_add_u32 v20, {s(sT0)}, v20
            v_lshlrev_b32 v21, 2, v20
            v_add_u32 v21, {STATS1}, v21
            v_lshlrev_b32 v20, 4, v20
            s_mov_b32 {s(sMWL)}, {s(sT4)}
            """)
            stores(G, [f"buffer_store_dwordx4 v[16:19], v2, {s(SWS,4)}, {s(sT4)} offen"], "STG")
            for k in range(nd - 5): one()
        if i == 5:
            G(f"buffer_load_dwordx4 v[24:27], v20, {s(SWS,4)}, {s(sMWL)} offen sc1")
        if cfg.fine == 1: G.stamp(f'd{i}')
        if i == 7: break
        G.wait_tag(f"c{i+1}")
        G.bar(f"c{i+1}")
        if i + 3 < 8: G.bg(dma_chunk(i + 3) + t1w(i + 5))
        if i == 4:
            for j in range(6): G.bg(wo(j))
        if i == 5:
            G.bg(wo(6))
            G.bg(w3_dma(0, W3SLOT[0], vP3))
        if i == 6:
            G.bg(wo(7))
            G.bg(w3_dma(1, W3SLOT[1], vP3))
    G._autowait(Ins("v_mov_b32 v24, v27"))
    G(f"s_mov_b32 {s(sCNT)}, 0")
    A.label("SGPOLL")
    A(f"""
    v_cmp_ne_u64 vcc, v[26:27], {v(vFE,2)}
    s_add_u32 {s(sCNT)}, {s(sCNT)}, 1
    s_cbranch_vccz SGOK
    s_cmp_ge_u32 {s(sCNT)}, 20000
    s_cbranch_scc1 SGOK
    buffer_load_dwordx4 v[24:27], v20, {s(SWS,4)}, {s(sMWL)} offen sc1
    s_waitcnt vmcnt(0)
    s_branch SGPOLL
    """)
    A.label("SGOK")
    G(f"""
    ds_write_b32 v21, v25
    ds_write_b32 v21, v24 offset:512
    """)
    G.lwait_all()
    G.bar('stats')
    G.stamp('p1loop')
    G.bg_on = True
    G.flush()
    G.items(p4_table())
    G(f"""
    v_mov_b32 v11, {v(vL16)}
    v_and_b32 v14, 31, v0
    v_lshlrev_b32 v14, 4, v14
    v_lshrrev_b32 v3, 5, v0
    v_lshl_add_u32 v14, v3, 2, v14
    v_subrev_u32 v12, {s(sWB)}, {v(vWT+1)}
    s_lshr_b32 {s(sT0)}, {s(sW)}, 1
    s_lshl_b32 {s(sT0)}, {s(sT0)}, 15
    v_add_u32 v13, {s(sT0)}, {v(vL16)}
    """)
    G.wait_tag('wo7')
    G.bsync('wo')
    WO = 80
    for q in range(32):
        for half in range(2): G(f"ds_read_b64_tr_b16 {v(WO + 4*q + 2*half, 2)}, v12 offset:{q*2048 + half*1024}")
    XU = 32
    for i in range(8):
        G(f"""
        v_lshlrev_b32 {v(XU+2*i)}, 16, {v(XR+i)}
        v_and_b32 {v(XU+2*i+1)}, 0xffff0000, {v(XR+i)}
        """)
    G.lwait_all()
    G.stamp('pre')
    G.bar('w3a')
    G.stamp('w3a')
    ACC2 = 16
    def red_write(u, reg):
        out = [f"""
        s_xor_b32 {s(sT5)}, {s(sW)}, {3-u}
        s_mul_i32 {s(sT5)}, {s(sT5)}, 12288
        v_add_u32 v10, {s(sT5)}, v11
        """]
        out += [f"ds_write_b128 v10, {v(reg+4*i,4)} offset:{u*4096+i*1024}" for i in range(4)]
        return out
    def red_read(RED, barname):
        out = [f"""
        s_mul_i32 {s(sT5)}, {s(sW)}, 12288
        v_add_u32 v10, {s(sT5)}, v11
        """, ('BSYNC', barname)]
        out += [f"ds_read_b128 {v(RED[i>>2]+4*(i&3),4)}, v10 offset:{i*1024}" for i in range(12)]
        return out
    def final(F, RED, XH, OUTR):
        for i in range(8): G(f"v_pk_add_f32 {v(RED[0]+2*i,2)}, {v(RED[0]+2*i,2)}, {v(RED[1]+2*i,2)}")
        for i in range(8):
            G(f"""
            v_lshlrev_b32 {v(RED[1]+2*i)}, 16, {v(XH+i)}
            v_and_b32 {v(RED[1]+2*i+1)}, 0xffff0000, {v(XH+i)}
            """)
        for i in range(8): G(f"v_pk_add_f32 {v(RED[2]+2*i,2)}, {v(RED[2]+2*i,2)}, {v(RED[1]+2*i,2)}")
        for i in range(8): G(f"v_pk_add_f32 {v(RED[0]+2*i,2)}, {v(RED[0]+2*i,2)}, {v(RED[2]+2*i,2)}")
        for i in range(8): G(f"v_pk_add_f32 {v(F+2*i,2)}, {v(F+2*i,2)}, {v(RED[0]+2*i,2)}")
        for i in range(8): G(f"v_cvt_pk_bf16_f32 {v(OUTR+i)}, {v(F+2*i)}, {v(F+2*i+1)}")
    AB2 = 48; NA2 = 6
    nr2 = 0
    def rd2():
        nonlocal nr2
        if nr2 == 24: G.wait_tag('w3_1')
        if nr2 % 8 == 0: G.bar(f"o_{nr2 // 8}")
        G(f"ds_read_b128 {v(AB2 + 4*(nr2 % NA2), 4)}, v13 offset:{nr2*1024}"); nr2 += 1
    for _ in range(NA2 - 1): rd2()
    G.stamp('poll0')
    for q in range(32):
        G(f"v_mfma_f32_32x32x16_bf16 {v(XU,16)}, {v(WO+4*q,4)}, {v(AB2+4*(q % NA2),4)}, {v(XU,16)}")
        if nr2 < 32: rd2()
    OUTR = 232
    G(f"v_mov_b64 v[16:17], 0\nv_mov_b64 v[18:19], 0")
    for i in range(8): G(f"v_cvt_pk_bf16_f32 {v(OUTR+i)}, {v(XU+2*i)}, {v(XU+2*i+1)}")
    sm, sq = 16, 17
    if cfg.fine == 2: G.stamp('fin')
    stores(G, [f"buffer_store_dwordx4 {v(OUTR,4)}, {v(vL16)}, {s(SWS,4)}, {s(sO0)} offen",
               f"buffer_store_dwordx4 {v(OUTR+4,4)}, {v(vL16)}, {s(SWS,4)}, {s(sO0)} offen offset:1024"], "ST2")
    for i in range(8):
        G(f"v_dot2c_f32_bf16 {v(sm+2*(i&1))}, {s(sONE)}, {v(OUTR+i)}")
        G(f"v_dot2c_f32_bf16 {v(sq+2*(i&1))}, {v(OUTR+i)}, {v(OUTR+i)}")
    G(f"""
    v_add_f32 {v(sm)}, {v(sm)}, {v(sm+2)}
    v_add_f32 {v(sq)}, {v(sq)}, {v(sq+2)}
    v_permlane32_swap_b32 {v(sm)}, {v(sq)}
    v_add_f32 {v(sm)}, {v(sm)}, {v(sq)}
    """)
    stores(G, [f"buffer_store_dword {v(sm)}, v14, {s(SWS,4)}, {s(sO1)} offen"], "ST2B")
    G.stamp('p2')
    signal(G, 1, vFE)
    G.stamp('sig1')
    nP3, nWD, nWT, nXA = 20, 23, 24, 1
    G(f"""
    s_mul_i32 {s(sT0)}, {s(sW)}, {8192 - 2048}
    s_add_u32 {s(sT0)}, {s(sT0)}, {WDT}
    s_add_u32 {s(sWB)}, {s(sWB)}, {s(sT0)}
    v_add_u32 {v(nWT)}, {s(sT0)}, {v(vWT)}
    v_add_u32 {v(nWT+1)}, {s(sT0)}, {v(vWT+1)}
    v_mov_b32 {v(nP3)}, {v(vP3)}
    v_mov_b32 {v(nP3+1)}, {v(vP3+1)}
    v_mov_b32 {v(nP3+2)}, {v(vP3+2)}
    v_mov_b32 {v(nWD)}, {v(vWD)}
    v_mov_b32 {v(nXA)}, {v(vXA)}
    s_mov_b32 {s(SW1)}, {s(SWS)}
    s_mov_b32 {s(SW1+1)}, {s(SWS+1)}
    s_cmp_eq_u32 {s(sM)}, 15
    s_cselect_b32 {s(SW1+2)}, 0, {L.GSTRIDE}
    s_lshl_b32 {s(sT4)}, {s(sW)}, 12
    s_add_u32 {s(sT4)}, {s(sT4)}, {L.ST_OFF}
    """)
    G.sv = (26, 28)
    G('v_mov_b32 v15, v253'); G.vS = 15
    poll(G, 1, vFE)
    G.stamp('poll1')
    def a_dma(c):
        r = (c % 3) * 16384
        g = [f"""
        s_xor_b32 {s(sB0)}, {s(sROT3)}, {lch(c)}
        s_lshl_b32 {s(sB0)}, {s(sB0)}, 12
        s_add_u32 {s(sB0)}, {s(sB0)}, {s(sA3)}
        s_lshl_b32 {s(sB1)}, {s(sW)}, 12
        s_add_u32 m0, {s(sB1)}, {r}
        s_nop 0
        buffer_load_dwordx4 v11, {s(SW1,4)}, {s(sB0)} offen sc1 lds
        """]
        for i in range(1, 4): g.append(f"buffer_load_dwordx4 v11, {s(SW1,4)}, {s(sB0)} offen offset:{1024*i} sc1 lds")
        g.append(('TAG', f"a3_{c}"))
        return g
    a1 = a_dma(1)
    G.items(a_dma(0) + a1[:2])
    G.wait_tag('a3_0')
    G.bar('a3_0')
    G.stamp('a3_0')
    G.items(a1[2:] + a_dma(2))
    SL = 32
    for i in range(4): G(f"buffer_load_dwordx4 {v(SL+4*i,4)}, v11, {s(SWS,4)}, {s(sT4)} offen offset:{1024*i} sc1")
    for l in PFORD[cfg.npf:]: G.items(w3_dma(l, W3SLOT[l], nP3))
    NR = 4
    WD_SLOT = [80 + 8*j for j in range(22)]
    wd = lambda j: wt_dma(SWD, sKO + j, (j % NR) * 2048, f"wd_{j}", nWD)
    wd_issue_period = {}
    st3 = []
    for i in range(4): st3.append(f"v_add_f32 {v(SL+4*i)}, {v(SL+4*i)}, {v(SL+4*i+2)}\nv_add_f32 {v(SL+4*i+1)}, {v(SL+4*i+1)}, {v(SL+4*i+3)}")
    st3.append(f"""
    v_add_f32 {v(SL)}, {v(SL)}, {v(SL+4)}
    v_add_f32 {v(SL+1)}, {v(SL+1)}, {v(SL+5)}
    v_add_f32 {v(SL+8)}, {v(SL+8)}, {v(SL+12)}
    v_add_f32 {v(SL+9)}, {v(SL+9)}, {v(SL+13)}
    v_add_f32 {v(SL)}, {v(SL)}, {v(SL+8)}
    v_add_f32 {v(SL+1)}, {v(SL+1)}, {v(SL+9)}
    v_mov_b32 {v(SL+2)}, {v(SL)}
    v_mov_b32 {v(SL+3)}, {v(SL+1)}
    v_permlane32_swap_b32 {v(SL)}, {v(SL+2)}
    v_permlane32_swap_b32 {v(SL+1)}, {v(SL+3)}
    v_add_f32 {v(SL)}, {v(SL)}, {v(SL+2)}
    v_add_f32 {v(SL+1)}, {v(SL+1)}, {v(SL+3)}
    v_mul_f32 {v(SL)}, 0x3b000000, {v(SL)}
    v_mul_f32 {v(SL+1)}, 0x3b000000, {v(SL+1)}
    v_fma_f32 {v(SL+1)}, -{v(SL)}, {v(SL)}, {v(SL+1)}
    v_max_f32 {v(SL+1)}, 0, {v(SL+1)}
    v_add_f32 {v(SL+1)}, 0x3727c5ac, {v(SL+1)}
    v_rcp_f32 {v(SL+1)}, {v(SL+1)}
    v_sub_f32 {v(SL)}, 0, {v(SL)}
    s_lshl_b32 {s(sT5)}, {s(sW)}, 8
    s_add_u32 {s(sT5)}, {s(sT5)}, {STATS3}
    v_and_b32 v2, 31, v0
    v_lshlrev_b32 v2, 3, v2
    v_add_u32 v2, {s(sT5)}, v2
    ds_write_b64 v2, {v(SL,2)}
    """)
    G.items(st3)
    wd_next = 0; wd_iss = 0
    def wd_cycle(period, force=False):
        nonlocal wd_next, wd_iss
        did = []
        while wd_next < wd_iss:
            j = wd_next
            lead = 2 if j < NR else 1
            if not force and period - wd_issue_period[j] < lead: break
            G.wait_tag(f"wd_{j}")
            for x in wt_reads(WD_SLOT[j], (j % NR) * 2048, nWT): G(x)
            did.append(j); wd_next += 1
        if did:
            G.lwait_all()
            for j in did:
                if wd_iss < 22:
                    G.items(wd(wd_iss)); wd_issue_period[wd_iss] = period; wd_iss += 1
    for c in range(7):
        st = 4*c + 3
        G.wait_tag(f"a3_{c+1}")
        for l, b in W3BAR.items():
            if b == st and f"w3_{l}" in G.tags: G.wait_tag(f"w3_{l}")
        G.lwait_all()
        G.bar(f'p3_{st}')
        if c + 3 < 8: G.items(a_dma(c + 3))
        heavy = False
        for l in (5, 6, 7):
            if 4*(l-5) + 3 == st: G.items(w3_dma(l, W3SLOT[l], nP3)); heavy = True
        if c == cfg.wd0:
            for j in range(NR): G.items(wd(j)); wd_issue_period[j] = c + 1
            wd_iss = NR
        elif not (heavy and cfg.skipwd): wd_cycle(c + 1)
    G.stamp('p3ld')
    while wd_next < 22: wd_cycle(99, force=True)
    G.lwait_all()
    G.stamp('wd')
    G.sv = (15, 8)
    G(f"""
    s_mul_i32 {s(sT0)}, {s(sW)}, 24576
    s_add_u32 {s(sT0)}, {s(sT0)}, {RING4}
    v_add_u32 v12, {s(sT0)}, v11
    """)
    G.bar('p4start')
    U = [16, 32, 48, 16]
    AB = 64; NAB = 4
    n = 22; skew = cfg.skew
    ops = []
    for j in range(n): ops += [(0, 0, j, j, True), (1, 1, j, j, False)]
    for j in range(n - 3):
        ops.append((2, 0, j, 22 + j, True))
        if j >= skew: ops.append((3, 1, j, 22 + j, False))
        if skew <= j < 2*skew: ops.append((3, 1, j - skew, 22 + j - skew, True))
    for j in range(n - 3, n): ops.append((2, 0, j, 22 + j, True))
    for j in range(n - 3, n): ops.append((3, 1, j, 22 + j, 'keep'))
    rd_list = [(k, o[3]) for k, o in enumerate(ops) if o[4] is True]
    slot_of = {}
    for r, (k, q) in enumerate(rd_list): slot_of[k] = r % NAB
    for k, o in enumerate(ops):
        if o[4] is False: slot_of[k] = slot_of[k-1]
        if o[4] == 'keep': slot_of[k] = slot_of[k-3]
    barred = -1
    nr = 0
    def issue_read():
        nonlocal nr, barred
        k, q = rd_list[nr]
        while barred < q // 4:
            barred += 1
            G.lwait_all() if False else None
            G.bar(f"p4_{barred}")
        G(f"ds_read_b128 {v(AB + 4*(nr % NAB), 4)}, v12 offset:{(q % 24) * 1024}")
        nr += 1
    RED = [80, 96, 112]
    XH = 128; OUTR = 136
    assert skew <= 6
    extra = {}
    w0 = red_write(0, U[0])
    extra.setdefault(2*n, []).extend(w0[:2]); extra.setdefault(2*n + 1, []).append(w0[2]); extra.setdefault(2*n + 2, []).append(w0[3]); extra.setdefault(2*n + 3, []).append(w0[4])
    i = 2*n + skew + 2
    for it in red_write(1, U[1]): extra.setdefault(i, []).append(it); i += 2
    last2 = max(k for k, o in enumerate(ops) if o[0] == 2)
    w2 = red_write(2, U[2])
    extra.setdefault(last2 + 1, []).extend(w2[:3]); extra.setdefault(last2 + 2, []).extend(w2[3:])
    assert last2 + 3 == len(ops) - 1
    rr = red_read(RED, 'red4')
    extra.setdefault(last2 + 3, []).extend(rr[:2] + rr[10:])
    e0 = last2 - 13
    assert all(not (o[0] == 3 and o[2] < 8) for o in ops[e0-2:]), 'slots still live'
    extra.setdefault(e0 - 2, []).append(f"""
    buffer_load_dwordx4 {v(XH,4)}, v11, {s(SWS,4)}, {s(sO0)} offen sc1
    buffer_load_dwordx4 {v(XH+4,4)}, v11, {s(SWS,4)}, {s(sO0)} offen offset:1024 sc1
    """)
    extra.setdefault(e0, []).extend([rr[0], ('BSYNC', 'red4a')] + rr[2:10])
    pre = [f"v_add_f32 {v(RED[0]+i)}, {v(RED[0]+i)}, {v(RED[1]+i)}" for i in range(16)]
    for i in range(8): pre += [f"v_lshlrev_b32 {v(RED[1]+2*i)}, 16, {v(XH+i)}", f"v_and_b32 {v(RED[1]+2*i+1)}, 0xffff0000, {v(XH+i)}"]
    pre += [f"v_add_f32 {v(RED[0]+i)}, {v(RED[0]+i)}, {v(RED[1]+i)}" for i in range(16)]
    for i, x in enumerate(pre): extra.setdefault(e0 + 2 + i // 4, []).append(x)
    for _ in range(NAB - 1): issue_read()
    G.stamp('p4_0')
    rdone = 0
    for k, (u, cs, j, q, fresh) in enumerate(ops):
        if u == 3 and j == skew: G.lwait(G.w0idx)
        G(f"v_mfma_f32_32x32x16_bf16 {v(U[u],16)}, {v(WD_SLOT[j]+4*cs,4)}, {v(AB+4*slot_of[k],4)}, {'0' if j == (skew if u == 3 else 0) else v(U[u],16)}")
        if fresh is True: rdone += 1
        nxt_fresh = (k + 1 == len(ops)) or (ops[k+1][4] is not False)
        while nr < len(rd_list) and nr - NAB < rdone - (0 if nxt_fresh else 1): issue_read()
        G.items(extra.get(k, []))
        if k == 2*n + 3: G.w0idx = G.lg
    for i in range(8): G(f"v_pk_add_f32 {v(RED[0]+2*i,2)}, {v(RED[0]+2*i,2)}, {v(RED[2]+2*i,2)}")
    for i in range(8): G(f"v_pk_add_f32 {v(U[3]+2*i,2)}, {v(U[3]+2*i,2)}, {v(RED[0]+2*i,2)}")
    for i in range(8): G(f"v_cvt_pk_bf16_f32 {v(OUTR+i)}, {v(U[3]+2*i)}, {v(U[3]+2*i+1)}")
    for i in range(4): G(f"v_permlane16_swap_b32 {v(OUTR+i)}, {v(OUTR+4+i)}")
    G(f"""
    buffer_store_dwordx4 {v(OUTR,4)}, {v(nXA)}, {s(SOUT,4)}, 0 offen
    buffer_store_dwordx4 {v(OUTR+4,4)}, {v(nXA)}, {s(SOUT,4)}, 0 offen offset:1024
    """)
    G.stamp('end')

def main(path, cfg):
    A = Asm()
    A.raw(HDR.rstrip('\n'))
    A.raw(f"; @launch grid=(256,1,1) block=(512,1,1) lds={LDS_TOTAL}")
    A.raw('.amdgcn_target "amdgcn-amd-amdhsa--gfx950"\n.text')
    n = NAME + "_kernel"
    A.raw(f".globl {n}\n.p2align 8\n.type {n},@function\n{n}:")
    A(f"""
    s_cmp_ge_u32 s2, 256
    s_cbranch_scc1 K_END
    s_load_dwordx16 s[64:79], s[0:1], 0
    s_load_dwordx4 s[80:83], s[0:1], 64
    s_memrealtime {s(sTS,2)}
    s_getreg_b32 {s(sXCC)}, hwreg(HW_REG_XCC_ID, 0, 4)
    v_lshrrev_b32 v1, 6, v0
    v_and_b32 v0, 63, v0
    v_readfirstlane_b32 {s(sW8)}, v1
    s_and_b32 {s(sXCD)}, s2, 7
    s_lshr_b32 {s(sIDX)}, s2, 3
    s_lshr_b32 {s(sRBL)}, {s(sIDX)}, 3
    s_and_b32 {s(sCB)}, {s(sIDX)}, 7
    s_lshl_b32 {s(sRB)}, {s(sXCD)}, 2
    s_add_u32 {s(sRB)}, {s(sRB)}, {s(sRBL)}
    s_and_b32 {s(sM)}, {s(sIDX)}, 15
    s_lshr_b32 {s(sG)}, {s(sRB)}, 1
    s_mov_b32 {s(sONE)}, 0x3f803f80
    s_and_b32 {s(sW)}, {s(sW8)}, 3
    s_cmp_lt_u32 {s(sW8)}, 4
    s_cbranch_scc1 PROG_A
    """)
    def pad(G):
        if not G.probed: return
        A(f"s_add_u32 s36, s36, 4000")
        A.label(G.pfx + "PADL")
        A(f"""
        s_memrealtime s[50:51]
        s_waitcnt lgkmcnt(0)
        s_sub_u32 s50, s50, s36
        s_cmp_lt_i32 s50, 0
        s_cbranch_scc1 {G.pfx}PADL
        """)
    GB = Gen(cfg, A, "B_"); prog_b(GB); pad(GB)
    A("s_endpgm")
    A.label("PROG_A")
    GA = Gen(cfg, A, "A_"); prog_a(GA); pad(GA)
    A.label("K_END")
    A("s_endpgm")
    assert GA.bars == GB.bars, (GA.bars, GB.bars)
    A.raw('.section .rodata,"a"\n.p2align 6')
    A.raw(f""".amdhsa_kernel {n}
  .amdhsa_next_free_vgpr 256
  .amdhsa_next_free_sgpr 102
  .amdhsa_accum_offset 256
  .amdhsa_group_segment_fixed_size 0
  .amdhsa_kernarg_size 80
  .amdhsa_user_sgpr_count 2
  .amdhsa_user_sgpr_kernarg_segment_ptr 1
  .amdhsa_system_sgpr_workgroup_id_x 1
.end_amdhsa_kernel""")
    open(path, 'w').write(A.finalize())
    print("barriers:", len(GA.bars)); print("stampsA:", GA.names); print("stampsB:", GB.names)

if __name__ == '__main__':
    cfg = Cfg()
    for a_ in sys.argv[2:]:
        k, val = a_.split('=')
        setattr(cfg, k, val if k == 'probe' else int(val))
    main(sys.argv[1], cfg)
```
